```python
import torch

def _softmax(x, axis=-1):
    return torch.softmax(x, dim=axis)
def _gelu(x):
    return torch.nn.functional.gelu(x, approximate="tanh")
def _silu(x):
    return torch.nn.functional.silu(x)
def _sigmoid(x):
    return torch.sigmoid(x)
def _layernorm(x, axis=-1, eps=1e-5):
    m = x.mean(dim=axis, keepdim=True)
    v = x.var(dim=axis, keepdim=True, unbiased=False)
    return (x - m) / torch.sqrt(v + eps)
def _scatter_add(tgt, idx, src, axis=0):
    return tgt.clone().index_add_(axis, idx, src)
def _segment_sum(src, seg, n):
    out = torch.zeros((n,) + src.shape[1:], dtype=src.dtype)
    return out.index_add_(0, seg, src)
def _pad(x, pw):
    flat = tuple(v for pair in reversed(pw) for v in pair)
    return torch.nn.functional.pad(x, flat)

kernel_name = 'sequential_preLN__sliding_block_cached__swiglu_ffn__decode'

def setup_inputs():

    _w = (lambda a: (lambda t: t.to(torch.bfloat16) if t.is_floating_point() else t)(torch.as_tensor(a)))
    def _A_setup():
        B, Sq, D = 2, 1, 640
        Hq, Hkv, Sk, Dh = 32, 32, 4096, 128
        assert Hq % Hkv == 0, (Hq, Hkv)
        return {
            "x": _w((lambda *s: torch.randn(*s, dtype=torch.bfloat16) * 0.05)(B, Sq, D)),
            "k_cache": _w((lambda *s: torch.randn(*s, dtype=torch.bfloat16) * 3.2)(B, Hkv, Sk, Dh)),
            "v_cache": _w((lambda *s: torch.randn(*s, dtype=torch.bfloat16) * 0.4)(B, Hkv, Sk, Dh)),
            "wq": _w((lambda *s: torch.randn(*s, dtype=torch.bfloat16) * 3.2)(D, Hq * Dh) * (D ** -0.5)),
            "wo": _w((lambda *s: torch.randn(*s, dtype=torch.bfloat16) * 0.4)(Hq * Dh, D) * ((Hq * Dh) ** -0.5)),
        }
    _A_in = _A_setup()

    def _B_setup():
        B, S, D, F = 2, 1, 640, 1728
        return {
            "x": _w((lambda *s: torch.randn(*s, dtype=torch.bfloat16) * 0.05)(B, S, D)),
            "w_gate": _w((lambda *s: torch.randn(*s, dtype=torch.bfloat16) * 0.05)(D, F)),
            "w_up": _w((lambda *s: torch.randn(*s, dtype=torch.bfloat16) * 0.05)(D, F)),
            "w_down": _w((lambda *s: torch.randn(*s, dtype=torch.bfloat16) * 0.05)(F, D)),
        }
    _B_in = _B_setup()

    return {
        "A_x": _A_in["x"],
        "A_k_cache": _A_in["k_cache"],
        "A_v_cache": _A_in["v_cache"],
        "A_wq": _A_in["wq"],
        "A_wo": _A_in["wo"],
        "B_x": _B_in["x"],
        "B_w_gate": _B_in["w_gate"],
        "B_w_up": _B_in["w_up"],
        "B_w_down": _B_in["w_down"],
    }

def reference(A_x, A_k_cache, A_v_cache, A_wq, A_wo, B_x, B_w_gate, B_w_up, B_w_down):
    def _A_ref(x, k_cache, v_cache, wq, wo):
        B, Sq, D = x.shape
        Hq, Dh = 32, 128
        Hkv, Sk = k_cache.shape[1], k_cache.shape[2]
        W = min(4096, max(256, Sk // 4))
        rep = Hq // Hkv
        q = (lambda x, *d: x.permute(*d))((x @ wq).reshape(B, Sq, Hq, Dh), 0, 2, 1, 3)
        k = (lambda x, n, axis: torch.repeat_interleave(x, n, dim=axis))(k_cache[:, :, Sk - W:, :], rep, axis=1)
        v = (lambda x, n, axis: torch.repeat_interleave(x, n, dim=axis))(v_cache[:, :, Sk - W:, :], rep, axis=1)
        scores = torch.einsum("bhqd,bhkd->bhqk", q, k) * (Dh ** -0.5)
        p = _softmax(scores, axis=-1)
        o = torch.einsum("bhqk,bhkd->bhqd", p, v)
        return (lambda x, *d: x.permute(*d))(o, 0, 2, 1, 3).reshape(B, Sq, Hq * Dh) @ wo

    def _B_ref(x, w_gate, w_up, w_down):
        g = _silu(x @ w_gate)
        u = x @ w_up
        return (g * u) @ w_down

    x = A_x
    h = x + _A_ref(_layernorm(x, axis=-1), A_k_cache, A_v_cache, A_wq, A_wo)
    h2 = h + _B_ref(_layernorm(h, axis=-1), B_w_gate, B_w_up, B_w_down)
    return h2
```

```python
import re

_REG = re.compile(r'\b([vsa])(?:(\d+)|\[(\d+):(\d+)\])')
TRANS = ('v_exp_f32', 'v_log_f32', 'v_rcp_f32', 'v_rsq_f32', 'v_sqrt_f32', 'v_sin_f32', 'v_cos_f32')


def regs(tok):
    out = []
    for m in _REG.finditer(tok):
        k = m.group(1)
        if m.group(2) is not None:
            out.append((k, int(m.group(2))))
        else:
            out += [(k, i) for i in range(int(m.group(3)), int(m.group(4)) + 1)]
    if re.search(r'\bvcc\b', tok):
        out += [('s', 106), ('s', 107)]
    return out


def split_ops(s):
    ops, depth, cur = [], 0, ''
    for ch in s:
        if ch in '[(':
            depth += 1
        if ch in '])':
            depth -= 1
        if ch == ',' and depth == 0:
            ops.append(cur.strip())
            cur = ''
        else:
            cur += ch
    if cur.strip():
        ops.append(cur.strip())
    return ops


class Asm:
    def __init__(self):
        self.lines = []
        self.t = 0
        self.reset()
        self.nlabel = 0

    def reset(self):
        self.valu_w = {}
        self.trans_w = {}
        self.mfma_w = {}
        self.mfma_c = {}
        self.valu_sw = {}
        self.store_d = {}
        self.m0_w = -100

    def raw(self, s):
        self.lines.append(s)

    def comment(self, s):
        self.lines.append('    ; ' + s)

    def label(self, name):
        self.lines.append(name + ':')

    def newlabel(self, base='L'):
        self.nlabel += 1
        return '%s_%d' % (base, self.nlabel)

    def nop(self, n):
        while n > 0:
            k = min(n, 16)
            self.lines.append('    s_nop %d' % (k - 1))
            self.t += k
            n -= k

    def __call__(self, s):
        for ln in s.strip().split('\n'):
            ln = ln.split(';')[0].strip()
            if ln:
                self.emit(ln)

    def emit(self, ln):
        parts = ln.split(None, 1)
        mn = parts[0]
        rest = parts[1] if len(parts) > 1 else ''
        ops = split_ops(rest)
        if ops:
            last = ops[-1].split()
            mods = ' '.join(last[1:])
            ops[-1] = last[0]
        else:
            mods = ''
        is_mfma = mn.startswith('v_mfma')
        is_valu = mn.startswith('v_') and not is_mfma
        is_dpp = mn.endswith('_dpp')
        is_perml = mn.startswith('v_permlane')
        is_rl = mn.startswith('v_readlane') or mn.startswith('v_readfirstlane')
        is_vmem = mn.startswith(('global_', 'buffer_', 'flat_'))
        is_ds = mn.startswith('ds_')
        is_store = is_vmem and ('store' in mn or 'atomic' in mn)
        is_lds_dma = is_vmem and ('_lds_' in mn or ' lds' in (' ' + mods))
        dst, src = [], []
        if is_mfma or is_valu:
            dst = regs(ops[0])
            src = [r for o in ops[1:] for r in regs(o)]
            if mn.startswith(('v_add_co', 'v_addc_co', 'v_sub_co', 'v_subb_co')):
                dst += regs(ops[1])
                src = [r for o in ops[2:] for r in regs(o)]
            if mn.startswith(('v_fmac', 'v_dot2c', 'v_writelane')) or is_dpp:
                src += regs(ops[0])
            if is_perml:
                dst = regs(ops[0]) + regs(ops[1])
                src = list(dst)
            if mn.startswith('v_cndmask') and len(ops) == 3:
                src += [('s', 106), ('s', 107)]
        elif is_vmem:
            if is_store or is_lds_dma:
                src = [r for o in ops for r in regs(o)]
            else:
                dst = regs(ops[0])
                src = [r for o in ops[1:] for r in regs(o)]
        elif is_ds:
            if mn.startswith(('ds_read', 'ds_bpermute', 'ds_permute', 'ds_swizzle')):
                dst = regs(ops[0])
                src = [r for o in ops[1:] for r in regs(o)]
            else:
                src = [r for o in ops for r in regs(o)]
        need = 0

        def req(table, r, n):
            nonlocal need
            if r in table:
                need = max(need, n - (self.t - table[r] - 1))

        vs = [r for r in src if r[0] == 'v']
        ss = [r for r in src if r[0] == 's']
        vd = [r for r in dst if r[0] == 'v']
        if is_mfma:
            ab = regs(ops[1]) + regs(ops[2])
            c = regs(ops[3])
            for r in ab + c:
                req(self.valu_w, r, 2)
            for r in ab:
                req(self.mfma_w, r, 8)
            if c and c != dst:
                for r in c:
                    req(self.mfma_w, r, 8)
            if c != dst:
                for r in dst:
                    req(self.mfma_w, r, 8)
        if is_valu:
            for r in vs + vd:
                req(self.mfma_w, r, 8)
            for r in vd:
                req(self.mfma_c, r, 3)
                req(self.store_d, r, 2)
            if not mn.startswith(TRANS):
                for r in vs:
                    req(self.trans_w, r, 1)
            else:
                for r in vs:
                    req(self.trans_w, r, 1)
            if is_dpp:
                for r in regs(ops[1]):
                    req(self.valu_w, r, 2)
            if is_perml:
                for r in vs:
                    req(self.valu_w, r, 2)
            if is_rl:
                for r in vs:
                    req(self.valu_w, r, 1)
                for r in ss:
                    req(self.valu_sw, r, 4)
            for r in ss:
                req(self.valu_sw, r, 2)
        if is_vmem or is_ds:
            for r in vs + vd:
                req(self.mfma_w, r, 8)
            for r in vs:
                req(self.trans_w, r, 1)
            for r in vd:
                req(self.store_d, r, 2)
                req(self.mfma_c, r, 3)
            if is_vmem:
                for r in ss:
                    req(self.valu_sw, r, 5)
            if is_lds_dma:
                need = max(need, 1 - (self.t - self.m0_w - 1))
        if need > 0:
            self.nop(need)
        self.lines.append('    ' + ln)
        now = self.t
        self.t += 1
        if mn == 's_nop':
            self.t += int(ops[0])
        if is_valu:
            for r in dst:
                if r[0] == 'v':
                    self.valu_w[r] = now
                    self.mfma_w.pop(r, None)
                    if mn.startswith(TRANS):
                        self.trans_w[r] = now
                    else:
                        self.trans_w.pop(r, None)
                else:
                    self.valu_sw[r] = now
        if is_mfma:
            for r in dst:
                self.mfma_w[r] = now
                self.valu_w.pop(r, None)
            for r in regs(ops[3]):
                self.mfma_c[r] = now
        if is_store and ('x4' in mn or 'x3' in mn):
            for r in regs(ops[1]) + regs(ops[0]):
                if r[0] == 'v':
                    self.store_d[r] = now
        if mn.startswith('s_') and ops and ops[0] == 'm0':
            self.m0_w = now

    def text(self):
        return '\n'.join(self.lines) + '\n'
```

```python
import struct
import sys
from asmlib import Asm

NAME = 'sequential_preLN__sliding_block_cached__swiglu_ffn__decode'


def f2u(x):
    return struct.unpack('<I', struct.pack('<f', x))[0]


EPOCH = 0
QP = 0x1000
OP = 0x100000
YP = 0x180000
GP = 0x200000
CP = 0x300000
SP = 0x380000
DP = 0x400000
TS = 0x600000

WO_LDS = 0
XN_LDS = 20480
Q_LDS = 25600
MX_LDS = 25856
O_LDS = 25984
H_LDS = O_LDS + 528 + 16
ZERO_BYTES = 528 + 16 + 256
O2_LDS = H_LDS + 256
LDS_BYTES = 27648

sWID, sX, sI, sH, sJ8, sB, sJ, sAW = 's3', 's4', 's5', 's6', 's7', 's8', 's9', 's10'
sTAG = 's11'
sT = ['s12', 's13', 's14', 's15']
pX, pK, pV, pWQ, pWO, pWG, pWU = 16, 18, 20, 22, 24, 28, 30
pWD, pOUT, pDBG, pWS = 32, 34, 36, 38
sSEL = 's53'
sSPIN = 's52'
sXCC = 's54'
sC0, sC1, sC2 = 's55', 's56', 's57'
HIROWS = 's[58:59]'
SPIN_MAX = 200000


def sp(n):
    return 's[%d:%d]' % (n, n + 1)


def v4(n):
    return 'v[%d:%d]' % (n, n + 3)


def v2(n):
    return 'v[%d:%d]' % (n, n + 1)


class Gen:
    def __init__(self, stamps=False, nt=True, opts=None):
        self.a = Asm()
        self.stamps = stamps
        self.nt = ' nt' if nt else ''
        self.opts = opts or {}

    def stamp(self, k):
        if self.stamps:
            self.a('s_memrealtime %s' % sp(60 + 2 * k))

    def end_wave(self):
        a = self.a
        if self.stamps:
            a('s_mov_b64 exec, -1')
            self.stamp(15)
            a('s_waitcnt lgkmcnt(0)')
            a('v_mov_b32 v120, 0')
            for k in range(16):
                a('v_writelane_b32 v120, s%d, %d' % (60 + 2 * k, k))
            a('s_mul_i32 s44, s2, 9')
            a('s_add_u32 s44, s44, %s' % sWID)
            a('s_lshl_b32 s44, s44, 6')
            a('s_add_u32 s44, s44, %d' % TS)
            a('v_lshlrev_b32 v121, 2, v0')
            a('v_add_u32 v121, s44, v121')
            a('s_mov_b64 exec, 0xffff')
            a('global_store_dword v121, v120, %s' % sp(pWS))
        a('s_endpgm')

    def tag4(self, base):
        for k in range(4):
            self.a('v_and_or_b32 v%d, v%d, v7, %s' % (base + k, base + k, sT[k]))

    def check4(self, base, t0, t1, first, mask=None):
        a = self.a
        a('v_perm_b32 v%d, v%d, v%d, %s' % (t0, base + 1, base, sSEL))
        a('v_perm_b32 v%d, v%d, v%d, %s' % (t1, base + 3, base + 2, sSEL))
        a('v_lshl_or_b32 v%d, v%d, 16, v%d' % (t0, t1, t0))
        self.check1(t0, first, mask)

    def check1(self, reg, first, mask=None):
        a = self.a
        if first and mask is None:
            a('v_cmp_ne_u32 s[48:49], %s, v%d' % (sTAG, reg))
        else:
            a('v_cmp_ne_u32 s[50:51], %s, v%d' % (sTAG, reg))
            if mask is not None:
                a('s_and_b64 s[50:51], s[50:51], %s' % mask)
            if first:
                a('s_mov_b64 s[48:49], s[50:51]')
            else:
                a('s_or_b64 s[48:49], s[48:49], s[50:51]')

    def poll(self, loads, checks):
        a = self.a
        top = a.newlabel('L_poll')
        done = a.newlabel('L_pdone')
        a('s_mov_b32 %s, %d' % (sSPIN, SPIN_MAX))
        a.label(top)
        loads()
        a('s_waitcnt vmcnt(0)')
        checks()
        a('s_cmp_eq_u64 s[48:49], 0')
        a('s_cbranch_scc1 %s' % done)
        a('s_sub_u32 %s, %s, 1' % (sSPIN, sSPIN))
        a('s_cmp_lg_u32 %s, 0' % sSPIN)
        a('s_cbranch_scc1 %s' % top)
        a.label(done)

    def allreduce(self, rs, tmps, op='add', steps=('x1', 'x2', 'r4', 'r8', 'p16')):
        a = self.a
        dpp = {'x1': 'quad_perm:[1,0,3,2]', 'x2': 'quad_perm:[2,3,0,1]', 'r4': 'row_ror:4',
               'r8': 'row_ror:8', 'hm': 'row_half_mirror'}
        for st in steps:
            if st in dpp:
                for r in rs:
                    a('v_%s_f32_dpp v%d, v%d, v%d %s row_mask:0xf bank_mask:0xf' % (op, r, r, r, dpp[st]))
            else:
                ins = 'v_permlane16_swap_b32' if st == 'p16' else 'v_permlane32_swap_b32'
                for r, t in zip(rs, tmps):
                    a('v_mov_b32 v%d, v%d' % (t, r))
                for r, t in zip(rs, tmps):
                    a('%s v%d, v%d' % (ins, r, t))
                for r, t in zip(rs, tmps):
                    a('v_%s_f32 v%d, v%d, v%d' % (op, r, r, t))

    def sparse(self, dst, src):
        for k in range(4):
            self.a('v_and_b32 v%d, v%d, v%d' % (dst + k, src, 3 + k))

    def barrier(self):
        self.a('s_barrier')

    def prologue(self):
        a = self.a
        a('s_cmp_ge_u32 s2, 256')
        a('s_cbranch_scc1 L_exit')
        a('s_load_dwordx16 s[16:31], s[0:1], 0')
        a('s_load_dwordx8 s[32:39], s[0:1], 64')
        if self.stamps:
            for k in range(1, 16):
                a('s_mov_b64 %s, 0' % sp(60 + 2 * k))
        self.stamp(0)
        a('v_lshrrev_b32 v1, 6, v0')
        a('v_and_b32 v0, 63, v0')
        a('v_readfirstlane_b32 %s, v1' % sWID)
        a('s_and_b32 %s, s2, 7' % sX)
        a('s_lshr_b32 %s, s2, 3' % sI)
        a('s_and_b32 %s, %s, 3' % (sH, sI))
        a('s_lshl_b32 s44, %s, 2' % sX)
        a('s_add_u32 %s, %s, s44' % (sH, sH))
        a('s_lshr_b32 %s, %s, 2' % (sJ8, sI))
        a('s_lshr_b32 %s, %s, 2' % (sB, sJ8))
        a('s_and_b32 %s, %s, 3' % (sJ, sJ8))
        a('v_and_b32 v1, 15, v0')
        a('v_lshrrev_b32 v2, 4, v0')
        a('s_sub_u32 %s, %s, 1' % (sAW, sWID))
        a('s_cmp_eq_u32 %s, 0' % sWID)
        a('s_cbranch_scc1 L_comm')
        a('s_cmp_lt_u32 %s, 5' % sWID)
        a('s_cbranch_scc1 L_attA')
        a('s_cmp_eq_u32 %s, 5' % sWID)
        a('s_cbranch_scc1 L_attB4')
        a('s_branch L_attB')

    def consts(self):
        a = self.a
        a('v_and_b32 v8, 7, v0')
        a('v_and_b32 v9, 1, v8')
        a('v_cmp_eq_u32 vcc, 1, v9')
        a('v_mov_b32 v9, 0xffff')
        a('v_mov_b32 v10, 0xffff0000')
        a('v_cndmask_b32 v9, v9, v10, vcc')
        a('v_lshrrev_b32 v8, 1, v8')
        for k in range(4):
            a('v_cmp_eq_u32 vcc, %d, v8' % k)
            a('v_cndmask_b32 v%d, 0, v9, vcc' % (3 + k))
        a('v_mov_b32 v7, 0xffffff00')
        a('s_mov_b32 %s, 0x0c0c0400' % sSEL)
        a('s_mov_b32 s58, 0xff00ff00')
        a('s_mov_b32 s59, 0xff00ff00')

    def tagcalc(self):
        a = self.a
        a('s_mul_i32 %s, %s, 0x9e3779b1' % (sTAG, sTAG))
        a('s_add_u32 %s, %s, 0x7f4a7c15' % (sTAG, sTAG))
        a('s_and_b32 %s, %s, 0xff' % (sT[0], sTAG))
        a('s_bfe_u32 %s, %s, 0x80008' % (sT[1], sTAG))
        a('s_bfe_u32 %s, %s, 0x80010' % (sT[2], sTAG))
        a('s_lshr_b32 %s, %s, 24' % (sT[3], sTAG))

    def load_xs(self, c5_sgpr, dst):
        a = self.a
        a('s_mul_i32 s44, %s, 40' % sI)
        a('s_lshl_b32 s45, %s, 3' % c5_sgpr)
        a('s_add_u32 s44, s44, s45')
        a('v_lshrrev_b32 v8, 5, v0')
        a('v_mul_u32_u24 v8, 1280, v8')
        a('v_add_u32 v8, s44, v8')
        a('global_load_dwordx2 %s, v8, %s' % (v2(dst), sp(pX)))

    def comm(self):
        a = self.a
        a.label('L_comm')
        a.reset()
        a('s_setprio 3')
        XR = 96
        WQ = 16
        XS = 14
        a('v_lshrrev_b32 v8, 5, v0')
        a('v_and_b32 v9, 31, v0')
        a('v_mul_u32_u24 v10, 1280, v8')
        a('v_mul_u32_u24 v11, 40, v9')
        a('v_add_u32 v10, v10, v11')
        a('s_mul_i32 s44, %s, %d' % (sJ8, 80 * 8192))
        a('s_lshl_b32 s45, %s, 8' % sH)
        a('s_add_u32 s44, s44, s45')
        a('v_mul_u32_u24 v12, %d, v2' % (20 * 8192))
        a('v_lshl_add_u32 v12, v1, 4, v12')
        a('v_add_u32 v12, s44, v12')
        a('s_waitcnt lgkmcnt(0)')
        a('s_load_dword %s, %s, %d' % (sTAG, sp(pWS), EPOCH))
        a('global_load_dwordx4 %s, v10, %s' % (v4(XR), sp(pX)))
        a('global_load_dwordx4 %s, v10, %s offset:16' % (v4(XR + 4), sp(pX)))
        a('global_load_dwordx2 %s, v10, %s offset:32' % (v2(XR + 8), sp(pX)))
        for n in range(20):
            a('global_load_dwordx4 %s, v12, %s%s' % (v4(WQ + 4 * n), sp(pWQ), self.nt))
            if n < 19:
                a('v_add_u32 v12, 8192, v12')
        a('s_mov_b32 %s, 4' % sC0)
        self.load_xs(sC0, XS)
        self.stamp(1)
        self.consts()
        a('s_getreg_b32 %s, hwreg(HW_REG_XCC_ID)' % sXCC)
        a('v_lshrrev_b32 v8, 5, v0')
        a('v_and_b32 v9, 31, v0')
        a('v_mul_u32_u24 v10, 2560, v8')
        a('v_mul_u32_u24 v11, 80, v9')
        a('v_add_u32 v13, v10, v11')
        F = 106
        a('s_waitcnt vmcnt(21)')
        self.stamp(2)
        for k in range(10):
            a('v_lshlrev_b32 v%d, 16, v%d' % (F + 2 * k, XR + k))
            a('v_and_b32 v%d, 0xffff0000, v%d' % (F + 2 * k + 1, XR + k))
        a('v_add_f32 v8, v%d, v%d' % (F, F + 1))
        a('v_add_f32 v9, v%d, v%d' % (F + 2, F + 3))
        for k in range(4, 20, 2):
            a('v_add_f32 v8, v8, v%d' % (F + k))
            a('v_add_f32 v9, v9, v%d' % (F + k + 1))
        a('v_add_f32 v8, v8, v9')
        self.allreduce([8], [9])
        a('v_mul_f32 v8, 0x%x, v8' % f2u(1.0 / 640))
        a('v_mov_b32 v9, 0')
        a('v_mov_b32 v10, 0')
        for k in range(0, 20, 2):
            a('v_sub_f32 v11, v%d, v8' % (F + k))
            a('v_sub_f32 v12, v%d, v8' % (F + k + 1))
            a('v_fmac_f32 v9, v11, v11')
            a('v_fmac_f32 v10, v12, v12')
        a('v_add_f32 v9, v9, v10')
        self.allreduce([9], [10])
        a('v_mul_f32 v9, 0x%x, v9' % f2u(1.0 / 640))
        self.ln_finish(8, 9)
        for k in range(0, 20, 2):
            a('v_sub_f32 v10, v%d, v8' % (F + k))
            a('v_sub_f32 v11, v%d, v8' % (F + k + 1))
            a('v_cvt_pk_bf16_f32 v10, v10, v11')
            a('v_and_b32 v11, 0xffff0000, v10')
            a('v_lshlrev_b32 v10, 16, v10')
            a('v_mul_f32 v10, v10, v9')
            a('v_mul_f32 v11, v11, v9')
            a('v_cvt_pk_bf16_f32 v%d, v10, v10' % (F + k))
            a('v_cvt_pk_bf16_f32 v%d, v11, v11' % (F + k + 1))
        for k in range(5):
            a('ds_write_b128 v13, v[%d:%d] offset:%d' % (F + 4 * k, F + 4 * k + 3, XN_LDS + 16 * k))
        a('v_bfe_u32 v8, v0, 3, 1')
        a('v_mul_u32_u24 v8, 2560, v8')
        a('v_mul_u32_u24 v9, 80, v2')
        a('s_mul_i32 s44, %s, 320' % sJ8)
        a('v_add3_u32 v8, v8, v9, s44')
        a('s_waitcnt lgkmcnt(0)')
        self.tagcalc()
        for k in range(5):
            a('ds_read_b128 v[%d:%d], v8 offset:%d' % (F + 4 * k, F + 4 * k + 3, XN_LDS + 16 * k))
        a('s_lshl_b32 s44, %s, 14' % sH)
        a('s_add_u32 s44, s44, %d' % QP)
        a('s_lshl_b32 s45, %s, 10' % sJ8)
        a('s_add_u32 s45, s45, s44')
        a('v_lshrrev_b32 v9, 1, v2')
        a('v_lshlrev_b32 v9, 13, v9')
        a('v_and_b32 v10, 1, v2')
        a('v_lshl_add_u32 v10, v1, 1, v10')
        a('v_lshl_add_u32 v12, v10, 4, v9')
        a('v_add_u32 v12, s45, v12')
        a('s_lshl_b32 s45, %s, 13' % sB)
        a('s_add_u32 s45, s45, s44')
        a('s_add_u32 s45, s45, 4096')
        a('v_lshrrev_b32 v9, 5, v0')
        a('v_lshlrev_b32 v9, 10, v9')
        a('v_and_b32 v10, 31, v0')
        a('v_lshl_add_u32 v13, v10, 4, v9')
        a('v_add_u32 v13, s45, v13')
        a('s_waitcnt lgkmcnt(0)')
        self.stamp(3)
        A0, A1, D = 96, 100, 8
        self.sparse(A0, F)
        for n in range(20):
            if n < 19:
                self.sparse(A1 if n % 2 == 0 else A0, F + n + 1)
            a('s_waitcnt vmcnt(%d)' % (20 - n))
            a('v_mfma_f32_16x16x32_bf16 %s, %s, %s, %s' % (
                v4(D), v4(A0 if n % 2 == 0 else A1), v4(WQ + 4 * n), '0' if n == 0 else v4(D)))
        P = 96
        a('v_mov_b32 v%d, %s' % (P + 2, sTAG))
        a('v_mov_b32 v%d, %s' % (P + 3, sXCC))
        a('v_mov_b32 v%d, %s' % (P + 6, sTAG))
        a('v_mov_b32 v%d, %s' % (P + 7, sXCC))
        a('v_mov_b32 v%d, v%d' % (P, D))
        a('v_mov_b32 v%d, v%d' % (P + 1, D + 1))
        a('v_mov_b32 v%d, v%d' % (P + 4, D + 2))
        a('v_mov_b32 v%d, v%d' % (P + 5, D + 3))
        a('global_store_dwordx4 v12, %s, %s sc1' % (v4(P), sp(pWS)))
        a('global_store_dwordx4 v12, %s, %s offset:512 sc1' % (v4(P + 4), sp(pWS)))
        self.stamp(4)
        G = 16

        def loads():
            for k in range(4):
                for hf in range(2):
                    a('global_load_dwordx4 %s, v13, %s offset:%d sc1' % (
                        v4(G + 8 * k + 4 * hf), sp(pWS), k * 2048 + hf * 512 - 4096))

        def checks():
            for k in range(8):
                self.check1(G + 4 * k + 2, k == 0)
        self.poll(loads, checks)
        self.stamp(5)
        for r, off in ((8, 0), (9, 1), (10, 4), (11, 5)):
            a('v_add_f32 v%d, v%d, v%d' % (r, G + off, G + 8 + off))
            a('v_add_f32 v%d, v%d, v%d' % (G + 16 + off, G + 16 + off, G + 24 + off))
        for r, off in ((8, 0), (9, 1), (10, 4), (11, 5)):
            a('v_add_f32 v%d, v%d, v%d' % (r, r, G + 16 + off))
        self.allreduce([8, 9, 10, 11], [48, 49, 50, 51], steps=('p32',))
        a('v_cvt_pk_bf16_f32 v8, v8, v9')
        a('v_cvt_pk_bf16_f32 v9, v10, v11')
        a('v_and_b32 v10, 31, v0')
        a('v_lshlrev_b32 v10, 3, v10')
        a('ds_write_b64 v10, v[8:9] offset:%d' % Q_LDS)
        a('s_waitcnt lgkmcnt(0)')
        self.barrier()
        self.stamp(6)
        a('s_lshl_b32 s44, %s, 13' % sH)
        a('s_add_u32 s44, s44, %d' % OP)
        a('s_lshl_b32 s45, %s, 10' % sJ8)
        a('s_add_u32 s45, s45, s44')
        a('v_lshlrev_b32 v11, 4, v0')
        a('v_add_u32 v12, s45, v11')
        a('v_lshrrev_b32 v9, 5, v0')
        a('v_lshlrev_b32 v9, 12, v9')
        a('v_add_u32 v9, s44, v9')
        a('v_and_b32 v10, 31, v0')
        a('v_lshl_add_u32 v13, v10, 4, v9')
        a('v_and_b32 v10, 3, v0')
        a('v_lshl_add_u32 v16, v10, 10, v9')
        a('v_lshlrev_b32 v17, 3, v0')
        self.wo_prep('4')
        self.barrier()
        self.barrier()
        self.stamp(7)
        a('s_mov_b32 exec_hi, 1')
        a('ds_read_b128 v[8:11], v11 offset:%d' % O_LDS)
        a('s_waitcnt lgkmcnt(0)')
        self.tag4(8)
        a('global_store_dwordx4 v12, v[8:11], %s sc1' % sp(pWS))
        a('s_mov_b64 exec, -1')
        G = 20

        def loads():
            a('global_load_dwordx4 %s, v16, %s offset:512 sc1' % (v4(G + 16), sp(pWS)))
            for j in range(4):
                a('global_load_dwordx4 %s, v13, %s offset:%d sc1' % (v4(G + 4 * j), sp(pWS), j * 1024))

        def checks():
            for k in range(5):
                self.check4(G + 4 * k, 40, 41, k == 0)
        self.poll(loads, checks)
        self.stamp(8)
        a('v_and_b32 v40, v%d, v7' % (G + 16))
        a('v_mov_b32 v41, v40')
        self.allreduce([41], [], op='max', steps=('x1', 'x2'))
        a('v_sub_f32 v40, v40, v41')
        a('v_mul_f32 v40, 0x%x, v40' % f2u(1.4426950408889634))
        a('v_exp_f32 v40, v40')
        a('v_mul_f32 v41, v40, v%d' % (G + 17))
        self.allreduce([41], [], steps=('x1', 'x2'))
        a('v_rcp_f32 v41, v41')
        a('v_mul_f32 v40, v40, v41')
        for r in range(4):
            a('v_mul_f32_dpp v%d, v40, v%d quad_perm:[0,0,0,0] row_mask:0xf bank_mask:0xf' % (8 + r, G + r))
        for j in range(1, 4):
            for r in range(4):
                a('v_fmac_f32_dpp v%d, v40, v%d quad_perm:[%d,%d,%d,%d] row_mask:0xf bank_mask:0xf' % (
                    8 + r, G + 4 * j + r, j, j, j, j))
        a('v_cvt_pk_bf16_f32 v8, v8, v9')
        a('v_cvt_pk_bf16_f32 v9, v10, v11')
        a('ds_write_b64 v17, v[8:9] offset:%d' % O2_LDS)
        a('s_waitcnt lgkmcnt(0)')
        self.barrier()
        self.stamp(9)
        self.wo_stage(XS)
        self.barrier()
        self.end_wave()

    def ln_finish(self, rm, rv):
        a = self.a
        a('v_cvt_pk_bf16_f32 v%d, v%d, v%d' % (rv, rm, rv))
        a('v_lshlrev_b32 v%d, 16, v%d' % (rm, rv))
        a('v_and_b32 v%d, 0xffff0000, v%d' % (rv, rv))
        a('v_add_f32 v%d, 0x%x, v%d' % (rv, f2u(1e-5), rv))
        a('v_cvt_pk_bf16_f32 v%d, v%d, v%d' % (rv, rv, rv))
        a('v_and_b32 v%d, 0xffff0000, v%d' % (rv, rv))
        a('v_sqrt_f32 v%d, v%d' % (rv, rv))
        a('v_cvt_pk_bf16_f32 v%d, v%d, v%d' % (rv, rv, rv))
        a('v_and_b32 v%d, 0xffff0000, v%d' % (rv, rv))
        a('v_rcp_f32 v%d, v%d' % (rv, rv))

    def wo_prep(self, m):
        a = self.a
        a('s_mov_b32 %s, %s' % (sC1, m))
        a('v_and_b32 v110, 1, v1')
        a('v_lshlrev_b32 v110, 8, v110')
        a('v_lshl_add_u32 v110, v2, 4, v110')
        a('v_lshrrev_b32 v111, 2, v1')
        a('v_lshl_add_u32 v111, v2, 3, v111')
        a('v_mul_u32_u24 v111, 160, v111')
        a('v_and_b32 v112, 3, v1')
        a('v_lshl_add_u32 v111, v112, 3, v111')
        a('s_lshl_b32 s44, %s, 5' % sC1)
        a('v_add_u32 v111, s44, v111')
        a('s_mul_i32 s44, %s, 20' % sJ8)
        a('s_lshl_b32 s45, %s, 2' % sC1)
        a('s_add_u32 s44, s44, s45')
        a('v_add_u32 v112, s44, v2')
        a('v_lshl_add_u32 v112, v112, 1, v1')
        a('v_lshlrev_b32 v112, 9, v112')
        a('s_lshl_b32 s44, %s, 4' % sH)
        a('s_add_u32 s44, s44, %d' % YP)
        a('v_add_u32 v112, s44, v112')
        a('s_mul_i32 s44, %s, 5' % sI)
        a('s_add_u32 s44, s44, %s' % sC1)
        a('s_lshl_b32 s44, s44, 10')
        a('s_add_u32 s44, s44, %d' % YP)
        a('v_lshlrev_b32 v113, 4, v0')
        a('v_add_u32 v113, s44, v113')
        a('v_lshrrev_b32 v114, 5, v0')
        a('v_lshlrev_b32 v114, 7, v114')
        a('s_lshl_b32 s44, %s, 2' % sC1)
        a('v_add_u32 v114, s44, v114')

    def wo_stage(self, XS):
        a = self.a
        OF, WF, D = 16, 32, 48
        for ks in range(4):
            a('ds_read_b128 %s, v110 offset:%d' % (v4(OF + 4 * ks), O2_LDS + 64 * ks))
            a('ds_read_b64_tr_b16 %s, v111 offset:%d' % (v2(WF + 4 * ks), WO_LDS + 32 * 160 * ks))
            a('ds_read_b64_tr_b16 %s, v111 offset:%d' % (v2(WF + 4 * ks + 2), WO_LDS + 32 * 160 * ks + 4 * 160))
        a('s_waitcnt lgkmcnt(0)')
        for ks in range(4):
            a('v_mfma_f32_16x16x32_bf16 %s, %s, %s, %s' % (
                v4(D), v4(WF + 4 * ks), v4(OF + 4 * ks), '0' if ks == 0 else v4(D)))
        a('v_lshlrev_b32 v56, 16, v%d' % XS)
        a('v_and_b32 v57, 0xffff0000, v%d' % XS)
        a('v_lshlrev_b32 v58, 16, v%d' % (XS + 1))
        a('v_and_b32 v59, 0xffff0000, v%d' % (XS + 1))
        a('s_mov_b32 s46, 0x00030003')
        a('s_mov_b32 s47, 0x00030003')
        self.tag4(D)
        a('s_mov_b64 exec, s[46:47]')
        a('global_store_dwordx4 v112, %s, %s sc1' % (v4(D), sp(pWS)))
        a('s_mov_b64 exec, -1')
        self.stamp(10)
        G = 16

        def loads():
            a('global_load_dwordx4 %s, v113, %s sc1' % (v4(G), sp(pWS)))

        def checks():
            self.check4(G, 20, 21, True)
        self.poll(loads, checks)
        self.stamp(11)
        self.allreduce([G, G + 1, G + 2, G + 3], [20, 21, 22, 23])
        a('v_cvt_pk_bf16_f32 v20, v%d, v%d' % (G, G + 1))
        a('v_cvt_pk_bf16_f32 v22, v%d, v%d' % (G + 2, G + 3))
        a('v_and_b32 v21, 0xffff0000, v20')
        a('v_lshlrev_b32 v20, 16, v20')
        a('v_and_b32 v23, 0xffff0000, v22')
        a('v_lshlrev_b32 v22, 16, v22')
        for k in range(4):
            a('v_add_f32 v%d, v%d, v%d' % (20 + k, 20 + k, 56 + k))
        for k in range(4):
            a('v_cvt_pk_bf16_f32 v%d, v%d, v%d' % (20 + k, 20 + k, 20 + k))
        a('s_mov_b32 s46, 1')
        a('s_mov_b32 s47, 1')
        a('s_mov_b64 exec, s[46:47]')
        for k in range(4):
            a('ds_write_b32 v114, v%d offset:%d' % (20 + k, H_LDS + 32 * k))
        a('s_mov_b64 exec, -1')
        a('s_waitcnt lgkmcnt(0)')
        self.stamp(12)

    def attention(self, cls):
        a = self.a
        a.label('L_att' + cls)
        a.reset()
        KR, VR = 16, 48
        GU = 80
        DW = 100
        XS = 14
        a('s_lshl_b32 s44, %s, 5' % sB)
        a('s_add_u32 s44, s44, %s' % sH)
        a('s_lshl_b32 s44, s44, 20')
        a('s_lshl_b32 s45, %s, 16' % sJ)
        a('s_add_u32 s44, s44, s45')
        a('s_lshl_b32 s45, %s, 13' % sAW)
        a('s_add_u32 s44, s44, s45')
        a('s_add_u32 s44, s44, %d' % (3072 * 256 + 4096))
        a('v_lshlrev_b32 v8, 8, v1')
        a('v_lshl_add_u32 v8, v2, 4, v8')
        a('v_lshlrev_b32 v9, 10, v2')
        a('v_lshl_add_u32 v9, v1, 4, v9')
        a('v_add_u32 v8, s44, v8')
        a('v_add_u32 v9, s44, v9')
        a('s_waitcnt lgkmcnt(0)')
        a('s_load_dword %s, %s, %d' % (sTAG, sp(pWS), EPOCH))
        for bb in range(2):
            for m in range(4):
                a('global_load_dwordx4 %s, v8, %s offset:%d%s' % (
                    v4(KR + 16 * bb + 4 * m), sp(pK), bb * 4096 + m * 64 - 4096, self.nt))
        for bb in range(2):
            for r in range(4):
                a('global_load_dwordx4 %s, v9, %s offset:%d%s' % (
                    v4(VR + 16 * bb + 4 * r), sp(pV), bb * 4096 + r * 256 - 4096, self.nt))
        after_v = 0
        ndma = 3 if cls == 'A' else 2
        a('s_mul_i32 s44, %s, %d' % (sH, 128 * 1280))
        a('s_mul_i32 s45, %s, 160' % sJ8)
        a('s_add_u32 s44, s44, s45')
        a('s_lshl_b32 s45, %s, 6' % sAW)
        a('s_lshl_b32 s46, %s, 10' % sAW)
        for t in range(ndma):
            a('v_add_u32 v10, s45, v0')
            if t:
                a('v_add_u32 v10, %d, v10' % (512 * t))
            a('v_mul_u32_u24 v11, 6554, v10')
            a('v_lshrrev_b32 v11, 16, v11')
            a('v_mul_u32_u24 v11, 1120, v11')
            a('v_lshl_add_u32 v11, v10, 4, v11')
            a('v_add_u32 v11, s44, v11')
            a('s_add_u32 m0, s46, %d' % (WO_LDS + 8192 * t))
            a('global_load_lds_dwordx4 v11, %s%s' % (sp(pWO), self.nt))
            after_v += 1
        after_dma = 0
        if cls == 'A':
            self.load_xs(sAW, XS)
            after_dma += 1
        else:
            a('s_sub_u32 s44, %s, 4' % sAW)
            a('s_lshl_b32 s44, s44, 4')
            a('v_add_u32 v10, s44, v1')
            a('v_min_u32 v10, 53, v10')
            a('v_cmp_le_u32 vcc, 27, v10')
            a('v_subrev_u32 v11, 27, v10')
            a('v_cndmask_b32 v11, v10, v11, vcc')
            a('v_mov_b32 v12, s%d' % pWG)
            a('v_mov_b32 v13, s%d' % pWU)
            a('v_cndmask_b32 v12, v12, v13, vcc')
            a('v_mov_b32 v13, s%d' % (pWG + 1))
            a('v_mov_b32 v14, s%d' % (pWU + 1))
            a('v_cndmask_b32 v13, v13, v14, vcc')
            a('v_cndmask_b32 v15, 0, 1, vcc')
            a('s_mul_i32 s44, %s, %d' % (sI, 20 * 3456))
            a('s_mul_i32 s45, %s, 432' % sX)
            a('s_add_u32 s44, s44, s45')
            a('v_mul_u32_u24 v14, 3456, v2')
            a('v_lshl_add_u32 v14, v11, 4, v14')
            a('v_add_u32 v14, s44, v14')
            a('v_add_co_u32 v12, vcc, v12, v14')
            a('v_addc_co_u32 v13, vcc, 0, v13, vcc')
            for n in range(5):
                a('global_load_dwordx4 %s, v[12:13], off%s' % (v4(GU + 4 * n), self.nt))
                if n < 4:
                    a('v_add_co_u32 v12, vcc, %d, v12' % (4 * 3456))
                    a('v_addc_co_u32 v13, vcc, 0, v13, vcc')
                after_dma += 1
            a('s_mul_i32 s44, %s, 27' % sX)
            a('v_add_u32 v11, s44, v11')
            a('v_lshlrev_b32 v11, 5, v11')
            a('v_add_u32 v11, %s, v11' % sI)
            a('v_and_b32 v14, 1, v2')
            a('v_lshl_add_u32 v14, v15, 1, v14')
            a('v_lshl_add_u32 v13, v11, 2, v14')
            a('v_lshlrev_b32 v13, 4, v13')
            a('v_add_u32 v13, %d, v13' % CP)
            a('v_lshrrev_b32 v12, 1, v2')
            a('v_lshl_add_u32 v12, v14, 1, v12')
            a('v_lshl_add_u32 v12, v11, 3, v12')
            a('v_lshlrev_b32 v12, 4, v12')
            a('v_add_u32 v12, %d, v12' % GP)
            a('s_sub_u32 s44, %s, 4' % sAW)
            a('s_lshl_b32 s44, s44, 4')
            a('v_add_u32 v10, s44, v1')
            a('v_cmp_gt_u32 s[40:41], 54, v10')
        self.stamp(1)
        self.consts()
        if cls == 'A':
            self.wo_prep(sAW)
            skip = a.newlabel('L_nz')
            a('s_cmp_lg_u32 %s, 0' % sAW)
            a('s_cbranch_scc1 %s' % skip)
            a('v_mov_b32 v8, 0')
            a('v_mov_b32 v9, 0')
            a('v_mov_b32 v10, 0')
            a('v_mov_b32 v11, 0')
            a('v_lshlrev_b32 v115, 4, v0')
            a('s_mov_b32 s46, -1')
            a('s_mov_b32 s47, 0x3ffff')
            a('s_mov_b64 exec, s[46:47]')
            a('ds_write_b128 v115, v[8:11] offset:%d' % O_LDS)
            a('s_mov_b64 exec, -1')
            a.label(skip)
        a('v_lshlrev_b32 v116, 4, v2')
        a('v_and_b32 v117, 1, v2')
        a('v_lshl_add_u32 v117, v1, 1, v117')
        a('v_lshlrev_b32 v117, 4, v117')
        a('s_lshl_b32 s44, %s, 2' % sAW)
        a('v_mov_b32 v118, s44')
        a('v_mov_b32 v119, 0')
        a('s_waitcnt lgkmcnt(0)')
        self.tagcalc()
        self.barrier()
        self.stamp(2)
        QF = 100
        QF = 80 if cls == 'A' else 100
        for m in range(4):
            a('ds_read_b128 %s, v116 offset:%d' % (v4(QF + 4 * m), Q_LDS + 64 * m))
        S = 120
        tail = 8 + after_v + after_dma
        a('s_waitcnt vmcnt(%d) lgkmcnt(0)' % (tail + 4))
        for m in range(4):
            a('v_mfma_f32_16x16x32_bf16 %s, %s, %s, %s' % (v4(S), v4(KR + 4 * m), v4(QF + 4 * m), '0' if m == 0 else v4(S)))
        a('s_waitcnt vmcnt(%d)' % tail)
        for m in range(4):
            a('v_mfma_f32_16x16x32_bf16 %s, %s, %s, %s' % (v4(S + 4), v4(KR + 16 + 4 * m), v4(QF + 4 * m), '0' if m == 0 else v4(S + 4)))
        self.stamp(3)
        sc = f2u(128 ** -0.5)
        for k in range(0, 8, 2):
            a('v_cvt_pk_bf16_f32 v8, v%d, v%d' % (S + k, S + k + 1))
            a('v_and_b32 v9, 0xffff0000, v8')
            a('v_lshlrev_b32 v8, 16, v8')
            a('v_mul_f32 v8, 0x%x, v8' % sc)
            a('v_mul_f32 v9, 0x%x, v9' % sc)
            a('v_cvt_pk_bf16_f32 v8, v8, v9')
            a('v_and_b32 v%d, 0xffff0000, v8' % (S + k + 1))
            a('v_lshlrev_b32 v%d, 16, v8' % (S + k))
        a('v_max3_f32 v8, v%d, v%d, v%d' % (S, S + 1, S + 2))
        a('v_max3_f32 v9, v%d, v%d, v%d' % (S + 3, S + 4, S + 5))
        a('v_max3_f32 v8, v8, v%d, v%d' % (S + 6, S + 7))
        a('v_max_f32 v8, v8, v9')
        self.allreduce([8], [9], op='max', steps=('p16', 'p32'))
        a('ds_write_b32 v118, v8 offset:%d' % MX_LDS)
        a('s_waitcnt lgkmcnt(0)')
        self.barrier()
        a('ds_read_b128 v[16:19], v119 offset:%d' % MX_LDS)
        a('ds_read_b128 v[20:23], v119 offset:%d' % (MX_LDS + 16))
        a('s_waitcnt lgkmcnt(0)')
        a('v_max3_f32 v8, v16, v17, v18')
        a('v_max3_f32 v9, v19, v20, v21')
        a('v_max3_f32 v8, v8, v22, v23')
        a('v_max_f32 v8, v8, v9')
        for k in range(8):
            a('v_sub_f32 v%d, v%d, v8' % (S + k, S + k))
        for k in range(8):
            a('v_mul_f32 v%d, 0x%x, v%d' % (S + k, f2u(1.4426950408889634), S + k))
        for k in range(8):
            a('v_exp_f32 v%d, v%d' % (S + k, S + k))
        a('v_add_f32 v9, v%d, v%d' % (S, S + 1))
        a('v_add_f32 v10, v%d, v%d' % (S + 2, S + 3))
        a('v_add_f32 v9, v9, v%d' % (S + 4))
        a('v_add_f32 v10, v10, v%d' % (S + 5))
        a('v_add_f32 v9, v9, v%d' % (S + 6))
        a('v_add_f32 v10, v10, v%d' % (S + 7))
        a('v_add_f32 v9, v9, v10')
        self.allreduce([9], [10], steps=('p16', 'p32'))
        a('s_mov_b64 exec, 1')
        a('ds_add_f32 v119, v9 offset:%d' % (O_LDS + 516))
        a('ds_write_b32 v119, v8 offset:%d' % (O_LDS + 512))
        a('s_mov_b64 exec, -1')
        for k in range(8):
            a('v_cvt_pk_bf16_f32 v9, v%d, v%d' % (S + k, S + k))
            a('v_and_b32 v9, 0xffff0000, v9')
            a('v_sub_f32 v9, v%d, v9' % (S + k))
            a('v_cndmask_b32 v9, v%d, v9, %s' % (S + k, HIROWS))
            a('v_cvt_pk_bf16_f32 v9, v9, v9')
            self.sparse(KR + 4 * k, 9)
        self.stamp(4)
        O = 8
        for k in range(8):
            a('s_waitcnt vmcnt(%d)' % (7 - k + after_v + after_dma))
            a('v_mfma_f32_16x16x32_bf16 %s, %s, %s, %s' % (v4(O), v4(KR + 4 * k), v4(VR + 4 * k), '0' if k == 0 else v4(O)))
        self.stamp(5)
        for r in range(4):
            a('ds_add_f32 v117, v%d offset:%d' % (O + r, O_LDS + 4 * r))
        a('s_waitcnt lgkmcnt(0)')
        self.barrier()
        self.stamp(6)
        if cls == 'B4':
            DW = 16
            a('s_min_u32 s44, %s, 26' % sI)
            a('s_lshl_b32 s44, s44, 3')
            a('s_mul_i32 s45, %s, 216' % sX)
            a('s_add_u32 s44, s44, s45')
            a('s_mul_i32 s44, s44, 1280')
            a('v_and_b32 v8, 1, v2')
            a('v_lshlrev_b32 v8, 1, v8')
            a('v_lshrrev_b32 v9, 1, v2')
            a('v_add_u32 v8, v8, v9')
            a('v_mul_u32_u24 v8, 2560, v8')
            a('v_lshl_add_u32 v8, v1, 4, v8')
            a('v_add_u32 v8, s44, v8')
            for rg in range(2):
                for m in range(5):
                    a('global_load_dwordx4 %s, v8, %s offset:%d%s' % (
                        v4(DW + 20 * rg + 4 * m), sp(pWD), rg * 1280 + m * 256, self.nt))
            a('s_waitcnt vmcnt(%d)' % (after_dma + 10))
        else:
            a('s_waitcnt vmcnt(%d)' % after_dma)
        self.barrier()
        self.stamp(7)
        if cls == 'A':
            a('s_waitcnt vmcnt(0)')
            self.wo_stage(XS)
            self.barrier()
            self.after_b5_A()
        else:
            self.gateup(cls, GU)

    def gateup(self, cls, GU):
        a = self.a
        D = 8
        A0, A1 = 100, 104
        a('v_mov_b32 v108, 0x3f803f80')
        self.sparse(A0, 108)
        a('s_waitcnt vmcnt(%d)' % (10 if cls == 'B4' else 0))
        for n in range(5):
            a('v_mfma_f32_16x16x32_bf16 %s, %s, %s, %s' % (v4(D), v4(A0), v4(GU + 4 * n), '0' if n == 0 else v4(D)))
        a('v_bfe_u32 v109, v0, 3, 1')
        a('v_lshlrev_b32 v109, 7, v109')
        a('v_lshl_add_u32 v109, v2, 5, v109')
        a('s_mov_b32 s46, s40')
        a('s_mov_b32 s47, 0')
        self.tag4(D)
        a('s_mov_b64 exec, s[46:47]')
        a('global_store_dwordx4 v13, %s, %s sc1' % (v4(D), sp(pWS)))
        a('s_mov_b64 exec, -1')
        self.stamp(8)
        self.barrier()
        self.stamp(9)
        HD = 110
        a('ds_read_b128 %s, v109 offset:%d' % (v4(HD), H_LDS))
        a('ds_read_b32 v%d, v109 offset:%d' % (HD + 4, H_LDS + 16))
        a('s_waitcnt lgkmcnt(0)')
        D = 116
        self.sparse(A0, HD)
        for n in range(5):
            if n < 4:
                self.sparse(A1 if n % 2 == 0 else A0, HD + n + 1)
            a('v_mfma_f32_16x16x32_bf16 %s, %s, %s, %s' % (
                v4(D), v4(A0 if n % 2 == 0 else A1), v4(GU + 4 * n), '0' if n == 0 else v4(D)))
        self.tag4(D)
        a('s_mov_b64 exec, s[40:41]')
        a('global_store_dwordx4 v12, %s, %s sc1' % (v4(D), sp(pWS)))
        a('s_mov_b64 exec, -1')
        self.stamp(10)
        if cls == 'B':
            self.end_wave()
            return
        fin = a.newlabel('L_b4end')
        a('s_cmp_ge_u32 %s, 27' % sI)
        a('s_cbranch_scc1 %s' % fin)
        DW = 16
        a('s_mul_i32 s44, %s, 27' % sX)
        a('s_add_u32 s44, s44, %s' % sI)
        a('s_lshl_b32 s45, s44, 12')
        a('s_add_u32 s45, s45, %d' % GP)
        a('v_and_b32 v11, 7, v0')
        a('v_lshrrev_b32 v12, 3, v0')
        a('v_lshlrev_b32 v8, 7, v11')
        a('v_lshl_add_u32 v8, v12, 4, v8')
        a('v_add_u32 v8, s45, v8')
        a('s_lshl_b32 s45, s44, 11')
        a('s_add_u32 s45, s45, %d' % CP)
        a('v_lshlrev_b32 v9, 6, v1')
        a('v_lshl_add_u32 v9, v2, 4, v9')
        a('v_add_u32 v9, s45, v9')
        a('s_lshl_b32 s45, %s, 10' % sX)
        a('s_add_u32 s45, s45, %d' % SP)
        a('v_bfe_u32 v10, v0, 3, 1')
        a('v_lshlrev_b32 v10, 5, v10')
        a('v_lshl_add_u32 v10, v2, 3, v10')
        a('v_add_u32 v10, v10, v11')
        a('v_lshlrev_b32 v10, 4, v10')
        a('v_add_u32 v10, s45, v10')
        a('v_and_b32 v13, 1, v2')
        a('v_lshl_add_u32 v13, v1, 1, v13')
        a('v_lshrrev_b32 v14, 1, v2')
        a('v_lshl_add_u32 v13, v13, 1, v14')
        a('v_mul_u32_u24 v13, 3456, v13')
        a('s_lshl_b32 s45, s44, 4')
        a('s_add_u32 s45, s45, %d' % DP)
        a('v_add_u32 v13, s45, v13')
        Gr, Cr, Sr = 56, 72, 80

        def loads():
            for n in range(2):
                a('global_load_dwordx4 %s, v9, %s offset:%d sc1' % (v4(Cr + 4 * n), sp(pWS), 1024 * n))
            a('global_load_dwordx4 %s, v10, %s sc1' % (v4(Sr), sp(pWS)))
            for n in range(4):
                a('global_load_dwordx4 %s, v8, %s offset:%d sc1' % (v4(Gr + 4 * n), sp(pWS), 1024 * n))

        def checks():
            for k in range(6):
                self.check4(Gr + 4 * k, 84, 85, k == 0)
            self.check1(Sr + 2, False)
        self.poll(loads, checks)
        self.stamp(11)
        for r in range(4):
            a('v_add_f32 v%d, v%d, v%d' % (Gr + r, Gr + r, Gr + 4 + r))
            a('v_add_f32 v%d, v%d, v%d' % (Gr + 8 + r, Gr + 8 + r, Gr + 12 + r))
            a('v_add_f32 v%d, v%d, v%d' % (Cr + r, Cr + r, Cr + 4 + r))
        for r in range(4):
            a('v_add_f32 v%d, v%d, v%d' % (Gr + r, Gr + r, Gr + 8 + r))
        allr = [Gr, Gr + 1, Gr + 2, Gr + 3, Cr, Cr + 1, Cr + 2, Cr + 3, Sr, Sr + 1]
        self.allreduce(allr, [], steps=('x1', 'x2', 'hm'))
        self.allreduce([Cr, Cr + 1, Cr + 2, Cr + 3], [], steps=('r8',))
        self.allreduce([Sr, Sr + 1], [84, 85], steps=('p16', 'p32'))
        a('v_mul_f32 v%d, 0x%x, v%d' % (Sr, f2u(1.0 / 640), Sr))
        a('v_mul_f32 v%d, 0x%x, v%d' % (Sr + 1, f2u(1.0 / 640), Sr + 1))
        a('v_fma_f32 v%d, -v%d, v%d, v%d' % (Sr + 1, Sr, Sr, Sr + 1))
        a('v_max_f32 v%d, 0, v%d' % (Sr + 1, Sr + 1))
        self.ln_finish(Sr, Sr + 1)
        for r in range(4):
            a('v_fma_f32 v%d, -v%d, v%d, v%d' % (Gr + r, Sr, Cr + r, Gr + r))
        for r in range(4):
            a('v_mul_f32 v%d, v%d, v%d' % (Gr + r, Gr + r, Sr + 1))
        a('v_permlane32_swap_b32 v%d, v%d' % (Gr, Gr + 2))
        a('v_permlane32_swap_b32 v%d, v%d' % (Gr + 1, Gr + 3))
        a('v_cvt_pk_bf16_f32 v84, v%d, v%d' % (Gr, Gr + 1))
        a('v_cvt_pk_bf16_f32 v86, v%d, v%d' % (Gr + 2, Gr + 3))
        a('v_and_b32 v85, 0xffff0000, v84')
        a('v_lshlrev_b32 v84, 16, v84')
        a('v_and_b32 v87, 0xffff0000, v86')
        a('v_lshlrev_b32 v86, 16, v86')
        a('v_mul_f32 v88, 0x%x, v84' % f2u(-1.4426950408889634))
        a('v_mul_f32 v89, 0x%x, v85' % f2u(-1.4426950408889634))
        a('v_exp_f32 v88, v88')
        a('v_exp_f32 v89, v89')
        a('v_add_f32 v88, 1.0, v88')
        a('v_add_f32 v89, 1.0, v89')
        a('v_rcp_f32 v88, v88')
        a('v_rcp_f32 v89, v89')
        a('v_mul_f32 v84, v84, v88')
        a('v_mul_f32 v85, v85, v89')
        a('v_cvt_pk_bf16_f32 v84, v84, v85')
        a('v_and_b32 v85, 0xffff0000, v84')
        a('v_lshlrev_b32 v84, 16, v84')
        a('v_mul_f32 v84, v84, v86')
        a('v_mul_f32 v85, v85, v87')
        a('v_cvt_pk_bf16_f32 v84, v84, v84')
        a('v_cvt_pk_bf16_f32 v85, v85, v85')
        self.sparse(A0, 84)
        self.sparse(A1, 85)
        DD = 56
        for m in range(5):
            a('v_mfma_f32_16x16x32_bf16 %s, %s, %s, 0' % (v4(DD + 4 * m), v4(A0), v4(DW + 4 * m)))
        for m in range(5):
            a('v_mfma_f32_16x16x32_bf16 %s, %s, %s, %s' % (v4(DD + 4 * m), v4(A1), v4(DW + 20 + 4 * m), v4(DD + 4 * m)))
        for m in range(5):
            self.tag4(DD + 4 * m)
            a('global_store_dwordx4 v13, %s, %s sc1' % (v4(DD + 4 * m), sp(pWS)))
            if m < 4:
                a('v_add_u32 v13, %d, v13' % (64 * 3456))
        self.stamp(12)
        a.label(fin)
        self.end_wave()

    def after_b5_A(self):
        a = self.a
        l_stats = a.newlabel('L_stats')
        l_end = a.newlabel('L_aend')
        a('s_cmp_eq_u32 %s, 1' % sAW)
        a('s_cbranch_scc1 %s' % l_stats)
        a('s_cmp_lg_u32 %s, 0' % sAW)
        a('s_cbranch_scc1 %s' % l_end)
        a('s_cmp_ge_u32 %s, 5' % sX)
        a('s_cbranch_scc1 %s' % l_end)
        a('s_mul_i32 s44, %s, 5' % sI)
        a('s_add_u32 s44, s44, %s' % sX)
        a('s_mul_i32 s45, s44, 6912')
        a('s_add_u32 s45, s45, %d' % DP)
        a('v_lshrrev_b32 v8, 5, v0')
        a('v_mul_u32_u24 v9, 3456, v8')
        a('v_and_b32 v10, 31, v0')
        a('v_lshl_add_u32 v9, v10, 4, v9')
        a('v_add_u32 v9, s45, v9')
        a('v_mul_u32_u24 v10, 1280, v8')
        a('s_lshl_b32 s45, s44, 3')
        a('v_add_u32 v10, s45, v10')
        a('v_lshlrev_b32 v11, 7, v8')
        a('s_lshl_b32 s45, %s, 2' % sX)
        a('v_add_u32 v11, s45, v11')
        for k in range(4):
            a('ds_read_b32 v%d, v11 offset:%d' % (48 + k, H_LDS + 32 * k))
        G = 16
        for k in range(4):
            a('v_mov_b32 v%d, 0' % (G + 24 + k))
        a('s_mov_b32 s46, 0x00ffffff')
        a('s_mov_b32 s47, 0x00ffffff')
        a('s_waitcnt lgkmcnt(0)')
        for k in range(4):
            a('v_and_b32 v%d, 0xffff0000, v%d' % (48 + k, 48 + k))

        def loads():
            for n in range(6):
                a('global_load_dwordx4 %s, v9, %s offset:%d sc1' % (v4(G + 4 * n), sp(pWS), 512 * n))
            a('s_mov_b64 exec, s[46:47]')
            a('global_load_dwordx4 %s, v9, %s offset:%d sc1' % (v4(G + 24), sp(pWS), 512 * 6))
            a('s_mov_b64 exec, -1')

        def checks():
            for k in range(6):
                self.check4(G + 4 * k, 44, 45, k == 0)
            self.check4(G + 24, 44, 45, False, mask='s[46:47]')
        self.poll(loads, checks)
        self.stamp(13)
        for r in range(4):
            a('v_add_f32 v%d, v%d, v%d' % (G + r, G + r, G + 4 + r))
            a('v_add_f32 v%d, v%d, v%d' % (G + 8 + r, G + 8 + r, G + 12 + r))
            a('v_add_f32 v%d, v%d, v%d' % (G + 16 + r, G + 16 + r, G + 20 + r))
        for r in range(4):
            a('v_add_f32 v%d, v%d, v%d' % (G + r, G + r, G + 8 + r))
            a('v_add_f32 v%d, v%d, v%d' % (G + 16 + r, G + 16 + r, G + 24 + r))
        for r in range(4):
            a('v_add_f32 v%d, v%d, v%d' % (G + r, G + r, G + 16 + r))
        self.allreduce([G, G + 1, G + 2, G + 3], [20, 21, 22, 23])
        a('v_cvt_pk_bf16_f32 v20, v%d, v%d' % (G, G + 1))
        a('v_cvt_pk_bf16_f32 v22, v%d, v%d' % (G + 2, G + 3))
        a('v_and_b32 v21, 0xffff0000, v20')
        a('v_lshlrev_b32 v20, 16, v20')
        a('v_and_b32 v23, 0xffff0000, v22')
        a('v_lshlrev_b32 v22, 16, v22')
        for k in range(4):
            a('v_add_f32 v%d, v%d, v%d' % (20 + k, 20 + k, 48 + k))
        a('v_cvt_pk_bf16_f32 v20, v20, v21')
        a('v_cvt_pk_bf16_f32 v21, v22, v23')
        a('s_mov_b32 s46, 1')
        a('s_mov_b32 s47, 1')
        a('s_mov_b64 exec, s[46:47]')
        a('global_store_dwordx2 v10, v[20:21], %s' % sp(pOUT))
        a('s_cmp_lg_u32 s2, 0')
        a('s_cbranch_scc1 %s' % l_end)
        a('s_mov_b64 exec, 1')
        a('v_mov_b32 v24, %s' % sTAG)
        a('v_mov_b32 v25, %d' % EPOCH)
        a('global_store_dword v25, v24, %s sc1' % sp(pWS))
        a('s_branch %s' % l_end)
        a.label(l_stats)
        a('v_lshlrev_b32 v8, 2, v0')
        a('ds_read_b32 v16, v8 offset:%d' % H_LDS)
        a('s_lshl_b32 s44, %s, 10' % sX)
        a('s_lshl_b32 s45, %s, 4' % sI)
        a('s_add_u32 s44, s44, s45')
        a('s_add_u32 s44, s44, %d' % SP)
        a('v_lshrrev_b32 v9, 5, v0')
        a('v_lshlrev_b32 v9, 9, v9')
        a('v_add_u32 v9, s44, v9')
        a('v_mov_b32 v18, %s' % sTAG)
        a('v_mov_b32 v19, %s' % sTAG)
        a('s_mov_b32 s46, 1')
        a('s_mov_b32 s47, 1')
        a('s_waitcnt lgkmcnt(0)')
        a('v_and_b32 v16, 0xffff0000, v16')
        a('v_mul_f32 v17, v16, v16')
        self.allreduce([16, 17], [20, 21])
        a('s_mov_b64 exec, s[46:47]')
        a('global_store_dwordx4 v9, v[16:19], %s sc1' % sp(pWS))
        self.stamp(13)
        a.label(l_end)
        self.end_wave()

    def build(self):
        a = self.a
        hdr = open('cdna_kernels/%s.s.ref' % NAME).read().split('\n')
        top = []
        for ln in hdr:
            if ln.startswith('; @launch'):
                top.append('; @launch grid=(256,1,1) block=(576,1,1) lds=%d' % LDS_BYTES)
                break
            top.append(ln)
        out = '\n'.join(top) + '\n'
        out += '.amdgcn_target "amdgcn-amd-amdhsa--gfx950"\n.text\n.globl %s_kernel\n.p2align 8\n' % NAME
        out += '.type %s_kernel,@function\n%s_kernel:\n' % (NAME, NAME)
        self.prologue()
        self.comm()
        self.attention('A')
        self.attention('B4')
        self.attention('B')
        a.label('L_exit')
        a('s_endpgm')
        out += a.text()
        out += '''.section .rodata,"a"
.p2align 6
.amdhsa_kernel %s_kernel
  .amdhsa_next_free_vgpr 128
  .amdhsa_next_free_sgpr 102
  .amdhsa_accum_offset 128
  .amdhsa_group_segment_fixed_size 0
  .amdhsa_kernarg_size 96
  .amdhsa_user_sgpr_count 2
  .amdhsa_user_sgpr_kernarg_segment_ptr 1
  .amdhsa_system_sgpr_workgroup_id_x 1
  .amdhsa_float_denorm_mode_32 3
.end_amdhsa_kernel
''' % NAME
        return out


if __name__ == '__main__':
    outp = sys.argv[1]
    stamps = 'stamps' in sys.argv[2:]
    nt = 'nont' not in sys.argv[2:]
    open(outp, 'w').write(Gen(stamps=stamps, nt=nt).build())
```

```python
import struct
import sys
from asmlib import Asm

NAME = 'sequential_preLN__sliding_block_cached__swiglu_ffn__decode'


def f2u(x):
    return struct.unpack('<I', struct.pack('<f', x))[0]


EPOCH = 0
QP = 0x1000
OP = 0x81000
YP = 0xC1000
GP = 0xE9000
CP = 0x200000
SP = 0x26C000
DP = 0x26E000
TS = 0x600000

WO_LDS = 0
WD_LDS = 20480
XN_LDS = 32768
Q_LDS = 37888
MX_LDS = 38144
OW_LDS = 38160
H_LDS = OW_LDS + 4 * 528
O2_LDS = H_LDS + 256
LDS_BYTES = 41216

sWID, sX, sI, sH, sJ8, sB, sJ, sAW = 's3', 's4', 's5', 's6', 's7', 's8', 's9', 's10'
sTAG = 's11'
sT = ['s12', 's13', 's14', 's15']
pX, pK, pV, pWQ, pWO, pWG, pWU = 16, 18, 20, 22, 24, 28, 30
pWD, pOUT, pDBG, pWS = 32, 34, 36, 38
sSEL = 's53'
sSPIN = 's52'
sXCC = 's54'
sC0, sC1, sC2 = 's55', 's56', 's57'
HIROWS = 's[58:59]'
SPIN_MAX = 200000
NWAVES = 5
LOG2E = 1.4426950408889634


def sp(n):
    return 's[%d:%d]' % (n, n + 1)


def v4(n):
    return 'v[%d:%d]' % (n, n + 3)


def v2(n):
    return 'v[%d:%d]' % (n, n + 1)


class Gen:
    def __init__(self, stamps=False, opts=()):
        self.a = Asm()
        self.stamps = stamps
        self.opts = set(opts)
        self.nt = '' if 'nont' in self.opts else ' nt'

    def stamp(self, k):
        if self.stamps:
            self.a('s_memrealtime %s' % sp(60 + 2 * k))

    def end_wave(self):
        a = self.a
        if self.stamps:
            a('s_mov_b64 exec, -1')
            self.stamp(15)
            a('s_waitcnt lgkmcnt(0)')
            a('v_mov_b32 v200, 0')
            for k in range(16):
                a('v_writelane_b32 v200, s%d, %d' % (60 + 2 * k, k))
            a('s_mul_i32 s44, s2, %d' % NWAVES)
            a('s_add_u32 s44, s44, %s' % sWID)
            a('s_lshl_b32 s44, s44, 6')
            a('s_add_u32 s44, s44, %d' % TS)
            a('v_lshlrev_b32 v201, 2, v0')
            a('v_add_u32 v201, s44, v201')
            a('s_mov_b64 exec, 0xffff')
            a('global_store_dword v201, v200, %s' % sp(pWS))
        a('s_endpgm')

    def tag4(self, base):
        for k in range(4):
            self.a('v_and_or_b32 v%d, v%d, v7, %s' % (base + k, base + k, sT[k]))

    def check4(self, base, t0, t1, first, mask=None):
        a = self.a
        a('v_perm_b32 v%d, v%d, v%d, %s' % (t0, base + 1, base, sSEL))
        a('v_perm_b32 v%d, v%d, v%d, %s' % (t1, base + 3, base + 2, sSEL))
        a('v_lshl_or_b32 v%d, v%d, 16, v%d' % (t0, t1, t0))
        self.check1(t0, first, mask)

    def check1(self, reg, first, mask=None):
        a = self.a
        if first and mask is None:
            a('v_cmp_ne_u32 s[48:49], %s, v%d' % (sTAG, reg))
        else:
            a('v_cmp_ne_u32 s[50:51], %s, v%d' % (sTAG, reg))
            if mask is not None:
                a('s_and_b64 s[50:51], s[50:51], %s' % mask)
            if first:
                a('s_mov_b64 s[48:49], s[50:51]')
            else:
                a('s_or_b64 s[48:49], s[48:49], s[50:51]')

    def poll(self, loads, checks):
        a = self.a
        top = a.newlabel('L_poll')
        done = a.newlabel('L_pdone')
        a('s_mov_b32 %s, %d' % (sSPIN, SPIN_MAX))
        a.label(top)
        loads()
        a('s_waitcnt vmcnt(0)')
        checks()
        a('s_cmp_eq_u64 s[48:49], 0')
        a('s_cbranch_scc1 %s' % done)
        a('s_sub_u32 %s, %s, 1' % (sSPIN, sSPIN))
        a('s_cmp_lg_u32 %s, 0' % sSPIN)
        a('s_cbranch_scc1 %s' % top)
        a.label(done)

    def allreduce(self, rs, tmps, op='add', steps=('x1', 'x2', 'r4', 'r8', 'p16')):
        a = self.a
        dpp = {'x1': 'quad_perm:[1,0,3,2]', 'x2': 'quad_perm:[2,3,0,1]', 'r4': 'row_ror:4',
               'r8': 'row_ror:8', 'hm': 'row_half_mirror'}
        for st in steps:
            if st in dpp:
                for r in rs:
                    a('v_%s_f32_dpp v%d, v%d, v%d %s row_mask:0xf bank_mask:0xf' % (op, r, r, r, dpp[st]))
            else:
                ins = 'v_permlane16_swap_b32' if st == 'p16' else 'v_permlane32_swap_b32'
                for r, t in zip(rs, tmps):
                    a('v_mov_b32 v%d, v%d' % (t, r))
                for r, t in zip(rs, tmps):
                    a('%s v%d, v%d' % (ins, r, t))
                for r, t in zip(rs, tmps):
                    a('v_%s_f32 v%d, v%d, v%d' % (op, r, r, t))

    def sparse(self, dst, src):
        for k in range(4):
            self.a('v_and_b32 v%d, v%d, v%d' % (dst + k, src, 3 + k))

    def barrier(self):
        self.a('s_barrier')

    def mfma(self, d, x, y, first):
        self.a('v_mfma_f32_16x16x32_bf16 %s, %s, %s, %s' % (v4(d), v4(x), v4(y), '0' if first else v4(d)))

    def prologue(self):
        a = self.a
        a('s_cmp_ge_u32 s2, 256')
        a('s_cbranch_scc1 L_exit')
        a('s_load_dwordx16 s[16:31], s[0:1], 0')
        a('s_load_dwordx8 s[32:39], s[0:1], 64')
        if self.stamps:
            for k in range(1, 16):
                a('s_mov_b64 %s, 0' % sp(60 + 2 * k))
        self.stamp(0)
        a('v_lshrrev_b32 v1, 6, v0')
        a('v_and_b32 v0, 63, v0')
        a('v_readfirstlane_b32 %s, v1' % sWID)
        a('s_and_b32 %s, s2, 7' % sX)
        a('s_lshr_b32 %s, s2, 3' % sI)
        a('s_and_b32 %s, %s, 3' % (sH, sI))
        a('s_lshl_b32 s44, %s, 2' % sX)
        a('s_add_u32 %s, %s, s44' % (sH, sH))
        a('s_lshr_b32 %s, %s, 2' % (sJ8, sI))
        a('s_lshr_b32 %s, %s, 2' % (sB, sJ8))
        a('s_and_b32 %s, %s, 3' % (sJ, sJ8))
        a('v_and_b32 v1, 15, v0')
        a('v_lshrrev_b32 v2, 4, v0')
        a('s_sub_u32 %s, %s, 1' % (sAW, sWID))
        a('s_cmp_lg_u32 %s, 0' % sWID)
        a('s_cbranch_scc1 L_att')

    def consts(self):
        a = self.a
        a('v_and_b32 v8, 7, v0')
        a('v_and_b32 v9, 1, v8')
        a('v_cmp_eq_u32 vcc, 1, v9')
        a('v_mov_b32 v9, 0xffff')
        a('v_mov_b32 v10, 0xffff0000')
        a('v_cndmask_b32 v9, v9, v10, vcc')
        a('v_lshrrev_b32 v8, 1, v8')
        for k in range(4):
            a('v_cmp_eq_u32 vcc, %d, v8' % k)
            a('v_cndmask_b32 v%d, 0, v9, vcc' % (3 + k))
        a('v_mov_b32 v7, 0xffffff00')
        a('s_mov_b32 %s, 0x0c0c0400' % sSEL)
        a('s_mov_b32 s58, 0xff00ff00')
        a('s_mov_b32 s59, 0xff00ff00')

    def tagcalc(self):
        a = self.a
        a('s_mul_i32 %s, %s, 0x9e3779b1' % (sTAG, sTAG))
        a('s_add_u32 %s, %s, 0x7f4a7c15' % (sTAG, sTAG))
        a('s_and_b32 %s, %s, 0xff' % (sT[0], sTAG))
        a('s_bfe_u32 %s, %s, 0x80008' % (sT[1], sTAG))
        a('s_bfe_u32 %s, %s, 0x80010' % (sT[2], sTAG))
        a('s_lshr_b32 %s, %s, 24' % (sT[3], sTAG))

    def load_xs(self, c5_sgpr, dst):
        a = self.a
        a('s_mul_i32 s44, %s, 40' % sI)
        a('s_lshl_b32 s45, %s, 3' % c5_sgpr)
        a('s_add_u32 s44, s44, s45')
        a('v_lshrrev_b32 v8, 5, v0')
        a('v_mul_u32_u24 v8, 1280, v8')
        a('v_add_u32 v8, s44, v8')
        a('global_load_dwordx2 %s, v8, %s' % (v2(dst), sp(pX)))

    def ln_finish(self, rm, rv):
        a = self.a
        a('v_cvt_pk_bf16_f32 v%d, v%d, v%d' % (rv, rm, rv))
        a('v_lshlrev_b32 v%d, 16, v%d' % (rm, rv))
        a('v_and_b32 v%d, 0xffff0000, v%d' % (rv, rv))
        a('v_add_f32 v%d, 0x%x, v%d' % (rv, f2u(1e-5), rv))
        a('v_cvt_pk_bf16_f32 v%d, v%d, v%d' % (rv, rv, rv))
        a('v_and_b32 v%d, 0xffff0000, v%d' % (rv, rv))
        a('v_sqrt_f32 v%d, v%d' % (rv, rv))
        a('v_cvt_pk_bf16_f32 v%d, v%d, v%d' % (rv, rv, rv))
        a('v_and_b32 v%d, 0xffff0000, v%d' % (rv, rv))
        a('v_rcp_f32 v%d, v%d' % (rv, rv))

    def comm(self):
        a = self.a
        a.label('L_comm')
        XR = 96
        WQ = 16
        XS = 14
        a('v_lshrrev_b32 v8, 5, v0')
        a('v_and_b32 v9, 31, v0')
        a('v_mul_u32_u24 v10, 1280, v8')
        a('v_mul_u32_u24 v11, 40, v9')
        a('v_add_u32 v10, v10, v11')
        a('s_mul_i32 s44, %s, %d' % (sJ8, 80 * 8192))
        a('s_lshl_b32 s45, %s, 8' % sH)
        a('s_add_u32 s44, s44, s45')
        a('v_mul_u32_u24 v12, %d, v2' % (20 * 8192))
        a('v_lshl_add_u32 v12, v1, 4, v12')
        a('v_add_u32 v12, s44, v12')
        a('s_waitcnt lgkmcnt(0)')
        a('s_load_dword %s, %s, %d' % (sTAG, sp(pWS), EPOCH))
        a('global_load_dwordx4 %s, v10, %s' % (v4(XR), sp(pX)))
        a('global_load_dwordx4 %s, v10, %s offset:16' % (v4(XR + 4), sp(pX)))
        a('global_load_dwordx2 %s, v10, %s offset:32' % (v2(XR + 8), sp(pX)))
        for n in range(20):
            a('global_load_dwordx4 %s, v12, %s%s' % (v4(WQ + 4 * n), sp(pWQ), self.nt))
            if n < 19:
                a('v_add_u32 v12, 8192, v12')
        self.barrier()
        a('s_setprio 3')
        a('s_mov_b32 %s, 4' % sC0)
        self.load_xs(sC0, XS)
        self.stamp(1)
        self.consts()
        a('s_getreg_b32 %s, hwreg(HW_REG_XCC_ID)' % sXCC)
        a('v_lshrrev_b32 v8, 5, v0')
        a('v_and_b32 v9, 31, v0')
        a('v_mul_u32_u24 v10, 2560, v8')
        a('v_mul_u32_u24 v11, 80, v9')
        a('v_add_u32 v13, v10, v11')
        F = 106
        a('s_waitcnt vmcnt(21)')
        self.stamp(2)
        for k in range(10):
            a('v_lshlrev_b32 v%d, 16, v%d' % (F + 2 * k, XR + k))
            a('v_and_b32 v%d, 0xffff0000, v%d' % (F + 2 * k + 1, XR + k))
        a('v_add_f32 v8, v%d, v%d' % (F, F + 1))
        a('v_add_f32 v9, v%d, v%d' % (F + 2, F + 3))
        for k in range(4, 20, 2):
            a('v_add_f32 v8, v8, v%d' % (F + k))
            a('v_add_f32 v9, v9, v%d' % (F + k + 1))
        a('v_add_f32 v8, v8, v9')
        self.allreduce([8], [9])
        a('v_mul_f32 v8, 0x%x, v8' % f2u(1.0 / 640))
        a('v_mov_b32 v9, 0')
        a('v_mov_b32 v10, 0')
        for k in range(0, 20, 2):
            a('v_sub_f32 v11, v%d, v8' % (F + k))
            a('v_sub_f32 v12, v%d, v8' % (F + k + 1))
            a('v_fmac_f32 v9, v11, v11')
            a('v_fmac_f32 v10, v12, v12')
        a('v_add_f32 v9, v9, v10')
        self.allreduce([9], [10])
        a('v_mul_f32 v9, 0x%x, v9' % f2u(1.0 / 640))
        self.ln_finish(8, 9)
        for k in range(0, 20, 2):
            a('v_sub_f32 v10, v%d, v8' % (F + k))
            a('v_sub_f32 v11, v%d, v8' % (F + k + 1))
            a('v_cvt_pk_bf16_f32 v10, v10, v11')
            a('v_and_b32 v11, 0xffff0000, v10')
            a('v_lshlrev_b32 v10, 16, v10')
            a('v_mul_f32 v10, v10, v9')
            a('v_mul_f32 v11, v11, v9')
            a('v_cvt_pk_bf16_f32 v%d, v10, v10' % (F + k))
            a('v_cvt_pk_bf16_f32 v%d, v11, v11' % (F + k + 1))
        for k in range(5):
            a('ds_write_b128 v13, v[%d:%d] offset:%d' % (F + 4 * k, F + 4 * k + 3, XN_LDS + 16 * k))
        a('v_mov_b32 v10, 0')
        a('v_lshlrev_b32 v11, 2, v0')
        a('ds_write_b32 v11, v10 offset:%d' % H_LDS)
        a('v_bfe_u32 v8, v0, 3, 1')
        a('v_mul_u32_u24 v8, 2560, v8')
        a('v_mul_u32_u24 v9, 80, v2')
        a('s_mul_i32 s44, %s, 320' % sJ8)
        a('v_add3_u32 v8, v8, v9, s44')
        a('s_waitcnt lgkmcnt(0)')
        self.tagcalc()
        for k in range(5):
            a('ds_read_b128 v[%d:%d], v8 offset:%d' % (F + 4 * k, F + 4 * k + 3, XN_LDS + 16 * k))
        a('s_lshl_b32 s44, %s, 14' % sH)
        a('s_add_u32 s44, s44, %d' % QP)
        a('s_lshl_b32 s45, %s, 10' % sJ8)
        a('s_add_u32 s45, s45, s44')
        a('v_lshrrev_b32 v9, 1, v2')
        a('v_lshlrev_b32 v9, 13, v9')
        a('v_and_b32 v10, 1, v2')
        a('v_lshl_add_u32 v10, v1, 1, v10')
        a('v_lshl_add_u32 v12, v10, 4, v9')
        a('v_add_u32 v12, s45, v12')
        a('s_lshl_b32 s45, %s, 13' % sB)
        a('s_add_u32 s45, s45, s44')
        a('s_add_u32 s45, s45, 4096')
        a('v_lshrrev_b32 v9, 5, v0')
        a('v_lshlrev_b32 v9, 10, v9')
        a('v_and_b32 v10, 31, v0')
        a('v_lshl_add_u32 v13, v10, 4, v9')
        a('v_add_u32 v13, s45, v13')
        a('s_waitcnt lgkmcnt(0)')
        self.stamp(3)
        A0, A1, D = 96, 100, 8
        self.sparse(A0, F)
        for n in range(20):
            if n < 19:
                self.sparse(A1 if n % 2 == 0 else A0, F + n + 1)
            a('s_waitcnt vmcnt(%d)' % (20 - n))
            self.mfma(D, A0 if n % 2 == 0 else A1, WQ + 4 * n, n == 0)
        P = 96
        a('v_mov_b32 v%d, %s' % (P + 2, sTAG))
        a('v_mov_b32 v%d, %s' % (P + 3, sXCC))
        a('v_mov_b32 v%d, %s' % (P + 6, sTAG))
        a('v_mov_b32 v%d, %s' % (P + 7, sXCC))
        a('v_mov_b32 v%d, v%d' % (P, D))
        a('v_mov_b32 v%d, v%d' % (P + 1, D + 1))
        a('v_mov_b32 v%d, v%d' % (P + 4, D + 2))
        a('v_mov_b32 v%d, v%d' % (P + 5, D + 3))
        a('global_store_dwordx4 v12, %s, %s sc1' % (v4(P), sp(pWS)))
        a('global_store_dwordx4 v12, %s, %s offset:512 sc1' % (v4(P + 4), sp(pWS)))
        self.stamp(4)
        G = 16

        def loads():
            for k in range(4):
                for hf in range(2):
                    a('global_load_dwordx4 %s, v13, %s offset:%d sc1' % (
                        v4(G + 8 * k + 4 * hf), sp(pWS), k * 2048 + hf * 512 - 4096))

        def checks():
            for k in range(8):
                self.check1(G + 4 * k + 2, k == 0)
        self.poll(loads, checks)
        self.stamp(5)
        for r, off in ((8, 0), (9, 1), (10, 4), (11, 5)):
            a('v_add_f32 v%d, v%d, v%d' % (r, G + off, G + 8 + off))
            a('v_add_f32 v%d, v%d, v%d' % (G + 16 + off, G + 16 + off, G + 24 + off))
        for r, off in ((8, 0), (9, 1), (10, 4), (11, 5)):
            a('v_add_f32 v%d, v%d, v%d' % (r, r, G + 16 + off))
        self.allreduce([8, 9, 10, 11], [48, 49, 50, 51], steps=('p32',))
        a('v_cvt_pk_bf16_f32 v8, v8, v9')
        a('v_cvt_pk_bf16_f32 v9, v10, v11')
        a('v_and_b32 v10, 31, v0')
        a('v_lshlrev_b32 v10, 3, v10')
        a('ds_write_b64 v10, v[8:9] offset:%d' % Q_LDS)
        a('s_waitcnt lgkmcnt(0)')
        self.barrier()
        self.stamp(6)
        a('s_lshl_b32 s44, %s, 13' % sH)
        a('s_add_u32 s44, s44, %d' % OP)
        a('s_lshl_b32 s45, %s, 10' % sJ8)
        a('s_add_u32 s45, s45, s44')
        a('v_lshlrev_b32 v60, 4, v0')
        a('v_add_u32 v12, s45, v60')
        a('v_lshrrev_b32 v9, 5, v0')
        a('v_lshlrev_b32 v9, 12, v9')
        a('v_add_u32 v9, s44, v9')
        a('v_and_b32 v10, 31, v0')
        a('v_lshl_add_u32 v13, v10, 4, v9')
        a('v_and_b32 v10, 3, v0')
        a('v_lshl_add_u32 v61, v10, 10, v9')
        a('v_lshlrev_b32 v62, 3, v0')
        self.wo_prep('4')
        self.e2b_prep()
        self.barrier()
        self.barrier()
        self.stamp(7)
        a('s_mov_b32 exec_hi, 1')
        for w in range(4):
            a('ds_read_b128 %s, v60 offset:%d' % (v4(16 + 4 * w), OW_LDS + 528 * w))
        a('s_waitcnt lgkmcnt(0)')
        for r in range(4):
            a('v_add_f32 v%d, v%d, v%d' % (16 + r, 16 + r, 20 + r))
            a('v_add_f32 v%d, v%d, v%d' % (24 + r, 24 + r, 28 + r))
        for r in range(4):
            a('v_add_f32 v%d, v%d, v%d' % (8 + r, 16 + r, 24 + r))
        self.tag4(8)
        a('global_store_dwordx4 v12, v[8:11], %s sc1' % sp(pWS))
        a('s_mov_b64 exec, -1')
        G = 20

        def loads():
            a('global_load_dwordx4 %s, v61, %s offset:512 sc1' % (v4(G + 16), sp(pWS)))
            for j in range(4):
                a('global_load_dwordx4 %s, v13, %s offset:%d sc1' % (v4(G + 4 * j), sp(pWS), j * 1024))

        def checks():
            for k in range(5):
                self.check4(G + 4 * k, 40, 41, k == 0)
        self.poll(loads, checks)
        self.stamp(8)
        a('v_and_b32 v40, v%d, v7' % (G + 16))
        a('v_mov_b32 v41, v40')
        self.allreduce([41], [], op='max', steps=('x1', 'x2'))
        a('v_sub_f32 v40, v40, v41')
        a('v_mul_f32 v40, 0x%x, v40' % f2u(LOG2E))
        a('v_exp_f32 v40, v40')
        a('v_mul_f32 v41, v40, v%d' % (G + 17))
        self.allreduce([41], [], steps=('x1', 'x2'))
        a('v_rcp_f32 v41, v41')
        a('v_mul_f32 v40, v40, v41')
        for r in range(4):
            a('v_mul_f32_dpp v%d, v40, v%d quad_perm:[0,0,0,0] row_mask:0xf bank_mask:0xf' % (8 + r, G + r))
        for j in range(1, 4):
            for r in range(4):
                a('v_fmac_f32_dpp v%d, v40, v%d quad_perm:[%d,%d,%d,%d] row_mask:0xf bank_mask:0xf' % (
                    8 + r, G + 4 * j + r, j, j, j, j))
        a('v_cvt_pk_bf16_f32 v8, v8, v9')
        a('v_cvt_pk_bf16_f32 v9, v10, v11')
        a('ds_write_b64 v62, v[8:9] offset:%d' % O2_LDS)
        a('s_waitcnt lgkmcnt(0)')
        self.barrier()
        self.stamp(9)
        self.wo_stage(XS, None)
        self.barrier()
        self.e2b()

    def wo_prep(self, m):
        a = self.a
        a('s_mov_b32 %s, %s' % (sC1, m))
        a('v_and_b32 v190, 1, v1')
        a('v_lshlrev_b32 v190, 8, v190')
        a('v_lshl_add_u32 v190, v2, 4, v190')
        a('v_lshrrev_b32 v191, 2, v1')
        a('v_lshl_add_u32 v191, v2, 3, v191')
        a('v_mul_u32_u24 v191, 160, v191')
        a('v_and_b32 v192, 3, v1')
        a('v_lshl_add_u32 v191, v192, 3, v191')
        a('s_lshl_b32 s44, %s, 5' % sC1)
        a('v_add_u32 v191, s44, v191')
        a('s_mul_i32 s44, %s, 20' % sJ8)
        a('s_lshl_b32 s45, %s, 2' % sC1)
        a('s_add_u32 s44, s44, s45')
        a('v_add_u32 v192, s44, v2')
        a('v_lshl_add_u32 v192, v192, 1, v1')
        a('v_lshlrev_b32 v192, 9, v192')
        a('s_lshl_b32 s44, %s, 4' % sH)
        a('s_add_u32 s44, s44, %d' % YP)
        a('v_add_u32 v192, s44, v192')
        a('s_mul_i32 s44, %s, 5' % sI)
        a('s_add_u32 s44, s44, %s' % sC1)
        a('s_lshl_b32 s44, s44, 10')
        a('s_add_u32 s44, s44, %d' % YP)
        a('v_lshlrev_b32 v193, 4, v0')
        a('v_add_u32 v193, s44, v193')
        a('v_lshrrev_b32 v194, 5, v0')
        a('v_lshlrev_b32 v194, 7, v194')
        a('s_lshl_b32 s44, %s, 2' % sC1)
        a('v_add_u32 v194, s44, v194')

    def wo_stage(self, XS, between):
        a = self.a
        OF, WF, D = 16, 32, 48
        for ks in range(4):
            a('ds_read_b128 %s, v190 offset:%d' % (v4(OF + 4 * ks), O2_LDS + 64 * ks))
            a('ds_read_b64_tr_b16 %s, v191 offset:%d' % (v2(WF + 4 * ks), WO_LDS + 32 * 160 * ks))
            a('ds_read_b64_tr_b16 %s, v191 offset:%d' % (v2(WF + 4 * ks + 2), WO_LDS + 32 * 160 * ks + 4 * 160))
        a('s_waitcnt lgkmcnt(0)')
        for ks in range(4):
            self.mfma(D, WF + 4 * ks, OF + 4 * ks, ks == 0)
        a('s_mov_b32 s46, 0x00030003')
        a('s_mov_b32 s47, 0x00030003')
        self.tag4(D)
        a('s_mov_b64 exec, s[46:47]')
        a('global_store_dwordx4 v192, %s, %s sc1' % (v4(D), sp(pWS)))
        a('s_mov_b64 exec, -1')
        self.stamp(10)
        if between:
            between()
        G = 16

        def loads():
            a('global_load_dwordx4 %s, v193, %s sc1' % (v4(G), sp(pWS)))

        def checks():
            self.check4(G, 20, 21, True)
        self.poll(loads, checks)
        self.stamp(11)
        self.allreduce([G, G + 1, G + 2, G + 3], [20, 21, 22, 23])
        a('v_lshlrev_b32 v56, 16, v%d' % XS)
        a('v_and_b32 v57, 0xffff0000, v%d' % XS)
        a('v_lshlrev_b32 v58, 16, v%d' % (XS + 1))
        a('v_and_b32 v59, 0xffff0000, v%d' % (XS + 1))
        a('v_cvt_pk_bf16_f32 v20, v%d, v%d' % (G, G + 1))
        a('v_cvt_pk_bf16_f32 v22, v%d, v%d' % (G + 2, G + 3))
        a('v_and_b32 v21, 0xffff0000, v20')
        a('v_lshlrev_b32 v20, 16, v20')
        a('v_and_b32 v23, 0xffff0000, v22')
        a('v_lshlrev_b32 v22, 16, v22')
        for k in range(4):
            a('v_add_f32 v%d, v%d, v%d' % (20 + k, 20 + k, 56 + k))
        for k in range(4):
            a('v_cvt_pk_bf16_f32 v%d, v%d, v%d' % (20 + k, 20 + k, 20 + k))
        a('s_mov_b32 s46, 1')
        a('s_mov_b32 s47, 1')
        a('s_mov_b64 exec, s[46:47]')
        for k in range(4):
            a('ds_write_b32 v194, v%d offset:%d' % (20 + k, H_LDS + 32 * k))
        a('s_mov_b64 exec, -1')
        a('s_waitcnt lgkmcnt(0)')
        self.stamp(12)

    def e2b_prep(self):
        a = self.a
        a('s_mul_i32 s44, %s, 27' % sX)
        a('s_add_u32 s44, s44, %s' % sI)
        a('s_lshl_b32 s45, s44, 12')
        a('s_add_u32 s45, s45, %d' % GP)
        a('v_and_b32 v8, 7, v0')
        a('v_lshrrev_b32 v9, 3, v0')
        a('v_lshlrev_b32 v180, 7, v8')
        a('v_lshl_add_u32 v180, v9, 4, v180')
        a('v_add_u32 v180, s45, v180')
        a('s_lshl_b32 s45, s44, 11')
        a('s_add_u32 s45, s45, %d' % CP)
        a('v_lshlrev_b32 v181, 6, v1')
        a('v_lshl_add_u32 v181, v2, 4, v181')
        a('v_add_u32 v181, s45, v181')
        a('s_lshl_b32 s45, %s, 10' % sX)
        a('s_add_u32 s45, s45, %d' % SP)
        a('v_bfe_u32 v182, v0, 3, 1')
        a('v_lshlrev_b32 v182, 5, v182')
        a('v_lshl_add_u32 v182, v2, 3, v182')
        a('v_add_u32 v182, v182, v8')
        a('v_lshlrev_b32 v182, 4, v182')
        a('v_add_u32 v182, s45, v182')
        a('v_and_b32 v183, 1, v2')
        a('v_lshl_add_u32 v183, v1, 1, v183')
        a('v_lshrrev_b32 v9, 1, v2')
        a('v_lshl_add_u32 v183, v183, 1, v9')
        a('v_mul_u32_u24 v183, 3456, v183')
        a('s_lshl_b32 s46, s44, 4')
        a('s_add_u32 s46, s46, %d' % DP)
        a('v_add_u32 v183, s46, v183')
        a('s_lshl_b32 s46, %s, 4' % sI)
        a('s_add_u32 s45, s45, s46')
        a('v_lshrrev_b32 v184, 5, v0')
        a('v_lshlrev_b32 v184, 9, v184')
        a('v_add_u32 v184, s45, v184')
        a('v_lshlrev_b32 v185, 2, v0')
        a('v_and_b32 v186, 1, v2')
        a('v_lshlrev_b32 v186, 1, v186')
        a('v_add_u32 v186, v186, v9')
        a('v_mul_u32_u24 v186, 2560, v186')
        a('v_lshl_add_u32 v186, v1, 4, v186')

    def e2b(self):
        a = self.a
        fin = a.newlabel('L_cend')
        a('ds_read_b32 v16, v185 offset:%d' % H_LDS)
        a('v_mov_b32 v18, %s' % sTAG)
        a('v_mov_b32 v19, %s' % sTAG)
        a('s_waitcnt lgkmcnt(0)')
        a('v_and_b32 v16, 0xffff0000, v16')
        a('v_mul_f32 v17, v16, v16')
        self.allreduce([16, 17], [20, 21])
        a('s_mov_b64 exec, s[46:47]')
        a('global_store_dwordx4 v184, v[16:19], %s sc1' % sp(pWS))
        a('s_mov_b64 exec, -1')
        a('s_cmp_ge_u32 %s, 27' % sI)
        a('s_cbranch_scc1 %s' % fin)
        DW = 96
        for rg in range(2):
            for m in range(5):
                a('ds_read_b128 %s, v186 offset:%d' % (v4(DW + 20 * rg + 4 * m), WD_LDS + rg * 1280 + m * 256))
        A0, A1 = 40, 44
        Gr, Cr, Sr = 56, 72, 80

        def loads():
            for n in range(2):
                a('global_load_dwordx4 %s, v181, %s offset:%d sc1' % (v4(Cr + 4 * n), sp(pWS), 1024 * n))
            a('global_load_dwordx4 %s, v182, %s sc1' % (v4(Sr), sp(pWS)))
            for n in range(4):
                a('global_load_dwordx4 %s, v180, %s offset:%d sc1' % (v4(Gr + 4 * n), sp(pWS), 1024 * n))

        def checks():
            for k in range(6):
                self.check4(Gr + 4 * k, 84, 85, k == 0)
            self.check1(Sr + 2, False)
        self.poll(loads, checks)
        self.stamp(13)
        for r in range(4):
            a('v_add_f32 v%d, v%d, v%d' % (Gr + r, Gr + r, Gr + 4 + r))
            a('v_add_f32 v%d, v%d, v%d' % (Gr + 8 + r, Gr + 8 + r, Gr + 12 + r))
            a('v_add_f32 v%d, v%d, v%d' % (Cr + r, Cr + r, Cr + 4 + r))
        for r in range(4):
            a('v_add_f32 v%d, v%d, v%d' % (Gr + r, Gr + r, Gr + 8 + r))
        allr = [Sr, Sr + 1, Gr, Gr + 1, Gr + 2, Gr + 3, Cr, Cr + 1, Cr + 2, Cr + 3]
        self.allreduce(allr, [], steps=('x1', 'x2', 'hm'))
        self.allreduce([Sr, Sr + 1], [84, 85], steps=('p16',))
        self.allreduce([Cr, Cr + 1, Cr + 2, Cr + 3], [], steps=('r8',))
        self.allreduce([Sr, Sr + 1], [84, 85], steps=('p32',))
        a('v_mul_f32 v%d, 0x%x, v%d' % (Sr, f2u(1.0 / 640), Sr))
        a('v_mul_f32 v%d, 0x%x, v%d' % (Sr + 1, f2u(1.0 / 640), Sr + 1))
        a('v_fma_f32 v%d, -v%d, v%d, v%d' % (Sr + 1, Sr, Sr, Sr + 1))
        a('v_max_f32 v%d, 0, v%d' % (Sr + 1, Sr + 1))
        self.ln_finish(Sr, Sr + 1)
        for r in range(4):
            a('v_fma_f32 v%d, -v%d, v%d, v%d' % (Gr + r, Sr, Cr + r, Gr + r))
        for r in range(4):
            a('v_mul_f32 v%d, v%d, v%d' % (Gr + r, Gr + r, Sr + 1))
        a('v_permlane32_swap_b32 v%d, v%d' % (Gr, Gr + 2))
        a('v_permlane32_swap_b32 v%d, v%d' % (Gr + 1, Gr + 3))
        a('v_cvt_pk_bf16_f32 v84, v%d, v%d' % (Gr, Gr + 1))
        a('v_cvt_pk_bf16_f32 v86, v%d, v%d' % (Gr + 2, Gr + 3))
        a('v_and_b32 v85, 0xffff0000, v84')
        a('v_lshlrev_b32 v84, 16, v84')
        a('v_and_b32 v87, 0xffff0000, v86')
        a('v_lshlrev_b32 v86, 16, v86')
        a('v_mul_f32 v88, 0x%x, v84' % f2u(-LOG2E))
        a('v_mul_f32 v89, 0x%x, v85' % f2u(-LOG2E))
        a('v_exp_f32 v88, v88')
        a('v_exp_f32 v89, v89')
        a('v_add_f32 v88, 1.0, v88')
        a('v_add_f32 v89, 1.0, v89')
        a('v_rcp_f32 v88, v88')
        a('v_rcp_f32 v89, v89')
        a('v_mul_f32 v84, v84, v88')
        a('v_mul_f32 v85, v85, v89')
        a('v_cvt_pk_bf16_f32 v84, v84, v85')
        a('v_and_b32 v85, 0xffff0000, v84')
        a('v_lshlrev_b32 v84, 16, v84')
        a('v_mul_f32 v84, v84, v86')
        a('v_mul_f32 v85, v85, v87')
        a('v_cvt_pk_bf16_f32 v84, v84, v84')
        a('v_cvt_pk_bf16_f32 v85, v85, v85')
        self.sparse(A0, 84)
        self.sparse(A1, 85)
        a('s_waitcnt lgkmcnt(0)')
        DD = 56
        for m in range(5):
            self.mfma(DD + 4 * m, A0, DW + 4 * m, True)
        for m in range(5):
            self.mfma(DD + 4 * m, A1, DW + 20 + 4 * m, False)
        for m in range(5):
            self.tag4(DD + 4 * m)
            a('global_store_dwordx4 v183, %s, %s sc1' % (v4(DD + 4 * m), sp(pWS)))
            if m < 4:
                a('v_add_u32 v183, %d, v183' % (64 * 3456))
        self.stamp(14)
        a.label(fin)
        self.end_wave()

    def attention(self):
        a = self.a
        a.label('L_att')
        a.reset()
        KR, VR, GU, QF, S = 16, 80, 144, 164, 164
        S = 168 + 12
        S = 196
        XS = 14
        a('s_lshl_b32 s44, %s, 5' % sB)
        a('s_add_u32 s44, s44, %s' % sH)
        a('s_lshl_b32 s44, s44, 20')
        a('s_lshl_b32 s45, %s, 16' % sJ)
        a('s_add_u32 s44, s44, s45')
        a('s_lshl_b32 s45, %s, 14' % sAW)
        a('s_add_u32 s44, s44, s45')
        a('s_add_u32 s44, s44, %d' % (3072 * 256 + 4096))
        a('v_lshlrev_b32 v8, 8, v1')
        a('v_lshl_add_u32 v8, v2, 4, v8')
        a('v_lshlrev_b32 v9, 10, v2')
        a('v_lshl_add_u32 v9, v1, 4, v9')
        a('v_add_u32 v8, s44, v8')
        a('v_add_u32 v9, s44, v9')
        a('v_add_u32 v10, 8192, v8')
        a('v_add_u32 v11, 8192, v9')
        a('s_waitcnt lgkmcnt(0)')
        a('s_load_dword %s, %s, %d' % (sTAG, sp(pWS), EPOCH))
        self.barrier()
        for bb in range(4):
            for m in range(4):
                a('global_load_dwordx4 %s, v%d, %s offset:%d%s' % (
                    v4(KR + 16 * bb + 4 * m), 8 if bb < 2 else 10, sp(pK), (bb & 1) * 4096 + m * 64 - 4096, self.nt))
        for bb in range(4):
            for r in range(4):
                a('global_load_dwordx4 %s, v%d, %s offset:%d%s' % (
                    v4(VR + 16 * bb + 4 * r), 9 if bb < 2 else 11, sp(pV), (bb & 1) * 4096 + r * 256 - 4096, self.nt))
        n_after_v = 0
        if 'notouch' not in self.opts:
            a('s_min_u32 s44, %s, 4' % sX)
            a('s_mul_i32 s45, %s, 5' % sI)
            a('s_add_u32 s44, s44, s45')
            a('s_mul_i32 s44, s44, 6912')
            a('s_add_u32 s44, s44, %d' % DP)
            a('s_add_u32 s46, s44, %d' % (6912 - 4096))
            l2 = a.newlabel('L_pt')
            a('s_cmp_eq_u32 %s, 0' % sAW)
            a('s_cbranch_scc1 %s' % l2)
            a('s_min_u32 s47, %s, 26' % sI)
            a('s_mul_i32 s44, %s, 27' % sX)
            a('s_add_u32 s47, s47, s44')
            a('s_lshl_b32 s44, s47, 12')
            a('s_add_u32 s44, s44, %d' % GP)
            a('s_lshl_b32 s46, s47, 11')
            a('s_add_u32 s46, s46, %d' % CP)
            a('s_cmp_eq_u32 %s, 1' % sAW)
            a('s_cbranch_scc1 %s' % l2)
            a('s_lshl_b32 s44, s45, 10')
            a('s_add_u32 s44, s44, %d' % YP)
            a('s_add_u32 s46, s44, 1024')
            a('s_cmp_eq_u32 %s, 2' % sAW)
            a('s_cbranch_scc1 %s' % l2)
            a('s_lshl_b32 s44, %s, 13' % sH)
            a('s_add_u32 s44, s44, %d' % OP)
            a('s_add_u32 s46, s44, 4096')
            a.label(l2)
            a('v_lshlrev_b32 v12, 6, v0')
            a('v_add_u32 v13, s46, v12')
            a('v_add_u32 v12, s44, v12')
            a('global_load_dword v212, v12, %s sc1' % sp(pWS))
            a('global_load_dword v213, v13, %s sc1' % sp(pWS))
            a('v_and_b32 v12, 31, v0')
            a('v_lshlrev_b32 v12, 6, v12')
            a('global_load_dword v214, v12, %s' % sp(pOUT))
            n_after_v += 3
        a('s_mul_i32 s44, %s, %d' % (sH, 128 * 1280))
        a('s_mul_i32 s45, %s, 160' % sJ8)
        a('s_add_u32 s44, s44, s45')
        a('s_mul_i32 s45, %s, 320' % sAW)
        a('s_mul_i32 s46, %s, 5120' % sAW)
        for t in range(5):
            a('v_add_u32 v10, s45, v0')
            if t:
                a('v_add_u32 v10, %d, v10' % (64 * t))
            a('v_mul_u32_u24 v11, 6554, v10')
            a('v_lshrrev_b32 v11, 16, v11')
            a('v_mul_u32_u24 v11, 1120, v11')
            a('v_lshl_add_u32 v11, v10, 4, v11')
            a('v_add_u32 v11, s44, v11')
            a('s_add_u32 m0, s46, %d' % (WO_LDS + 1024 * t))
            a('global_load_lds_dwordx4 v11, %s%s' % (sp(pWO), self.nt))
            n_after_v += 1
        n_after_wo = 0
        a('s_lshl_b32 s44, %s, 4' % sAW)
        a('v_add_u32 v10, s44, v1')
        a('v_cmp_gt_u32 s[40:41], 54, v10')
        a('v_min_u32 v10, 53, v10')
        a('v_cmp_le_u32 vcc, 27, v10')
        a('v_subrev_u32 v11, 27, v10')
        a('v_cndmask_b32 v11, v10, v11, vcc')
        a('v_mov_b32 v12, s%d' % pWG)
        a('v_mov_b32 v13, s%d' % pWU)
        a('v_cndmask_b32 v12, v12, v13, vcc')
        a('v_mov_b32 v13, s%d' % (pWG + 1))
        a('v_mov_b32 v8, s%d' % (pWU + 1))
        a('v_cndmask_b32 v13, v13, v8, vcc')
        a('v_cndmask_b32 v9, 0, 1, vcc')
        a('s_mul_i32 s44, %s, %d' % (sI, 20 * 3456))
        a('s_mul_i32 s45, %s, 432' % sX)
        a('s_add_u32 s44, s44, s45')
        a('v_mul_u32_u24 v8, 3456, v2')
        a('v_lshl_add_u32 v8, v11, 4, v8')
        a('v_add_u32 v8, s44, v8')
        a('v_add_co_u32 v12, vcc, v12, v8')
        a('v_addc_co_u32 v13, vcc, 0, v13, vcc')
        for n in range(5):
            a('global_load_dwordx4 %s, v[12:13], off%s' % (v4(GU + 4 * n), self.nt))
            if n < 4:
                a('v_add_co_u32 v12, vcc, %d, v12' % (4 * 3456))
                a('v_addc_co_u32 v13, vcc, 0, v13, vcc')
            n_after_wo += 1
        a('s_mul_i32 s44, %s, 27' % sX)
        a('v_add_u32 v11, s44, v11')
        a('v_lshlrev_b32 v11, 5, v11')
        a('v_add_u32 v11, %s, v11' % sI)
        a('v_and_b32 v8, 1, v2')
        a('v_lshl_add_u32 v8, v9, 1, v8')
        a('v_lshl_add_u32 v13, v11, 2, v8')
        a('v_lshlrev_b32 v13, 4, v13')
        a('v_add_u32 v13, %d, v13' % CP)
        a('v_lshrrev_b32 v12, 1, v2')
        a('v_lshl_add_u32 v12, v8, 1, v12')
        a('v_lshl_add_u32 v12, v11, 3, v12')
        a('v_lshlrev_b32 v12, 4, v12')
        a('v_add_u32 v12, %d, v12' % GP)
        a('s_min_u32 s44, %s, 26' % sI)
        a('s_lshl_b32 s44, s44, 3')
        a('s_mul_i32 s45, %s, 216' % sX)
        a('s_add_u32 s44, s44, s45')
        a('s_mul_i32 s44, s44, 1280')
        a('v_lshlrev_b32 v8, 4, v0')
        a('v_add_u32 v8, s44, v8')
        a('s_mul_i32 s45, %s, 3072' % sAW)
        for t in range(3):
            a('s_add_u32 s46, s45, %d' % (1024 * t))
            a('s_add_u32 m0, s46, %d' % WD_LDS)
            a('s_min_u32 s46, s46, 9216')
            a('v_add_u32 v9, s46, v8')
            a('global_load_lds_dwordx4 v9, %s%s' % (sp(pWD), self.nt))
            n_after_wo += 1
        self.load_xs(sAW, XS)
        n_after_wo += 1
        self.stamp(1)
        self.consts()
        self.wo_prep(sAW)
        a('v_lshlrev_b32 v180, 4, v2')
        a('v_and_b32 v181, 1, v2')
        a('v_lshl_add_u32 v181, v1, 1, v181')
        a('v_lshlrev_b32 v181, 4, v181')
        a('v_lshrrev_b32 v182, 5, v0')
        a('v_lshl_add_u32 v181, v182, 3, v181')
        a('s_mul_i32 s44, %s, 528' % sAW)
        a('v_add_u32 v181, s44, v181')
        a('v_mov_b32 v185, s44')
        a('s_lshl_b32 s44, %s, 2' % sAW)
        a('v_mov_b32 v182, s44')
        a('v_mov_b32 v183, 0')
        a('v_bfe_u32 v184, v0, 3, 1')
        a('v_lshlrev_b32 v184, 7, v184')
        a('v_lshl_add_u32 v184, v2, 5, v184')
        a('s_waitcnt lgkmcnt(0)')
        self.tagcalc()
        self.barrier()
        self.stamp(2)
        for m in range(4):
            a('ds_read_b128 %s, v180 offset:%d' % (v4(QF + 4 * m), Q_LDS + 64 * m))
        tail = 16 + n_after_v + n_after_wo
        a('s_waitcnt lgkmcnt(0)')
        for bb in range(4):
            a('s_waitcnt vmcnt(%d)' % (tail + 4 * (3 - bb)))
            for m in range(4):
                self.mfma(S + 4 * bb, KR + 16 * bb + 4 * m, QF + 4 * m, m == 0)
        self.stamp(3)
        sc = f2u(128 ** -0.5)
        for k in range(0, 16, 2):
            a('v_cvt_pk_bf16_f32 v8, v%d, v%d' % (S + k, S + k + 1))
            a('v_and_b32 v9, 0xffff0000, v8')
            a('v_lshlrev_b32 v8, 16, v8')
            a('v_mul_f32 v8, 0x%x, v8' % sc)
            a('v_mul_f32 v9, 0x%x, v9' % sc)
            a('v_cvt_pk_bf16_f32 v8, v8, v9')
            a('v_and_b32 v%d, 0xffff0000, v8' % (S + k + 1))
            a('v_lshlrev_b32 v%d, 16, v8' % (S + k))
        a('v_max3_f32 v8, v%d, v%d, v%d' % (S, S + 1, S + 2))
        a('v_max3_f32 v9, v%d, v%d, v%d' % (S + 3, S + 4, S + 5))
        a('v_max3_f32 v8, v8, v%d, v%d' % (S + 6, S + 7))
        a('v_max3_f32 v9, v9, v%d, v%d' % (S + 8, S + 9))
        a('v_max3_f32 v8, v8, v%d, v%d' % (S + 10, S + 11))
        a('v_max3_f32 v9, v9, v%d, v%d' % (S + 12, S + 13))
        a('v_max3_f32 v8, v8, v%d, v%d' % (S + 14, S + 15))
        a('v_max_f32 v8, v8, v9')
        self.allreduce([8], [9], op='max', steps=('p16', 'p32'))
        a('ds_write_b32 v182, v8 offset:%d' % MX_LDS)
        a('s_waitcnt lgkmcnt(0)')
        self.barrier()
        a('ds_read_b128 v[16:19], v183 offset:%d' % MX_LDS)
        a('s_waitcnt lgkmcnt(0)')
        a('v_max3_f32 v8, v16, v17, v18')
        a('v_max_f32 v8, v8, v19')
        for k in range(16):
            a('v_sub_f32 v%d, v%d, v8' % (S + k, S + k))
        for k in range(16):
            a('v_mul_f32 v%d, 0x%x, v%d' % (S + k, f2u(LOG2E), S + k))
        for k in range(16):
            a('v_exp_f32 v%d, v%d' % (S + k, S + k))
        a('v_add_f32 v9, v%d, v%d' % (S, S + 1))
        a('v_add_f32 v10, v%d, v%d' % (S + 2, S + 3))
        for k in range(4, 16, 2):
            a('v_add_f32 v9, v9, v%d' % (S + k))
            a('v_add_f32 v10, v10, v%d' % (S + k + 1))
        a('v_add_f32 v9, v9, v10')
        self.allreduce([9], [10], steps=('p16', 'p32'))
        a('v_mul_f32 v8, 0.5, v8')
        a('v_mul_f32 v8, 0.5, v8')
        a('v_mov_b32 v10, 0')
        a('v_mov_b32 v11, 0')
        a('s_mov_b64 exec, 1')
        a('ds_write_b128 v185, v[8:11] offset:%d' % (OW_LDS + 512))
        a('s_mov_b64 exec, -1')
        for k in range(16):
            a('v_cvt_pk_bf16_f32 v186, v%d, v%d' % (S + k, S + k))
            a('v_and_b32 v186, 0xffff0000, v186')
            a('v_sub_f32 v186, v%d, v186' % (S + k))
            a('v_cndmask_b32 v186, v%d, v186, %s' % (S + k, HIROWS))
            a('v_cvt_pk_bf16_f32 v186, v186, v186')
            self.sparse(KR + 4 * k, 186)
        self.stamp(4)
        O = 164
        for k in range(16):
            a('s_waitcnt vmcnt(%d)' % (15 - k + n_after_v + n_after_wo))
            self.mfma(O, KR + 4 * k, VR + 4 * k, k == 0)
        self.stamp(5)
        a('v_permlane32_swap_b32 v%d, v%d' % (O, O + 2))
        a('v_permlane32_swap_b32 v%d, v%d' % (O + 1, O + 3))
        a('v_add_f32 v%d, v%d, v%d' % (O, O, O + 2))
        a('v_add_f32 v%d, v%d, v%d' % (O + 1, O + 1, O + 3))
        a('ds_write_b64 v181, %s offset:%d' % (v2(O), OW_LDS))
        a('s_waitcnt lgkmcnt(0)')
        self.barrier()
        self.stamp(6)
        a('s_waitcnt vmcnt(%d)' % n_after_wo)
        self.barrier()
        self.stamp(7)
        A0, A1 = 64, 68

        def colsum():
            D = 72
            a('v_mov_b32 v76, 0x3f803f80')
            self.sparse(A0, 76)
            a('s_waitcnt vmcnt(%d)' % (n_after_wo - 5 + 1))
            for n in range(5):
                self.mfma(D, A0, GU + 4 * n, n == 0)
            a('s_mov_b32 s46, s40')
            a('s_mov_b32 s47, 0')
            self.tag4(D)
            a('s_mov_b64 exec, s[46:47]')
            a('global_store_dwordx4 v13, %s, %s sc1' % (v4(D), sp(pWS)))
            a('s_mov_b64 exec, -1')
            self.stamp(8)
        self.wo_stage(XS, colsum)
        self.barrier()
        self.stamp(9)
        HD = 80
        a('ds_read_b128 %s, v184 offset:%d' % (v4(HD), H_LDS))
        a('ds_read_b32 v%d, v184 offset:%d' % (HD + 4, H_LDS + 16))
        a('s_waitcnt lgkmcnt(0)')
        D = 88
        self.sparse(A0, HD)
        for n in range(5):
            if n < 4:
                self.sparse(A1 if n % 2 == 0 else A0, HD + n + 1)
            self.mfma(D, A0 if n % 2 == 0 else A1, GU + 4 * n, n == 0)
        self.tag4(D)
        a('s_mov_b64 exec, s[40:41]')
        a('global_store_dwordx4 v12, %s, %s sc1' % (v4(D), sp(pWS)))
        a('s_mov_b64 exec, -1')
        self.stamp(13)
        self.final()

    def final(self):
        a = self.a
        l_end = a.newlabel('L_aend')
        a('s_cmp_lg_u32 %s, 0' % sAW)
        a('s_cbranch_scc1 %s' % l_end)
        a('s_cmp_ge_u32 %s, 5' % sX)
        a('s_cbranch_scc1 %s' % l_end)
        a('s_mul_i32 s44, %s, 5' % sI)
        a('s_add_u32 s44, s44, %s' % sX)
        a('s_mul_i32 s45, s44, 6912')
        a('s_add_u32 s45, s45, %d' % DP)
        a('v_lshrrev_b32 v8, 5, v0')
        a('v_mul_u32_u24 v9, 3456, v8')
        a('v_and_b32 v10, 31, v0')
        a('v_lshl_add_u32 v9, v10, 4, v9')
        a('v_add_u32 v9, s45, v9')
        a('v_mul_u32_u24 v10, 1280, v8')
        a('s_lshl_b32 s45, s44, 3')
        a('v_add_u32 v10, s45, v10')
        a('v_lshlrev_b32 v11, 7, v8')
        a('s_lshl_b32 s45, %s, 2' % sX)
        a('v_add_u32 v11, s45, v11')
        for k in range(4):
            a('ds_read_b32 v%d, v11 offset:%d' % (48 + k, H_LDS + 32 * k))
        G = 16
        for k in range(4):
            a('v_mov_b32 v%d, 0' % (G + 24 + k))
        a('s_mov_b32 s46, 0x00ffffff')
        a('s_mov_b32 s47, 0x00ffffff')
        a('s_waitcnt lgkmcnt(0)')
        for k in range(4):
            a('v_and_b32 v%d, 0xffff0000, v%d' % (48 + k, 48 + k))

        def loads():
            for n in range(6):
                a('global_load_dwordx4 %s, v9, %s offset:%d sc1' % (v4(G + 4 * n), sp(pWS), 512 * n))
            a('s_mov_b64 exec, s[46:47]')
            a('global_load_dwordx4 %s, v9, %s offset:%d sc1' % (v4(G + 24), sp(pWS), 512 * 6))
            a('s_mov_b64 exec, -1')

        def checks():
            for k in range(6):
                self.check4(G + 4 * k, 44, 45, k == 0)
            self.check4(G + 24, 44, 45, False, mask='s[46:47]')
        self.poll(loads, checks)
        self.stamp(14)
        for r in range(4):
            a('v_add_f32 v%d, v%d, v%d' % (G + r, G + r, G + 4 + r))
            a('v_add_f32 v%d, v%d, v%d' % (G + 8 + r, G + 8 + r, G + 12 + r))
            a('v_add_f32 v%d, v%d, v%d' % (G + 16 + r, G + 16 + r, G + 20 + r))
        for r in range(4):
            a('v_add_f32 v%d, v%d, v%d' % (G + r, G + r, G + 8 + r))
            a('v_add_f32 v%d, v%d, v%d' % (G + 16 + r, G + 16 + r, G + 24 + r))
        for r in range(4):
            a('v_add_f32 v%d, v%d, v%d' % (G + r, G + r, G + 16 + r))
        self.allreduce([G, G + 1, G + 2, G + 3], [20, 21, 22, 23])
        a('v_cvt_pk_bf16_f32 v20, v%d, v%d' % (G, G + 1))
        a('v_cvt_pk_bf16_f32 v22, v%d, v%d' % (G + 2, G + 3))
        a('v_and_b32 v21, 0xffff0000, v20')
        a('v_lshlrev_b32 v20, 16, v20')
        a('v_and_b32 v23, 0xffff0000, v22')
        a('v_lshlrev_b32 v22, 16, v22')
        for k in range(4):
            a('v_add_f32 v%d, v%d, v%d' % (20 + k, 20 + k, 48 + k))
        a('v_cvt_pk_bf16_f32 v20, v20, v21')
        a('v_cvt_pk_bf16_f32 v21, v22, v23')
        a('s_mov_b32 s46, 1')
        a('s_mov_b32 s47, 1')
        a('s_mov_b64 exec, s[46:47]')
        a('global_store_dwordx2 v10, v[20:21], %s' % sp(pOUT))
        a('s_cmp_lg_u32 s2, 0')
        a('s_cbranch_scc1 %s' % l_end)
        a('s_mov_b64 exec, 1')
        a('v_mov_b32 v24, %s' % sTAG)
        a('v_mov_b32 v25, %d' % EPOCH)
        a('global_store_dword v25, v24, %s sc1' % sp(pWS))
        a.label(l_end)
        self.end_wave()

    def build(self):
        a = self.a
        hdr = open('cdna_kernels/%s.s.ref' % NAME).read().split('\n')
        top = []
        for ln in hdr:
            if ln.startswith('; @launch'):
                top.append('; @launch grid=(256,1,1) block=(%d,1,1) lds=%d' % (64 * NWAVES, LDS_BYTES))
                break
            top.append(ln)
        out = '\n'.join(top) + '\n'
        out += '.amdgcn_target "amdgcn-amd-amdhsa--gfx950"\n.text\n.globl %s_kernel\n.p2align 8\n' % NAME
        out += '.type %s_kernel,@function\n%s_kernel:\n' % (NAME, NAME)
        self.prologue()
        self.comm()
        self.attention()
        a.label('L_exit')
        a('s_endpgm')
        out += a.text()
        out += '''.section .rodata,"a"
.p2align 6
.amdhsa_kernel %s_kernel
  .amdhsa_next_free_vgpr 216
  .amdhsa_next_free_sgpr 102
  .amdhsa_accum_offset 216
  .amdhsa_group_segment_fixed_size 0
  .amdhsa_kernarg_size 96
  .amdhsa_user_sgpr_count 2
  .amdhsa_user_sgpr_kernarg_segment_ptr 1
  .amdhsa_system_sgpr_workgroup_id_x 1
  .amdhsa_float_denorm_mode_32 3
.end_amdhsa_kernel
''' % NAME
        return out


if __name__ == '__main__':
    outp = sys.argv[1]
    opts = sys.argv[2:]
    open(outp, 'w').write(Gen(stamps='stamps' in opts, opts=opts).build())
```

```python
import struct
import sys
from asmlib import Asm

NAME = 'sequential_preLN__sliding_block_cached__swiglu_ffn__decode'


def f2u(x):
    return struct.unpack('<I', struct.pack('<f', x))[0]


EPOCH = 0
QP = 0x1000
OP = 0x81000
YP = 0xC1000
GP = 0xE9000
CP = 0x200000
SP = 0x26C000
DP = 0x26E000
TS = 0x600000

WO_LDS = 0
WD_LDS = 20480
XN_LDS = 32768
Q_LDS = 37888
MX_LDS = 38144
OW_LDS = 38160
H_LDS = OW_LDS + 4 * 528
O2_LDS = H_LDS + 256
LDS_BYTES = 41216

sWID, sX, sI, sH, sJ8, sB, sJ, sAW = 's3', 's4', 's5', 's6', 's7', 's8', 's9', 's10'
sTAG = 's11'
sT = ['s12', 's13', 's14', 's15']
pX, pK, pV, pWQ, pWO, pWG, pWU = 16, 18, 20, 22, 24, 28, 30
pWD, pOUT, pDBG, pWS = 32, 34, 36, 38
sSEL = 's53'
sSPIN = 's52'
sXCC = 's54'
sC0, sC1, sC2 = 's55', 's56', 's57'
HIROWS = 's[58:59]'
SPIN_MAX = 200000
NWAVES = 5
LOG2E = 1.4426950408889634


def sp(n):
    return 's[%d:%d]' % (n, n + 1)


def v4(n):
    return 'v[%d:%d]' % (n, n + 3)


def v2(n):
    return 'v[%d:%d]' % (n, n + 1)


class Gen:
    def __init__(self, stamps=False, opts=()):
        self.a = Asm()
        self.stamps = stamps
        self.opts = set(opts)
        self.nt = '' if 'nont' in self.opts else ' nt'

    def stamp(self, k):
        if self.stamps:
            self.a('s_memrealtime %s' % sp(60 + 2 * k))

    def end_wave(self):
        a = self.a
        if self.stamps:
            a('s_mov_b64 exec, -1')
            self.stamp(15)
            if 'dbg' in self.opts:
                a('s_memtime s[94:95]')
            a('s_waitcnt lgkmcnt(0)')
            if 'dbg' in self.opts:
                lab = a.newlabel('L_dbg')
                a('s_cmp_lg_u32 s2, 0')
                a('s_cbranch_scc1 %s' % lab)
                a('s_cmp_lg_u32 %s, 1' % sWID)
                a('s_cbranch_scc1 %s' % lab)
                a('v_mov_b32 v200, 0')
                a('s_sub_u32 s44, s94, s92')
                a('v_writelane_b32 v200, s44, 0')
                for k in range(1, 16):
                    a('s_sub_u32 s44, s%d, s60' % (60 + 2 * k))
                    a('v_writelane_b32 v200, s44, %d' % k)
                a('v_lshlrev_b32 v201, 2, v0')
                a('s_mov_b64 exec, 0xffff')
                a('global_store_dword v201, v200, %s' % sp(pDBG))
                a.label(lab)
                a('s_endpgm')
                return
            a('v_mov_b32 v200, 0')
            for k in range(16):
                a('v_writelane_b32 v200, s%d, %d' % (60 + 2 * k, k))
            a('s_mul_i32 s44, s2, %d' % NWAVES)
            a('s_add_u32 s44, s44, %s' % sWID)
            a('s_lshl_b32 s44, s44, 6')
            a('s_add_u32 s44, s44, %d' % TS)
            a('v_lshlrev_b32 v201, 2, v0')
            a('v_add_u32 v201, s44, v201')
            a('s_mov_b64 exec, 0xffff')
            a('global_store_dword v201, v200, %s' % sp(pWS))
        a('s_endpgm')

    def tag4(self, base):
        for k in range(4):
            self.a('v_and_or_b32 v%d, v%d, v7, %s' % (base + k, base + k, sT[k]))

    def check4(self, base, t0, t1, first, mask=None):
        a = self.a
        a('v_perm_b32 v%d, v%d, v%d, %s' % (t0, base + 1, base, sSEL))
        a('v_perm_b32 v%d, v%d, v%d, %s' % (t1, base + 3, base + 2, sSEL))
        a('v_lshl_or_b32 v%d, v%d, 16, v%d' % (t0, t1, t0))
        self.check1(t0, first, mask)

    def check1(self, reg, first, mask=None):
        a = self.a
        if first and mask is None:
            a('v_cmp_ne_u32 s[48:49], %s, v%d' % (sTAG, reg))
        else:
            a('v_cmp_ne_u32 s[50:51], %s, v%d' % (sTAG, reg))
            if mask is not None:
                a('s_and_b64 s[50:51], s[50:51], %s' % mask)
            if first:
                a('s_mov_b64 s[48:49], s[50:51]')
            else:
                a('s_or_b64 s[48:49], s[48:49], s[50:51]')

    def poll(self, loads, checks):
        a = self.a
        top = a.newlabel('L_poll')
        done = a.newlabel('L_pdone')
        a('s_mov_b32 %s, %d' % (sSPIN, SPIN_MAX))
        a.label(top)
        loads()
        a('s_waitcnt vmcnt(0)')
        checks()
        a('s_cmp_eq_u64 s[48:49], 0')
        a('s_cbranch_scc1 %s' % done)
        a('s_sub_u32 %s, %s, 1' % (sSPIN, sSPIN))
        a('s_cmp_lg_u32 %s, 0' % sSPIN)
        a('s_cbranch_scc1 %s' % top)
        a.label(done)

    def allreduce(self, rs, tmps, op='add', steps=('x1', 'x2', 'r4', 'r8', 'p16')):
        a = self.a
        dpp = {'x1': 'quad_perm:[1,0,3,2]', 'x2': 'quad_perm:[2,3,0,1]', 'r4': 'row_ror:4',
               'r8': 'row_ror:8', 'hm': 'row_half_mirror'}
        for st in steps:
            if st in dpp:
                for r in rs:
                    a('v_%s_f32_dpp v%d, v%d, v%d %s row_mask:0xf bank_mask:0xf' % (op, r, r, r, dpp[st]))
            else:
                ins = 'v_permlane16_swap_b32' if st == 'p16' else 'v_permlane32_swap_b32'
                for r, t in zip(rs, tmps):
                    a('v_mov_b32 v%d, v%d' % (t, r))
                for r, t in zip(rs, tmps):
                    a('%s v%d, v%d' % (ins, r, t))
                for r, t in zip(rs, tmps):
                    a('v_%s_f32 v%d, v%d, v%d' % (op, r, r, t))

    def sparse(self, dst, src):
        for k in range(4):
            self.a('v_and_b32 v%d, v%d, v%d' % (dst + k, src, 3 + k))

    def barrier(self):
        self.a('s_barrier')

    def mfma(self, d, x, y, first):
        self.a('v_mfma_f32_16x16x32_bf16 %s, %s, %s, %s' % (v4(d), v4(x), v4(y), '0' if first else v4(d)))

    def prologue(self):
        a = self.a
        a('s_cmp_ge_u32 s2, 256')
        a('s_cbranch_scc1 L_exit')
        a('s_load_dwordx16 s[16:31], s[0:1], 0')
        a('s_load_dwordx8 s[32:39], s[0:1], 64')
        if self.stamps:
            for k in range(1, 16):
                a('s_mov_b64 %s, 0' % sp(60 + 2 * k))
        self.stamp(0)
        if 'dbg' in self.opts:
            a('s_memtime s[92:93]')
        a('v_lshrrev_b32 v1, 6, v0')
        a('v_and_b32 v0, 63, v0')
        a('v_readfirstlane_b32 %s, v1' % sWID)
        a('s_and_b32 %s, s2, 7' % sX)
        a('s_lshr_b32 %s, s2, 3' % sI)
        a('s_and_b32 %s, %s, 3' % (sH, sI))
        a('s_lshl_b32 s44, %s, 2' % sX)
        a('s_add_u32 %s, %s, s44' % (sH, sH))
        a('s_lshr_b32 %s, %s, 2' % (sJ8, sI))
        a('s_lshr_b32 %s, %s, 2' % (sB, sJ8))
        a('s_and_b32 %s, %s, 3' % (sJ, sJ8))
        a('v_and_b32 v1, 15, v0')
        a('v_lshrrev_b32 v2, 4, v0')
        a('s_sub_u32 %s, %s, 1' % (sAW, sWID))
        a('s_cmp_lg_u32 %s, 0' % sWID)
        a('s_cbranch_scc1 L_att')

    def consts(self):
        a = self.a
        a('v_and_b32 v8, 7, v0')
        a('v_and_b32 v9, 1, v8')
        a('v_cmp_eq_u32 vcc, 1, v9')
        a('v_mov_b32 v9, 0xffff')
        a('v_mov_b32 v10, 0xffff0000')
        a('v_cndmask_b32 v9, v9, v10, vcc')
        a('v_lshrrev_b32 v8, 1, v8')
        for k in range(4):
            a('v_cmp_eq_u32 vcc, %d, v8' % k)
            a('v_cndmask_b32 v%d, 0, v9, vcc' % (3 + k))
        a('v_mov_b32 v7, 0xffffff00')
        a('s_mov_b32 %s, 0x0c0c0400' % sSEL)
        a('s_mov_b32 s58, 0xff00ff00')
        a('s_mov_b32 s59, 0xff00ff00')

    def tagcalc(self):
        a = self.a
        a('s_mul_i32 %s, %s, 0x9e3779b1' % (sTAG, sTAG))
        a('s_add_u32 %s, %s, 0x7f4a7c15' % (sTAG, sTAG))
        a('s_and_b32 %s, %s, 0xff' % (sT[0], sTAG))
        a('s_bfe_u32 %s, %s, 0x80008' % (sT[1], sTAG))
        a('s_bfe_u32 %s, %s, 0x80010' % (sT[2], sTAG))
        a('s_lshr_b32 %s, %s, 24' % (sT[3], sTAG))

    def load_xs(self, c5_sgpr, dst):
        a = self.a
        a('s_mul_i32 s44, %s, 40' % sI)
        a('s_lshl_b32 s45, %s, 3' % c5_sgpr)
        a('s_add_u32 s44, s44, s45')
        a('v_lshrrev_b32 v8, 5, v0')
        a('v_mul_u32_u24 v8, 1280, v8')
        a('v_add_u32 v8, s44, v8')
        a('global_load_dwordx2 %s, v8, %s' % (v2(dst), sp(pX)))

    def ln_finish(self, rm, rv):
        a = self.a
        a('v_cvt_pk_bf16_f32 v%d, v%d, v%d' % (rv, rm, rv))
        a('v_lshlrev_b32 v%d, 16, v%d' % (rm, rv))
        a('v_and_b32 v%d, 0xffff0000, v%d' % (rv, rv))
        a('v_add_f32 v%d, 0x%x, v%d' % (rv, f2u(1e-5), rv))
        a('v_cvt_pk_bf16_f32 v%d, v%d, v%d' % (rv, rv, rv))
        a('v_and_b32 v%d, 0xffff0000, v%d' % (rv, rv))
        a('v_sqrt_f32 v%d, v%d' % (rv, rv))
        a('v_cvt_pk_bf16_f32 v%d, v%d, v%d' % (rv, rv, rv))
        a('v_and_b32 v%d, 0xffff0000, v%d' % (rv, rv))
        a('v_rcp_f32 v%d, v%d' % (rv, rv))

    def comm(self):
        a = self.a
        a.label('L_comm')
        XR = 96
        WQ = 16
        XS = 14
        a('v_lshrrev_b32 v8, 5, v0')
        a('v_and_b32 v9, 31, v0')
        a('v_mul_u32_u24 v10, 1280, v8')
        a('v_mul_u32_u24 v11, 40, v9')
        a('v_add_u32 v10, v10, v11')
        a('s_mul_i32 s44, %s, %d' % (sJ8, 80 * 8192))
        a('s_lshl_b32 s45, %s, 8' % sH)
        a('s_add_u32 s44, s44, s45')
        a('v_mul_u32_u24 v12, %d, v2' % (20 * 8192))
        a('v_lshl_add_u32 v12, v1, 4, v12')
        a('v_add_u32 v12, s44, v12')
        a('s_waitcnt lgkmcnt(0)')
        a('s_load_dword %s, %s, %d' % (sTAG, sp(pWS), EPOCH))
        a('global_load_dwordx4 %s, v10, %s' % (v4(XR), sp(pX)))
        a('global_load_dwordx4 %s, v10, %s offset:16' % (v4(XR + 4), sp(pX)))
        a('global_load_dwordx2 %s, v10, %s offset:32' % (v2(XR + 8), sp(pX)))
        for n in range(20):
            a('global_load_dwordx4 %s, v12, %s%s' % (v4(WQ + 4 * n), sp(pWQ), self.nt))
            if n < 19:
                a('v_add_u32 v12, 8192, v12')
        self.barrier()
        a('s_setprio 3')
        a('s_mov_b32 %s, 4' % sC0)
        self.load_xs(sC0, XS)
        self.stamp(1)
        self.consts()
        a('s_getreg_b32 %s, hwreg(HW_REG_XCC_ID)' % sXCC)
        a('v_lshrrev_b32 v8, 5, v0')
        a('v_and_b32 v9, 31, v0')
        a('v_mul_u32_u24 v10, 2560, v8')
        a('v_mul_u32_u24 v11, 80, v9')
        a('v_add_u32 v13, v10, v11')
        F = 106
        a('s_waitcnt vmcnt(21)')
        self.stamp(2)
        for k in range(10):
            a('v_lshlrev_b32 v%d, 16, v%d' % (F + 2 * k, XR + k))
            a('v_and_b32 v%d, 0xffff0000, v%d' % (F + 2 * k + 1, XR + k))
        a('v_add_f32 v8, v%d, v%d' % (F, F + 1))
        a('v_add_f32 v9, v%d, v%d' % (F + 2, F + 3))
        for k in range(4, 20, 2):
            a('v_add_f32 v8, v8, v%d' % (F + k))
            a('v_add_f32 v9, v9, v%d' % (F + k + 1))
        a('v_add_f32 v8, v8, v9')
        self.allreduce([8], [9])
        a('v_mul_f32 v8, 0x%x, v8' % f2u(1.0 / 640))
        a('v_mov_b32 v9, 0')
        a('v_mov_b32 v10, 0')
        for k in range(0, 20, 2):
            a('v_sub_f32 v11, v%d, v8' % (F + k))
            a('v_sub_f32 v12, v%d, v8' % (F + k + 1))
            a('v_fmac_f32 v9, v11, v11')
            a('v_fmac_f32 v10, v12, v12')
        a('v_add_f32 v9, v9, v10')
        self.allreduce([9], [10])
        a('v_mul_f32 v9, 0x%x, v9' % f2u(1.0 / 640))
        self.ln_finish(8, 9)
        for k in range(0, 20, 2):
            a('v_sub_f32 v10, v%d, v8' % (F + k))
            a('v_sub_f32 v11, v%d, v8' % (F + k + 1))
            a('v_cvt_pk_bf16_f32 v10, v10, v11')
            a('v_and_b32 v11, 0xffff0000, v10')
            a('v_lshlrev_b32 v10, 16, v10')
            a('v_mul_f32 v10, v10, v9')
            a('v_mul_f32 v11, v11, v9')
            a('v_cvt_pk_bf16_f32 v%d, v10, v10' % (F + k))
            a('v_cvt_pk_bf16_f32 v%d, v11, v11' % (F + k + 1))
        for k in range(5):
            a('ds_write_b128 v13, v[%d:%d] offset:%d' % (F + 4 * k, F + 4 * k + 3, XN_LDS + 16 * k))
        a('v_mov_b32 v10, 0')
        a('v_lshlrev_b32 v11, 2, v0')
        a('ds_write_b32 v11, v10 offset:%d' % H_LDS)
        a('v_bfe_u32 v8, v0, 3, 1')
        a('v_mul_u32_u24 v8, 2560, v8')
        a('v_mul_u32_u24 v9, 80, v2')
        a('s_mul_i32 s44, %s, 320' % sJ8)
        a('v_add3_u32 v8, v8, v9, s44')
        a('s_waitcnt lgkmcnt(0)')
        self.tagcalc()
        for k in range(5):
            a('ds_read_b128 v[%d:%d], v8 offset:%d' % (F + 4 * k, F + 4 * k + 3, XN_LDS + 16 * k))
        a('s_lshl_b32 s44, %s, 14' % sH)
        a('s_add_u32 s44, s44, %d' % QP)
        a('s_lshl_b32 s45, %s, 10' % sJ8)
        a('s_add_u32 s45, s45, s44')
        a('v_lshrrev_b32 v9, 1, v2')
        a('v_lshlrev_b32 v9, 13, v9')
        a('v_and_b32 v10, 1, v2')
        a('v_lshl_add_u32 v10, v1, 1, v10')
        a('v_lshl_add_u32 v12, v10, 4, v9')
        a('v_add_u32 v12, s45, v12')
        a('s_lshl_b32 s45, %s, 13' % sB)
        a('s_add_u32 s45, s45, s44')
        a('s_add_u32 s45, s45, 4096')
        a('v_lshrrev_b32 v9, 5, v0')
        a('v_lshlrev_b32 v9, 10, v9')
        a('v_and_b32 v10, 31, v0')
        a('v_lshl_add_u32 v13, v10, 4, v9')
        a('v_add_u32 v13, s45, v13')
        a('s_waitcnt lgkmcnt(0)')
        self.stamp(3)
        A0, A1, D = 96, 100, 8
        self.sparse(A0, F)
        for n in range(20):
            if n < 19:
                self.sparse(A1 if n % 2 == 0 else A0, F + n + 1)
            a('s_waitcnt vmcnt(%d)' % (20 - n))
            self.mfma(D, A0 if n % 2 == 0 else A1, WQ + 4 * n, n == 0)
        P = 96
        a('v_mov_b32 v%d, %s' % (P + 2, sTAG))
        a('v_mov_b32 v%d, %s' % (P + 3, sXCC))
        a('v_mov_b32 v%d, %s' % (P + 6, sTAG))
        a('v_mov_b32 v%d, %s' % (P + 7, sXCC))
        a('v_mov_b32 v%d, v%d' % (P, D))
        a('v_mov_b32 v%d, v%d' % (P + 1, D + 1))
        a('v_mov_b32 v%d, v%d' % (P + 4, D + 2))
        a('v_mov_b32 v%d, v%d' % (P + 5, D + 3))
        a('global_store_dwordx4 v12, %s, %s sc1' % (v4(P), sp(pWS)))
        a('global_store_dwordx4 v12, %s, %s offset:512 sc1' % (v4(P + 4), sp(pWS)))
        self.stamp(4)
        G = 16

        def loads():
            for k in range(4):
                for hf in range(2):
                    a('global_load_dwordx4 %s, v13, %s offset:%d sc1' % (
                        v4(G + 8 * k + 4 * hf), sp(pWS), k * 2048 + hf * 512 - 4096))

        def checks():
            for k in range(8):
                self.check1(G + 4 * k + 2, k == 0)
        self.poll(loads, checks)
        self.stamp(5)
        for r, off in ((8, 0), (9, 1), (10, 4), (11, 5)):
            a('v_add_f32 v%d, v%d, v%d' % (r, G + off, G + 8 + off))
            a('v_add_f32 v%d, v%d, v%d' % (G + 16 + off, G + 16 + off, G + 24 + off))
        for r, off in ((8, 0), (9, 1), (10, 4), (11, 5)):
            a('v_add_f32 v%d, v%d, v%d' % (r, r, G + 16 + off))
        self.allreduce([8, 9, 10, 11], [48, 49, 50, 51], steps=('p32',))
        a('v_cvt_pk_bf16_f32 v8, v8, v9')
        a('v_cvt_pk_bf16_f32 v9, v10, v11')
        a('v_and_b32 v10, 31, v0')
        a('v_lshlrev_b32 v10, 3, v10')
        a('ds_write_b64 v10, v[8:9] offset:%d' % Q_LDS)
        a('s_waitcnt lgkmcnt(0)')
        self.barrier()
        self.stamp(6)
        a('s_lshl_b32 s44, %s, 13' % sH)
        a('s_add_u32 s44, s44, %d' % OP)
        a('s_lshl_b32 s45, %s, 10' % sJ8)
        a('s_add_u32 s45, s45, s44')
        a('v_lshlrev_b32 v60, 4, v0')
        a('v_add_u32 v12, s45, v60')
        a('v_lshrrev_b32 v9, 5, v0')
        a('v_lshlrev_b32 v9, 12, v9')
        a('v_add_u32 v9, s44, v9')
        a('v_and_b32 v10, 31, v0')
        a('v_lshl_add_u32 v13, v10, 4, v9')
        a('v_and_b32 v10, 3, v0')
        a('v_lshl_add_u32 v61, v10, 10, v9')
        a('v_lshlrev_b32 v62, 3, v0')
        self.wo_prep('4')
        self.e2b_prep()
        self.barrier()
        self.barrier()
        self.stamp(7)
        a('s_mov_b32 exec_hi, 1')
        for w in range(4):
            a('ds_read_b128 %s, v60 offset:%d' % (v4(16 + 4 * w), OW_LDS + 528 * w))
        a('s_waitcnt lgkmcnt(0)')
        for r in range(4):
            a('v_add_f32 v%d, v%d, v%d' % (16 + r, 16 + r, 20 + r))
            a('v_add_f32 v%d, v%d, v%d' % (24 + r, 24 + r, 28 + r))
        for r in range(4):
            a('v_add_f32 v%d, v%d, v%d' % (8 + r, 16 + r, 24 + r))
        self.tag4(8)
        a('global_store_dwordx4 v12, v[8:11], %s sc1' % sp(pWS))
        a('s_mov_b64 exec, -1')
        G = 20

        def loads():
            a('global_load_dwordx4 %s, v61, %s offset:512 sc1' % (v4(G + 16), sp(pWS)))
            for j in range(4):
                a('global_load_dwordx4 %s, v13, %s offset:%d sc1' % (v4(G + 4 * j), sp(pWS), j * 1024))

        def checks():
            for k in range(5):
                self.check4(G + 4 * k, 40, 41, k == 0)
        self.poll(loads, checks)
        self.stamp(8)
        a('v_and_b32 v40, v%d, v7' % (G + 16))
        a('v_mov_b32 v41, v40')
        self.allreduce([41], [], op='max', steps=('x1', 'x2'))
        a('v_sub_f32 v40, v40, v41')
        a('v_mul_f32 v40, 0x%x, v40' % f2u(LOG2E))
        a('v_exp_f32 v40, v40')
        a('v_mul_f32 v41, v40, v%d' % (G + 17))
        self.allreduce([41], [], steps=('x1', 'x2'))
        a('v_rcp_f32 v41, v41')
        a('v_mul_f32 v40, v40, v41')
        for r in range(4):
            a('v_mul_f32_dpp v%d, v40, v%d quad_perm:[0,0,0,0] row_mask:0xf bank_mask:0xf' % (8 + r, G + r))
        for j in range(1, 4):
            for r in range(4):
                a('v_fmac_f32_dpp v%d, v40, v%d quad_perm:[%d,%d,%d,%d] row_mask:0xf bank_mask:0xf' % (
                    8 + r, G + 4 * j + r, j, j, j, j))
        a('v_cvt_pk_bf16_f32 v8, v8, v9')
        a('v_cvt_pk_bf16_f32 v9, v10, v11')
        a('ds_write_b64 v62, v[8:9] offset:%d' % O2_LDS)
        a('s_waitcnt lgkmcnt(0)')
        self.barrier()
        self.stamp(9)
        self.wo_stage(XS, None)
        self.barrier()
        self.e2b()

    def wo_prep(self, m):
        a = self.a
        a('s_mov_b32 %s, %s' % (sC1, m))
        a('v_and_b32 v190, 1, v1')
        a('v_lshlrev_b32 v190, 8, v190')
        a('v_lshl_add_u32 v190, v2, 4, v190')
        a('v_lshrrev_b32 v191, 2, v1')
        a('v_lshl_add_u32 v191, v2, 3, v191')
        a('v_mul_u32_u24 v191, 160, v191')
        a('v_and_b32 v192, 3, v1')
        a('v_lshl_add_u32 v191, v192, 3, v191')
        a('s_lshl_b32 s44, %s, 5' % sC1)
        a('v_add_u32 v191, s44, v191')
        a('s_mul_i32 s44, %s, 20' % sJ8)
        a('s_lshl_b32 s45, %s, 2' % sC1)
        a('s_add_u32 s44, s44, s45')
        a('v_add_u32 v192, s44, v2')
        a('v_lshl_add_u32 v192, v192, 1, v1')
        a('v_lshlrev_b32 v192, 9, v192')
        a('s_lshl_b32 s44, %s, 4' % sH)
        a('s_add_u32 s44, s44, %d' % YP)
        a('v_add_u32 v192, s44, v192')
        a('s_mul_i32 s44, %s, 5' % sI)
        a('s_add_u32 s44, s44, %s' % sC1)
        a('s_lshl_b32 s44, s44, 10')
        a('s_add_u32 s44, s44, %d' % YP)
        a('v_lshlrev_b32 v193, 4, v0')
        a('v_add_u32 v193, s44, v193')
        a('v_lshrrev_b32 v194, 5, v0')
        a('v_lshlrev_b32 v194, 7, v194')
        a('s_lshl_b32 s44, %s, 2' % sC1)
        a('v_add_u32 v194, s44, v194')

    def wo_stage(self, XS, between):
        a = self.a
        OF, WF, D = 16, 32, 48
        for ks in range(4):
            a('ds_read_b128 %s, v190 offset:%d' % (v4(OF + 4 * ks), O2_LDS + 64 * ks))
            a('ds_read_b64_tr_b16 %s, v191 offset:%d' % (v2(WF + 4 * ks), WO_LDS + 32 * 160 * ks))
            a('ds_read_b64_tr_b16 %s, v191 offset:%d' % (v2(WF + 4 * ks + 2), WO_LDS + 32 * 160 * ks + 4 * 160))
        a('s_waitcnt lgkmcnt(0)')
        for ks in range(4):
            self.mfma(D, WF + 4 * ks, OF + 4 * ks, ks == 0)
        a('s_mov_b32 s46, 0x00030003')
        a('s_mov_b32 s47, 0x00030003')
        self.tag4(D)
        a('s_mov_b64 exec, s[46:47]')
        a('global_store_dwordx4 v192, %s, %s sc1' % (v4(D), sp(pWS)))
        a('s_mov_b64 exec, -1')
        self.stamp(10)
        if between:
            between()
        G = 16

        def loads():
            a('global_load_dwordx4 %s, v193, %s sc1' % (v4(G), sp(pWS)))

        def checks():
            self.check4(G, 20, 21, True)
        self.poll(loads, checks)
        self.stamp(11)
        self.allreduce([G, G + 1, G + 2, G + 3], [20, 21, 22, 23])
        a('v_lshlrev_b32 v56, 16, v%d' % XS)
        a('v_and_b32 v57, 0xffff0000, v%d' % XS)
        a('v_lshlrev_b32 v58, 16, v%d' % (XS + 1))
        a('v_and_b32 v59, 0xffff0000, v%d' % (XS + 1))
        a('v_cvt_pk_bf16_f32 v20, v%d, v%d' % (G, G + 1))
        a('v_cvt_pk_bf16_f32 v22, v%d, v%d' % (G + 2, G + 3))
        a('v_and_b32 v21, 0xffff0000, v20')
        a('v_lshlrev_b32 v20, 16, v20')
        a('v_and_b32 v23, 0xffff0000, v22')
        a('v_lshlrev_b32 v22, 16, v22')
        for k in range(4):
            a('v_add_f32 v%d, v%d, v%d' % (20 + k, 20 + k, 56 + k))
        for k in range(4):
            a('v_cvt_pk_bf16_f32 v%d, v%d, v%d' % (20 + k, 20 + k, 20 + k))
        a('s_mov_b32 s46, 1')
        a('s_mov_b32 s47, 1')
        a('s_mov_b64 exec, s[46:47]')
        for k in range(4):
            a('ds_write_b32 v194, v%d offset:%d' % (20 + k, H_LDS + 32 * k))
        a('s_mov_b64 exec, -1')
        a('s_waitcnt lgkmcnt(0)')
        self.stamp(12)

    def e2b_prep(self):
        a = self.a
        a('s_mul_i32 s44, %s, 27' % sX)
        a('s_add_u32 s44, s44, %s' % sI)
        a('s_lshl_b32 s45, s44, 12')
        a('s_add_u32 s45, s45, %d' % GP)
        a('v_and_b32 v8, 7, v0')
        a('v_lshrrev_b32 v9, 3, v0')
        a('v_lshlrev_b32 v180, 7, v8')
        a('v_lshl_add_u32 v180, v9, 4, v180')
        a('v_add_u32 v180, s45, v180')
        a('s_lshl_b32 s45, s44, 11')
        a('s_add_u32 s45, s45, %d' % CP)
        a('v_lshlrev_b32 v181, 6, v1')
        a('v_lshl_add_u32 v181, v2, 4, v181')
        a('v_add_u32 v181, s45, v181')
        a('s_lshl_b32 s45, %s, 10' % sX)
        a('s_add_u32 s45, s45, %d' % SP)
        a('v_bfe_u32 v182, v0, 3, 1')
        a('v_lshlrev_b32 v182, 5, v182')
        a('v_lshl_add_u32 v182, v2, 3, v182')
        a('v_add_u32 v182, v182, v8')
        a('v_lshlrev_b32 v182, 4, v182')
        a('v_add_u32 v182, s45, v182')
        a('v_and_b32 v183, 1, v2')
        a('v_lshl_add_u32 v183, v1, 1, v183')
        a('v_lshrrev_b32 v9, 1, v2')
        a('v_lshl_add_u32 v183, v183, 1, v9')
        a('v_mul_u32_u24 v183, 3456, v183')
        a('s_lshl_b32 s46, s44, 4')
        a('s_add_u32 s46, s46, %d' % DP)
        a('v_add_u32 v183, s46, v183')
        a('s_lshl_b32 s46, %s, 4' % sI)
        a('s_add_u32 s45, s45, s46')
        a('v_lshrrev_b32 v184, 5, v0')
        a('v_lshlrev_b32 v184, 9, v184')
        a('v_add_u32 v184, s45, v184')
        a('v_lshlrev_b32 v185, 2, v0')
        a('v_and_b32 v186, 1, v2')
        a('v_lshlrev_b32 v186, 1, v186')
        a('v_add_u32 v186, v186, v9')
        a('v_mul_u32_u24 v186, 2560, v186')
        a('v_lshl_add_u32 v186, v1, 4, v186')

    def e2b(self):
        a = self.a
        fin = a.newlabel('L_cend')
        a('ds_read_b32 v16, v185 offset:%d' % H_LDS)
        a('v_mov_b32 v18, %s' % sTAG)
        a('v_mov_b32 v19, %s' % sTAG)
        a('s_waitcnt lgkmcnt(0)')
        a('v_and_b32 v16, 0xffff0000, v16')
        a('v_mul_f32 v17, v16, v16')
        self.allreduce([16, 17], [20, 21])
        a('s_mov_b64 exec, s[46:47]')
        a('global_store_dwordx4 v184, v[16:19], %s sc1' % sp(pWS))
        a('s_mov_b64 exec, -1')
        a('s_cmp_ge_u32 %s, 27' % sI)
        a('s_cbranch_scc1 %s' % fin)
        DW = 96
        for rg in range(2):
            for m in range(5):
                a('ds_read_b128 %s, v186 offset:%d' % (v4(DW + 20 * rg + 4 * m), WD_LDS + rg * 1280 + m * 256))
        A0, A1 = 40, 44
        Gr, Cr, Sr = 56, 72, 80

        def loads():
            for n in range(2):
                a('global_load_dwordx4 %s, v181, %s offset:%d sc1' % (v4(Cr + 4 * n), sp(pWS), 1024 * n))
            a('global_load_dwordx4 %s, v182, %s sc1' % (v4(Sr), sp(pWS)))
            for n in range(4):
                a('global_load_dwordx4 %s, v180, %s offset:%d sc1' % (v4(Gr + 4 * n), sp(pWS), 1024 * n))

        def checks():
            for k in range(6):
                self.check4(Gr + 4 * k, 84, 85, k == 0)
            self.check1(Sr + 2, False)
        self.poll(loads, checks)
        self.stamp(13)
        for r in range(4):
            a('v_add_f32 v%d, v%d, v%d' % (Gr + r, Gr + r, Gr + 4 + r))
            a('v_add_f32 v%d, v%d, v%d' % (Gr + 8 + r, Gr + 8 + r, Gr + 12 + r))
            a('v_add_f32 v%d, v%d, v%d' % (Cr + r, Cr + r, Cr + 4 + r))
        for r in range(4):
            a('v_add_f32 v%d, v%d, v%d' % (Gr + r, Gr + r, Gr + 8 + r))
        allr = [Sr, Sr + 1, Gr, Gr + 1, Gr + 2, Gr + 3, Cr, Cr + 1, Cr + 2, Cr + 3]
        self.allreduce(allr, [], steps=('x1', 'x2', 'hm'))
        self.allreduce([Sr, Sr + 1], [84, 85], steps=('p16',))
        self.allreduce([Cr, Cr + 1, Cr + 2, Cr + 3], [], steps=('r8',))
        self.allreduce([Sr, Sr + 1], [84, 85], steps=('p32',))
        a('v_mul_f32 v%d, 0x%x, v%d' % (Sr, f2u(1.0 / 640), Sr))
        a('v_mul_f32 v%d, 0x%x, v%d' % (Sr + 1, f2u(1.0 / 640), Sr + 1))
        a('v_fma_f32 v%d, -v%d, v%d, v%d' % (Sr + 1, Sr, Sr, Sr + 1))
        a('v_max_f32 v%d, 0, v%d' % (Sr + 1, Sr + 1))
        self.ln_finish(Sr, Sr + 1)
        for r in range(4):
            a('v_fma_f32 v%d, -v%d, v%d, v%d' % (Gr + r, Sr, Cr + r, Gr + r))
        for r in range(4):
            a('v_mul_f32 v%d, v%d, v%d' % (Gr + r, Gr + r, Sr + 1))
        a('v_permlane32_swap_b32 v%d, v%d' % (Gr, Gr + 2))
        a('v_permlane32_swap_b32 v%d, v%d' % (Gr + 1, Gr + 3))
        a('v_cvt_pk_bf16_f32 v84, v%d, v%d' % (Gr, Gr + 1))
        a('v_cvt_pk_bf16_f32 v86, v%d, v%d' % (Gr + 2, Gr + 3))
        a('v_and_b32 v85, 0xffff0000, v84')
        a('v_lshlrev_b32 v84, 16, v84')
        a('v_and_b32 v87, 0xffff0000, v86')
        a('v_lshlrev_b32 v86, 16, v86')
        a('v_mul_f32 v88, 0x%x, v84' % f2u(-LOG2E))
        a('v_mul_f32 v89, 0x%x, v85' % f2u(-LOG2E))
        a('v_exp_f32 v88, v88')
        a('v_exp_f32 v89, v89')
        a('v_add_f32 v88, 1.0, v88')
        a('v_add_f32 v89, 1.0, v89')
        a('v_rcp_f32 v88, v88')
        a('v_rcp_f32 v89, v89')
        a('v_mul_f32 v84, v84, v88')
        a('v_mul_f32 v85, v85, v89')
        a('v_cvt_pk_bf16_f32 v84, v84, v85')
        a('v_and_b32 v85, 0xffff0000, v84')
        a('v_lshlrev_b32 v84, 16, v84')
        a('v_mul_f32 v84, v84, v86')
        a('v_mul_f32 v85, v85, v87')
        a('v_cvt_pk_bf16_f32 v84, v84, v84')
        a('v_cvt_pk_bf16_f32 v85, v85, v85')
        self.sparse(A0, 84)
        self.sparse(A1, 85)
        a('s_waitcnt lgkmcnt(0)')
        DD = 56
        for m in range(5):
            self.mfma(DD + 4 * m, A0, DW + 4 * m, True)
        for m in range(5):
            self.mfma(DD + 4 * m, A1, DW + 20 + 4 * m, False)
        for m in range(5):
            self.tag4(DD + 4 * m)
            a('global_store_dwordx4 v183, %s, %s sc1' % (v4(DD + 4 * m), sp(pWS)))
            if m < 4:
                a('v_add_u32 v183, %d, v183' % (64 * 3456))
        self.stamp(14)
        a.label(fin)
        self.end_wave()

    def attention(self):
        a = self.a
        a.label('L_att')
        a.reset()
        KR, VR, GU, QF, S = 16, 80, 144, 164, 164
        S = 168 + 12
        S = 196
        XS = 14
        a('s_lshl_b32 s44, %s, 5' % sB)
        a('s_add_u32 s44, s44, %s' % sH)
        a('s_lshl_b32 s44, s44, 20')
        a('s_lshl_b32 s45, %s, 16' % sJ)
        a('s_add_u32 s44, s44, s45')
        a('s_lshl_b32 s45, %s, 14' % sAW)
        a('s_add_u32 s44, s44, s45')
        a('s_add_u32 s44, s44, %d' % (3072 * 256 + 4096))
        a('v_lshlrev_b32 v8, 8, v1')
        a('v_lshl_add_u32 v8, v2, 4, v8')
        a('v_lshlrev_b32 v9, 10, v2')
        a('v_lshl_add_u32 v9, v1, 4, v9')
        a('v_add_u32 v8, s44, v8')
        a('v_add_u32 v9, s44, v9')
        a('v_add_u32 v10, 8192, v8')
        a('v_add_u32 v11, 8192, v9')
        a('s_waitcnt lgkmcnt(0)')
        a('s_load_dword %s, %s, %d' % (sTAG, sp(pWS), EPOCH))
        self.barrier()
        for bb in range(4):
            for m in range(4):
                a('global_load_dwordx4 %s, v%d, %s offset:%d%s' % (
                    v4(KR + 16 * bb + 4 * m), 8 if bb < 2 else 10, sp(pK), (bb & 1) * 4096 + m * 64 - 4096, self.nt))
        for bb in range(4):
            for r in range(4):
                a('global_load_dwordx4 %s, v%d, %s offset:%d%s' % (
                    v4(VR + 16 * bb + 4 * r), 9 if bb < 2 else 11, sp(pV), (bb & 1) * 4096 + r * 256 - 4096, self.nt))
        n_after_v = 0
        if 'notouch' not in self.opts:
            a('s_min_u32 s44, %s, 4' % sX)
            a('s_mul_i32 s45, %s, 5' % sI)
            a('s_add_u32 s44, s44, s45')
            a('s_mul_i32 s44, s44, 6912')
            a('s_add_u32 s44, s44, %d' % DP)
            a('s_add_u32 s46, s44, %d' % (6912 - 4096))
            l2 = a.newlabel('L_pt')
            a('s_cmp_eq_u32 %s, 0' % sAW)
            a('s_cbranch_scc1 %s' % l2)
            a('s_min_u32 s47, %s, 26' % sI)
            a('s_mul_i32 s44, %s, 27' % sX)
            a('s_add_u32 s47, s47, s44')
            a('s_lshl_b32 s44, s47, 12')
            a('s_add_u32 s44, s44, %d' % GP)
            a('s_lshl_b32 s46, s47, 11')
            a('s_add_u32 s46, s46, %d' % CP)
            a('s_cmp_eq_u32 %s, 1' % sAW)
            a('s_cbranch_scc1 %s' % l2)
            a('s_lshl_b32 s44, s45, 10')
            a('s_add_u32 s44, s44, %d' % YP)
            a('s_add_u32 s46, s44, 1024')
            a('s_cmp_eq_u32 %s, 2' % sAW)
            a('s_cbranch_scc1 %s' % l2)
            a('s_lshl_b32 s44, %s, 13' % sH)
            a('s_add_u32 s44, s44, %d' % OP)
            a('s_add_u32 s46, s44, 4096')
            a.label(l2)
            a('v_lshlrev_b32 v12, 6, v0')
            a('v_add_u32 v13, s46, v12')
            a('v_add_u32 v12, s44, v12')
            a('global_load_dword v212, v12, %s sc1' % sp(pWS))
            a('global_load_dword v213, v13, %s sc1' % sp(pWS))
            a('v_and_b32 v12, 31, v0')
            a('v_lshlrev_b32 v12, 6, v12')
            a('global_load_dword v214, v12, %s' % sp(pOUT))
            n_after_v += 3
        a('s_mul_i32 s44, %s, %d' % (sH, 128 * 1280))
        a('s_mul_i32 s45, %s, 160' % sJ8)
        a('s_add_u32 s44, s44, s45')
        a('s_mul_i32 s45, %s, 320' % sAW)
        a('s_mul_i32 s46, %s, 5120' % sAW)
        for t in range(5):
            a('v_add_u32 v10, s45, v0')
            if t:
                a('v_add_u32 v10, %d, v10' % (64 * t))
            a('v_mul_u32_u24 v11, 6554, v10')
            a('v_lshrrev_b32 v11, 16, v11')
            a('v_mul_u32_u24 v11, 1120, v11')
            a('v_lshl_add_u32 v11, v10, 4, v11')
            a('v_add_u32 v11, s44, v11')
            a('s_add_u32 m0, s46, %d' % (WO_LDS + 1024 * t))
            a('global_load_lds_dwordx4 v11, %s%s' % (sp(pWO), self.nt))
            n_after_v += 1
        n_after_wo = 0
        a('s_lshl_b32 s44, %s, 4' % sAW)
        a('v_add_u32 v10, s44, v1')
        a('v_cmp_gt_u32 s[40:41], 54, v10')
        a('v_min_u32 v10, 53, v10')
        a('v_cmp_le_u32 vcc, 27, v10')
        a('v_subrev_u32 v11, 27, v10')
        a('v_cndmask_b32 v11, v10, v11, vcc')
        a('v_mov_b32 v12, s%d' % pWG)
        a('v_mov_b32 v13, s%d' % pWU)
        a('v_cndmask_b32 v12, v12, v13, vcc')
        a('v_mov_b32 v13, s%d' % (pWG + 1))
        a('v_mov_b32 v8, s%d' % (pWU + 1))
        a('v_cndmask_b32 v13, v13, v8, vcc')
        a('v_cndmask_b32 v9, 0, 1, vcc')
        a('s_mul_i32 s44, %s, %d' % (sI, 20 * 3456))
        a('s_mul_i32 s45, %s, 432' % sX)
        a('s_add_u32 s44, s44, s45')
        a('v_mul_u32_u24 v8, 3456, v2')
        a('v_lshl_add_u32 v8, v11, 4, v8')
        a('v_add_u32 v8, s44, v8')
        a('v_add_co_u32 v12, vcc, v12, v8')
        a('v_addc_co_u32 v13, vcc, 0, v13, vcc')
        for n in range(5):
            a('global_load_dwordx4 %s, v[12:13], off%s' % (v4(GU + 4 * n), self.nt))
            if n < 4:
                a('v_add_co_u32 v12, vcc, %d, v12' % (4 * 3456))
                a('v_addc_co_u32 v13, vcc, 0, v13, vcc')
            n_after_wo += 1
        a('s_mul_i32 s44, %s, 27' % sX)
        a('v_add_u32 v11, s44, v11')
        a('v_lshlrev_b32 v11, 5, v11')
        a('v_add_u32 v11, %s, v11' % sI)
        a('v_and_b32 v8, 1, v2')
        a('v_lshl_add_u32 v8, v9, 1, v8')
        a('v_lshl_add_u32 v13, v11, 2, v8')
        a('v_lshlrev_b32 v13, 4, v13')
        a('v_add_u32 v13, %d, v13' % CP)
        a('v_lshrrev_b32 v12, 1, v2')
        a('v_lshl_add_u32 v12, v8, 1, v12')
        a('v_lshl_add_u32 v12, v11, 3, v12')
        a('v_lshlrev_b32 v12, 4, v12')
        a('v_add_u32 v12, %d, v12' % GP)
        a('s_min_u32 s44, %s, 26' % sI)
        a('s_lshl_b32 s44, s44, 3')
        a('s_mul_i32 s45, %s, 216' % sX)
        a('s_add_u32 s44, s44, s45')
        a('s_mul_i32 s44, s44, 1280')
        a('v_lshlrev_b32 v8, 4, v0')
        a('v_add_u32 v8, s44, v8')
        a('s_mul_i32 s45, %s, 3072' % sAW)
        for t in range(3):
            a('s_add_u32 s46, s45, %d' % (1024 * t))
            a('s_add_u32 m0, s46, %d' % WD_LDS)
            a('s_min_u32 s46, s46, 9216')
            a('v_add_u32 v9, s46, v8')
            a('global_load_lds_dwordx4 v9, %s%s' % (sp(pWD), self.nt))
            n_after_wo += 1
        self.load_xs(sAW, XS)
        n_after_wo += 1
        self.stamp(1)
        self.consts()
        self.wo_prep(sAW)
        a('v_lshlrev_b32 v180, 4, v2')
        a('v_and_b32 v181, 1, v2')
        a('v_lshl_add_u32 v181, v1, 1, v181')
        a('v_lshlrev_b32 v181, 4, v181')
        a('v_lshrrev_b32 v182, 5, v0')
        a('v_lshl_add_u32 v181, v182, 3, v181')
        a('s_mul_i32 s44, %s, 528' % sAW)
        a('v_add_u32 v181, s44, v181')
        a('v_mov_b32 v185, s44')
        a('s_lshl_b32 s44, %s, 2' % sAW)
        a('v_mov_b32 v182, s44')
        a('v_mov_b32 v183, 0')
        a('v_bfe_u32 v184, v0, 3, 1')
        a('v_lshlrev_b32 v184, 7, v184')
        a('v_lshl_add_u32 v184, v2, 5, v184')
        a('s_waitcnt lgkmcnt(0)')
        self.tagcalc()
        self.barrier()
        self.stamp(2)
        for m in range(4):
            a('ds_read_b128 %s, v180 offset:%d' % (v4(QF + 4 * m), Q_LDS + 64 * m))
        tail = 16 + n_after_v + n_after_wo
        a('s_waitcnt lgkmcnt(0)')
        for bb in range(4):
            a('s_waitcnt vmcnt(%d)' % (tail + 4 * (3 - bb)))
            for m in range(4):
                self.mfma(S + 4 * bb, KR + 16 * bb + 4 * m, QF + 4 * m, m == 0)
        self.stamp(3)
        sc = f2u(128 ** -0.5)
        for k in range(0, 16, 2):
            a('v_cvt_pk_bf16_f32 v8, v%d, v%d' % (S + k, S + k + 1))
            a('v_and_b32 v9, 0xffff0000, v8')
            a('v_lshlrev_b32 v8, 16, v8')
            a('v_mul_f32 v8, 0x%x, v8' % sc)
            a('v_mul_f32 v9, 0x%x, v9' % sc)
            a('v_cvt_pk_bf16_f32 v8, v8, v9')
            a('v_and_b32 v%d, 0xffff0000, v8' % (S + k + 1))
            a('v_lshlrev_b32 v%d, 16, v8' % (S + k))
        a('v_max3_f32 v8, v%d, v%d, v%d' % (S, S + 1, S + 2))
        a('v_max3_f32 v9, v%d, v%d, v%d' % (S + 3, S + 4, S + 5))
        a('v_max3_f32 v8, v8, v%d, v%d' % (S + 6, S + 7))
        a('v_max3_f32 v9, v9, v%d, v%d' % (S + 8, S + 9))
        a('v_max3_f32 v8, v8, v%d, v%d' % (S + 10, S + 11))
        a('v_max3_f32 v9, v9, v%d, v%d' % (S + 12, S + 13))
        a('v_max3_f32 v8, v8, v%d, v%d' % (S + 14, S + 15))
        a('v_max_f32 v8, v8, v9')
        self.allreduce([8], [9], op='max', steps=('p16', 'p32'))
        a('ds_write_b32 v182, v8 offset:%d' % MX_LDS)
        a('s_waitcnt lgkmcnt(0)')
        self.barrier()
        a('ds_read_b128 v[16:19], v183 offset:%d' % MX_LDS)
        a('s_waitcnt lgkmcnt(0)')
        a('v_max3_f32 v8, v16, v17, v18')
        a('v_max_f32 v8, v8, v19')
        for k in range(16):
            a('v_sub_f32 v%d, v%d, v8' % (S + k, S + k))
        for k in range(16):
            a('v_mul_f32 v%d, 0x%x, v%d' % (S + k, f2u(LOG2E), S + k))
        for k in range(16):
            a('v_exp_f32 v%d, v%d' % (S + k, S + k))
        a('v_add_f32 v9, v%d, v%d' % (S, S + 1))
        a('v_add_f32 v10, v%d, v%d' % (S + 2, S + 3))
        for k in range(4, 16, 2):
            a('v_add_f32 v9, v9, v%d' % (S + k))
            a('v_add_f32 v10, v10, v%d' % (S + k + 1))
        a('v_add_f32 v9, v9, v10')
        self.allreduce([9], [10], steps=('p16', 'p32'))
        a('v_mul_f32 v8, 0.5, v8')
        a('v_mul_f32 v8, 0.5, v8')
        a('v_mov_b32 v10, 0')
        a('v_mov_b32 v11, 0')
        a('s_mov_b64 exec, 1')
        a('ds_write_b128 v185, v[8:11] offset:%d' % (OW_LDS + 512))
        a('s_mov_b64 exec, -1')
        for k in range(16):
            a('v_cvt_pk_bf16_f32 v186, v%d, v%d' % (S + k, S + k))
            a('v_and_b32 v186, 0xffff0000, v186')
            a('v_sub_f32 v186, v%d, v186' % (S + k))
            a('v_cndmask_b32 v186, v%d, v186, %s' % (S + k, HIROWS))
            a('v_cvt_pk_bf16_f32 v186, v186, v186')
            self.sparse(KR + 4 * k, 186)
        self.stamp(4)
        O = 164
        for k in range(16):
            a('s_waitcnt vmcnt(%d)' % (15 - k + n_after_v + n_after_wo))
            self.mfma(O, KR + 4 * k, VR + 4 * k, k == 0)
        self.stamp(5)
        a('v_permlane32_swap_b32 v%d, v%d' % (O, O + 2))
        a('v_permlane32_swap_b32 v%d, v%d' % (O + 1, O + 3))
        a('v_add_f32 v%d, v%d, v%d' % (O, O, O + 2))
        a('v_add_f32 v%d, v%d, v%d' % (O + 1, O + 1, O + 3))
        a('ds_write_b64 v181, %s offset:%d' % (v2(O), OW_LDS))
        a('s_waitcnt lgkmcnt(0)')
        self.barrier()
        self.stamp(6)
        a('s_waitcnt vmcnt(%d)' % n_after_wo)
        self.barrier()
        self.stamp(7)
        A0, A1 = 64, 68

        def colsum():
            D = 72
            a('v_mov_b32 v76, 0x3f803f80')
            self.sparse(A0, 76)
            a('s_waitcnt vmcnt(%d)' % (n_after_wo - 5 + 1))
            for n in range(5):
                self.mfma(D, A0, GU + 4 * n, n == 0)
            a('s_mov_b32 s46, s40')
            a('s_mov_b32 s47, 0')
            self.tag4(D)
            a('s_mov_b64 exec, s[46:47]')
            a('global_store_dwordx4 v13, %s, %s sc1' % (v4(D), sp(pWS)))
            a('s_mov_b64 exec, -1')
            self.stamp(8)
        self.wo_stage(XS, colsum)
        self.barrier()
        self.stamp(9)
        HD = 80
        a('ds_read_b128 %s, v184 offset:%d' % (v4(HD), H_LDS))
        a('ds_read_b32 v%d, v184 offset:%d' % (HD + 4, H_LDS + 16))
        a('s_waitcnt lgkmcnt(0)')
        D = 88
        self.sparse(A0, HD)
        for n in range(5):
            if n < 4:
                self.sparse(A1 if n % 2 == 0 else A0, HD + n + 1)
            self.mfma(D, A0 if n % 2 == 0 else A1, GU + 4 * n, n == 0)
        self.tag4(D)
        a('s_mov_b64 exec, s[40:41]')
        a('global_store_dwordx4 v12, %s, %s sc1' % (v4(D), sp(pWS)))
        a('s_mov_b64 exec, -1')
        self.stamp(13)
        self.final()

    def final(self):
        a = self.a
        l_end = a.newlabel('L_aend')
        a('s_cmp_lg_u32 %s, 0' % sAW)
        a('s_cbranch_scc1 %s' % l_end)
        a('s_cmp_ge_u32 %s, 5' % sX)
        a('s_cbranch_scc1 %s' % l_end)
        a('s_mul_i32 s44, %s, 5' % sI)
        a('s_add_u32 s44, s44, %s' % sX)
        a('s_mul_i32 s45, s44, 6912')
        a('s_add_u32 s45, s45, %d' % DP)
        a('v_lshrrev_b32 v8, 5, v0')
        a('v_mul_u32_u24 v9, 3456, v8')
        a('v_and_b32 v10, 31, v0')
        a('v_lshl_add_u32 v9, v10, 4, v9')
        a('v_add_u32 v9, s45, v9')
        a('v_mul_u32_u24 v10, 1280, v8')
        a('s_lshl_b32 s45, s44, 3')
        a('v_add_u32 v10, s45, v10')
        a('v_lshlrev_b32 v11, 7, v8')
        a('s_lshl_b32 s45, %s, 2' % sX)
        a('v_add_u32 v11, s45, v11')
        for k in range(4):
            a('ds_read_b32 v%d, v11 offset:%d' % (48 + k, H_LDS + 32 * k))
        G = 16
        for k in range(4):
            a('v_mov_b32 v%d, 0' % (G + 24 + k))
        a('s_mov_b32 s46, 0x00ffffff')
        a('s_mov_b32 s47, 0x00ffffff')
        a('s_waitcnt lgkmcnt(0)')
        for k in range(4):
            a('v_and_b32 v%d, 0xffff0000, v%d' % (48 + k, 48 + k))

        def loads():
            for n in range(6):
                a('global_load_dwordx4 %s, v9, %s offset:%d sc1' % (v4(G + 4 * n), sp(pWS), 512 * n))
            a('s_mov_b64 exec, s[46:47]')
            a('global_load_dwordx4 %s, v9, %s offset:%d sc1' % (v4(G + 24), sp(pWS), 512 * 6))
            a('s_mov_b64 exec, -1')

        def checks():
            for k in range(6):
                self.check4(G + 4 * k, 44, 45, k == 0)
            self.check4(G + 24, 44, 45, False, mask='s[46:47]')
        self.poll(loads, checks)
        self.stamp(14)
        for r in range(4):
            a('v_add_f32 v%d, v%d, v%d' % (G + r, G + r, G + 4 + r))
            a('v_add_f32 v%d, v%d, v%d' % (G + 8 + r, G + 8 + r, G + 12 + r))
            a('v_add_f32 v%d, v%d, v%d' % (G + 16 + r, G + 16 + r, G + 20 + r))
        for r in range(4):
            a('v_add_f32 v%d, v%d, v%d' % (G + r, G + r, G + 8 + r))
            a('v_add_f32 v%d, v%d, v%d' % (G + 16 + r, G + 16 + r, G + 24 + r))
        for r in range(4):
            a('v_add_f32 v%d, v%d, v%d' % (G + r, G + r, G + 16 + r))
        self.allreduce([G, G + 1, G + 2, G + 3], [20, 21, 22, 23])
        a('v_cvt_pk_bf16_f32 v20, v%d, v%d' % (G, G + 1))
        a('v_cvt_pk_bf16_f32 v22, v%d, v%d' % (G + 2, G + 3))
        a('v_and_b32 v21, 0xffff0000, v20')
        a('v_lshlrev_b32 v20, 16, v20')
        a('v_and_b32 v23, 0xffff0000, v22')
        a('v_lshlrev_b32 v22, 16, v22')
        for k in range(4):
            a('v_add_f32 v%d, v%d, v%d' % (20 + k, 20 + k, 48 + k))
        a('v_cvt_pk_bf16_f32 v20, v20, v21')
        a('v_cvt_pk_bf16_f32 v21, v22, v23')
        a('s_mov_b32 s46, 1')
        a('s_mov_b32 s47, 1')
        a('s_mov_b64 exec, s[46:47]')
        a('global_store_dwordx2 v10, v[20:21], %s' % sp(pOUT))
        a('s_cmp_lg_u32 s2, 0')
        a('s_cbranch_scc1 %s' % l_end)
        a('s_mov_b64 exec, 1')
        a('v_mov_b32 v24, %s' % sTAG)
        a('v_mov_b32 v25, %d' % EPOCH)
        a('global_store_dword v25, v24, %s sc1' % sp(pWS))
        a.label(l_end)
        self.end_wave()

    def build(self):
        a = self.a
        hdr = open('cdna_kernels/%s.s.ref' % NAME).read().split('\n')
        top = []
        for ln in hdr:
            if ln.startswith('; @launch'):
                top.append('; @launch grid=(256,1,1) block=(%d,1,1) lds=%d' % (64 * NWAVES, LDS_BYTES))
                break
            top.append(ln)
        out = '\n'.join(top) + '\n'
        out += '.amdgcn_target "amdgcn-amd-amdhsa--gfx950"\n.text\n.globl %s_kernel\n.p2align 8\n' % NAME
        out += '.type %s_kernel,@function\n%s_kernel:\n' % (NAME, NAME)
        self.prologue()
        self.comm()
        self.attention()
        a.label('L_exit')
        a('s_endpgm')
        out += a.text()
        out += '''.section .rodata,"a"
.p2align 6
.amdhsa_kernel %s_kernel
  .amdhsa_next_free_vgpr 216
  .amdhsa_next_free_sgpr 102
  .amdhsa_accum_offset 216
  .amdhsa_group_segment_fixed_size 0
  .amdhsa_kernarg_size 96
  .amdhsa_user_sgpr_count 2
  .amdhsa_user_sgpr_kernarg_segment_ptr 1
  .amdhsa_system_sgpr_workgroup_id_x 1
  .amdhsa_float_denorm_mode_32 3
.end_amdhsa_kernel
''' % NAME
        return out


if __name__ == '__main__':
    outp = sys.argv[1]
    opts = sys.argv[2:]
    open(outp, 'w').write(Gen(stamps='stamps' in opts, opts=opts).build())
```

```python
import struct
import sys
from asmlib import Asm

NAME = 'sequential_preLN__sliding_block_cached__swiglu_ffn__decode'


def f2u(x):
    return struct.unpack('<I', struct.pack('<f', x))[0]


EPOCH = 0
QA = 0x10000
QB = 0x90000
YP = 0x110000
FP = 0x120000
LOCB = 0x200000
L_OP = 0
L_SP = 20480
L_IN = 21504
INP = 5120
LOCP = 163840
RB = 0x200000
TS = 0x600000

SY = 0
FQ, FV, MX, FO, FY, FH, FWO, FGU, FWD, MODE, FG1 = (SY + o for o in (0, 16, 32, 48, 64, 80, 84, 88, 92, 96, 112))
FVSA = [SY + 4, SY + 8, SY + 12, SY + 100]
Q_LDS = 128
OW_LDS = 384
O2_LDS = 2560
YW_LDS = 4608
H_LDS = 5632
HF_LDS = 5888
WD_LDS = 6144
WO_LDS = 16384
GU_LDS = 49152
V_LDS = 81920
LDS_BYTES = V_LDS + 65536
VSTAGES = [(0, 6), (6, 12), (12, 15), (15, 16)]

sWID, sX, sI, sH, sJ8, sB, sJ, sAW = 's3', 's4', 's5', 's6', 's7', 's8', 's9', 's10'
sTAG = 's11'
sT = ['s12', 's13', 's14', 's15']
pX, pK, pV, pWQ, pWO, pWG, pWU = 16, 18, 20, 22, 24, 28, 30
pWD, pOUT, pDBG, pWS = 32, 34, 36, 38
sLOC = 's42'
sMODE = 's43'
sTP = 's100'
sU = 's101'
sSPIN = 's52'
sSEL = 's53'
sXCC = 's54'
sTAG2 = 's55'
sT2 = ['s96', 's97', 's98', 's99']
HIROWS = 's[58:59]'
SPIN_MAX = 100000
NWAVES = 6
LOG2E = 1.4426950408889634


def sp(n):
    return 's[%d:%d]' % (n, n + 1)


def v4(n):
    return 'v[%d:%d]' % (n, n + 3)


def v2(n):
    return 'v[%d:%d]' % (n, n + 1)


class Gen:
    def __init__(self, opts=()):
        self.a = Asm()
        self.opts = set(opts)
        self.stamps = 'stamps' in self.opts
        self.nt = '' if 'nont' in self.opts else ' nt'
        self.depth = 4
        self.ldepth = 16
        self.fvat = 12
        self.woearly = 4
        for o in self.opts:
            if o.startswith('depth='):
                self.depth = int(o[6:])
            if o.startswith('woearly='):
                self.woearly = int(o[8:])
            if o.startswith('fvat='):
                self.fvat = int(o[5:])
            if o.startswith('ldepth='):
                self.ldepth = int(o[7:])

    def stamp(self, k):
        if self.stamps:
            self.a('s_memrealtime %s' % sp(60 + 2 * k))

    def end_wave(self):
        a = self.a
        if self.stamps:
            a('s_mov_b64 exec, -1')
            self.stamp(15)
            a('s_waitcnt lgkmcnt(0)')
            a('v_mov_b32 v200, 0')
            for k in range(16):
                a('v_writelane_b32 v200, s%d, %d' % (60 + 2 * k, k))
            a('s_mul_i32 s44, s2, %d' % NWAVES)
            a('s_add_u32 s44, s44, %s' % sWID)
            a('s_lshl_b32 s44, s44, 6')
            a('s_add_u32 s44, s44, %d' % TS)
            a('v_lshlrev_b32 v201, 2, v0')
            a('v_add_u32 v201, s44, v201')
            a('s_mov_b64 exec, 0xffff')
            a('global_store_dword v201, v200, %s' % sp(pWS))
        a('s_endpgm')

    def tag4(self, base, second=False):
        t = sT2 if second else sT
        for k in range(4):
            self.a('v_and_or_b32 v%d, v%d, v7, %s' % (base + k, base + k, t[k]))

    def check4(self, base, t0, t1, first, mask=None, second=False):
        a = self.a
        a('v_perm_b32 v%d, v%d, v%d, %s' % (t0, base + 1, base, sSEL))
        a('v_perm_b32 v%d, v%d, v%d, %s' % (t1, base + 3, base + 2, sSEL))
        a('v_lshl_or_b32 v%d, v%d, 16, v%d' % (t0, t1, t0))
        self.check1(t0, first, mask, second)

    def check1(self, reg, first, mask=None, second=False):
        a = self.a
        tg = sTAG2 if second else sTAG
        if first and mask is None:
            a('v_cmp_ne_u32 s[48:49], %s, v%d' % (tg, reg))
        else:
            a('v_cmp_ne_u32 s[50:51], %s, v%d' % (tg, reg))
            if mask is not None:
                a('s_and_b64 s[50:51], s[50:51], %s' % mask)
            if first:
                a('s_mov_b64 s[48:49], s[50:51]')
            else:
                a('s_or_b64 s[48:49], s[48:49], s[50:51]')

    def poll(self, loads, checks, wait='vmcnt(0)', sleep=0):
        a = self.a
        top = a.newlabel('L_poll')
        done = a.newlabel('L_pdone')
        a('s_mov_b32 %s, %d' % (sSPIN, SPIN_MAX if wait.startswith('vm') else SPIN_MAX * 8))
        a.label(top)
        loads()
        a('s_waitcnt %s' % wait)
        checks()
        a('s_cmp_eq_u64 s[48:49], 0')
        a('s_cbranch_scc1 %s' % done)
        if sleep:
            a('s_sleep %d' % sleep)
        a('s_sub_u32 %s, %s, 1' % (sSPIN, sSPIN))
        a('s_cmp_lg_u32 %s, 0' % sSPIN)
        a('s_cbranch_scc1 %s' % top)
        a.label(done)

    def wait_flag(self, addr, n, t, extra=None, sleep=0, lazy=False):
        a = self.a
        lazy = lazy and 'nolazy' not in self.opts

        def loads():
            if n == 1:
                a('ds_read_b32 v%d, v190 offset:%d' % (t, addr))
            else:
                a('ds_read_b128 %s, v190 offset:%d' % (v4(t), addr))
            if extra and not lazy:
                extra()

        def checks():
            if n == 4:
                a('v_or3_b32 v%d, v%d, v%d, v%d' % (t, t, t + 1, t + 2))
                a('v_or_b32 v%d, v%d, v%d' % (t, t, t + 3))
            a('v_cmp_ne_u32 s[48:49], 0, v%d' % t)
        self.poll(loads, checks, wait='lgkmcnt(0)', sleep=max(sleep, 1) if lazy else sleep)
        if extra and lazy:
            extra()
            a('s_waitcnt lgkmcnt(0)')

    def set_flag(self, vaddr, off):
        self.a('ds_write_b32 v%d, v190 offset:%d' % (vaddr, off))

    def st_local(self, stores):
        a = self.a
        lg = a.newlabel('L_sg')
        ld = a.newlabel('L_sd')
        a('s_cmp_lg_u32 %s, 0' % sMODE)
        a('s_cbranch_scc1 %s' % lg)
        for va, d, off in stores:
            a('global_store_dwordx4 v%d, %s, %s offset:%d' % (va, v4(d), sp(pWS), off))
        a('s_branch %s' % ld)
        a.label(lg)
        for va, d, off in stores:
            a('global_store_dwordx4 v%d, %s, %s offset:%d sc1' % (va, v4(d), sp(pWS), off))
        a.label(ld)

    def get_mode(self, t):
        a = self.a

        def loads():
            a('ds_read_b32 v%d, v190 offset:%d' % (t, MODE))

        def checks():
            a('v_cmp_eq_u32 s[48:49], -1, v%d' % t)
        self.poll(loads, checks, wait='lgkmcnt(0)', sleep=1)
        a('v_readfirstlane_b32 s44, v%d' % t)
        a('s_cmp_eq_u32 s44, 0')
        a('s_cselect_b32 %s, 0, %d' % (sMODE, RB))
        a('s_mul_i32 %s, %s, %d' % (sLOC, sX, LOCP))
        a('s_add_u32 %s, %s, %d' % (sLOC, sLOC, LOCB))
        a('s_add_u32 %s, %s, %s' % (sLOC, sLOC, sMODE))

    def allreduce(self, rs, tmps, op='add', steps=('x1', 'x2', 'r4', 'r8', 'p16')):
        a = self.a
        dpp = {'x1': 'quad_perm:[1,0,3,2]', 'x2': 'quad_perm:[2,3,0,1]', 'r4': 'row_ror:4',
               'r8': 'row_ror:8', 'hm': 'row_half_mirror'}
        for st in steps:
            if st in dpp:
                for r in rs:
                    a('v_%s_f32_dpp v%d, v%d, v%d %s row_mask:0xf bank_mask:0xf' % (op, r, r, r, dpp[st]))
            else:
                ins = 'v_permlane16_swap_b32' if st == 'p16' else 'v_permlane32_swap_b32'
                for r, t in zip(rs, tmps):
                    a('v_mov_b32 v%d, v%d' % (t, r))
                for r, t in zip(rs, tmps):
                    a('%s v%d, v%d' % (ins, r, t))
                for r, t in zip(rs, tmps):
                    a('v_%s_f32 v%d, v%d, v%d' % (op, r, r, t))

    def sparse(self, dst, src):
        for k in range(4):
            self.a('v_and_b32 v%d, v%d, v%d' % (dst + k, src, 3 + k))

    def mfma(self, d, x, y, first):
        self.a('v_mfma_f32_16x16x32_bf16 %s, %s, %s, %s' % (v4(d), v4(x), v4(y), '0' if first else v4(d)))

    def bf16_round4(self, src, dst):
        a = self.a
        a('v_cvt_pk_bf16_f32 v%d, v%d, v%d' % (dst, src, src + 1))
        a('v_cvt_pk_bf16_f32 v%d, v%d, v%d' % (dst + 2, src + 2, src + 3))
        a('v_and_b32 v%d, 0xffff0000, v%d' % (dst + 1, dst))
        a('v_lshlrev_b32 v%d, 16, v%d' % (dst, dst))
        a('v_and_b32 v%d, 0xffff0000, v%d' % (dst + 3, dst + 2))
        a('v_lshlrev_b32 v%d, 16, v%d' % (dst + 2, dst + 2))

    def prologue(self):
        a = self.a
        a('s_cmp_ge_u32 s2, 256')
        a('s_cbranch_scc1 L_exit')
        a('s_load_dwordx16 s[16:31], s[0:1], 0')
        a('s_load_dwordx8 s[32:39], s[0:1], 64')
        if self.stamps:
            for k in range(1, 16):
                a('s_mov_b64 %s, 0' % sp(60 + 2 * k))
        self.stamp(0)
        a('v_lshrrev_b32 v1, 6, v0')
        a('v_and_b32 v0, 63, v0')
        a('v_readfirstlane_b32 %s, v1' % sWID)
        a('s_and_b32 %s, s2, 7' % sX)
        a('s_lshr_b32 %s, s2, 3' % sI)
        a('s_and_b32 %s, %s, 3' % (sH, sI))
        a('s_lshl_b32 s44, %s, 2' % sX)
        a('s_add_u32 %s, %s, s44' % (sH, sH))
        a('s_lshr_b32 %s, %s, 2' % (sJ8, sI))
        a('s_lshr_b32 %s, %s, 2' % (sB, sJ8))
        a('s_and_b32 %s, %s, 3' % (sJ, sJ8))
        a('v_and_b32 v1, 15, v0')
        a('v_lshrrev_b32 v2, 4, v0')
        a('v_mov_b32 v190, 0')
        a('s_sub_u32 %s, %s, 12' % (sTP, sI))
        a('s_max_i32 %s, %s, 0' % (sTP, sTP))
        a('s_add_u32 %s, %s, 12' % (sU, sI))
        a('s_cmp_lt_u32 %s, 12' % sI)
        a('s_cselect_b32 %s, %s, %s' % (sU, sI, sU))
        a('s_sub_u32 s44, %s, 8' % sI)
        a('s_cmp_ge_u32 %s, 20' % sI)
        a('s_cselect_b32 %s, s44, %s' % (sU, sU))
        a('s_sub_u32 %s, %s, 1' % (sAW, sWID))
        a('s_cmp_eq_u32 %s, 5' % sWID)
        a('s_cbranch_scc1 L_load')
        a('s_cmp_lg_u32 %s, 0' % sWID)
        a('s_cbranch_scc1 L_att')

    def consts(self, t=8):
        a = self.a
        a('v_and_b32 v%d, 7, v0' % t)
        a('v_and_b32 v%d, 1, v%d' % (t + 1, t))
        a('v_cmp_eq_u32 vcc, 1, v%d' % (t + 1))
        a('v_mov_b32 v%d, 0xffff' % (t + 1))
        a('v_mov_b32 v%d, 0xffff0000' % (t + 2))
        a('v_cndmask_b32 v%d, v%d, v%d, vcc' % (t + 1, t + 1, t + 2))
        a('v_lshrrev_b32 v%d, 1, v%d' % (t, t))
        for k in range(4):
            a('v_cmp_eq_u32 vcc, %d, v%d' % (k, t))
            a('v_cndmask_b32 v%d, 0, v%d, vcc' % (3 + k, t + 1))
        a('v_mov_b32 v7, 0xffffff00')
        a('s_mov_b32 %s, 0x0c0c0400' % sSEL)
        a('s_mov_b32 s58, 0xff00ff00')
        a('s_mov_b32 s59, 0xff00ff00')

    def tagcalc(self):
        a = self.a
        a('s_mul_i32 %s, %s, 0x9e3779b1' % (sTAG, sTAG))
        a('s_add_u32 %s, %s, 0x7f4a7c15' % (sTAG, sTAG))
        a('s_xor_b32 %s, %s, 0x5a5a5a5a' % (sTAG2, sTAG))
        for tg, t in ((sTAG, sT), (sTAG2, sT2)):
            a('s_and_b32 %s, %s, 0xff' % (t[0], tg))
            a('s_bfe_u32 %s, %s, 0x80008' % (t[1], tg))
            a('s_bfe_u32 %s, %s, 0x80010' % (t[2], tg))
            a('s_lshr_b32 %s, %s, 24' % (t[3], tg))

    def ln_finish(self, rm, rv):
        a = self.a
        a('v_cvt_pk_bf16_f32 v%d, v%d, v%d' % (rv, rm, rv))
        a('v_lshlrev_b32 v%d, 16, v%d' % (rm, rv))
        a('v_and_b32 v%d, 0xffff0000, v%d' % (rv, rv))
        a('v_add_f32 v%d, 0x%x, v%d' % (rv, f2u(1e-5), rv))
        a('v_cvt_pk_bf16_f32 v%d, v%d, v%d' % (rv, rv, rv))
        a('v_and_b32 v%d, 0xffff0000, v%d' % (rv, rv))
        a('v_sqrt_f32 v%d, v%d' % (rv, rv))
        a('v_cvt_pk_bf16_f32 v%d, v%d, v%d' % (rv, rv, rv))
        a('v_and_b32 v%d, 0xffff0000, v%d' % (rv, rv))
        a('v_rcp_f32 v%d, v%d' % (rv, rv))

    def xc_addend(self):
        a = self.a
        a('s_and_b32 %s, %s, 0xf' % (sXCC, sXCC))
        a('s_mul_i32 s44, %s, %s' % (sXCC, sXCC))
        a('s_lshl_b32 s44, s44, 18')
        a('s_lshl_b32 s45, %s, 8' % sXCC)
        a('s_add_u32 s44, s44, s45')
        a('s_add_u32 %s, s44, 1' % sXCC)

    def gather8(self, vaddr, G):
        a = self.a

        def loads():
            a('global_load_dwordx4 %s, v%d, %s sc1' % (v4(G), vaddr, sp(pWS)))
            a('global_load_dwordx4 %s, v%d, %s offset:1024 sc1' % (v4(G + 4), vaddr, sp(pWS)))

        def checks():
            self.check4(G, G + 8, G + 9, True)
            self.check4(G + 4, G + 8, G + 9, False)
        self.poll(loads, checks)

        def reduce():
            for r in range(4):
                a('v_add_f32 v%d, v%d, v%d' % (G + r, G + r, G + 4 + r))
            self.allreduce([G, G + 1, G + 2, G + 3], [G + 4, G + 5, G + 6, G + 7], steps=('p16', 'p32'))
        return reduce

    def comm(self):
        a = self.a
        a.label('L_comm')
        WQ = 16
        XR = 96
        XN = 106
        XS = 14
        F = 116
        a('v_bfe_u32 v8, v0, 3, 1')
        a('v_mul_u32_u24 v8, 1280, v8')
        a('v_and_b32 v9, 7, v0')
        a('v_lshl_add_u32 v9, v2, 3, v9')
        a('v_mul_u32_u24 v9, 40, v9')
        a('v_add_u32 v10, v8, v9')
        a('s_mul_i32 s44, %s, 160' % sJ8)
        a('v_mul_u32_u24 v9, 40, v2')
        a('v_add3_u32 v11, v8, v9, s44')
        a('s_mul_i32 s44, %s, %d' % (sJ8, 80 * 8192))
        a('s_lshl_b32 s45, %s, 8' % sH)
        a('s_add_u32 s44, s44, s45')
        a('v_mul_u32_u24 v12, %d, v2' % (20 * 8192))
        a('v_lshl_add_u32 v12, v1, 4, v12')
        a('v_add_u32 v12, s44, v12')
        a('v_and_b32 v8, 1, v1')
        a('v_mul_u32_u24 v8, 1280, v8')
        a('v_lshrrev_b32 v13, 1, v1')
        a('v_lshl_add_u32 v13, v13, 3, v8')
        a('s_lshl_b32 s44, %s, 6' % sTP)
        a('v_add_u32 v13, s44, v13')
        a('s_waitcnt lgkmcnt(0)')
        a('s_load_dword %s, %s, %d' % (sTAG, sp(pWS), EPOCH))
        for base, va in ((XR, 10), (XN, 11)):
            a('global_load_dwordx4 %s, v%d, %s' % (v4(base), va, sp(pX)))
            a('global_load_dwordx4 %s, v%d, %s offset:16' % (v4(base + 4), va, sp(pX)))
            a('global_load_dwordx2 %s, v%d, %s offset:32' % (v2(base + 8), va, sp(pX)))
        a('global_load_dwordx2 %s, v13, %s' % (v2(XS), sp(pX)))
        for n in range(0 if 'nowq' in self.opts else 20):
            a('global_load_dwordx4 %s, v12, %s%s' % (v4(WQ + 4 * n), sp(pWQ), self.nt))
            if n < 19:
                a('v_add_u32 v12, 8192, v12')
        a('s_barrier')
        if 'stream' in self.opts and not ({'s2', 's3', 's4'} & self.opts):
            a('s_waitcnt vmcnt(0)')
            self.stamp(4)
            self.end_wave()
            return
        if 'noprio' not in self.opts:
            a('s_setprio 3')
        self.stamp(1)
        a('s_lshl_b32 s44, %s, 14' % sH)
        a('s_lshl_b32 s45, %s, 13' % sB)
        a('s_add_u32 s44, s44, s45')
        a('s_add_u32 s44, s44, %d' % (QA + 512 + 31 * 16 + 8))
        a('s_add_u32 s56, s%d, s44' % pWS)
        a('s_addc_u32 s57, s%d, 0' % (pWS + 1))
        if 'qtouch' in self.opts:
            for p in range(8):
                a('s_load_dword s%d, s[56:57], %d glc' % (46 + (p % 6), 1024 * p))
        self.consts()
        a('s_lshl_b32 s44, %s, 14' % sH)
        a('s_add_u32 s44, s44, %d' % QA)
        a('s_lshl_b32 s45, %s, 10' % sJ8)
        a('s_add_u32 s45, s45, s44')
        a('v_lshrrev_b32 v9, 1, v2')
        a('v_lshlrev_b32 v9, 13, v9')
        a('v_and_b32 v10, 1, v2')
        a('v_lshl_add_u32 v10, v1, 1, v10')
        a('v_lshl_add_u32 v12, v10, 4, v9')
        a('v_add_u32 v12, s45, v12')
        a('v_add_u32 v140, %d, v12' % (QB - QA))
        a('s_lshl_b32 s45, %s, 13' % sB)
        a('s_add_u32 s45, s45, s44')
        a('s_add_u32 s45, s45, 4096')
        a('v_lshrrev_b32 v9, 5, v0')
        a('v_lshlrev_b32 v9, 10, v9')
        a('v_and_b32 v10, 31, v0')
        a('v_lshl_add_u32 v13, v10, 4, v9')
        a('v_add_u32 v13, s45, v13')
        a('s_waitcnt vmcnt(20)')
        self.stamp(2)
        for k in range(10):
            a('v_lshlrev_b32 v%d, 16, v%d' % (F + 2 * k, XR + k))
            a('v_and_b32 v%d, 0xffff0000, v%d' % (F + 2 * k + 1, XR + k))
        a('v_add_f32 v8, v%d, v%d' % (F, F + 1))
        a('v_add_f32 v9, v%d, v%d' % (F + 2, F + 3))
        for k in range(4, 20, 2):
            a('v_add_f32 v8, v8, v%d' % (F + k))
            a('v_add_f32 v9, v9, v%d' % (F + k + 1))
        a('v_add_f32 v8, v8, v9')
        red = ('x1', 'x2', 'hm', 'p16', 'p32')
        self.allreduce([8], [9], steps=red)
        a('v_mul_f32 v8, 0x%x, v8' % f2u(1.0 / 640))
        a('v_mov_b32 v9, 0')
        a('v_mov_b32 v10, 0')
        for k in range(0, 20, 2):
            a('v_sub_f32 v%d, v%d, v8' % (F + k, F + k))
            a('v_sub_f32 v%d, v%d, v8' % (F + k + 1, F + k + 1))
            a('v_fmac_f32 v9, v%d, v%d' % (F + k, F + k))
            a('v_fmac_f32 v10, v%d, v%d' % (F + k + 1, F + k + 1))
        a('v_add_f32 v9, v9, v10')
        self.allreduce([9], [10], steps=red)
        a('v_mul_f32 v9, 0x%x, v9' % f2u(1.0 / 640))
        self.ln_finish(8, 9)
        a('s_waitcnt lgkmcnt(0)')
        self.tagcalc()
        self.stamp(3)
        D = 136
        A = [96, 100]
        for k in range(10):
            a('v_lshlrev_b32 v10, 16, v%d' % (XN + k))
            a('v_and_b32 v11, 0xffff0000, v%d' % (XN + k))
            a('v_sub_f32 v10, v10, v8')
            a('v_sub_f32 v11, v11, v8')
            a('v_cvt_pk_bf16_f32 v10, v10, v11')
            a('v_and_b32 v11, 0xffff0000, v10')
            a('v_lshlrev_b32 v10, 16, v10')
            a('v_mul_f32 v10, v10, v9')
            a('v_mul_f32 v11, v11, v9')
            a('v_cvt_pk_bf16_f32 v10, v10, v10')
            a('v_cvt_pk_bf16_f32 v11, v11, v11')
            self.sparse(A[0], 10)
            self.sparse(A[1], 11)
            a('s_waitcnt vmcnt(%d)' % (18 - 2 * k))
            self.mfma(D, A[0], WQ + 8 * k, k == 0)
            self.mfma(D, A[1], WQ + 8 * k + 4, False)
        P = 116
        a('v_mov_b32 v%d, %s' % (P + 2, sTAG))
        a('v_mov_b32 v%d, %s' % (P + 3, sTAG))
        a('v_mov_b32 v%d, %s' % (P + 6, sTAG))
        a('v_mov_b32 v%d, %s' % (P + 7, sTAG))
        a('v_mov_b32 v%d, v%d' % (P, D))
        a('v_mov_b32 v%d, v%d' % (P + 1, D + 1))
        a('v_mov_b32 v%d, v%d' % (P + 4, D + 2))
        a('v_mov_b32 v%d, v%d' % (P + 5, D + 3))
        a('global_store_dwordx4 v12, %s, %s' % (v4(P), sp(pWS)))
        a('global_store_dwordx4 v12, %s, %s offset:512' % (v4(P + 4), sp(pWS)))
        if 'noqb' not in self.opts:
            a('global_store_dwordx4 v140, %s, %s sc1' % (v4(P), sp(pWS)))
            a('global_store_dwordx4 v140, %s, %s offset:512 sc1' % (v4(P + 4), sp(pWS)))
        self.stamp(4)
        if 's2' in self.opts:
            self.end_wave()
            return
        top = a.newlabel('L_sp')
        top2 = a.newlabel('L_spb')
        chk = a.newlabel('L_spc')
        done = a.newlabel('L_spd')
        a('s_mov_b32 %s, %d' % (sSPIN, SPIN_MAX))
        a.label(top)
        a('s_and_b32 s44, %s, 3' % sSPIN)
        a('s_cmp_eq_u32 s44, 1')
        a('s_cbranch_scc1 %s' % top2)
        for p in range(8):
            a('s_load_dword s%d, s[56:57], %d glc' % (44 + p, 1024 * p))
        a('s_branch %s' % chk)
        a.label(top2)
        for p in range(8):
            a('s_load_dword s%d, s[56:57], %d glc' % (44 + p, 1024 * p + QB - QA))
        a.label(chk)
        a('s_waitcnt lgkmcnt(0)')
        for p in range(8):
            a('s_xor_b32 s%d, s%d, %s' % (44 + p, 44 + p, sTAG))
        a('s_or_b64 s[44:45], s[44:45], s[46:47]')
        a('s_or_b64 s[48:49], s[48:49], s[50:51]')
        a('s_or_b64 s[44:45], s[44:45], s[48:49]')
        a('s_cbranch_scc0 %s' % done)
        if 'qsleep' in self.opts:
            a('s_sleep 8')
        a('s_sub_u32 %s, %s, 1' % (sSPIN, sSPIN))
        a('s_cmp_lg_u32 %s, 0' % sSPIN)
        a('s_cbranch_scc1 %s' % top)
        a.label(done)
        a('s_and_b32 s56, %s, 3' % sSPIN)
        self.stamp(14)
        if 's3' in self.opts:
            self.end_wave()
            return
        G = 16

        def loads():
            a('s_add_u32 s44, %s, s56' % sSPIN)
            a('s_and_b32 s44, s44, 3')
            a('s_cmp_eq_u32 s44, 1')
            a('s_cselect_b32 s44, %d, 0' % (QB - QA))
            a('v_add_u32 v12, s44, v13')
            for k in range(4):
                for hf in range(2):
                    a('global_load_dwordx4 %s, v12, %s offset:%d sc1' % (
                        v4(G + 8 * k + 4 * hf), sp(pWS), k * 2048 + hf * 512 - 4096))

        def checks():
            for k in range(8):
                self.check1(G + 4 * k + 2, k == 0)
        self.poll(loads, checks)
        self.stamp(5)
        for r, off in ((8, 0), (9, 1), (10, 4), (11, 5)):
            a('v_add_f32 v%d, v%d, v%d' % (r, G + off, G + 8 + off))
            a('v_add_f32 v%d, v%d, v%d' % (G + 16 + off, G + 16 + off, G + 24 + off))
        for r, off in ((8, 0), (9, 1), (10, 4), (11, 5)):
            a('v_add_f32 v%d, v%d, v%d' % (r, r, G + 16 + off))
        self.allreduce([8, 9, 10, 11], [48, 49, 50, 51], steps=('p32',))
        a('v_cvt_pk_bf16_f32 v8, v8, v9')
        a('v_cvt_pk_bf16_f32 v9, v10, v11')
        a('v_and_b32 v10, 31, v0')
        a('v_lshlrev_b32 v10, 3, v10')
        a('ds_write_b64 v10, v[8:9] offset:%d' % Q_LDS)
        self.set_flag(190, FQ)
        self.stamp(6)
        if 's4' in self.opts:
            self.end_wave()
            return
        a('s_getreg_b32 %s, hwreg(HW_REG_XCC_ID)' % sXCC)
        self.xc_addend()
        a('s_lshl_b32 s45, %s, 5' % sX)
        a('s_add_u32 s56, s%d, s45' % pDBG)
        a('s_addc_u32 s57, s%d, 0' % (pDBG + 1))
        if 'noxc' in self.opts:
            a('s_mov_b32 s44, 0')
        else:
            top = a.newlabel('L_xc')
            done = a.newlabel('L_xcd')
            a('s_mov_b32 %s, %d' % (sSPIN, SPIN_MAX))
            a.label(top)
            a('s_load_dword s44, s[56:57], 0 glc')
            a('s_waitcnt lgkmcnt(0)')
            a('s_and_b32 s45, s44, 0xff')
            a('s_cmp_eq_u32 s45, 32')
            a('s_cbranch_scc1 %s' % done)
            a('s_sleep 16')
            a('s_sub_u32 %s, %s, 1' % (sSPIN, sSPIN))
            a('s_cmp_lg_u32 %s, 0' % sSPIN)
            a('s_cbranch_scc1 %s' % top)
            a.label(done)
            a('s_lshl_b32 s45, %s, 5' % sXCC)
            a('s_cmp_lg_u32 s44, s45')
            a('s_cselect_b32 s44, 1, 0')
        if 'forceglobal' in self.opts:
            a('s_mov_b32 s44, 1')
        a('v_mov_b32 v8, s44')
        a('ds_write_b32 v190, v8 offset:%d' % MODE)
        self.get_mode(8)
        a('v_lshlrev_b32 v150, 4, v0')
        a('s_mul_i32 s44, %s, 640' % sI)
        a('s_add_u32 s44, s44, %s' % sLOC)
        a('v_add_u32 v151, s44, v150')
        a('s_lshl_b32 s44, %s, 11' % sTP)
        a('s_add_u32 s44, s44, %d' % YP)
        a('v_add_u32 v152, s44, v150')
        a('s_lshl_b32 s44, %s, 11' % sI)
        a('s_lshl_b32 s45, %s, 8' % sX)
        a('s_add_u32 s44, s44, s45')
        a('s_add_u32 s44, s44, %d' % YP)
        a('v_add_u32 v153, s44, v150')
        a('v_and_b32 v8, 1, v1')
        a('v_lshlrev_b32 v8, 7, v8')
        a('v_lshrrev_b32 v9, 1, v1')
        a('v_lshl_add_u32 v154, v9, 2, v8')
        a('s_lshl_b32 s44, %s, 4' % sTP)
        a('s_add_u32 s44, s44, %s' % sLOC)
        a('s_add_u32 s44, s44, %d' % L_SP)
        a('v_lshlrev_b32 v155, 9, v0')
        a('v_add_u32 v155, s44, v155')
        a('s_min_u32 s45, %s, 26' % sU)
        a('s_mul_i32 s45, s45, %d' % INP)
        a('s_add_u32 s45, s45, %s' % sLOC)
        a('s_add_u32 s45, s45, %d' % L_IN)
        a('v_and_b32 v8, 7, v0')
        a('v_lshrrev_b32 v9, 3, v0')
        a('v_lshlrev_b32 v156, 7, v8')
        a('v_lshl_add_u32 v156, v9, 4, v156')
        a('v_add_u32 v156, s45, v156')
        a('v_lshlrev_b32 v157, 6, v1')
        a('v_lshl_add_u32 v157, v2, 4, v157')
        a('v_add_u32 v157, s45, v157')
        a('v_bfe_u32 v158, v0, 3, 1')
        a('v_lshlrev_b32 v158, 5, v158')
        a('v_lshl_add_u32 v158, v2, 3, v158')
        a('v_add_u32 v158, v158, v8')
        a('v_lshlrev_b32 v158, 4, v158')
        a('s_add_u32 s44, %s, %d' % (sLOC, L_SP))
        a('v_add_u32 v158, s44, v158')
        a('v_and_b32 v159, 1, v2')
        a('v_lshl_add_u32 v159, v1, 1, v159')
        a('v_lshrrev_b32 v9, 1, v2')
        a('v_lshl_add_u32 v159, v159, 1, v9')
        a('v_lshlrev_b32 v159, 4, v159')
        a('v_add_u32 v159, s45, v159')
        a('v_add_u32 v159, 2048, v159')
        a('v_lshlrev_b32 v160, 16, v%d' % XS)
        a('v_and_b32 v161, 0xffff0000, v%d' % XS)
        a('v_lshlrev_b32 v162, 16, v%d' % (XS + 1))
        a('v_and_b32 v163, 0xffff0000, v%d' % (XS + 1))
        a('global_load_dwordx4 v[164:167], v152, %s sc1' % sp(pWS))
        a('global_load_dwordx4 v[168:171], v152, %s offset:1024 sc1' % sp(pWS))
        a('s_mov_b32 exec_hi, 1')

        def rd():
            for w in range(4):
                a('ds_read_b128 %s, v150 offset:%d' % (v4(16 + 4 * w), OW_LDS + 528 * w))
        self.wait_flag(FVSA[2], 1, 8, sleep=2)
        self.wait_flag(FO, 4, 8, rd)
        self.stamp(7)
        for r in range(4):
            a('v_add_f32 v%d, v%d, v%d' % (16 + r, 16 + r, 20 + r))
            a('v_add_f32 v%d, v%d, v%d' % (24 + r, 24 + r, 28 + r))
        for r in range(4):
            a('v_add_f32 v%d, v%d, v%d' % (8 + r, 16 + r, 24 + r))
        self.tag4(8)
        self.st_local([(151, 8, L_OP)])
        self.stamp(8)
        l_noy = a.newlabel('L_noy')
        l_noh = a.newlabel('L_noh')
        fin = a.newlabel('L_cend')
        a('s_cmp_ge_u32 %s, 20' % sI)
        a('s_cbranch_scc1 %s' % l_noy)
        a('s_mov_b64 exec, 0xffff')

        def rd():
            for w in range(4):
                a('ds_read_b128 %s, v150 offset:%d' % (v4(16 + 4 * w), YW_LDS + 256 * w))
        self.wait_flag(FG1, 4, 32, sleep=1)
        self.wait_flag(FY, 4, 32, rd)
        self.stamp(9)
        for r in range(4):
            a('v_add_f32 v%d, v%d, v%d' % (16 + r, 16 + r, 20 + r))
            a('v_add_f32 v%d, v%d, v%d' % (24 + r, 24 + r, 28 + r))
        for r in range(4):
            a('v_add_f32 v%d, v%d, v%d' % (32 + r, 16 + r, 24 + r))
        self.tag4(32)
        a('global_store_dwordx4 v153, v[32:35], %s sc1' % sp(pWS))
        a.label(l_noy)
        a('s_mov_b64 exec, -1')
        a('s_cmp_lt_u32 %s, 12' % sI)
        a('s_cbranch_scc1 %s' % l_noh)
        red8 = self.gather8(152, 16)
        self.stamp(10)
        red8()
        self.bf16_round4(16, 20)
        for k in range(4):
            a('v_add_f32 v%d, v%d, v%d' % (20 + k, 20 + k, 160 + k))
        for k in range(4):
            a('v_cvt_pk_bf16_f32 v%d, v%d, v%d' % (20 + k, 20 + k, 20 + k))
        a('s_mov_b64 exec, 0xffff')
        for k in range(4):
            a('ds_write_b32 v154, v%d offset:%d' % (20 + k, H_LDS + 32 * k))
        a('ds_write_b128 v150, v[20:23] offset:%d' % HF_LDS)
        self.set_flag(190, FH)
        a('s_mov_b64 exec, -1')
        self.stamp(11)
        for k in range(4):
            a('v_and_b32 v%d, 0xffff0000, v%d' % (24 + k, 20 + k))
        a('v_add_f32 v28, v24, v25')
        a('v_add_f32 v30, v26, v27')
        a('v_mul_f32 v29, v24, v24')
        a('v_fmac_f32 v29, v25, v25')
        a('v_add_f32 v28, v28, v30')
        a('v_fmac_f32 v29, v26, v26')
        a('v_fmac_f32 v29, v27, v27')
        a('v_mov_b32 v30, %s' % sTAG)
        a('v_mov_b32 v31, %s' % sTAG)
        self.allreduce([28, 29], [], steps=('x2', 'r4', 'r8'))
        a('s_mov_b64 exec, 3')
        self.st_local([(155, 28, 0)])
        a('s_mov_b64 exec, -1')
        a.label(l_noh)
        a('s_cmp_ge_u32 %s, 27' % sU)
        a('s_cbranch_scc1 %s' % fin)
        DW = 96
        A0, A1 = 40, 44
        Gr, Cr, Sr = 56, 72, 80
        for k in range(4):
            a('v_mov_b32 v%d, 0' % (Gr + 8 + k))
            a('v_mov_b32 v%d, 0' % (Cr + 4 + k))
        a('v_mov_b32 v%d, 0' % Sr)
        a('v_mov_b32 v%d, 0' % (Sr + 1))
        a('s_mov_b32 s40, 0x000f000f')
        a('s_mov_b32 s41, 0x000f000f')

        def loads():
            a('global_load_dwordx4 %s, v157, %s offset:2560 sc1' % (v4(Cr), sp(pWS)))
            a('s_mov_b64 exec, s[40:41]')
            a('global_load_dwordx4 %s, v157, %s offset:3584 sc1' % (v4(Cr + 4), sp(pWS)))
            a('s_mov_b64 exec, -1')

        def checks():
            self.check4(Cr, 84, 85, True)
            self.check4(Cr + 4, 84, 85, False, mask='s[40:41]')
        self.poll(loads, checks, sleep=2)
        for r in range(4):
            a('v_add_f32 v%d, v%d, v%d' % (Cr + r, Cr + r, Cr + 4 + r))
        self.allreduce([Cr, Cr + 1, Cr + 2, Cr + 3], [], steps=('x1', 'x2', 'hm', 'r8'))

        def rd():
            for q in range(10):
                a('ds_read_b128 %s, v150 offset:%d' % (v4(DW + 4 * q), WD_LDS + 1024 * q))
        self.wait_flag(FWD, 1, 8, rd, lazy=True)
        a('s_mov_b32 s40, 0x0f0f0f0f')
        a('s_mov_b32 s41, 0x0f0f0f0f')
        a('s_mov_b32 s46, -1')
        a('s_mov_b32 s47, 0x00000f0f')

        def loads():
            a('s_mov_b64 exec, s[46:47]')
            a('global_load_dwordx4 %s, v158, %s sc1' % (v4(Sr), sp(pWS)))
            a('s_mov_b64 exec, s[40:41]')
            a('global_load_dwordx4 %s, v156, %s offset:2048 sc1' % (v4(Gr + 8), sp(pWS)))
            a('s_mov_b64 exec, -1')
            for n in range(2):
                a('global_load_dwordx4 %s, v156, %s offset:%d sc1' % (v4(Gr + 4 * n), sp(pWS), 1024 * n))

        def checks():
            self.check4(Gr, 84, 85, True)
            self.check4(Gr + 4, 84, 85, False)
            self.check4(Gr + 8, 84, 85, False, mask='s[40:41]')
            self.check1(Sr + 2, False, mask='s[46:47]')
        self.poll(loads, checks)
        self.stamp(12)
        for r in range(4):
            a('v_add_f32 v%d, v%d, v%d' % (Gr + r, Gr + r, Gr + 4 + r))
        self.allreduce([Sr, Sr + 1], [], steps=('x1',))
        for r in range(4):
            a('v_add_f32 v%d, v%d, v%d' % (Gr + r, Gr + r, Gr + 8 + r))
        self.allreduce([Sr, Sr + 1], [], steps=('x2',))
        self.allreduce([Gr, Gr + 1, Gr + 2, Gr + 3], [], steps=('x1',))
        self.allreduce([Sr, Sr + 1], [], steps=('hm',))
        self.allreduce([Gr, Gr + 1, Gr + 2, Gr + 3], [], steps=('x2',))
        self.allreduce([Sr, Sr + 1], [84, 85], steps=('p16',))
        self.allreduce([Gr, Gr + 1, Gr + 2, Gr + 3], [], steps=('hm',))
        self.allreduce([Sr, Sr + 1], [84, 85], steps=('p32',))
        a('v_mul_f32 v%d, 0x%x, v%d' % (Sr, f2u(1.0 / 640), Sr))
        a('v_mul_f32 v%d, 0x%x, v%d' % (Sr + 1, f2u(1.0 / 640), Sr + 1))
        a('v_fma_f32 v%d, -v%d, v%d, v%d' % (Sr + 1, Sr, Sr, Sr + 1))
        a('v_max_f32 v%d, 0, v%d' % (Sr + 1, Sr + 1))
        self.ln_finish(Sr, Sr + 1)
        for r in range(4):
            a('v_fma_f32 v%d, -v%d, v%d, v%d' % (Gr + r, Sr, Cr + r, Gr + r))
        for r in range(4):
            a('v_mul_f32 v%d, v%d, v%d' % (Gr + r, Gr + r, Sr + 1))
        a('v_permlane32_swap_b32 v%d, v%d' % (Gr, Gr + 2))
        a('v_permlane32_swap_b32 v%d, v%d' % (Gr + 1, Gr + 3))
        self.bf16_round4(Gr, 84)
        a('v_mul_f32 v88, 0x%x, v84' % f2u(-LOG2E))
        a('v_mul_f32 v89, 0x%x, v85' % f2u(-LOG2E))
        a('v_exp_f32 v88, v88')
        a('v_exp_f32 v89, v89')
        a('v_add_f32 v88, 1.0, v88')
        a('v_add_f32 v89, 1.0, v89')
        a('v_rcp_f32 v88, v88')
        a('v_rcp_f32 v89, v89')
        a('v_mul_f32 v84, v84, v88')
        a('v_mul_f32 v85, v85, v89')
        a('v_cvt_pk_bf16_f32 v84, v84, v85')
        a('v_and_b32 v85, 0xffff0000, v84')
        a('v_lshlrev_b32 v84, 16, v84')
        a('v_mul_f32 v84, v84, v86')
        a('v_mul_f32 v85, v85, v87')
        a('v_cvt_pk_bf16_f32 v84, v84, v84')
        a('v_cvt_pk_bf16_f32 v85, v85, v85')
        self.sparse(A0, 84)
        self.sparse(A1, 85)
        DD = 56
        for m in range(5):
            self.mfma(DD + 4 * m, A0, DW + 4 * m, True)
        for m in range(5):
            self.mfma(DD + 4 * m, A1, DW + 20 + 4 * m, False)
        for m in range(5):
            self.tag4(DD + 4 * m, second=True)
        self.st_local([(159, DD + 4 * m, 1024 * m - 2048) for m in range(5)])
        self.stamp(13)
        a.label(fin)
        self.end_wave()

    def loader(self):
        a = self.a
        a.label('L_load')
        a.reset()
        a('v_mov_b32 v8, -1')
        a('v_lshlrev_b32 v9, 2, v0')
        a('s_mov_b32 exec_hi, 0')
        a('ds_write_b32 v9, v8 offset:%d' % SY)
        a('s_mov_b64 exec, -1')
        a('s_getreg_b32 %s, hwreg(HW_REG_XCC_ID)' % sXCC)
        self.xc_addend()
        a('s_lshl_b32 s45, %s, 5' % sX)
        a('v_mov_b32 v11, s45')
        a('v_mov_b32 v12, %s' % sXCC)
        if 'tlb' in self.opts:
            a('s_lshl_b32 s44, %s, 5' % sB)
            a('s_add_u32 s44, s44, %s' % sH)
            a('s_lshl_b32 s44, s44, 20')
            a('s_lshl_b32 s45, %s, 16' % sJ)
            a('s_add_u32 s44, s44, s45')
            a('s_add_u32 s44, s44, %d' % (3072 * 256))
            a('v_mov_b32 v20, s44')
            a('s_mul_i32 s44, %s, %d' % (sX, 512 * 1280))
            a('v_mov_b32 v21, s44')
            a('v_add_u32 v22, %d, v21' % (511 * 1280))
            a('s_mul_i32 s44, %s, %d' % (sTP, 32 * 3456))
            a('v_mov_b32 v23, s44')
            a('v_add_u32 v24, %d, v23' % (32 * 3456 - 4))
            a('s_mul_i32 s44, %s, %d' % (sX, 216 * 1280))
            a('v_mov_b32 v25, s44')
            a('v_add_u32 v26, %d, v25' % (216 * 1280 - 4))
            a('s_mul_i32 s44, %s, %d' % (sX, LOCP))
            a('s_add_u32 s44, s44, %d' % LOCB)
            a('v_mov_b32 v27, s44')
            a('v_mov_b32 v28, %d' % YP)
        a('s_waitcnt lgkmcnt(0)')
        a('s_mov_b64 exec, 1')
        if 'tlb' in self.opts:
            for dst, va, p in ((40, 20, pK), (41, 20, pV), (42, 21, pWO), (43, 22, pWO), (44, 23, pWG), (45, 24, pWG),
                               (46, 23, pWU), (47, 24, pWU), (48, 25, pWD), (49, 26, pWD), (50, 27, pWS), (51, 28, pWS),
                               (52, 190, pOUT)):
                a('global_load_dword v%d, v%d, %s nt' % (dst, va, sp(p)))
        if 'noxc' not in self.opts:
            a('global_atomic_add v11, v12, %s sc1' % sp(pDBG))
        a('s_mov_b64 exec, -1')
        a('s_barrier')
        if 'noprio' not in self.opts:
            a('s_setprio 2')
        self.stamp(1)
        a('s_mul_i32 s44, %s, %d' % (sX, 512 * 1280))
        a('s_min_u32 s45, %s, 19' % sI)
        a('s_lshl_b32 s45, s45, 6')
        a('s_add_u32 s44, s44, s45')
        a('v_lshrrev_b32 v8, 2, v0')
        a('v_mul_u32_u24 v8, 1280, v8')
        a('v_and_b32 v9, 3, v0')
        a('v_lshl_add_u32 v8, v9, 4, v8')
        a('v_add_u32 v32, s44, v8')
        a('s_mul_i32 s44, %s, %d' % (sTP, 32 * 3456))
        a('s_mul_i32 s45, %s, 432' % sX)
        a('s_add_u32 s44, s44, s45')
        a('v_mul_u32_u24 v13, 3456, v2')
        a('v_add_u32 v13, s44, v13')
        for cb in range(4):
            lo, hi = 56 + 2 * cb, 57 + 2 * cb
            a('v_add_u32 v8, %d, v1' % (16 * cb))
            a('v_min_u32 v8, 53, v8')
            a('v_cmp_le_u32 vcc, 27, v8')
            a('v_subrev_u32 v9, 27, v8')
            a('v_cndmask_b32 v9, v8, v9, vcc')
            a('v_mov_b32 v%d, s%d' % (lo, pWG))
            a('v_mov_b32 v8, s%d' % pWU)
            a('v_cndmask_b32 v%d, v%d, v8, vcc' % (lo, lo))
            a('v_mov_b32 v%d, s%d' % (hi, pWG + 1))
            a('v_mov_b32 v8, s%d' % (pWU + 1))
            a('v_cndmask_b32 v%d, v%d, v8, vcc' % (hi, hi))
            a('v_lshl_add_u32 v9, v9, 4, v13')
            a('v_add_co_u32 v%d, vcc, v%d, v9' % (lo, lo))
            a('v_addc_co_u32 v%d, vcc, 0, v%d, vcc' % (hi, hi))
        a('s_min_u32 s44, %s, 26' % sU)
        a('s_lshl_b32 s44, s44, 3')
        a('s_mul_i32 s45, %s, 216' % sX)
        a('s_add_u32 s44, s44, s45')
        a('s_mul_i32 s44, s44, 1280')
        a('v_and_b32 v8, 1, v2')
        a('v_lshlrev_b32 v8, 1, v8')
        a('v_lshrrev_b32 v9, 1, v2')
        a('v_add_u32 v8, v8, v9')
        a('v_mul_u32_u24 v8, 2560, v8')
        a('v_lshl_add_u32 v8, v1, 4, v8')
        a('v_add_u32 v64, s44, v8')
        a('s_lshl_b32 s44, %s, 5' % sB)
        a('s_add_u32 s44, s44, %s' % sH)
        a('s_lshl_b32 s44, s44, 20')
        a('s_lshl_b32 s45, %s, 16' % sJ)
        a('s_add_u32 s44, s44, s45')
        a('s_add_u32 s44, s44, %d' % (3072 * 256))
        a('v_lshlrev_b32 v8, 10, v2')
        a('v_lshl_add_u32 v8, v1, 4, v8')
        a('v_add_u32 v66, s44, v8')
        self.wait_flag(FV, 4, 16, sleep=1)
        self.stamp(3)
        LD = self.ldepth
        seq = [(k, aw) for k in range(16) for aw in range(4)]
        marks = {4 * k1: FVSA[t] for t, (k0, k1) in enumerate(VSTAGES)}
        for i, (k, aw) in enumerate(seq):
            a('v_add_u32 v65, %d, v66' % (aw * 16384 + (k >> 2) * 4096 + (k & 3) * 256))
            if i >= LD:
                a('s_waitcnt vmcnt(%d)' % (LD - 1))
                if i - LD + 1 in marks:
                    self.set_flag(190, marks.pop(i - LD + 1))
            a('s_mov_b32 m0, %d' % (V_LDS + 1024 * (4 * k + aw)))
            a('global_load_lds_dwordx4 v65, %s%s' % (sp(pV), self.nt))
        if 'stream' in self.opts:
            a('s_waitcnt vmcnt(0)')
            self.stamp(7)
            self.end_wave()
            return
        l_nowo = a.newlabel('L_nowo')
        l_wod = a.newlabel('L_wod')
        l_nogu = a.newlabel('L_nogu')
        l_nod = a.newlabel('L_nod')
        WE = self.woearly
        for donec in sorted(marks):
            if 64 - donec >= WE:
                a('s_waitcnt vmcnt(%d)' % (64 - donec))
                self.set_flag(190, marks.pop(donec))
        a('s_cmp_ge_u32 %s, 20' % sI)
        a('s_cbranch_scc1 %s' % l_nowo)
        a('s_waitcnt vmcnt(%d)' % WE)
        pend = dict(marks)
        for q in range(32):
            a('s_mov_b32 m0, %d' % (WO_LDS + 1024 * q))
            a('global_load_lds_dwordx4 v32, %s%s' % (sp(pWO), self.nt))
            if q < 31:
                a('v_add_u32 v32, 20480, v32')
            if q == 7:
                for donec in sorted(pend):
                    a('s_waitcnt vmcnt(%d)' % (64 - donec + 8))
                    self.set_flag(190, pend[donec])
                self.stamp(7)
        a('s_waitcnt vmcnt(0)')
        self.set_flag(190, FWO)
        self.stamp(4)
        self.wait_flag(FG1, 4, 16, sleep=1)
        a('s_branch %s' % l_wod)
        a.label(l_nowo)
        for donec in sorted(marks):
            a('s_waitcnt vmcnt(%d)' % (64 - donec))
            self.set_flag(190, marks[donec])
        self.stamp(7)
        self.wait_flag(FO, 4, 16, sleep=1)
        a.label(l_wod)
        a('s_cmp_lt_u32 %s, 12' % sI)
        a('s_cbranch_scc1 %s' % l_nogu)
        for n in range(8):
            for cb in range(4):
                lo, hi = 56 + 2 * cb, 57 + 2 * cb
                a('s_mov_b32 m0, %d' % (GU_LDS + 1024 * (8 * cb + n)))
                a('global_load_lds_dwordx4 v[%d:%d], off%s' % (lo, hi, self.nt))
                if n < 7:
                    a('v_add_co_u32 v%d, vcc, %d, v%d' % (lo, 4 * 3456, lo))
                    a('v_addc_co_u32 v%d, vcc, 0, v%d, vcc' % (hi, hi))
        a.label(l_nogu)
        for rg in range(2):
            for m in range(5):
                a('s_mov_b32 m0, %d' % (WD_LDS + 1024 * (5 * rg + m)))
                a('v_add_u32 v65, %d, v64' % (rg * 1280 + m * 256))
                a('global_load_lds_dwordx4 v65, %s%s' % (sp(pWD), self.nt))
        a('s_waitcnt vmcnt(10)')
        self.set_flag(190, FGU)
        self.stamp(5)
        a('s_waitcnt vmcnt(0)')
        self.set_flag(190, FWD)
        self.stamp(6)
        self.end_wave()

    def att_prep(self):
        a = self.a
        self.consts(12)
        a('v_lshlrev_b32 v176, 4, v2')
        a('v_and_b32 v177, 1, v2')
        a('v_lshl_add_u32 v177, v1, 1, v177')
        a('v_lshlrev_b32 v177, 4, v177')
        a('v_lshrrev_b32 v12, 5, v0')
        a('v_lshl_add_u32 v177, v12, 3, v177')
        a('s_mul_i32 s44, %s, 528' % sAW)
        a('v_add_u32 v177, s44, v177')
        a('v_mov_b32 v178, s44')
        a('v_bfe_u32 v179, v0, 3, 1')
        a('v_lshlrev_b32 v179, 7, v179')
        a('v_lshl_add_u32 v179, v2, 5, v179')
        a('s_lshl_b32 s44, %s, 9' % sAW)
        a('v_lshlrev_b32 v180, 3, v0')
        a('v_add_u32 v180, s44, v180')
        a('v_and_b32 v181, 1, v1')
        a('v_lshlrev_b32 v181, 8, v181')
        a('v_lshl_add_u32 v181, v2, 4, v181')
        a('v_add_u32 v181, s44, v181')
        a('v_lshrrev_b32 v12, 2, v1')
        a('v_lshl_add_u32 v12, v2, 3, v12')
        a('v_lshlrev_b32 v12, 6, v12')
        a('s_lshl_b32 s44, %s, 13' % sAW)
        a('v_add_u32 v12, s44, v12')
        a('v_and_b32 v13, 3, v1')
        a('v_lshl_add_u32 v182, v13, 3, v12')
        a('v_lshl_add_u32 v184, v2, 1, v1')
        a('v_lshlrev_b32 v184, 4, v184')
        a('s_lshl_b32 s44, %s, 8' % sAW)
        a('v_add_u32 v184, s44, v184')
        a('v_lshlrev_b32 v185, 4, v0')
        a('s_lshl_b32 s44, %s, 13' % sAW)
        a('s_add_u32 s44, s44, %d' % GU_LDS)
        a('v_add_u32 v186, s44, v185')
        a('s_lshl_b32 s44, %s, 10' % sAW)
        a('s_add_u32 s44, s44, %d' % V_LDS)
        a('v_add_u32 v187, s44, v185')

    def attention(self):
        a = self.a
        a.label('L_att')
        a.reset()
        KR, VR, QF, S = 16, 80, 144, 160
        a('s_lshl_b32 s44, %s, 5' % sB)
        a('s_add_u32 s44, s44, %s' % sH)
        a('s_lshl_b32 s44, s44, 20')
        a('s_lshl_b32 s45, %s, 16' % sJ)
        a('s_add_u32 s44, s44, s45')
        a('s_lshl_b32 s45, %s, 14' % sAW)
        a('s_add_u32 s44, s44, s45')
        a('s_add_u32 s44, s44, %d' % (3072 * 256 + 4096))
        a('v_lshlrev_b32 v8, 8, v1')
        a('v_lshl_add_u32 v8, v2, 4, v8')
        a('v_lshlrev_b32 v9, 10, v2')
        a('v_lshl_add_u32 v9, v1, 4, v9')
        a('v_add_u32 v8, s44, v8')
        a('v_add_u32 v9, s44, v9')
        a('v_add_u32 v10, 8192, v8')
        a('v_add_u32 v11, 8192, v9')
        a('s_lshl_b32 s44, %s, 2' % sAW)
        a('v_mov_b32 v191, s44')
        a('s_waitcnt lgkmcnt(0)')
        a('s_load_dword %s, %s, %d' % (sTAG, sp(pWS), EPOCH))
        a('s_barrier')
        idx = 0
        for bb in range(4):
            for m in range(4):
                if idx >= self.depth:
                    a('s_waitcnt vmcnt(%d)' % (self.depth - 1))
                a('global_load_dwordx4 %s, v%d, %s offset:%d%s' % (
                    v4(KR + 16 * bb + 4 * m), 8 if bb < 2 else 10, sp(pK), (bb & 1) * 4096 + m * 64 - 4096, self.nt))
                idx += 1
                if idx == self.depth:
                    self.att_prep()
                if idx == self.fvat:
                    self.set_flag(191, FV)
        self.stamp(1)
        if 'stream' in self.opts:
            a('s_waitcnt vmcnt(0)')
            self.stamp(3)
            self.end_wave()
            return
        a('s_waitcnt lgkmcnt(0)')
        self.tagcalc()

        def rd():
            for m in range(4):
                a('ds_read_b128 %s, v176 offset:%d' % (v4(QF + 4 * m), Q_LDS + 64 * m))
        self.wait_flag(FQ, 1, 8, rd, lazy=True)
        self.stamp(2)
        for bb in range(4):
            a('s_waitcnt vmcnt(%d)' % (4 * (3 - bb)))
            for m in range(4):
                self.mfma(S + 4 * bb, KR + 16 * bb + 4 * m, QF + 4 * m, m == 0)
        self.stamp(3)
        sc = f2u(128 ** -0.5)
        for k in range(0, 16, 2):
            a('v_cvt_pk_bf16_f32 v8, v%d, v%d' % (S + k, S + k + 1))
            a('v_and_b32 v9, 0xffff0000, v8')
            a('v_lshlrev_b32 v8, 16, v8')
            a('v_mul_f32 v8, 0x%x, v8' % sc)
            a('v_mul_f32 v9, 0x%x, v9' % sc)
            a('v_cvt_pk_bf16_f32 v8, v8, v9')
            a('v_and_b32 v%d, 0xffff0000, v8' % (S + k + 1))
            a('v_lshlrev_b32 v%d, 16, v8' % (S + k))
        a('v_max3_f32 v8, v%d, v%d, v%d' % (S, S + 1, S + 2))
        a('v_max3_f32 v9, v%d, v%d, v%d' % (S + 3, S + 4, S + 5))
        a('v_max3_f32 v8, v8, v%d, v%d' % (S + 6, S + 7))
        a('v_max3_f32 v9, v9, v%d, v%d' % (S + 8, S + 9))
        a('v_max3_f32 v8, v8, v%d, v%d' % (S + 10, S + 11))
        a('v_max3_f32 v9, v9, v%d, v%d' % (S + 12, S + 13))
        a('v_max3_f32 v8, v8, v%d, v%d' % (S + 14, S + 15))
        a('v_max_f32 v8, v8, v9')
        self.allreduce([8], [9], op='max', steps=('p16', 'p32'))
        a('ds_write_b32 v191, v8 offset:%d' % MX)

        def loads():
            a('ds_read_b128 v[16:19], v190 offset:%d' % MX)

        def checks():
            a('v_or3_b32 v8, v16, v17, v18')
            a('v_or_b32 v8, v8, v19')
            a('v_and_b32 v8, 1, v8')
            a('v_cmp_ne_u32 s[48:49], 0, v8')
        self.poll(loads, checks, wait='lgkmcnt(0)')
        a('v_max3_f32 v8, v16, v17, v18')
        a('v_max_f32 v8, v8, v19')
        for k in range(16):
            a('v_sub_f32 v%d, v%d, v8' % (S + k, S + k))
        for k in range(16):
            a('v_mul_f32 v%d, 0x%x, v%d' % (S + k, f2u(LOG2E), S + k))
        for k in range(16):
            a('v_exp_f32 v%d, v%d' % (S + k, S + k))
        a('v_add_f32 v9, v%d, v%d' % (S, S + 1))
        a('v_add_f32 v10, v%d, v%d' % (S + 2, S + 3))
        for k in range(4, 16, 2):
            a('v_add_f32 v9, v9, v%d' % (S + k))
            a('v_add_f32 v10, v10, v%d' % (S + k + 1))
        a('v_add_f32 v9, v9, v10')
        self.allreduce([9], [10], steps=('p16', 'p32'))
        a('v_mul_f32 v8, 0x3e800000, v8')
        a('v_mov_b32 v10, 0')
        a('v_mov_b32 v11, 0')
        a('s_mov_b64 exec, 1')
        a('ds_write_b128 v178, v[8:11] offset:%d' % (OW_LDS + 512))
        a('s_mov_b64 exec, -1')
        O = 144
        for k in range(16):
            a('v_cvt_pk_bf16_f32 v12, v%d, v%d' % (S + k, S + k))
            a('v_and_b32 v12, 0xffff0000, v12')
            a('v_sub_f32 v12, v%d, v12' % (S + k))
            a('v_cndmask_b32 v12, v%d, v12, %s' % (S + k, HIROWS))
            a('v_cvt_pk_bf16_f32 v12, v12, v12')
            self.sparse(KR + 4 * k, 12)
        self.stamp(4)
        for t, (k0, k1) in enumerate(VSTAGES):
            def rd():
                for k in range(k0, k1):
                    a('ds_read_b128 %s, v187 offset:%d' % (v4(VR + 4 * k), 4096 * k))
            self.wait_flag(FVSA[t], 1, 8, rd, lazy=(t < 3))
            for k in range(k0, k1):
                self.mfma(O, KR + 4 * k, VR + 4 * k, k == 0)
        self.stamp(5)
        a('v_permlane32_swap_b32 v%d, v%d' % (O, O + 2))
        a('v_permlane32_swap_b32 v%d, v%d' % (O + 1, O + 3))
        a('v_add_f32 v%d, v%d, v%d' % (O, O, O + 2))
        a('v_add_f32 v%d, v%d, v%d' % (O + 1, O + 1, O + 3))
        a('ds_write_b64 v177, %s offset:%d' % (v2(O), OW_LDS))
        self.set_flag(191, FO)
        self.get_mode(8)
        l_now = a.newlabel('L_anow')
        l_end = a.newlabel('L_aend')
        a('s_cmp_ge_u32 %s, 20' % sI)
        a('s_cbranch_scc1 %s' % l_now)
        a('s_mul_i32 s44, %s, 640' % sAW)
        a('s_add_u32 s44, s44, %s' % sLOC)
        a('s_add_u32 s44, s44, 3840')
        a('v_lshrrev_b32 v8, 5, v0')
        a('v_mul_u32_u24 v8, 10240, v8')
        a('v_add_u32 v8, s44, v8')
        a('v_and_b32 v9, 31, v0')
        a('v_lshl_add_u32 v12, v9, 4, v8')
        a('v_and_b32 v9, 3, v0')
        a('v_mul_u32_u24 v9, 2560, v9')
        a('v_add_u32 v13, v9, v8')
        G = 16

        def loads():
            a('global_load_dwordx4 %s, v13, %s offset:%d sc1' % (v4(G + 16), sp(pWS), 512 - 3840))
            for j in range(4):
                a('global_load_dwordx4 %s, v12, %s offset:%d sc1' % (v4(G + 4 * j), sp(pWS), j * 2560 - 3840))

        def checks():
            for k in range(5):
                self.check4(G + 4 * k, 40, 41, k == 0)
        self.poll(loads, checks)
        self.set_flag(191, FG1)
        self.stamp(6)
        a('v_and_b32 v40, v%d, v7' % (G + 16))
        a('v_mov_b32 v41, v40')
        self.allreduce([41], [], op='max', steps=('x1', 'x2'))
        a('v_sub_f32 v40, v40, v41')
        a('v_mul_f32 v40, 0x%x, v40' % f2u(LOG2E))
        a('v_exp_f32 v40, v40')
        a('v_mul_f32 v41, v40, v%d' % (G + 17))
        self.allreduce([41], [], steps=('x1', 'x2'))
        a('v_rcp_f32 v41, v41')
        a('v_mul_f32 v40, v40, v41')
        for r in range(4):
            a('v_mul_f32_dpp v%d, v40, v%d quad_perm:[0,0,0,0] row_mask:0xf bank_mask:0xf' % (8 + r, G + r))
        for j in range(1, 4):
            for r in range(4):
                a('v_fmac_f32_dpp v%d, v40, v%d quad_perm:[%d,%d,%d,%d] row_mask:0xf bank_mask:0xf' % (
                    8 + r, G + 4 * j + r, j, j, j, j))
        a('v_cvt_pk_bf16_f32 v8, v8, v9')
        a('v_cvt_pk_bf16_f32 v9, v10, v11')
        a('ds_write_b64 v180, v[8:9] offset:%d' % O2_LDS)
        OF, WF0, WF1 = 48, 64, 80

        def rd():
            for ks in range(4):
                a('ds_read_b128 %s, v181 offset:%d' % (v4(OF + 4 * ks), O2_LDS + 64 * ks))
                for hf in range(2):
                    off = WO_LDS + (32 * ks + 4 * hf) * 64
                    a('ds_read_b64_tr_b16 %s, v182 offset:%d' % (v2(WF0 + 4 * ks + 2 * hf), off))
                    a('ds_read_b64_tr_b16 %s, v182 offset:%d' % (v2(WF1 + 4 * ks + 2 * hf), off + 32))
        self.wait_flag(FWO, 1, 10, rd)
        self.stamp(7)
        D0, D1 = 96, 100
        for ks in range(4):
            self.mfma(D0, WF0 + 4 * ks, OF + 4 * ks, ks == 0)
            self.mfma(D1, WF1 + 4 * ks, OF + 4 * ks, ks == 0)
        a('s_mov_b32 s46, 0x00030003')
        a('s_mov_b32 s47, 0x00030003')
        a('s_mov_b64 exec, s[46:47]')
        a('ds_write_b128 v184, %s offset:%d' % (v4(D0), YW_LDS))
        a('ds_write_b128 v184, %s offset:%d' % (v4(D1), YW_LDS + 128))
        self.set_flag(191, FY)
        a('s_mov_b64 exec, -1')
        self.stamp(8)
        a.label(l_now)
        a('s_cmp_lt_u32 %s, 12' % sI)
        a('s_cbranch_scc1 %s' % l_end)
        a('s_lshl_b32 s44, %s, 4' % sAW)
        a('v_add_u32 v8, s44, v1')
        a('v_cmp_gt_u32 s[40:41], 54, v8')
        a('v_min_u32 v8, 53, v8')
        a('v_cmp_le_u32 vcc, 27, v8')
        a('v_subrev_u32 v9, 27, v8')
        a('v_cndmask_b32 v9, v8, v9, vcc')
        a('v_cndmask_b32 v8, 0, 2, vcc')
        a('v_mul_u32_u24 v9, %d, v9' % INP)
        a('s_add_u32 s44, %s, %d' % (sLOC, L_IN))
        a('v_add_u32 v9, s44, v9')
        a('v_and_b32 v10, 1, v2')
        a('v_add_u32 v8, v8, v10')
        a('s_lshl_b32 s44, %s, 6' % sTP)
        a('v_lshl_add_u32 v13, v8, 4, v9')
        a('v_add_u32 v13, s44, v13')
        a('v_lshrrev_b32 v10, 1, v2')
        a('v_lshl_add_u32 v8, v8, 1, v10')
        a('v_lshl_add_u32 v12, v8, 4, v9')
        a('s_lshl_b32 s44, %s, 7' % sTP)
        a('v_add_u32 v12, s44, v12')
        GU, A0, A1 = 16, 48, 52
        a('v_mov_b32 v56, 0x3f803f80')
        self.sparse(A0, 56)

        def rd():
            for n in range(8):
                a('ds_read_b128 %s, v186 offset:%d' % (v4(GU + 4 * n), 1024 * n))
        self.wait_flag(FGU, 1, 8, rd, lazy=True)
        D = 60
        for n in range(8):
            self.mfma(D, A0, GU + 4 * n, n == 0)
        a('s_mov_b32 s46, s40')
        a('s_mov_b32 s47, 0')
        self.tag4(D)
        a('s_mov_b64 exec, s[46:47]')
        self.st_local([(13, D, 2560)])
        a('s_mov_b64 exec, -1')
        self.stamp(9)
        HD = 64

        def rd():
            a('ds_read_b128 %s, v179 offset:%d' % (v4(HD), H_LDS))
            a('ds_read_b128 %s, v179 offset:%d' % (v4(HD + 4), H_LDS + 16))
        self.wait_flag(FH, 1, 8, rd)
        self.stamp(10)
        D = 72
        self.sparse(A0, HD)
        for n in range(8):
            if n < 7:
                self.sparse(A1 if n % 2 == 0 else A0, HD + n + 1)
            self.mfma(D, A0 if n % 2 == 0 else A1, GU + 4 * n, n == 0)
        self.tag4(D)
        a('s_mov_b64 exec, s[40:41]')
        self.st_local([(12, D, 0)])
        a('s_mov_b64 exec, -1')
        self.stamp(11)
        a('s_cmp_lg_u32 %s, 0' % sAW)
        a('s_cbranch_scc1 %s' % l_end)
        a('s_lshl_b32 s44, %s, 8' % sTP)
        a('s_add_u32 s44, s44, %s' % sLOC)
        a('s_add_u32 s44, s44, %d' % L_IN)
        a('v_lshlrev_b32 v8, 4, v1')
        a('v_mul_u32_u24 v9, %d, v2' % INP)
        a('v_add3_u32 v80, v8, v9, s44')
        for n in range(1, 7):
            a('v_add_u32 v%d, %d, v80' % (80 + n, 4 * INP * n))
        a('s_lshl_b32 s44, %s, 11' % sTP)
        a('s_add_u32 s44, s44, %d' % FP)
        a('v_add_u32 v88, s44, v185')
        a('s_lshl_b32 s45, %s, 8' % sX)
        a('v_add_u32 v89, s45, v88')
        a('v_and_b32 v8, 1, v1')
        a('v_mul_u32_u24 v8, 1280, v8')
        a('v_lshrrev_b32 v9, 1, v1')
        a('v_lshl_add_u32 v8, v9, 3, v8')
        a('s_lshl_b32 s44, %s, 6' % sTP)
        a('v_add_u32 v90, s44, v8')
        a('ds_read_b128 v[92:95], v185 offset:%d' % HF_LDS)
        G = 16
        for k in range(4):
            a('v_mov_b32 v%d, 0' % (G + 24 + k))
        a('s_mov_b32 s46, -1')
        a('s_mov_b32 s47, 0xffff')
        a('s_waitcnt lgkmcnt(0)')
        for k in range(4):
            a('v_and_b32 v%d, 0xffff0000, v%d' % (92 + k, 92 + k))

        def loads():
            for n in range(6):
                a('global_load_dwordx4 %s, v%d, %s sc1' % (v4(G + 4 * n), 80 + n, sp(pWS)))
            a('s_mov_b64 exec, s[46:47]')
            a('global_load_dwordx4 %s, v86, %s sc1' % (v4(G + 24), sp(pWS)))
            a('s_mov_b64 exec, -1')

        def checks():
            for k in range(6):
                self.check4(G + 4 * k, 44, 45, k == 0, second=True)
            self.check4(G + 24, 44, 45, False, mask='s[46:47]', second=True)
        self.poll(loads, checks)
        self.stamp(12)
        for r in range(4):
            a('v_add_f32 v%d, v%d, v%d' % (G + r, G + r, G + 4 + r))
            a('v_add_f32 v%d, v%d, v%d' % (G + 8 + r, G + 8 + r, G + 12 + r))
            a('v_add_f32 v%d, v%d, v%d' % (G + 16 + r, G + 16 + r, G + 20 + r))
        for r in range(4):
            a('v_add_f32 v%d, v%d, v%d' % (G + r, G + r, G + 8 + r))
            a('v_add_f32 v%d, v%d, v%d' % (G + 16 + r, G + 16 + r, G + 24 + r))
        for r in range(4):
            a('v_add_f32 v%d, v%d, v%d' % (48 + r, G + r, G + 16 + r))
        self.allreduce([48, 49, 50, 51], [20, 21, 22, 23], steps=('p16', 'p32'))
        self.tag4(48)
        a('s_mov_b64 exec, 0xffff')
        a('global_store_dwordx4 v89, v[48:51], %s sc1' % sp(pWS))
        a('s_mov_b64 exec, -1')
        self.stamp(13)
        a('s_and_b32 s44, %s, 7' % sTP)
        a('s_cmp_lg_u32 s44, %s' % sX)
        a('s_cbranch_scc1 %s' % l_end)
        red8 = self.gather8(88, 16)
        self.stamp(14)
        red8()
        self.bf16_round4(16, 20)
        for k in range(4):
            a('v_add_f32 v%d, v%d, v%d' % (20 + k, 20 + k, 92 + k))
        a('v_cvt_pk_bf16_f32 v20, v20, v21')
        a('v_cvt_pk_bf16_f32 v21, v22, v23')
        a('s_mov_b64 exec, 0xffff')
        a('global_store_dwordx2 v90, v[20:21], %s' % sp(pOUT))
        a('s_cmp_lg_u32 s2, 96')
        a('s_cbranch_scc1 %s' % l_end)
        a('s_mov_b64 exec, 1')
        a('v_mov_b32 v24, %s' % sTAG)
        a('global_store_dword v190, v24, %s offset:%d sc1' % (sp(pWS), EPOCH))
        a.label(l_end)
        self.end_wave()

    def build(self):
        a = self.a
        hdr = open('cdna_kernels/%s.s.ref' % NAME).read().split('\n')
        top = []
        for ln in hdr:
            if ln.startswith('; @launch'):
                top.append('; @launch grid=(256,1,1) block=(%d,1,1) lds=%d' % (64 * NWAVES, LDS_BYTES))
                break
            top.append(ln)
        out = '\n'.join(top) + '\n'
        out += '.amdgcn_target "amdgcn-amd-amdhsa--gfx950"\n.text\n.globl %s_kernel\n.p2align 8\n' % NAME
        out += '.type %s_kernel,@function\n%s_kernel:\n' % (NAME, NAME)
        self.prologue()
        self.comm()
        self.attention()
        self.loader()
        a.label('L_exit')
        a('s_endpgm')
        out += a.text()
        out += '''.section .rodata,"a"
.p2align 6
.amdhsa_kernel %s_kernel
  .amdhsa_next_free_vgpr 208
  .amdhsa_next_free_sgpr 102
  .amdhsa_accum_offset 208
  .amdhsa_group_segment_fixed_size 0
  .amdhsa_kernarg_size 96
  .amdhsa_user_sgpr_count 2
  .amdhsa_user_sgpr_kernarg_segment_ptr 1
  .amdhsa_system_sgpr_workgroup_id_x 1
  .amdhsa_float_denorm_mode_32 3
.end_amdhsa_kernel
''' % NAME
        return out


if __name__ == '__main__':
    outp = sys.argv[1]
    open(outp, 'w').write(Gen(opts=sys.argv[2:]).build())
```

```python
import struct
import sys
from asmlib import Asm

NAME = 'sequential_preLN__sliding_block_cached__swiglu_ffn__decode'


def f2u(x):
    return struct.unpack('<I', struct.pack('<f', x))[0]


EPOCH = 0
XCB = 0x2000
QA = 0x10000
QB = 0x90000
YP = 0x110000
FP = 0x120000
LOCB = 0x200000
L_OP = 0
L_SP = 20480
L_IN = 21504
INP = 5120
LOCP = 163840
RB = 0x200000
TS = 0x600000

SY = 0
FQ, FV, MX, FO, FY, FH, FWO, FGU, FWD, MODE, FG1, FPUB, FWI = (SY + o for o in (0, 16, 32, 48, 64, 80, 84, 88, 92, 96, 112, 104, 108))
FVSA = [SY + 4, SY + 8, SY + 12, SY + 100]
Q_LDS = 128
OW_LDS = 384
O2_LDS = 2560
YW_LDS = 4608
H_LDS = 5632
HF_LDS = 5888
WD_LDS = 6144
WO_LDS = 16384
GU_LDS = 49152
V_LDS = 81920
LDS_BYTES = V_LDS + 65536
VSTAGES = [(0, 6), (6, 12), (12, 15), (15, 16)]

sWID, sX, sI, sH, sJ8, sB, sJ, sAW = 's3', 's4', 's5', 's6', 's7', 's8', 's9', 's10'
sTAG = 's11'
sT = ['s12', 's13', 's14', 's15']
pX, pK, pV, pWQ, pWO, pWG, pWU = 16, 18, 20, 22, 24, 28, 30
pWD, pOUT, pDBG, pWS = 32, 34, 36, 38
sLOC = 's42'
sMODE = 's43'
sTP = 's100'
sU = 's101'
sSPIN = 's52'
sSEL = 's53'
sXCC = 's54'
sTAG2 = 's55'
sT2 = ['s96', 's97', 's98', 's99']
HIROWS = 's[58:59]'
SPIN_MAX = 100000
NWAVES = 6
LOG2E = 1.4426950408889634


def sp(n):
    return 's[%d:%d]' % (n, n + 1)


def v4(n):
    return 'v[%d:%d]' % (n, n + 3)


def v2(n):
    return 'v[%d:%d]' % (n, n + 1)


class Gen:
    def __init__(self, opts=()):
        self.a = Asm()
        self.opts = set(opts) | {'latek', 'gupub', 'nosent', 'nofp'}
        self.stamps = 'stamps' in self.opts
        self.nt = '' if 'nont' in self.opts else ' nt'
        self.depth = 4
        self.ldepth = 32
        self.fvat = 16
        self.woearly = 8
        self.wo1 = 32
        self.womid = 8
        self.ldepth2 = 12
        self.kfree = 13
        self.rot = 0
        self.sl1 = 0
        self.sent = 28
        self.psets = 1
        self.psets1 = 1
        self.pgap = 3
        self.ilv = 'ilv' in self.opts
        self.qsleep = 2
        for o in self.opts:
            if o.startswith('depth='):
                self.depth = int(o[6:])
            if o.startswith('psets='):
                self.psets = int(o[6:])
            if o.startswith('psets1='):
                self.psets1 = int(o[7:])
            if o.startswith('pgap='):
                self.pgap = int(o[5:])
            if o.startswith('sl1='):
                self.sl1 = int(o[4:])
            if o.startswith('sent='):
                self.sent = int(o[5:])
            if o.startswith('rot='):
                self.rot = int(o[4:])
            if o.startswith('kfree='):
                self.kfree = int(o[6:])
            if o.startswith('ldepth2='):
                self.ldepth2 = int(o[8:])
            if o.startswith('womid='):
                self.womid = int(o[6:])
            if o.startswith('wo1='):
                self.wo1 = int(o[4:])
            if o.startswith('qsleep='):
                self.qsleep = int(o[7:])
            if o.startswith('woearly='):
                self.woearly = int(o[8:])
            if o.startswith('fvat='):
                self.fvat = int(o[5:])
            if o.startswith('ldepth='):
                self.ldepth = int(o[7:])

    def stamp(self, k):
        if self.stamps:
            self.a('s_memrealtime %s' % sp(60 + 2 * k))

    def end_wave(self):
        a = self.a
        if self.stamps:
            a('s_mov_b64 exec, -1')
            self.stamp(15)
            a('s_waitcnt lgkmcnt(0)')
            a('v_mov_b32 v200, 0')
            for k in range(16):
                a('v_writelane_b32 v200, s%d, %d' % (60 + 2 * k, k))
            a('s_mul_i32 s44, s2, %d' % NWAVES)
            a('s_add_u32 s44, s44, %s' % sWID)
            a('s_lshl_b32 s44, s44, 6')
            a('s_add_u32 s44, s44, %d' % TS)
            a('v_lshlrev_b32 v201, 2, v0')
            a('v_add_u32 v201, s44, v201')
            a('s_mov_b64 exec, 0xffff')
            a('global_store_dword v201, v200, %s' % sp(pWS))
        a('s_endpgm')

    def tag4(self, base, second=False):
        t = sT2 if second else sT
        for k in range(4):
            self.a('v_and_or_b32 v%d, v%d, v7, %s' % (base + k, base + k, t[k]))

    def check4(self, base, t0, t1, first, mask=None, second=False):
        a = self.a
        a('v_perm_b32 v%d, v%d, v%d, %s' % (t0, base + 1, base, sSEL))
        a('v_perm_b32 v%d, v%d, v%d, %s' % (t1, base + 3, base + 2, sSEL))
        a('v_lshl_or_b32 v%d, v%d, 16, v%d' % (t0, t1, t0))
        self.check1(t0, first, mask, second)

    def check1(self, reg, first, mask=None, second=False):
        a = self.a
        tg = sTAG2 if second else sTAG
        if first and mask is None:
            a('v_cmp_ne_u32 s[48:49], %s, v%d' % (tg, reg))
        else:
            a('v_cmp_ne_u32 s[50:51], %s, v%d' % (tg, reg))
            if mask is not None:
                a('s_and_b64 s[50:51], s[50:51], %s' % mask)
            if first:
                a('s_mov_b64 s[48:49], s[50:51]')
            else:
                a('s_or_b64 s[48:49], s[48:49], s[50:51]')

    def poll(self, loads, checks, wait='vmcnt(0)', sleep=0):
        a = self.a
        top = a.newlabel('L_poll')
        done = a.newlabel('L_pdone')
        a('s_mov_b32 %s, %d' % (sSPIN, SPIN_MAX if wait.startswith('vm') else SPIN_MAX * 8))
        a.label(top)
        loads()
        a('s_waitcnt %s' % wait)
        checks()
        a('s_cmp_eq_u64 s[48:49], 0')
        a('s_cbranch_scc1 %s' % done)
        if sleep:
            a('s_sleep %d' % sleep)
        a('s_sub_u32 %s, %s, 1' % (sSPIN, sSPIN))
        a('s_cmp_lg_u32 %s, 0' % sSPIN)
        a('s_cbranch_scc1 %s' % top)
        a.label(done)

    def ppoll(self, bases, nloads, loads, checks, stub, gap=3, sleep=0):
        a = self.a
        S = len(bases)
        top = a.newlabel('L_pp')
        com = a.newlabel('L_ppc')
        dn = [a.newlabel('L_ppd') for _ in bases]
        a('s_mov_b32 %s, %d' % (sSPIN, SPIN_MAX))
        for k, b in enumerate(bases):
            loads(b)
            if k < S - 1 and gap:
                a('s_sleep %d' % gap)
        a.label(top)
        for k, b in enumerate(bases):
            a('s_waitcnt vmcnt(%d)' % ((S - 1) * nloads))
            checks(b)
            a('s_cmp_eq_u64 s[48:49], 0')
            a('s_cbranch_scc1 %s' % dn[k])
            if sleep:
                a('s_sleep %d' % sleep)
            loads(b)
        a('s_sub_u32 %s, %s, 1' % (sSPIN, sSPIN))
        a('s_cmp_lg_u32 %s, 0' % sSPIN)
        a('s_cbranch_scc1 %s' % top)
        a('s_waitcnt vmcnt(0)')
        for k, b in enumerate(bases):
            a.label(dn[k])
            stub(b)
            if k < S - 1:
                a('s_branch %s' % com)
        a.label(com)

    def wait_flag(self, addr, n, t, extra=None, sleep=0, lazy=False):
        a = self.a
        lazy = lazy and 'nolazy' not in self.opts

        def loads():
            if n == 1:
                a('ds_read_b32 v%d, v190 offset:%d' % (t, addr))
            else:
                a('ds_read_b128 %s, v190 offset:%d' % (v4(t), addr))
            if extra and not lazy:
                extra()

        def checks():
            if n == 4:
                a('v_or3_b32 v%d, v%d, v%d, v%d' % (t, t, t + 1, t + 2))
                a('v_or_b32 v%d, v%d, v%d' % (t, t, t + 3))
            a('v_cmp_ne_u32 s[48:49], 0, v%d' % t)
        self.poll(loads, checks, wait='lgkmcnt(0)', sleep=max(sleep, 1) if lazy else sleep)
        if extra and lazy:
            extra()
            a('s_waitcnt lgkmcnt(0)')

    def set_flag(self, vaddr, off):
        self.a('ds_write_b32 v%d, v190 offset:%d' % (vaddr, off))

    def st_local(self, stores):
        a = self.a
        lg = a.newlabel('L_sg')
        ld = a.newlabel('L_sd')
        a('s_cmp_lg_u32 %s, 0' % sMODE)
        a('s_cbranch_scc1 %s' % lg)
        for va, d, off in stores:
            a('global_store_dwordx4 v%d, %s, %s offset:%d' % (va, v4(d), sp(pWS), off))
        a('s_branch %s' % ld)
        a.label(lg)
        for va, d, off in stores:
            a('global_store_dwordx4 v%d, %s, %s offset:%d sc1' % (va, v4(d), sp(pWS), off))
        a.label(ld)

    def get_mode(self, t):
        a = self.a

        def loads():
            a('ds_read_b32 v%d, v190 offset:%d' % (t, MODE))

        def checks():
            a('v_cmp_eq_u32 s[48:49], -1, v%d' % t)
        self.poll(loads, checks, wait='lgkmcnt(0)', sleep=1)
        a('v_readfirstlane_b32 s44, v%d' % t)
        a('s_cmp_eq_u32 s44, 0')
        a('s_cselect_b32 %s, 0, %d' % (sMODE, RB))
        a('s_mul_i32 %s, %s, %d' % (sLOC, sX, LOCP))
        a('s_add_u32 %s, %s, %d' % (sLOC, sLOC, LOCB))
        a('s_add_u32 %s, %s, %s' % (sLOC, sLOC, sMODE))

    def allreduce(self, rs, tmps, op='add', steps=('x1', 'x2', 'r4', 'r8', 'p16')):
        a = self.a
        dpp = {'x1': 'quad_perm:[1,0,3,2]', 'x2': 'quad_perm:[2,3,0,1]', 'r4': 'row_ror:4',
               'r8': 'row_ror:8', 'hm': 'row_half_mirror'}
        for st in steps:
            if st in dpp:
                for r in rs:
                    a('v_%s_f32_dpp v%d, v%d, v%d %s row_mask:0xf bank_mask:0xf' % (op, r, r, r, dpp[st]))
            else:
                ins = 'v_permlane16_swap_b32' if st == 'p16' else 'v_permlane32_swap_b32'
                for r, t in zip(rs, tmps):
                    a('v_mov_b32 v%d, v%d' % (t, r))
                for r, t in zip(rs, tmps):
                    a('%s v%d, v%d' % (ins, r, t))
                for r, t in zip(rs, tmps):
                    a('v_%s_f32 v%d, v%d, v%d' % (op, r, r, t))

    def sparse(self, dst, src):
        for k in range(4):
            self.a('v_and_b32 v%d, v%d, v%d' % (dst + k, src, 3 + k))

    def mfma(self, d, x, y, first):
        self.a('v_mfma_f32_16x16x32_bf16 %s, %s, %s, %s' % (v4(d), v4(x), v4(y), '0' if first else v4(d)))

    def bf16_round4(self, src, dst):
        a = self.a
        a('v_cvt_pk_bf16_f32 v%d, v%d, v%d' % (dst, src, src + 1))
        a('v_cvt_pk_bf16_f32 v%d, v%d, v%d' % (dst + 2, src + 2, src + 3))
        a('v_and_b32 v%d, 0xffff0000, v%d' % (dst + 1, dst))
        a('v_lshlrev_b32 v%d, 16, v%d' % (dst, dst))
        a('v_and_b32 v%d, 0xffff0000, v%d' % (dst + 3, dst + 2))
        a('v_lshlrev_b32 v%d, 16, v%d' % (dst + 2, dst + 2))

    def prologue(self):
        a = self.a
        a('s_cmp_ge_u32 s2, 256')
        a('s_cbranch_scc1 L_exit')
        a('s_load_dwordx16 s[16:31], s[0:1], 0')
        a('s_load_dwordx8 s[32:39], s[0:1], 64')
        if self.stamps:
            for k in range(1, 16):
                a('s_mov_b64 %s, 0' % sp(60 + 2 * k))
        self.stamp(0)
        a('v_lshrrev_b32 v1, 6, v0')
        a('v_and_b32 v0, 63, v0')
        a('v_readfirstlane_b32 %s, v1' % sWID)
        a('s_and_b32 %s, s2, 7' % sX)
        a('s_lshr_b32 %s, s2, 3' % sI)
        a('s_and_b32 %s, %s, 3' % (sH, sI))
        a('s_lshl_b32 s44, %s, 2' % sX)
        a('s_add_u32 %s, %s, s44' % (sH, sH))
        a('s_lshr_b32 %s, %s, 2' % (sJ8, sI))
        a('s_lshr_b32 %s, %s, 2' % (sB, sJ8))
        a('s_and_b32 %s, %s, 3' % (sJ, sJ8))
        a('v_and_b32 v1, 15, v0')
        a('v_lshrrev_b32 v2, 4, v0')
        a('v_mov_b32 v190, 0')
        a('s_sub_u32 %s, %s, 12' % (sTP, sI))
        a('s_max_i32 %s, %s, 0' % (sTP, sTP))
        a('s_add_u32 %s, %s, 12' % (sU, sI))
        a('s_cmp_lt_u32 %s, 12' % sI)
        a('s_cselect_b32 %s, %s, %s' % (sU, sI, sU))
        a('s_sub_u32 s44, %s, 8' % sI)
        a('s_cmp_ge_u32 %s, 20' % sI)
        a('s_cselect_b32 %s, s44, %s' % (sU, sU))
        a('s_sub_u32 %s, %s, 1' % (sAW, sWID))
        a('s_cmp_eq_u32 %s, 5' % sWID)
        a('s_cbranch_scc1 L_load')
        a('s_cmp_lg_u32 %s, 0' % sWID)
        a('s_cbranch_scc1 L_att')

    def consts(self, t=8):
        a = self.a
        a('v_and_b32 v%d, 7, v0' % t)
        a('v_and_b32 v%d, 1, v%d' % (t + 1, t))
        a('v_cmp_eq_u32 vcc, 1, v%d' % (t + 1))
        a('v_mov_b32 v%d, 0xffff' % (t + 1))
        a('v_mov_b32 v%d, 0xffff0000' % (t + 2))
        a('v_cndmask_b32 v%d, v%d, v%d, vcc' % (t + 1, t + 1, t + 2))
        a('v_lshrrev_b32 v%d, 1, v%d' % (t, t))
        for k in range(4):
            a('v_cmp_eq_u32 vcc, %d, v%d' % (k, t))
            a('v_cndmask_b32 v%d, 0, v%d, vcc' % (3 + k, t + 1))
        a('v_mov_b32 v7, 0xffffff00')
        a('s_mov_b32 %s, 0x0c0c0400' % sSEL)
        a('s_mov_b32 s58, 0xff00ff00')
        a('s_mov_b32 s59, 0xff00ff00')

    def tagcalc(self):
        a = self.a
        a('s_mul_i32 %s, %s, 0x9e3779b1' % (sTAG, sTAG))
        a('s_add_u32 %s, %s, 0x7f4a7c15' % (sTAG, sTAG))
        a('s_xor_b32 %s, %s, 0x5a5a5a5a' % (sTAG2, sTAG))
        for tg, t in ((sTAG, sT), (sTAG2, sT2)):
            a('s_and_b32 %s, %s, 0xff' % (t[0], tg))
            a('s_bfe_u32 %s, %s, 0x80008' % (t[1], tg))
            a('s_bfe_u32 %s, %s, 0x80010' % (t[2], tg))
            a('s_lshr_b32 %s, %s, 24' % (t[3], tg))

    def ln_finish(self, rm, rv):
        a = self.a
        a('v_cvt_pk_bf16_f32 v%d, v%d, v%d' % (rv, rm, rv))
        a('v_lshlrev_b32 v%d, 16, v%d' % (rm, rv))
        a('v_and_b32 v%d, 0xffff0000, v%d' % (rv, rv))
        a('v_add_f32 v%d, 0x%x, v%d' % (rv, f2u(1e-5), rv))
        a('v_cvt_pk_bf16_f32 v%d, v%d, v%d' % (rv, rv, rv))
        a('v_and_b32 v%d, 0xffff0000, v%d' % (rv, rv))
        a('v_sqrt_f32 v%d, v%d' % (rv, rv))
        a('v_cvt_pk_bf16_f32 v%d, v%d, v%d' % (rv, rv, rv))
        a('v_and_b32 v%d, 0xffff0000, v%d' % (rv, rv))
        a('v_rcp_f32 v%d, v%d' % (rv, rv))

    def rot_setup(self):
        a = self.a
        a('s_lshl_b32 s47, %s, 5' % sB)
        a('s_add_u32 s47, s47, %s' % sH)
        if self.ilv:
            a('s_mul_i32 s47, s47, %d' % (self.rot * 16384))
            a('s_lshl_b32 s46, %s, 12' % sJ)
            a('s_add_u32 s47, s47, s46')
            a('s_mov_b32 s46, 0')
        else:
            a('s_lshl_b32 s47, s47, 2')
            a('s_add_u32 s47, s47, %s' % sJ)
            a('s_mul_i32 s47, s47, %d' % (self.rot * 4096))
            a('s_lshl_b32 s46, %s, 16' % sJ)

    def blk_off(self, dst, aw, bb):
        a = self.a
        if self.ilv:
            a('s_add_u32 %s, s47, %d' % (dst, aw * 65536 + bb * 16384))
            a('s_and_b32 %s, %s, 0x3ffff' % (dst, dst))
        else:
            a('s_add_u32 %s, s47, %d' % (dst, aw * 16384 + bb * 4096))
            a('s_and_b32 %s, %s, 0xffff' % (dst, dst))
            a('s_add_u32 %s, %s, s46' % (dst, dst))

    def xc_addend(self):
        a = self.a
        a('s_and_b32 %s, %s, 0xf' % (sXCC, sXCC))
        a('s_mul_i32 s44, %s, %s' % (sXCC, sXCC))
        a('s_lshl_b32 s44, s44, 18')
        a('s_lshl_b32 s45, %s, 8' % sXCC)
        a('s_add_u32 s44, s44, s45')
        a('s_add_u32 %s, s44, 1' % sXCC)

    def gather8(self, vaddr, G, sets, stampk):
        a = self.a

        def loads(b):
            a('global_load_dwordx4 %s, v%d, %s sc1' % (v4(b), vaddr, sp(pWS)))
            a('global_load_dwordx4 %s, v%d, %s offset:1024 sc1' % (v4(b + 4), vaddr, sp(pWS)))

        def checks(b):
            self.check4(b, G + 8, G + 9, True)
            self.check4(b + 4, G + 8, G + 9, False)

        def stub(b):
            for r in range(4):
                a('v_add_f32 v%d, v%d, v%d' % (G + r, b + r, b + 4 + r))
        self.ppoll(sets[:self.psets], 2, loads, checks, stub, gap=self.pgap)
        self.stamp(stampk)
        self.allreduce([G, G + 1, G + 2, G + 3], [G + 4, G + 5, G + 6, G + 7], steps=('p16', 'p32'))

    def comm(self):
        a = self.a
        a.label('L_comm')
        WQ = 16
        XR = 96
        XN = 106
        XS = 14
        F = 116
        a('v_bfe_u32 v8, v0, 3, 1')
        a('v_mul_u32_u24 v8, 1280, v8')
        a('v_and_b32 v9, 7, v0')
        a('v_lshl_add_u32 v9, v2, 3, v9')
        a('v_mul_u32_u24 v9, 40, v9')
        a('v_add_u32 v10, v8, v9')
        a('s_mul_i32 s44, %s, 160' % sJ8)
        a('v_mul_u32_u24 v9, 40, v2')
        a('v_add3_u32 v11, v8, v9, s44')
        a('s_mul_i32 s44, %s, %d' % (sJ8, 80 * 8192))
        a('s_lshl_b32 s45, %s, 8' % sH)
        a('s_add_u32 s44, s44, s45')
        a('v_mul_u32_u24 v12, %d, v2' % (20 * 8192))
        a('v_lshl_add_u32 v12, v1, 4, v12')
        a('v_add_u32 v12, s44, v12')
        a('v_and_b32 v8, 1, v1')
        a('v_mul_u32_u24 v8, 1280, v8')
        a('v_lshrrev_b32 v13, 1, v1')
        a('v_lshl_add_u32 v13, v13, 3, v8')
        a('s_lshl_b32 s44, %s, 6' % sTP)
        a('v_add_u32 v13, s44, v13')
        a('s_waitcnt lgkmcnt(0)')
        a('s_load_dword %s, %s, %d' % (sTAG, sp(pWS), EPOCH))
        for base, va in ((XR, 10), (XN, 11)):
            a('global_load_dwordx4 %s, v%d, %s' % (v4(base), va, sp(pX)))
            a('global_load_dwordx4 %s, v%d, %s offset:16' % (v4(base + 4), va, sp(pX)))
            a('global_load_dwordx2 %s, v%d, %s offset:32' % (v2(base + 8), va, sp(pX)))
        a('global_load_dwordx2 %s, v13, %s' % (v2(XS), sp(pX)))
        for n in range(0 if 'nowq' in self.opts else 20):
            a('global_load_dwordx4 %s, v12, %s%s' % (v4(WQ + 4 * n), sp(pWQ), self.nt))
            if n < 19:
                a('v_add_u32 v12, 8192, v12')
        a('s_barrier')
        if 'stream' in self.opts and not ({'s2', 's3', 's4'} & self.opts):
            a('s_waitcnt vmcnt(0)')
            self.stamp(4)
            self.end_wave()
            return
        if 'noprio' not in self.opts:
            a('s_setprio 3')
        self.stamp(1)
        self.consts()
        a('s_getreg_b32 %s, hwreg(HW_REG_XCC_ID)' % sXCC)
        a('s_and_b32 %s, %s, 0xf' % (sXCC, sXCC))
        a('v_and_b32 v10, 31, v0')
        a('s_lshl_b32 s44, %s, 12' % sX)
        a('s_add_u32 s44, s44, %d' % XCB)
        a('v_lshlrev_b32 v142, 7, v10')
        a('v_add_u32 v142, s44, v142')
        a('s_lshl_b32 s44, %s, 10' % sH)
        a('s_add_u32 s44, s44, %d' % XCB)
        a('v_and_b32 v9, 7, v0')
        a('v_lshlrev_b32 v143, 7, v9')
        a('v_add_u32 v143, s44, v143')
        a('s_lshl_b32 s44, %s, 14' % sH)
        a('s_add_u32 s44, s44, %d' % QA)
        a('v_lshrrev_b32 v9, 1, v2')
        a('v_lshlrev_b32 v9, 13, v9')
        a('v_and_b32 v10, 1, v2')
        a('v_lshl_add_u32 v10, v1, 1, v10')
        a('v_lshl_add_u32 v12, v10, 4, v9')
        a('v_add_u32 v12, s44, v12')
        a('s_and_b32 s45, %s, 1' % sJ8)
        a('s_lshl_b32 s45, s45, 9')
        a('s_lshr_b32 s46, %s, 1' % sJ8)
        a('s_lshl_b32 s46, s46, 2')
        a('s_add_u32 s45, s45, s46')
        a('s_add_u32 s45, s45, 4096')
        a('v_add_u32 v140, s45, v12')
        a('s_lshl_b32 s45, %s, 9' % sJ8)
        a('v_add_u32 v12, s45, v12')
        a('s_lshl_b32 s45, %s, 13' % sB)
        a('s_add_u32 s45, s45, s44')
        a('s_add_u32 s45, s45, 2048')
        a('v_lshlrev_b32 v13, 4, v0')
        a('v_add_u32 v13, s45, v13')
        a('s_waitcnt vmcnt(20)')
        self.stamp(2)
        for k in range(10):
            a('v_lshlrev_b32 v%d, 16, v%d' % (F + 2 * k, XR + k))
            a('v_and_b32 v%d, 0xffff0000, v%d' % (F + 2 * k + 1, XR + k))
        a('v_add_f32 v8, v%d, v%d' % (F, F + 1))
        a('v_add_f32 v9, v%d, v%d' % (F + 2, F + 3))
        for k in range(4, 20, 2):
            a('v_add_f32 v8, v8, v%d' % (F + k))
            a('v_add_f32 v9, v9, v%d' % (F + k + 1))
        a('v_add_f32 v8, v8, v9')
        red = ('x1', 'x2', 'hm', 'p16', 'p32')
        self.allreduce([8], [9], steps=red)
        a('v_mul_f32 v8, 0x%x, v8' % f2u(1.0 / 640))
        a('v_mov_b32 v9, 0')
        a('v_mov_b32 v10, 0')
        for k in range(0, 20, 2):
            a('v_sub_f32 v%d, v%d, v8' % (F + k, F + k))
            a('v_sub_f32 v%d, v%d, v8' % (F + k + 1, F + k + 1))
            a('v_fmac_f32 v9, v%d, v%d' % (F + k, F + k))
            a('v_fmac_f32 v10, v%d, v%d' % (F + k + 1, F + k + 1))
        a('v_add_f32 v9, v9, v10')
        self.allreduce([9], [10], steps=red)
        a('v_mul_f32 v9, 0x%x, v9' % f2u(1.0 / 640))
        self.ln_finish(8, 9)
        a('s_waitcnt lgkmcnt(0)')
        self.tagcalc()
        self.stamp(3)
        D = 136
        A = [96, 100]
        for k in range(10):
            a('v_lshlrev_b32 v10, 16, v%d' % (XN + k))
            a('v_and_b32 v11, 0xffff0000, v%d' % (XN + k))
            a('v_sub_f32 v10, v10, v8')
            a('v_sub_f32 v11, v11, v8')
            a('v_cvt_pk_bf16_f32 v10, v10, v11')
            a('v_and_b32 v11, 0xffff0000, v10')
            a('v_lshlrev_b32 v10, 16, v10')
            a('v_mul_f32 v10, v10, v9')
            a('v_mul_f32 v11, v11, v9')
            a('v_cvt_pk_bf16_f32 v10, v10, v10')
            a('v_cvt_pk_bf16_f32 v11, v11, v11')
            self.sparse(A[0], 10)
            self.sparse(A[1], 11)
            a('s_waitcnt vmcnt(%d)' % (18 - 2 * k))
            self.mfma(D, A[0], WQ + 8 * k, k == 0)
            self.mfma(D, A[1], WQ + 8 * k + 4, False)
        def qhash(dst, b, t):
            a('v_alignbit_b32 v%d, v%d, v%d, 8' % (dst, b + 1, b + 1))
            a('v_alignbit_b32 v%d, v%d, v%d, 16' % (t, b + 2, b + 2))
            a('v_xor_b32 v%d, v%d, v%d' % (dst, dst, b))
            a('v_xor_b32 v%d, v%d, v%d' % (dst, dst, t))
            a('v_alignbit_b32 v%d, v%d, v%d, 24' % (t, b + 3, b + 3))
            a('v_xor_b32 v%d, v%d, v%d' % (dst, dst, t))
        a('global_store_dwordx4 v12, %s, %s' % (v4(D), sp(pWS)))
        qhash(145, D, 146)
        a('v_xor_b32 v145, %s, v145' % sTAG)
        if 'forceglobal' not in self.opts:
            a('global_store_dword v140, v145, %s' % sp(pWS))
        self.stamp(4)
        a('s_waitcnt vmcnt(0)')
        self.stamp(13)
        G = 16
        top = a.newlabel('L_sp')
        nxt = a.newlabel('L_spn')
        done = a.newlabel('L_spd')
        a('s_mov_b32 %s, %d' % (sSPIN, SPIN_MAX))
        a('s_mov_b32 s40, 0')
        a.label(top)
        for k in range(5):
            a('global_load_dwordx4 %s, v13, %s offset:%d sc1' % (v4(G + 4 * k), sp(pWS), k * 1024 - 2048))
        a('s_waitcnt vmcnt(0)')
        for k in range(4):
            qhash(40, G + 4 * k, 41)
            a('v_xor_b32 v40, v40, v%d' % (G + 16 + k))
            self.check1(40, k == 0)
        a('s_cmp_eq_u64 s[48:49], 0')
        a('s_cbranch_scc1 %s' % done)
        a('s_and_b32 s44, %s, 3' % sSPIN)
        a('s_or_b32 s44, s44, s40')
        a('s_cmp_lg_u32 s44, 1')
        a('s_cbranch_scc1 %s' % nxt)
        a('global_load_dwordx2 v[16:17], v143, %s sc1' % sp(pWS))
        a('s_waitcnt vmcnt(0)')
        a('v_cmp_ne_u32 s[48:49], %s, v16' % sTAG)
        a('v_cmp_ne_u32 s[50:51], %s, v17' % sXCC)
        a('s_cmp_lg_u64 s[48:49], 0')
        a('s_cbranch_scc1 %s' % nxt)
        if 'forceglobal' not in self.opts:
            a('s_cmp_eq_u64 s[50:51], 0')
            a('s_cbranch_scc1 %s' % nxt)
        a('s_mov_b32 s40, 2')
        a('v_add_u32 v12, %d, v12' % (QB - QA))
        a('v_add_u32 v13, %d, v13' % (QB - QA))
        a('v_add_u32 v140, %d, v140' % (QB - QA))
        a('global_store_dwordx4 v12, %s, %s sc1' % (v4(D), sp(pWS)))
        a('global_store_dword v140, v145, %s sc1' % sp(pWS))
        a.label(nxt)
        a('s_sub_u32 %s, %s, 1' % (sSPIN, sSPIN))
        a('s_cmp_lg_u32 %s, 0' % sSPIN)
        a('s_cbranch_scc1 %s' % top)
        a.label(done)
        self.stamp(5)
        for r in range(4):
            a('v_add_f32 v%d, v%d, v%d' % (8 + r, G + r, G + 4 + r))
            a('v_add_f32 v%d, v%d, v%d' % (G + 8 + r, G + 8 + r, G + 12 + r))
        for r in range(4):
            a('v_add_f32 v%d, v%d, v%d' % (8 + r, 8 + r, G + 8 + r))
        self.allreduce([8, 9, 10, 11], [48, 49, 50, 51], steps=('p32',))
        a('v_cvt_pk_bf16_f32 v8, v8, v9')
        a('v_cvt_pk_bf16_f32 v9, v10, v11')
        a('v_and_b32 v10, 31, v0')
        a('v_lshlrev_b32 v10, 3, v10')
        a('ds_write_b64 v10, v[8:9] offset:%d' % Q_LDS)
        self.set_flag(190, FQ)
        self.stamp(6)
        top = a.newlabel('L_xc')
        nxt = a.newlabel('L_xcn')
        done = a.newlabel('L_xcd')
        a('s_mov_b32 %s, %d' % (sSPIN, SPIN_MAX))
        a.label(top)
        a('s_mov_b32 s44, 1')
        a('global_load_dwordx2 v[16:17], v142, %s sc1' % sp(pWS))
        a('s_waitcnt vmcnt(0)')
        a('v_cmp_ne_u32 s[48:49], %s, v16' % sTAG)
        a('v_cmp_ne_u32 s[50:51], %s, v17' % sXCC)
        a('s_cmp_lg_u64 s[48:49], 0')
        a('s_cbranch_scc1 %s' % nxt)
        a('s_cmp_lg_u64 s[50:51], 0')
        a('s_cselect_b32 s44, 1, 0')
        if 'forceglobal' in self.opts:
            a('s_mov_b32 s44, 1')
        a('s_branch %s' % done)
        a.label(nxt)
        a('s_sleep 4')
        a('s_sub_u32 %s, %s, 1' % (sSPIN, sSPIN))
        a('s_cmp_lg_u32 %s, 0' % sSPIN)
        a('s_cbranch_scc1 %s' % top)
        a.label(done)
        a('v_mov_b32 v8, s44')
        a('ds_write_b32 v190, v8 offset:%d' % MODE)
        skip = a.newlabel('L_xq')
        a('s_or_b32 s44, s44, s40')
        a('s_cmp_lg_u32 s44, 1')
        a('s_cbranch_scc1 %s' % skip)
        a('v_add_u32 v12, %d, v12' % (QB - QA))
        a('v_add_u32 v140, %d, v140' % (QB - QA))
        a('global_store_dwordx4 v12, %s, %s sc1' % (v4(D), sp(pWS)))
        a('global_store_dword v140, v145, %s sc1' % sp(pWS))
        a.label(skip)
        self.get_mode(8)
        a('v_lshlrev_b32 v150, 4, v0')
        a('s_mul_i32 s44, %s, 640' % sI)
        a('s_add_u32 s44, s44, %s' % sLOC)
        a('v_add_u32 v151, s44, v150')
        a('s_lshl_b32 s44, %s, 11' % sTP)
        a('s_add_u32 s44, s44, %d' % YP)
        a('v_add_u32 v152, s44, v150')
        a('s_lshl_b32 s44, %s, 11' % sI)
        a('s_lshl_b32 s45, %s, 8' % sX)
        a('s_add_u32 s44, s44, s45')
        a('s_add_u32 s44, s44, %d' % YP)
        a('v_add_u32 v153, s44, v150')
        a('v_and_b32 v8, 1, v1')
        a('v_lshlrev_b32 v8, 7, v8')
        a('v_lshrrev_b32 v9, 1, v1')
        a('v_lshl_add_u32 v154, v9, 2, v8')
        a('s_lshl_b32 s44, %s, 4' % sTP)
        a('s_add_u32 s44, s44, %s' % sLOC)
        a('s_add_u32 s44, s44, %d' % (L_IN + 3840))
        a('v_lshrrev_b32 v8, 1, v0')
        a('v_min_u32 v8, 26, v8')
        a('v_mul_u32_u24 v8, %d, v8' % INP)
        a('v_and_b32 v9, 1, v0')
        a('v_lshl_add_u32 v8, v9, 9, v8')
        a('v_add_u32 v155, s44, v8')
        a('v_lshlrev_b32 v160, 16, v%d' % XS)
        a('v_and_b32 v161, 0xffff0000, v%d' % XS)
        a('v_lshlrev_b32 v162, 16, v%d' % (XS + 1))
        a('v_and_b32 v163, 0xffff0000, v%d' % (XS + 1))
        a('global_load_dwordx4 v[164:167], v152, %s sc1' % sp(pWS))
        a('global_load_dwordx4 v[168:171], v152, %s offset:1024 sc1' % sp(pWS))
        a('s_mov_b32 exec_hi, 1')

        def rd():
            for w in range(4):
                a('ds_read_b128 %s, v150 offset:%d' % (v4(16 + 4 * w), OW_LDS + 528 * w))
        self.wait_flag(FVSA[2], 1, 8, sleep=2)
        self.wait_flag(FO, 4, 8, rd)
        self.stamp(7)
        for r in range(4):
            a('v_add_f32 v%d, v%d, v%d' % (16 + r, 16 + r, 20 + r))
            a('v_add_f32 v%d, v%d, v%d' % (24 + r, 24 + r, 28 + r))
        for r in range(4):
            a('v_add_f32 v%d, v%d, v%d' % (8 + r, 16 + r, 24 + r))
        self.tag4(8)
        self.st_local([(151, 8, L_OP)])
        self.set_flag(190, FPUB)
        self.stamp(8)
        l_noy = a.newlabel('L_noy')
        l_noh = a.newlabel('L_noh')
        fin = a.newlabel('L_cend')
        a('s_cmp_ge_u32 %s, 20' % sI)
        a('s_cbranch_scc1 %s' % l_noy)
        a('s_mov_b64 exec, 0xffff')

        def rd():
            for w in range(4):
                a('ds_read_b128 %s, v150 offset:%d' % (v4(16 + 4 * w), YW_LDS + 256 * w))
        self.wait_flag(FG1, 4, 32, sleep=1)
        self.wait_flag(FY, 4, 32, rd)
        self.stamp(9)
        for r in range(4):
            a('v_add_f32 v%d, v%d, v%d' % (16 + r, 16 + r, 20 + r))
            a('v_add_f32 v%d, v%d, v%d' % (24 + r, 24 + r, 28 + r))
        for r in range(4):
            a('v_add_f32 v%d, v%d, v%d' % (32 + r, 16 + r, 24 + r))
        self.tag4(32)
        a('global_store_dwordx4 v153, v[32:35], %s sc1' % sp(pWS))
        a.label(l_noy)
        a('s_mov_b64 exec, -1')
        a('s_cmp_lt_u32 %s, 12' % sI)
        a('s_cbranch_scc1 %s' % l_noh)
        self.gather8(152, 16, [164, 172, 180], 10)
        self.bf16_round4(16, 20)
        for k in range(4):
            a('v_add_f32 v%d, v%d, v%d' % (20 + k, 20 + k, 160 + k))
        for k in range(4):
            a('v_cvt_pk_bf16_f32 v%d, v%d, v%d' % (20 + k, 20 + k, 20 + k))
        a('s_mov_b64 exec, 0xffff')
        for k in range(4):
            a('ds_write_b32 v154, v%d offset:%d' % (20 + k, H_LDS + 32 * k))
        a('ds_write_b128 v150, v[20:23] offset:%d' % HF_LDS)
        self.set_flag(190, FH)
        a('s_mov_b64 exec, -1')
        self.stamp(11)
        for k in range(4):
            a('v_and_b32 v%d, 0xffff0000, v%d' % (24 + k, 20 + k))
        a('v_add_f32 v28, v24, v25')
        a('v_add_f32 v30, v26, v27')
        a('v_mul_f32 v29, v24, v24')
        a('v_fmac_f32 v29, v25, v25')
        a('v_add_f32 v28, v28, v30')
        a('v_fmac_f32 v29, v26, v26')
        a('v_fmac_f32 v29, v27, v27')
        a('v_mov_b32 v30, %s' % sTAG)
        a('v_mov_b32 v31, %s' % sTAG)
        self.allreduce([28, 29], [], steps=('x2', 'r4', 'r8'))
        self.st_local([(155, 28, 0)])
        a.label(l_noh)
        a.label(fin)
        self.end_wave()

    def down_unit(self):
        a = self.a
        fin = a.newlabel('L_dend')
        a('s_cmp_ge_u32 %s, 27' % sU)
        a('s_cbranch_scc1 %s' % fin)
        DW = 96
        A0, A1 = 40, 44
        Gr, Cr, Sr = 56, 72, 80
        self.consts()
        self.get_mode(8)
        a('v_lshlrev_b32 v150, 4, v0')
        for q in range(10):
            a('ds_read_b128 %s, v150 offset:%d' % (v4(DW + 4 * q), WD_LDS + 1024 * q))
        a('s_mul_i32 s45, %s, %d' % (sU, INP))
        a('s_add_u32 s45, s45, %s' % sLOC)
        a('s_add_u32 s45, s45, %d' % L_IN)
        a('v_and_b32 v8, 7, v0')
        a('v_lshrrev_b32 v9, 3, v0')
        a('v_lshlrev_b32 v156, 7, v8')
        a('v_lshl_add_u32 v156, v9, 4, v156')
        a('v_add_u32 v156, s45, v156')
        a('v_lshlrev_b32 v157, 6, v1')
        a('v_lshl_add_u32 v157, v2, 4, v157')
        a('v_add_u32 v157, s45, v157')
        a('v_bfe_u32 v158, v0, 3, 1')
        a('v_lshlrev_b32 v158, 5, v158')
        a('v_lshl_add_u32 v158, v2, 3, v158')
        a('v_add_u32 v158, v158, v8')
        a('v_lshlrev_b32 v158, 4, v158')
        a('v_add_u32 v158, s45, v158')
        a('v_and_b32 v159, 1, v2')
        a('v_lshl_add_u32 v159, v1, 1, v159')
        a('v_lshrrev_b32 v9, 1, v2')
        a('v_lshl_add_u32 v159, v159, 1, v9')
        a('v_lshlrev_b32 v159, 4, v159')
        a('v_add_u32 v159, s45, v159')
        a('v_add_u32 v159, 2048, v159')
        for k in range(4):
            a('v_mov_b32 v%d, 0' % (Cr + 4 + k))
            a('v_mov_b32 v%d, 0' % (Gr + 8 + k))
        a('v_mov_b32 v%d, 0' % Sr)
        a('v_mov_b32 v%d, 0' % (Sr + 1))
        a('s_mov_b32 s40, 0x000f000f')
        a('s_mov_b32 s41, 0x000f000f')

        def loads():
            a('global_load_dwordx4 %s, v157, %s offset:2560 sc1' % (v4(Cr), sp(pWS)))
            a('s_mov_b64 exec, s[40:41]')
            a('global_load_dwordx4 %s, v157, %s offset:3584 sc1' % (v4(Cr + 4), sp(pWS)))
            a('s_mov_b64 exec, -1')

        def checks():
            self.check4(Cr, 84, 85, True)
            self.check4(Cr + 4, 84, 85, False, mask='s[40:41]')
        self.poll(loads, checks, sleep=2)
        self.stamp(8)
        for r in range(4):
            a('v_add_f32 v%d, v%d, v%d' % (Cr + r, Cr + r, Cr + 4 + r))
        self.allreduce([Cr, Cr + 1, Cr + 2, Cr + 3], [], steps=('x1', 'x2', 'hm', 'r8'))
        a('s_mov_b32 s40, 0x0f0f0f0f')
        a('s_mov_b32 s41, 0x0f0f0f0f')
        a('s_mov_b32 s46, -1')
        a('s_mov_b32 s47, 0x00000f0f')
        a('s_waitcnt lgkmcnt(0)')

        def loads():
            a('s_mov_b64 exec, s[46:47]')
            a('global_load_dwordx4 %s, v158, %s offset:3840 sc1' % (v4(Sr), sp(pWS)))
            a('s_mov_b64 exec, s[40:41]')
            a('global_load_dwordx4 %s, v156, %s offset:2048 sc1' % (v4(Gr + 8), sp(pWS)))
            a('s_mov_b64 exec, -1')
            for n in range(2):
                a('global_load_dwordx4 %s, v156, %s offset:%d sc1' % (v4(Gr + 4 * n), sp(pWS), 1024 * n))

        def checks():
            self.check4(Gr, 84, 85, True)
            self.check4(Gr + 4, 84, 85, False)
            self.check4(Gr + 8, 84, 85, False, mask='s[40:41]')
            self.check1(Sr + 2, False, mask='s[46:47]')
        self.poll(loads, checks)
        self.stamp(12)
        for r in range(4):
            a('v_add_f32 v%d, v%d, v%d' % (Gr + r, Gr + r, Gr + 4 + r))
        self.allreduce([Sr, Sr + 1], [], steps=('x1',))
        for r in range(4):
            a('v_add_f32 v%d, v%d, v%d' % (Gr + r, Gr + r, Gr + 8 + r))
        self.allreduce([Sr, Sr + 1], [], steps=('x2',))
        self.allreduce([Gr, Gr + 1, Gr + 2, Gr + 3], [], steps=('x1',))
        self.allreduce([Sr, Sr + 1], [], steps=('hm',))
        self.allreduce([Gr, Gr + 1, Gr + 2, Gr + 3], [], steps=('x2',))
        self.allreduce([Sr, Sr + 1], [84, 85], steps=('p16',))
        self.allreduce([Gr, Gr + 1, Gr + 2, Gr + 3], [], steps=('hm',))
        self.allreduce([Sr, Sr + 1], [84, 85], steps=('p32',))
        a('v_mul_f32 v%d, 0x%x, v%d' % (Sr, f2u(1.0 / 640), Sr))
        a('v_mul_f32 v%d, 0x%x, v%d' % (Sr + 1, f2u(1.0 / 640), Sr + 1))
        a('v_fma_f32 v%d, -v%d, v%d, v%d' % (Sr + 1, Sr, Sr, Sr + 1))
        a('v_max_f32 v%d, 0, v%d' % (Sr + 1, Sr + 1))
        self.ln_finish(Sr, Sr + 1)
        for r in range(4):
            a('v_fma_f32 v%d, -v%d, v%d, v%d' % (Gr + r, Sr, Cr + r, Gr + r))
        for r in range(4):
            a('v_mul_f32 v%d, v%d, v%d' % (Gr + r, Gr + r, Sr + 1))
        a('v_permlane32_swap_b32 v%d, v%d' % (Gr, Gr + 2))
        a('v_permlane32_swap_b32 v%d, v%d' % (Gr + 1, Gr + 3))
        self.bf16_round4(Gr, 84)
        a('v_mul_f32 v88, 0x%x, v84' % f2u(-LOG2E))
        a('v_mul_f32 v89, 0x%x, v85' % f2u(-LOG2E))
        a('v_exp_f32 v88, v88')
        a('v_exp_f32 v89, v89')
        a('v_add_f32 v88, 1.0, v88')
        a('v_add_f32 v89, 1.0, v89')
        a('v_rcp_f32 v88, v88')
        a('v_rcp_f32 v89, v89')
        a('v_mul_f32 v84, v84, v88')
        a('v_mul_f32 v85, v85, v89')
        a('v_cvt_pk_bf16_f32 v84, v84, v85')
        a('v_and_b32 v85, 0xffff0000, v84')
        a('v_lshlrev_b32 v84, 16, v84')
        a('v_mul_f32 v84, v84, v86')
        a('v_mul_f32 v85, v85, v87')
        a('v_cvt_pk_bf16_f32 v84, v84, v84')
        a('v_cvt_pk_bf16_f32 v85, v85, v85')
        self.sparse(A0, 84)
        self.sparse(A1, 85)
        DD = 56
        for m in range(5):
            self.mfma(DD + 4 * m, A0, DW + 4 * m, True)
            self.mfma(DD + 4 * m, A1, DW + 20 + 4 * m, False)
        lg = a.newlabel('L_dg')
        a('s_cmp_lg_u32 %s, 0' % sMODE)
        a('s_cbranch_scc1 %s' % lg)
        for m in range(5):
            self.tag4(DD + 4 * m, second=True)
            a('global_store_dwordx4 v159, %s, %s offset:%d' % (v4(DD + 4 * m), sp(pWS), 1024 * m - 2048))
        a('s_branch %s' % fin)
        a.label(lg)
        a('s_nop 7')
        for m in range(5):
            self.tag4(DD + 4 * m, second=True)
            a('global_store_dwordx4 v159, %s, %s offset:%d sc1' % (v4(DD + 4 * m), sp(pWS), 1024 * m - 2048))
        a.label(fin)
        self.end_wave()

    def loader(self):
        a = self.a
        a.label('L_load')
        a.reset()
        a('v_mov_b32 v8, -1')
        a('v_lshlrev_b32 v9, 2, v0')
        a('s_mov_b32 exec_hi, 0')
        a('ds_write_b32 v9, v8 offset:%d' % SY)
        a('s_mov_b64 exec, -1')
        a('s_getreg_b32 %s, hwreg(HW_REG_XCC_ID)' % sXCC)
        a('s_and_b32 %s, %s, 0xf' % (sXCC, sXCC))
        a('s_lshl_b32 s44, %s, 10' % sH)
        a('s_lshl_b32 s45, %s, 7' % sJ8)
        a('s_add_u32 s44, s44, s45')
        a('s_add_u32 s44, s44, %d' % XCB)
        a('v_mov_b32 v11, s44')
        a('v_mov_b32 v15, %s' % sXCC)
        a('s_waitcnt lgkmcnt(0)')
        a('s_load_dword %s, %s, %d' % (sTAG, sp(pWS), EPOCH))
        a('s_barrier')
        if 'noprio' not in self.opts:
            a('s_setprio 2')
        self.stamp(1)
        a('s_mul_i32 s44, %s, %d' % (sX, 512 * 1280))
        a('s_min_u32 s45, %s, 19' % sI)
        a('s_lshl_b32 s45, s45, 6')
        a('s_add_u32 s44, s44, s45')
        a('v_lshrrev_b32 v8, 2, v0')
        a('v_mul_u32_u24 v8, 1280, v8')
        a('v_and_b32 v9, 3, v0')
        a('v_lshl_add_u32 v8, v9, 4, v8')
        a('v_add_u32 v32, s44, v8')
        a('s_mul_i32 s44, %s, %d' % (sX, 512 * 1280))
        a('s_mul_i32 s45, %s, 20480' % sI)
        a('s_add_u32 s44, s44, s45')
        a('v_lshlrev_b32 v8, 6, v0')
        a('v_add_u32 v33, s44, v8')
        a('s_min_u32 s44, %s, 26' % sU)
        a('s_mul_i32 s44, s44, %d' % INP)
        a('s_mul_i32 s45, %s, %d' % (sX, LOCP))
        a('s_add_u32 s44, s44, s45')
        a('s_add_u32 s44, s44, %d' % (LOCB + L_IN))
        a('v_add_u32 v34, s44, v8')
        a('s_mul_i32 s44, %s, %d' % (sTP, 32 * 3456))
        a('s_mul_i32 s45, %s, 432' % sX)
        a('s_add_u32 s44, s44, s45')
        a('v_mul_u32_u24 v13, 3456, v2')
        a('v_add_u32 v13, s44, v13')
        a('v_lshl_add_u32 v56, v1, 4, v13')
        a('v_min_u32 v8, 10, v1')
        a('v_lshl_add_u32 v57, v8, 4, v13')
        a('v_add_u32 v57, 256, v57')
        a('s_sub_u32 s44, %s, 20' % sI)
        a('s_and_b32 s44, s44, 7')
        a('s_mul_i32 s44, s44, %d' % (32 * 3456))
        a('s_add_u32 s44, s44, s45')
        a('v_lshrrev_b32 v8, 3, v0')
        a('v_mul_u32_u24 v8, 3456, v8')
        a('v_and_b32 v9, 7, v0')
        a('v_lshlrev_b32 v9, 6, v9')
        a('v_min_u32 v9, 428, v9')
        a('v_add3_u32 v58, v8, v9, s44')
        a('s_min_u32 s44, %s, 26' % sU)
        a('s_lshl_b32 s44, s44, 3')
        a('s_mul_i32 s45, %s, 216' % sX)
        a('s_add_u32 s44, s44, s45')
        a('s_mul_i32 s44, s44, 1280')
        a('v_and_b32 v8, 1, v2')
        a('v_lshlrev_b32 v8, 1, v8')
        a('v_lshrrev_b32 v9, 1, v2')
        a('v_add_u32 v8, v8, v9')
        a('v_mul_u32_u24 v8, 2560, v8')
        a('v_lshl_add_u32 v8, v1, 4, v8')
        a('v_add_u32 v64, s44, v8')
        a('s_lshl_b32 s44, %s, 5' % sB)
        a('s_add_u32 s44, s44, %s' % sH)
        a('s_lshl_b32 s44, s44, 20')
        a('s_add_u32 s44, s44, %d' % (3072 * 256))
        self.rot_setup()
        a('v_lshlrev_b32 v8, 10, v2')
        a('v_lshl_add_u32 v8, v1, 4, v8')
        a('v_add_u32 v66, s44, v8')
        a('s_waitcnt lgkmcnt(0)')
        self.tagcalc()
        a('v_mov_b32 v14, %s' % sTAG)
        a('s_mov_b64 exec, 1')
        a('global_store_dwordx2 v11, v[14:15], %s sc1' % sp(pWS))
        a('s_mov_b64 exec, -1')
        self.wait_flag(FV, 4, 16, sleep=1)
        self.stamp(3)
        LD = self.ldepth
        l_nowo = a.newlabel('L_nowo')
        l_fin = a.newlabel('L_lfin')
        l_nogu = a.newlabel('L_nogu')
        marks = {4 * k1: t for t, (k0, k1) in enumerate(VSTAGES)}

        def fire(mk, donec):
            if donec in mk:
                t = mk.pop(donec)
                self.set_flag(190, FVSA[t])
                if t == 3:
                    self.stamp(7)

        def issue(kind, k, aw):
            if kind == 'v':
                a('s_mov_b32 m0, %d' % (V_LDS + 1024 * (4 * k + aw)))
                a('global_load_lds_dwordx4 v65, %s%s' % (sp(pV), self.nt))
            elif kind == 'p':
                a('global_load_dword v%d, v33, %s' % (80 + k, sp(pWO)))
                a('v_add_u32 v33, 4096, v33')
            elif kind == 't':
                a('global_load_dword v%d, v34, %s offset:%d sc1' % (86 + k, sp(pWS), 1024 * k))
            elif kind == 'd':
                a('global_load_dword v%d, v58, %s' % (70 + k, sp(pWU if k & 1 else pWG)))
                if k & 1:
                    a('v_add_u32 v58, %d, v58' % (8 * 3456))
            elif kind == 'w':
                a('s_mov_b32 m0, %d' % (WO_LDS + 1024 * k))
                a('global_load_lds_dwordx4 v32, %s%s' % (sp(pWO), self.nt))
                a('v_add_u32 v32, 20480, v32')
            elif kind == 'g':
                n, cb = k, aw
                a('s_mov_b32 m0, %d' % (GU_LDS + 1024 * (8 * cb + n)))
                a('global_load_lds_dwordx4 v%d, %s%s' % (56 + (cb & 1), sp(pWU if cb >> 1 else pWG), self.nt))
                if cb == 3:
                    a('v_add_u32 v56, %d, v56' % (4 * 3456))
                    a('v_add_u32 v57, %d, v57' % (4 * 3456))
            elif kind == 'n':
                a('s_mov_b32 m0, %d' % (WD_LDS + 1024 * k))
                a('v_add_u32 v65, %d, v64' % ((k // 5) * 1280 + (k % 5) * 256))
                a('global_load_lds_dwordx4 v65, %s%s' % (sp(pWD), self.nt))

        def stream(seq, mk, base, ld, pub=False):
            for i, (kind, k, aw) in enumerate(seq):
                i += base
                if kind == 'v':
                    self.blk_off('s45', aw, k >> 2)
                    if k & 3:
                        a('s_add_u32 s45, s45, %d' % ((k & 3) * 256))
                    a('v_add_u32 v65, s45, v66')
                if i >= ld and mk:
                    a('s_waitcnt vmcnt(%d)' % (ld - 1))
                    for donec in sorted(mk):
                        if donec <= i - ld + 1:
                            fire(mk, donec)
                    if not mk and pub:
                        self.wait_flag(FPUB, 1, 16)
                issue(kind, k, aw)
            return base + len(seq)

        vs = [('v', k, aw) for k in range(16) for aw in range(4)]
        gs = [('g', n, cb) for n in range(8) for cb in range(4)]
        ns = [('n', q, 0) for q in range(10)]
        ts = [] if 'notouch' in self.opts else [('t', 0, 0), ('t', 1, 0)]
        n = stream(vs + [('p', i, 0) for i in range(5)] + ts, marks, 0, LD)
        a('s_cmp_ge_u32 %s, 20' % sI)
        a('s_cbranch_scc1 %s' % l_nowo)
        mk = dict(marks)
        for donec in sorted(mk):
            a('s_waitcnt vmcnt(%d)' % (n - donec))
            fire(mk, donec)
        a('s_waitcnt vmcnt(0)')
        self.stamp(2)
        for q in range(32):
            issue('w', q, 0)
        a('s_waitcnt vmcnt(0)')
        self.set_flag(190, FWO)
        self.stamp(4)
        self.wait_flag(FG1, 4, 16, sleep=1)
        a('s_cmp_lt_u32 %s, 12' % sI)
        a('s_cbranch_scc1 %s' % l_nogu)
        for e in gs:
            issue(*e)
        a.label(l_nogu)
        for e in ns:
            issue(*e)
        a('s_branch %s' % l_fin)
        a.label(l_nowo)
        mk = dict(marks)
        stream([('d', i, 0) for i in range(8)] + gs + ns, mk, n, self.ldepth2, pub=True)
        assert not mk
        a.label(l_fin)
        a('s_waitcnt vmcnt(10)')
        self.set_flag(190, FGU)
        self.stamp(5)
        a('s_waitcnt vmcnt(0)')
        self.stamp(6)
        self.down_unit()

    def att_prep(self):
        a = self.a
        self.consts(12)
        a('v_lshlrev_b32 v176, 4, v2')
        a('v_and_b32 v177, 1, v2')
        a('v_lshl_add_u32 v177, v1, 1, v177')
        a('v_lshlrev_b32 v177, 4, v177')
        a('v_lshrrev_b32 v12, 5, v0')
        a('v_lshl_add_u32 v177, v12, 3, v177')
        a('s_mul_i32 s44, %s, 528' % sAW)
        a('v_add_u32 v177, s44, v177')
        a('v_mov_b32 v178, s44')
        a('v_bfe_u32 v179, v0, 3, 1')
        a('v_lshlrev_b32 v179, 7, v179')
        a('v_lshl_add_u32 v179, v2, 5, v179')
        a('s_lshl_b32 s44, %s, 9' % sAW)
        a('v_lshlrev_b32 v180, 3, v0')
        a('v_add_u32 v180, s44, v180')
        a('v_and_b32 v181, 1, v1')
        a('v_lshlrev_b32 v181, 8, v181')
        a('v_lshl_add_u32 v181, v2, 4, v181')
        a('v_add_u32 v181, s44, v181')
        a('v_lshrrev_b32 v12, 2, v1')
        a('v_lshl_add_u32 v12, v2, 3, v12')
        a('v_lshlrev_b32 v12, 6, v12')
        a('s_lshl_b32 s44, %s, 13' % sAW)
        a('v_add_u32 v12, s44, v12')
        a('v_and_b32 v13, 3, v1')
        a('v_lshl_add_u32 v182, v13, 3, v12')
        a('v_lshl_add_u32 v184, v2, 1, v1')
        a('v_lshlrev_b32 v184, 4, v184')
        a('s_lshl_b32 s44, %s, 8' % sAW)
        a('v_add_u32 v184, s44, v184')
        a('v_lshlrev_b32 v185, 4, v0')
        a('s_lshl_b32 s44, %s, 13' % sAW)
        a('s_add_u32 s44, s44, %d' % GU_LDS)
        a('v_add_u32 v186, s44, v185')
        a('s_lshl_b32 s44, %s, 10' % sAW)
        a('s_add_u32 s44, s44, %d' % V_LDS)
        a('v_add_u32 v187, s44, v185')

    def attention(self):
        a = self.a
        a.label('L_att')
        a.reset()
        KR, VR, QF, S = 16, 80, 144, 160
        a('s_lshl_b32 s44, %s, 5' % sB)
        a('s_add_u32 s44, s44, %s' % sH)
        a('s_lshl_b32 s44, s44, 20')
        a('s_add_u32 s44, s44, %d' % (3072 * 256))
        self.rot_setup()
        a('v_lshlrev_b32 v12, 8, v1')
        a('v_lshl_add_u32 v12, v2, 4, v12')
        a('v_add_u32 v12, s44, v12')
        a('s_lshl_b32 s45, %s, %d' % (sAW, 16 if self.ilv else 14))
        a('s_add_u32 s47, s47, s45')
        for bb in range(4):
            self.blk_off('s45', 0, bb)
            a('v_add_u32 v%d, s45, v12' % (8 + bb))
        a('s_lshl_b32 s44, %s, 2' % sAW)
        a('v_mov_b32 v191, s44')
        a('s_waitcnt lgkmcnt(0)')
        a('s_load_dword %s, %s, %d' % (sTAG, sp(pWS), EPOCH))
        if 'latek' in self.opts:
            a('s_barrier')
        idx = 0
        for bb in range(4):
            for m in range(4):
                if self.depth <= idx < self.kfree:
                    a('s_waitcnt vmcnt(%d)' % (self.depth - 1))
                a('global_load_dwordx4 %s, v%d, %s offset:%d%s' % (
                    v4(KR + 16 * bb + 4 * m), 8 + bb, sp(pK), m * 64, self.nt))
                idx += 1
                if idx == self.depth:
                    self.att_prep()
                    if 'latek' not in self.opts:
                        a('s_barrier')
                if idx == self.fvat:
                    self.set_flag(191, FV)
        self.stamp(1)
        if 'stream' in self.opts:
            a('s_waitcnt vmcnt(0)')
            self.stamp(3)
            self.end_wave()
            return
        a('s_waitcnt lgkmcnt(0)')
        self.tagcalc()

        def rd():
            for m in range(4):
                a('ds_read_b128 %s, v176 offset:%d' % (v4(QF + 4 * m), Q_LDS + 64 * m))
        self.wait_flag(FQ, 1, 8, rd, lazy=True)
        self.stamp(2)
        for bb in range(4):
            a('s_waitcnt vmcnt(%d)' % (4 * (3 - bb)))
            for m in range(4):
                self.mfma(S + 4 * bb, KR + 16 * bb + 4 * m, QF + 4 * m, m == 0)
        self.stamp(3)
        sc = f2u(128 ** -0.5)
        for k in range(0, 16, 2):
            a('v_cvt_pk_bf16_f32 v8, v%d, v%d' % (S + k, S + k + 1))
            a('v_and_b32 v9, 0xffff0000, v8')
            a('v_lshlrev_b32 v8, 16, v8')
            a('v_mul_f32 v8, 0x%x, v8' % sc)
            a('v_mul_f32 v9, 0x%x, v9' % sc)
            a('v_cvt_pk_bf16_f32 v8, v8, v9')
            a('v_and_b32 v%d, 0xffff0000, v8' % (S + k + 1))
            a('v_lshlrev_b32 v%d, 16, v8' % (S + k))
        a('v_max3_f32 v8, v%d, v%d, v%d' % (S, S + 1, S + 2))
        a('v_max3_f32 v9, v%d, v%d, v%d' % (S + 3, S + 4, S + 5))
        a('v_max3_f32 v8, v8, v%d, v%d' % (S + 6, S + 7))
        a('v_max3_f32 v9, v9, v%d, v%d' % (S + 8, S + 9))
        a('v_max3_f32 v8, v8, v%d, v%d' % (S + 10, S + 11))
        a('v_max3_f32 v9, v9, v%d, v%d' % (S + 12, S + 13))
        a('v_max3_f32 v8, v8, v%d, v%d' % (S + 14, S + 15))
        a('v_max_f32 v8, v8, v9')
        self.allreduce([8], [9], op='max', steps=('p16', 'p32'))
        a('ds_write_b32 v191, v8 offset:%d' % MX)

        def loads():
            a('ds_read_b128 v[16:19], v190 offset:%d' % MX)

        def checks():
            a('v_or3_b32 v8, v16, v17, v18')
            a('v_or_b32 v8, v8, v19')
            a('v_and_b32 v8, 1, v8')
            a('v_cmp_ne_u32 s[48:49], 0, v8')
        self.poll(loads, checks, wait='lgkmcnt(0)')
        a('v_max3_f32 v8, v16, v17, v18')
        a('v_max_f32 v8, v8, v19')
        for k in range(16):
            a('v_sub_f32 v%d, v%d, v8' % (S + k, S + k))
        for k in range(16):
            a('v_mul_f32 v%d, 0x%x, v%d' % (S + k, f2u(LOG2E), S + k))
        for k in range(16):
            a('v_exp_f32 v%d, v%d' % (S + k, S + k))
        a('v_add_f32 v9, v%d, v%d' % (S, S + 1))
        a('v_add_f32 v10, v%d, v%d' % (S + 2, S + 3))
        for k in range(4, 16, 2):
            a('v_add_f32 v9, v9, v%d' % (S + k))
            a('v_add_f32 v10, v10, v%d' % (S + k + 1))
        a('v_add_f32 v9, v9, v10')
        self.allreduce([9], [10], steps=('p16', 'p32'))
        a('v_mul_f32 v8, 0x3e800000, v8')
        a('v_mov_b32 v10, 0')
        a('v_mov_b32 v11, 0')
        a('s_mov_b64 exec, 1')
        a('ds_write_b128 v178, v[8:11] offset:%d' % (OW_LDS + 512))
        a('s_mov_b64 exec, -1')
        O = 144
        for k in range(16):
            a('v_cvt_pk_bf16_f32 v12, v%d, v%d' % (S + k, S + k))
            a('v_and_b32 v12, 0xffff0000, v12')
            a('v_sub_f32 v12, v%d, v12' % (S + k))
            a('v_cndmask_b32 v12, v%d, v12, %s' % (S + k, HIROWS))
            a('v_cvt_pk_bf16_f32 v12, v12, v12')
            self.sparse(KR + 4 * k, 12)
        self.stamp(4)
        for t, (k0, k1) in enumerate(VSTAGES):
            def rd():
                for k in range(k0, k1):
                    a('ds_read_b128 %s, v187 offset:%d' % (v4(VR + 4 * k), 4096 * k))
            self.wait_flag(FVSA[t], 1, 8, rd, lazy=(t < 3))
            for k in range(k0, k1):
                self.mfma(O, KR + 4 * k, VR + 4 * k, k == 0)
        self.stamp(5)
        a('v_permlane32_swap_b32 v%d, v%d' % (O, O + 2))
        a('v_permlane32_swap_b32 v%d, v%d' % (O + 1, O + 3))
        a('v_add_f32 v%d, v%d, v%d' % (O, O, O + 2))
        a('v_add_f32 v%d, v%d, v%d' % (O + 1, O + 1, O + 3))
        a('ds_write_b64 v177, %s offset:%d' % (v2(O), OW_LDS))
        self.set_flag(191, FO)
        self.get_mode(8)
        l_now = a.newlabel('L_anow')
        l_end = a.newlabel('L_aend')
        l_wo = a.newlabel('L_awo')
        a('s_cmp_lt_u32 %s, 20' % sI)
        a('s_cbranch_scc1 %s' % l_wo)
        if {'gupub', 'gunow'} & self.opts:
            a('s_branch %s' % l_now)
        a('s_cmp_lg_u32 %s, 0' % sAW)
        a('s_cbranch_scc1 %s' % l_now)
        a('v_and_b32 v8, 31, v0')
        a('v_mul_u32_u24 v8, 640, v8')
        a('v_add_u32 v12, %s, v8' % sLOC)

        def loads():
            a('global_load_dwordx4 v[16:19], v12, %s offset:512 sc1' % sp(pWS))

        def checks():
            self.check4(16, 40, 41, True)
        self.poll(loads, checks, sleep=2)
        for k in range(4):
            a('v_mov_b32 v%d, 0' % (16 + k))
        a('ds_write_b128 v190, v[16:19] offset:%d' % FG1)
        self.stamp(6)
        a('s_branch %s' % l_now)
        a.label(l_wo)
        a('s_mul_i32 s44, %s, 640' % sAW)
        a('s_add_u32 s44, s44, %s' % sLOC)
        a('s_add_u32 s44, s44, 3840')
        a('v_lshrrev_b32 v8, 5, v0')
        a('v_mul_u32_u24 v8, 10240, v8')
        a('v_add_u32 v8, s44, v8')
        a('v_and_b32 v9, 31, v0')
        a('v_lshl_add_u32 v12, v9, 4, v8')
        a('v_and_b32 v9, 3, v0')
        a('v_mul_u32_u24 v9, 2560, v9')
        a('v_add_u32 v13, v9, v8')
        G = 16

        def loads(b):
            a('global_load_dwordx4 %s, v13, %s offset:%d sc1' % (v4(b + 16), sp(pWS), 512 - 3840))
            for j in range(4):
                a('global_load_dwordx4 %s, v12, %s offset:%d sc1' % (v4(b + 4 * j), sp(pWS), j * 2560 - 3840))
        OF, WF0, WF1 = 48, 64, 80

        def rdw():
            for ks in range(4):
                for hf in range(2):
                    off = WO_LDS + (32 * ks + 4 * hf) * 64
                    a('ds_read_b64_tr_b16 %s, v182 offset:%d' % (v2(WF0 + 4 * ks + 2 * hf), off))
                    a('ds_read_b64_tr_b16 %s, v182 offset:%d' % (v2(WF1 + 4 * ks + 2 * hf), off + 32))

        def checks(b):
            for k in range(5):
                self.check4(b + 4 * k, 40, 41, k == 0)

        def stub(b):
            self.set_flag(191, FG1)
            a('ds_read_b32 v42, v190 offset:%d' % FWO)
            rdw()
            self.stamp(6)
            a('v_and_b32 v40, v%d, v7' % (b + 16))
            a('v_mov_b32 v41, v40')
            self.allreduce([41], [], op='max', steps=('x1', 'x2'))
            a('v_sub_f32 v40, v40, v41')
            a('v_mul_f32 v40, 0x%x, v40' % f2u(LOG2E))
            a('v_exp_f32 v40, v40')
            a('v_mul_f32 v41, v40, v%d' % (b + 17))
            self.allreduce([41], [], steps=('x1', 'x2'))
            a('v_rcp_f32 v41, v41')
            a('v_mul_f32 v40, v40, v41')
            for r in range(4):
                a('v_mul_f32_dpp v%d, v40, v%d quad_perm:[0,0,0,0] row_mask:0xf bank_mask:0xf' % (8 + r, b + r))
            for j in range(1, 4):
                for r in range(4):
                    a('v_fmac_f32_dpp v%d, v40, v%d quad_perm:[%d,%d,%d,%d] row_mask:0xf bank_mask:0xf' % (
                        8 + r, b + 4 * j + r, j, j, j, j))
        self.ppoll([104, 124, 148][:self.psets1], 5, loads, checks, stub, gap=self.pgap, sleep=self.sl1)
        a('v_cvt_pk_bf16_f32 v8, v8, v9')
        a('v_cvt_pk_bf16_f32 v9, v10, v11')
        a('ds_write_b64 v180, v[8:9] offset:%d' % O2_LDS)
        for ks in range(4):
            a('ds_read_b128 %s, v181 offset:%d' % (v4(OF + 4 * ks), O2_LDS + 64 * ks))
        a('s_waitcnt lgkmcnt(0)')
        l_have = a.newlabel('L_havew')
        a('v_cmp_ne_u32 s[48:49], 0, v42')
        a('s_cmp_eq_u64 s[48:49], 0')
        a('s_cbranch_scc1 %s' % l_have)
        self.wait_flag(FWO, 1, 10, rdw)
        a.label(l_have)
        self.stamp(7)
        D0, D1 = 96, 100
        for ks in range(4):
            self.mfma(D0, WF0 + 4 * ks, OF + 4 * ks, ks == 0)
            self.mfma(D1, WF1 + 4 * ks, OF + 4 * ks, ks == 0)
        a('s_mov_b32 s46, 0x00030003')
        a('s_mov_b32 s47, 0x00030003')
        a('s_mov_b64 exec, s[46:47]')
        a('ds_write_b128 v184, %s offset:%d' % (v4(D0), YW_LDS))
        a('ds_write_b128 v184, %s offset:%d' % (v4(D1), YW_LDS + 128))
        self.set_flag(191, FY)
        a('s_mov_b64 exec, -1')
        self.stamp(8)
        a.label(l_now)
        a('s_cmp_lt_u32 %s, 12' % sI)
        a('s_cbranch_scc1 %s' % l_end)
        a('s_and_b32 s44, %s, 1' % sAW)
        a('s_lshl_b32 s44, s44, 4')
        a('v_add_u32 v9, s44, v1')
        a('v_cmp_gt_u32 s[40:41], 27, v9')
        a('v_min_u32 v9, 26, v9')
        a('s_and_b32 s44, %s, 2' % sAW)
        a('v_mov_b32 v8, s44')
        a('v_mul_u32_u24 v9, %d, v9' % INP)
        a('s_add_u32 s44, %s, %d' % (sLOC, L_IN))
        a('v_add_u32 v9, s44, v9')
        a('v_and_b32 v10, 1, v2')
        a('v_add_u32 v8, v8, v10')
        a('s_lshl_b32 s44, %s, 6' % sTP)
        a('v_lshl_add_u32 v13, v8, 4, v9')
        a('v_add_u32 v13, s44, v13')
        a('v_lshrrev_b32 v10, 1, v2')
        a('v_lshl_add_u32 v8, v8, 1, v10')
        a('v_lshl_add_u32 v12, v8, 4, v9')
        a('s_lshl_b32 s44, %s, 7' % sTP)
        a('v_add_u32 v12, s44, v12')
        GU, A0, A1 = 16, 48, 52
        a('v_mov_b32 v56, 0x3f803f80')
        self.sparse(A0, 56)

        def rd():
            for n in range(8):
                a('ds_read_b128 %s, v186 offset:%d' % (v4(GU + 4 * n), 1024 * n))
        self.wait_flag(FGU, 1, 8, rd, lazy=True)
        D = 60
        for n in range(8):
            self.mfma(D, A0, GU + 4 * n, n == 0)
        a('s_mov_b32 s46, s40')
        a('s_mov_b32 s47, 0')
        self.tag4(D)
        a('s_mov_b64 exec, s[46:47]')
        self.st_local([(13, D, 2560)])
        a('s_mov_b64 exec, -1')
        self.stamp(9)
        HD = 64

        def rd():
            a('ds_read_b128 %s, v179 offset:%d' % (v4(HD), H_LDS))
            a('ds_read_b128 %s, v179 offset:%d' % (v4(HD + 4), H_LDS + 16))
        self.wait_flag(FH, 1, 8, rd)
        self.stamp(10)
        D = 72
        self.sparse(A0, HD)
        for n in range(8):
            if n < 7:
                self.sparse(A1 if n % 2 == 0 else A0, HD + n + 1)
            self.mfma(D, A0 if n % 2 == 0 else A1, GU + 4 * n, n == 0)
        self.tag4(D)
        a('s_mov_b64 exec, s[40:41]')
        self.st_local([(12, D, 0)])
        a('s_mov_b64 exec, -1')
        self.stamp(11)
        a('s_cmp_lg_u32 %s, 0' % sAW)
        a('s_cbranch_scc1 %s' % l_end)
        a('s_lshl_b32 s44, %s, 8' % sTP)
        a('s_add_u32 s44, s44, %s' % sLOC)
        a('s_add_u32 s44, s44, %d' % L_IN)
        a('v_lshlrev_b32 v8, 4, v1')
        a('v_mul_u32_u24 v9, %d, v2' % INP)
        a('v_add3_u32 v80, v8, v9, s44')
        for n in range(1, 7):
            a('v_add_u32 v%d, %d, v80' % (80 + n, 4 * INP * n))
        a('s_lshl_b32 s44, %s, 11' % sTP)
        a('s_add_u32 s44, s44, %d' % FP)
        a('v_add_u32 v88, s44, v185')
        a('s_lshl_b32 s45, %s, 8' % sX)
        a('v_add_u32 v89, s45, v88')
        a('v_and_b32 v8, 1, v1')
        a('v_mul_u32_u24 v8, 1280, v8')
        a('v_lshrrev_b32 v9, 1, v1')
        a('v_lshl_add_u32 v8, v9, 3, v8')
        a('s_lshl_b32 s44, %s, 6' % sTP)
        a('v_add_u32 v90, s44, v8')
        a('ds_read_b128 v[92:95], v185 offset:%d' % HF_LDS)
        if 'nofp' not in self.opts:
            a('global_load_dwordx4 v[64:67], v88, %s sc1' % sp(pWS))
            a('global_load_dwordx4 v[68:71], v88, %s offset:1024 sc1' % sp(pWS))
        if 'outt' in self.opts:
            a('global_load_dword v72, v90, %s' % sp(pOUT))
        ES = [16, 104, 132][:self.psets1]
        a('s_waitcnt vmcnt(0)')
        for b in ES:
            for k in range(4):
                a('v_mov_b32 v%d, 0' % (b + 24 + k))
        a('s_mov_b32 s46, -1')
        a('s_mov_b32 s47, 0xffff')
        a('s_waitcnt lgkmcnt(0)')
        for k in range(4):
            a('v_and_b32 v%d, 0xffff0000, v%d' % (92 + k, 92 + k))

        def loads(b):
            for n in range(6):
                a('global_load_dwordx4 %s, v%d, %s sc1' % (v4(b + 4 * n), 80 + n, sp(pWS)))
            a('s_mov_b64 exec, s[46:47]')
            a('global_load_dwordx4 %s, v86, %s sc1' % (v4(b + 24), sp(pWS)))
            a('s_mov_b64 exec, -1')

        def checks(b):
            for k in range(6):
                self.check4(b + 4 * k, 44, 45, k == 0, second=True)
            self.check4(b + 24, 44, 45, False, mask='s[46:47]', second=True)

        def stub(b):
            for r in range(4):
                a('v_add_f32 v%d, v%d, v%d' % (b + r, b + r, b + 4 + r))
                a('v_add_f32 v%d, v%d, v%d' % (b + 8 + r, b + 8 + r, b + 12 + r))
                a('v_add_f32 v%d, v%d, v%d' % (b + 16 + r, b + 16 + r, b + 20 + r))
            for r in range(4):
                a('v_add_f32 v%d, v%d, v%d' % (b + r, b + r, b + 8 + r))
                a('v_add_f32 v%d, v%d, v%d' % (b + 16 + r, b + 16 + r, b + 24 + r))
            for r in range(4):
                a('v_add_f32 v%d, v%d, v%d' % (48 + r, b + r, b + 16 + r))
        if 'nosent' not in self.opts:
            a('v_min_u32 v8, 26, v0')
            a('v_mul_u32_u24 v8, %d, v8' % INP)
            a('v_readfirstlane_b32 s44, v80')
            a('v_add_u32 v87, s44, v8')
            top = a.newlabel('L_se')
            dn = a.newlabel('L_sed')
            a('s_mov_b32 %s, %d' % (sSPIN, SPIN_MAX))
            a('s_mov_b32 exec_hi, 0')
            a.label(top)
            a('global_load_dwordx4 v[16:19], v87, %s sc1' % sp(pWS))
            a('s_waitcnt vmcnt(0)')
            self.check4(16, 44, 45, True, second=True)
            a('s_bcnt1_i32_b64 s44, s[48:49]')
            a('s_cmp_le_u32 s44, %d' % self.sent)
            a('s_cbranch_scc1 %s' % dn)
            a('s_sleep 2')
            a('s_sub_u32 %s, %s, 1' % (sSPIN, sSPIN))
            a('s_cmp_lg_u32 %s, 0' % sSPIN)
            a('s_cbranch_scc1 %s' % top)
            a.label(dn)
            a('s_mov_b64 exec, -1')
        self.ppoll(ES, 7, loads, checks, stub, gap=self.pgap)
        self.stamp(12)
        self.allreduce([48, 49, 50, 51], [52, 53, 54, 55], steps=('p16', 'p32'))
        self.tag4(48)
        a('s_mov_b64 exec, 0xffff')
        a('global_store_dwordx4 v89, v[48:51], %s sc1' % sp(pWS))
        a('s_mov_b64 exec, -1')
        self.stamp(13)
        a('s_and_b32 s44, %s, 7' % sTP)
        a('s_cmp_lg_u32 s44, %s' % sX)
        a('s_cbranch_scc1 %s' % l_end)
        self.gather8(88, 52, [64, 72, 96], 14)
        self.bf16_round4(52, 56)
        for k in range(4):
            a('v_add_f32 v%d, v%d, v%d' % (56 + k, 56 + k, 92 + k))
        a('v_cvt_pk_bf16_f32 v56, v56, v57')
        a('v_cvt_pk_bf16_f32 v57, v58, v59')
        a('s_mov_b64 exec, 0xffff')
        a('global_store_dwordx2 v90, v[56:57], %s' % sp(pOUT))
        a('s_cmp_lg_u32 s2, 96')
        a('s_cbranch_scc1 %s' % l_end)
        a('s_mov_b64 exec, 1')
        a('v_mov_b32 v60, %s' % sTAG)
        a('global_store_dword v190, v60, %s offset:%d sc1' % (sp(pWS), EPOCH))
        a.label(l_end)
        self.end_wave()

    def build(self):
        a = self.a
        hdr = open('cdna_kernels/%s.s.ref' % NAME).read().split('\n')
        top = []
        for ln in hdr:
            if ln.startswith('; @launch'):
                top.append('; @launch grid=(256,1,1) block=(%d,1,1) lds=%d' % (64 * NWAVES, LDS_BYTES))
                break
            top.append(ln)
        out = '\n'.join(top) + '\n'
        out += '.amdgcn_target "amdgcn-amd-amdhsa--gfx950"\n.text\n.globl %s_kernel\n.p2align 8\n' % NAME
        out += '.type %s_kernel,@function\n%s_kernel:\n' % (NAME, NAME)
        self.prologue()
        self.comm()
        self.attention()
        self.loader()
        a.label('L_exit')
        a('s_endpgm')
        out += a.text()
        out += '''.section .rodata,"a"
.p2align 6
.amdhsa_kernel %s_kernel
  .amdhsa_next_free_vgpr 208
  .amdhsa_next_free_sgpr 102
  .amdhsa_accum_offset 208
  .amdhsa_group_segment_fixed_size 0
  .amdhsa_kernarg_size 96
  .amdhsa_user_sgpr_count 2
  .amdhsa_user_sgpr_kernarg_segment_ptr 1
  .amdhsa_system_sgpr_workgroup_id_x 1
  .amdhsa_float_denorm_mode_32 3
.end_amdhsa_kernel
''' % NAME
        return out


if __name__ == '__main__':
    outp = sys.argv[1]
    open(outp, 'w').write(Gen(opts=sys.argv[2:]).build())
```

```python
import struct
import sys
from asmlib import Asm

NAME = 'sequential_preLN__sliding_block_cached__swiglu_ffn__decode'


def f2u(x):
    return struct.unpack('<I', struct.pack('<f', x))[0]


EPOCH = 0
XCB = 0x2000
QA = 0x10000
QB = 0x90000
YP = 0x110000
FP = 0x180000
YPX = 40960
LOCB = 0x200000
L_OP = 0
L_SP = 20480
L_IN = 21504
INP = 5120
LOCP = 163840
RB = 0x200000
TS = 0x600000

SY = 0
FQ, FV, MX, FO, FY, FH, FWO, FGU, FWD, MODE, FG1, FPUB, FWI = (SY + o for o in (0, 16, 32, 48, 64, 80, 84, 88, 92, 96, 112, 104, 108))
FVSA = [SY + 4, SY + 8, SY + 12, SY + 100]
Q_LDS = 128
OW_LDS = 384
O2_LDS = 2560
YW_LDS = 4608
H_LDS = 5632
HF_LDS = 5888
WD_LDS = 6144
WO_LDS = 16384
GU_LDS = 49152
V_LDS = 81920
LDS_BYTES = V_LDS + 65536
VSTAGES = [(0, 6), (6, 12), (12, 15), (15, 16)]

sWID, sX, sI, sH, sJ8, sB, sJ, sAW = 's3', 's4', 's5', 's6', 's7', 's8', 's9', 's10'
sTAG = 's11'
sT = ['s12', 's13', 's14', 's15']
pX, pK, pV, pWQ, pWO, pWG, pWU = 16, 18, 20, 22, 24, 28, 30
pWD, pOUT, pDBG, pWS = 32, 34, 36, 38
sLOC = 's42'
sMODE = 's43'
sTP = 's100'
sU = 's101'
sSPIN = 's52'
sSEL = 's53'
sXCC = 's54'
sTAG2 = 's55'
sT2 = ['s96', 's97', 's98', 's99']
HIROWS = 's[58:59]'
SPIN_MAX = 100000
NWAVES = 6
LOG2E = 1.4426950408889634


def sp(n):
    return 's[%d:%d]' % (n, n + 1)


def v4(n):
    return 'v[%d:%d]' % (n, n + 3)


def v2(n):
    return 'v[%d:%d]' % (n, n + 1)


class Gen:
    def __init__(self, opts=()):
        self.a = Asm()
        self.opts = set(opts) | {'latek', 'gupub', 'nosent', 'nofp', 'nosp1', 'nosp2', 'nosp3'}
        self.stamps = 'stamps' in self.opts
        self.nt = '' if 'nont' in self.opts else ' nt'
        self.depth = 4
        self.ldepth = 32
        self.fvat = 16
        self.woearly = 8
        self.wo1 = 32
        self.womid = 8
        self.ldepth2 = 12
        self.kfree = 13
        self.rot = 0
        self.ppos = 64
        self.wlead = 0
        self.sl1 = 0
        self.sent = 28
        self.psets = 1
        self.psets1 = 1
        self.pgap = 3
        self.ilv = 'ilv' in self.opts
        self.qsleep = 2
        for o in self.opts:
            if o.startswith('depth='):
                self.depth = int(o[6:])
            if o.startswith('psets='):
                self.psets = int(o[6:])
            if o.startswith('psets1='):
                self.psets1 = int(o[7:])
            if o.startswith('pgap='):
                self.pgap = int(o[5:])
            if o.startswith('sl1='):
                self.sl1 = int(o[4:])
            if o.startswith('sent='):
                self.sent = int(o[5:])
            if o.startswith('ppos='):
                self.ppos = int(o[5:])
            if o.startswith('wlead='):
                self.wlead = int(o[6:])
            if o.startswith('rot='):
                self.rot = int(o[4:])
            if o.startswith('kfree='):
                self.kfree = int(o[6:])
            if o.startswith('ldepth2='):
                self.ldepth2 = int(o[8:])
            if o.startswith('womid='):
                self.womid = int(o[6:])
            if o.startswith('wo1='):
                self.wo1 = int(o[4:])
            if o.startswith('qsleep='):
                self.qsleep = int(o[7:])
            if o.startswith('woearly='):
                self.woearly = int(o[8:])
            if o.startswith('fvat='):
                self.fvat = int(o[5:])
            if o.startswith('ldepth='):
                self.ldepth = int(o[7:])

    def stamp(self, k):
        if self.stamps:
            self.a('s_memrealtime %s' % sp(60 + 2 * k))

    def end_wave(self):
        a = self.a
        if self.stamps:
            a('s_mov_b64 exec, -1')
            self.stamp(15)
            a('s_waitcnt lgkmcnt(0)')
            a('v_mov_b32 v200, 0')
            for k in range(16):
                a('v_writelane_b32 v200, s%d, %d' % (60 + 2 * k, k))
            a('s_mul_i32 s44, s2, %d' % NWAVES)
            a('s_add_u32 s44, s44, %s' % sWID)
            a('s_lshl_b32 s44, s44, 6')
            a('s_add_u32 s44, s44, %d' % TS)
            a('v_lshlrev_b32 v201, 2, v0')
            a('v_add_u32 v201, s44, v201')
            a('s_mov_b64 exec, 0xffff')
            a('global_store_dword v201, v200, %s' % sp(pWS))
        a('s_endpgm')

    def tag4(self, base, second=False):
        t = sT2 if second else sT
        for k in range(4):
            self.a('v_and_or_b32 v%d, v%d, v7, %s' % (base + k, base + k, t[k]))

    def check4(self, base, t0, t1, first, mask=None, second=False):
        a = self.a
        a('v_perm_b32 v%d, v%d, v%d, %s' % (t0, base + 1, base, sSEL))
        a('v_perm_b32 v%d, v%d, v%d, %s' % (t1, base + 3, base + 2, sSEL))
        a('v_lshl_or_b32 v%d, v%d, 16, v%d' % (t0, t1, t0))
        self.check1(t0, first, mask, second)

    def check1(self, reg, first, mask=None, second=False):
        a = self.a
        tg = sTAG2 if second else sTAG
        if first and mask is None:
            a('v_cmp_ne_u32 s[48:49], %s, v%d' % (tg, reg))
        else:
            a('v_cmp_ne_u32 s[50:51], %s, v%d' % (tg, reg))
            if mask is not None:
                a('s_and_b64 s[50:51], s[50:51], %s' % mask)
            if first:
                a('s_mov_b64 s[48:49], s[50:51]')
            else:
                a('s_or_b64 s[48:49], s[48:49], s[50:51]')

    def poll(self, loads, checks, wait='vmcnt(0)', sleep=0):
        a = self.a
        top = a.newlabel('L_poll')
        done = a.newlabel('L_pdone')
        a('s_mov_b32 %s, %d' % (sSPIN, SPIN_MAX if wait.startswith('vm') else SPIN_MAX * 8))
        a.label(top)
        loads()
        a('s_waitcnt %s' % wait)
        checks()
        a('s_cmp_eq_u64 s[48:49], 0')
        a('s_cbranch_scc1 %s' % done)
        if sleep:
            a('s_sleep %d' % sleep)
        a('s_sub_u32 %s, %s, 1' % (sSPIN, sSPIN))
        a('s_cmp_lg_u32 %s, 0' % sSPIN)
        a('s_cbranch_scc1 %s' % top)
        a.label(done)

    def ppoll(self, bases, nloads, loads, checks, stub, gap=3, sleep=0):
        a = self.a
        S = len(bases)
        top = a.newlabel('L_pp')
        com = a.newlabel('L_ppc')
        dn = [a.newlabel('L_ppd') for _ in bases]
        a('s_mov_b32 %s, %d' % (sSPIN, SPIN_MAX))
        for k, b in enumerate(bases):
            loads(b)
            if k < S - 1 and gap:
                a('s_sleep %d' % gap)
        a.label(top)
        for k, b in enumerate(bases):
            a('s_waitcnt vmcnt(%d)' % ((S - 1) * nloads))
            checks(b)
            a('s_cmp_eq_u64 s[48:49], 0')
            a('s_cbranch_scc1 %s' % dn[k])
            if sleep:
                a('s_sleep %d' % sleep)
            loads(b)
        a('s_sub_u32 %s, %s, 1' % (sSPIN, sSPIN))
        a('s_cmp_lg_u32 %s, 0' % sSPIN)
        a('s_cbranch_scc1 %s' % top)
        a('s_waitcnt vmcnt(0)')
        for k, b in enumerate(bases):
            a.label(dn[k])
            stub(b)
            if k < S - 1:
                a('s_branch %s' % com)
        a.label(com)

    def spoll(self, items):
        a = self.a
        top = a.newlabel('L_sq')
        done = a.newlabel('L_sqd')
        a('s_mov_b32 %s, %d' % (sSPIN, SPIN_MAX))
        a('s_mov_b32 s57, %d' % ((1 << len(items)) - 1))
        a.label(top)
        for k, (ld, ck) in enumerate(items):
            sk = a.newlabel('L_sql')
            a('s_bitcmp1_b32 s57, %d' % k)
            a('s_cbranch_scc0 %s' % sk)
            ld()
            a.label(sk)
        a('s_waitcnt vmcnt(0)')
        for k, (ld, ck) in enumerate(items):
            sk = a.newlabel('L_sqc')
            a('s_bitcmp1_b32 s57, %d' % k)
            a('s_cbranch_scc0 %s' % sk)
            ck()
            a('s_cmp_eq_u64 s[48:49], 0')
            a('s_cbranch_scc0 %s' % sk)
            a('s_bitset0_b32 s57, %d' % k)
            a.label(sk)
        a('s_cmp_eq_u32 s57, 0')
        a('s_cbranch_scc1 %s' % done)
        a('s_sub_u32 %s, %s, 1' % (sSPIN, sSPIN))
        a('s_cmp_lg_u32 %s, 0' % sSPIN)
        a('s_cbranch_scc1 %s' % top)
        a.label(done)

    def item(self, reg, va, off, t0, mask=None, second=False, full=False):
        a = self.a

        def ld():
            if mask:
                a('s_mov_b64 exec, %s' % mask)
            a('global_load_dwordx4 %s, v%d, %s offset:%d sc1' % (v4(reg), va, sp(pWS), off))
            if mask:
                a('s_mov_b64 exec, -1')

        def ck():
            if full:
                self.check1(reg + 2, True, mask=mask, second=second)
            else:
                self.check4(reg, t0, t0 + 1, True, mask=mask, second=second)
        return ld, ck

    def wait_flag(self, addr, n, t, extra=None, sleep=0, lazy=False):
        a = self.a
        lazy = lazy and 'nolazy' not in self.opts

        def loads():
            if n == 1:
                a('ds_read_b32 v%d, v190 offset:%d' % (t, addr))
            else:
                a('ds_read_b128 %s, v190 offset:%d' % (v4(t), addr))
            if extra and not lazy:
                extra()

        def checks():
            if n == 4:
                a('v_or3_b32 v%d, v%d, v%d, v%d' % (t, t, t + 1, t + 2))
                a('v_or_b32 v%d, v%d, v%d' % (t, t, t + 3))
            a('v_cmp_ne_u32 s[48:49], 0, v%d' % t)
        self.poll(loads, checks, wait='lgkmcnt(0)', sleep=max(sleep, 1) if lazy else sleep)
        if extra and lazy:
            extra()
            a('s_waitcnt lgkmcnt(0)')

    def set_flag(self, vaddr, off):
        self.a('ds_write_b32 v%d, v190 offset:%d' % (vaddr, off))

    def st_local(self, stores):
        a = self.a
        lg = a.newlabel('L_sg')
        ld = a.newlabel('L_sd')
        a('s_cmp_lg_u32 %s, 0' % sMODE)
        a('s_cbranch_scc1 %s' % lg)
        for va, d, off in stores:
            a('global_store_dwordx4 v%d, %s, %s offset:%d' % (va, v4(d), sp(pWS), off))
        a('s_branch %s' % ld)
        a.label(lg)
        for va, d, off in stores:
            a('global_store_dwordx4 v%d, %s, %s offset:%d sc1' % (va, v4(d), sp(pWS), off))
        a.label(ld)

    def get_mode(self, t):
        a = self.a

        def loads():
            a('ds_read_b32 v%d, v190 offset:%d' % (t, MODE))

        def checks():
            a('v_cmp_eq_u32 s[48:49], -1, v%d' % t)
        self.poll(loads, checks, wait='lgkmcnt(0)', sleep=1)
        a('v_readfirstlane_b32 s44, v%d' % t)
        a('s_cmp_eq_u32 s44, 0')
        a('s_cselect_b32 %s, 0, %d' % (sMODE, RB))
        a('s_mul_i32 %s, %s, %d' % (sLOC, sX, LOCP))
        a('s_add_u32 %s, %s, %d' % (sLOC, sLOC, LOCB))
        a('s_add_u32 %s, %s, %s' % (sLOC, sLOC, sMODE))

    def allreduce(self, rs, tmps, op='add', steps=('x1', 'x2', 'r4', 'r8', 'p16')):
        a = self.a
        dpp = {'x1': 'quad_perm:[1,0,3,2]', 'x2': 'quad_perm:[2,3,0,1]', 'r4': 'row_ror:4',
               'r8': 'row_ror:8', 'hm': 'row_half_mirror'}
        for st in steps:
            if st in dpp:
                for r in rs:
                    a('v_%s_f32_dpp v%d, v%d, v%d %s row_mask:0xf bank_mask:0xf' % (op, r, r, r, dpp[st]))
            else:
                ins = 'v_permlane16_swap_b32' if st == 'p16' else 'v_permlane32_swap_b32'
                for r, t in zip(rs, tmps):
                    a('v_mov_b32 v%d, v%d' % (t, r))
                for r, t in zip(rs, tmps):
                    a('%s v%d, v%d' % (ins, r, t))
                for r, t in zip(rs, tmps):
                    a('v_%s_f32 v%d, v%d, v%d' % (op, r, r, t))

    def sparse(self, dst, src):
        for k in range(4):
            self.a('v_and_b32 v%d, v%d, v%d' % (dst + k, src, 3 + k))

    def mfma(self, d, x, y, first):
        self.a('v_mfma_f32_16x16x32_bf16 %s, %s, %s, %s' % (v4(d), v4(x), v4(y), '0' if first else v4(d)))

    def bf16_round4(self, src, dst):
        a = self.a
        a('v_cvt_pk_bf16_f32 v%d, v%d, v%d' % (dst, src, src + 1))
        a('v_cvt_pk_bf16_f32 v%d, v%d, v%d' % (dst + 2, src + 2, src + 3))
        a('v_and_b32 v%d, 0xffff0000, v%d' % (dst + 1, dst))
        a('v_lshlrev_b32 v%d, 16, v%d' % (dst, dst))
        a('v_and_b32 v%d, 0xffff0000, v%d' % (dst + 3, dst + 2))
        a('v_lshlrev_b32 v%d, 16, v%d' % (dst + 2, dst + 2))

    def prologue(self):
        a = self.a
        a('s_cmp_ge_u32 s2, 256')
        a('s_cbranch_scc1 L_exit')
        a('s_load_dwordx16 s[16:31], s[0:1], 0')
        a('s_load_dwordx8 s[32:39], s[0:1], 64')
        if self.stamps:
            for k in range(1, 16):
                a('s_mov_b64 %s, 0' % sp(60 + 2 * k))
        self.stamp(0)
        a('v_lshrrev_b32 v1, 6, v0')
        a('v_and_b32 v0, 63, v0')
        a('v_readfirstlane_b32 %s, v1' % sWID)
        a('s_and_b32 %s, s2, 7' % sX)
        a('s_lshr_b32 %s, s2, 3' % sI)
        a('s_and_b32 %s, %s, 3' % (sH, sI))
        a('s_lshl_b32 s44, %s, 2' % sX)
        a('s_add_u32 %s, %s, s44' % (sH, sH))
        a('s_lshr_b32 %s, %s, 2' % (sJ8, sI))
        a('s_lshr_b32 %s, %s, 2' % (sB, sJ8))
        a('s_and_b32 %s, %s, 3' % (sJ, sJ8))
        a('v_and_b32 v1, 15, v0')
        a('v_lshrrev_b32 v2, 4, v0')
        a('v_mov_b32 v190, 0')
        a('s_sub_u32 %s, %s, 12' % (sTP, sI))
        a('s_max_i32 %s, %s, 0' % (sTP, sTP))
        a('s_add_u32 %s, %s, 12' % (sU, sI))
        a('s_cmp_lt_u32 %s, 12' % sI)
        a('s_cselect_b32 %s, %s, %s' % (sU, sI, sU))
        a('s_sub_u32 s44, %s, 8' % sI)
        a('s_cmp_ge_u32 %s, 20' % sI)
        a('s_cselect_b32 %s, s44, %s' % (sU, sU))
        a('s_sub_u32 %s, %s, 1' % (sAW, sWID))
        a('s_cmp_eq_u32 %s, 5' % sWID)
        a('s_cbranch_scc1 L_load')
        a('s_cmp_lg_u32 %s, 0' % sWID)
        a('s_cbranch_scc1 L_att')

    def consts(self, t=8):
        a = self.a
        a('v_and_b32 v%d, 7, v0' % t)
        a('v_and_b32 v%d, 1, v%d' % (t + 1, t))
        a('v_cmp_eq_u32 vcc, 1, v%d' % (t + 1))
        a('v_mov_b32 v%d, 0xffff' % (t + 1))
        a('v_mov_b32 v%d, 0xffff0000' % (t + 2))
        a('v_cndmask_b32 v%d, v%d, v%d, vcc' % (t + 1, t + 1, t + 2))
        a('v_lshrrev_b32 v%d, 1, v%d' % (t, t))
        for k in range(4):
            a('v_cmp_eq_u32 vcc, %d, v%d' % (k, t))
            a('v_cndmask_b32 v%d, 0, v%d, vcc' % (3 + k, t + 1))
        a('v_mov_b32 v7, 0xffffff00')
        a('s_mov_b32 %s, 0x0c0c0400' % sSEL)
        a('s_mov_b32 s58, 0xff00ff00')
        a('s_mov_b32 s59, 0xff00ff00')

    def tagcalc(self):
        a = self.a
        a('s_mul_i32 %s, %s, 0x9e3779b1' % (sTAG, sTAG))
        a('s_add_u32 %s, %s, 0x7f4a7c15' % (sTAG, sTAG))
        a('s_xor_b32 %s, %s, 0x5a5a5a5a' % (sTAG2, sTAG))
        for tg, t in ((sTAG, sT), (sTAG2, sT2)):
            a('s_and_b32 %s, %s, 0xff' % (t[0], tg))
            a('s_bfe_u32 %s, %s, 0x80008' % (t[1], tg))
            a('s_bfe_u32 %s, %s, 0x80010' % (t[2], tg))
            a('s_lshr_b32 %s, %s, 24' % (t[3], tg))

    def ln_finish(self, rm, rv):
        a = self.a
        a('v_cvt_pk_bf16_f32 v%d, v%d, v%d' % (rv, rm, rv))
        a('v_lshlrev_b32 v%d, 16, v%d' % (rm, rv))
        a('v_and_b32 v%d, 0xffff0000, v%d' % (rv, rv))
        a('v_add_f32 v%d, 0x%x, v%d' % (rv, f2u(1e-5), rv))
        a('v_cvt_pk_bf16_f32 v%d, v%d, v%d' % (rv, rv, rv))
        a('v_and_b32 v%d, 0xffff0000, v%d' % (rv, rv))
        a('v_sqrt_f32 v%d, v%d' % (rv, rv))
        a('v_cvt_pk_bf16_f32 v%d, v%d, v%d' % (rv, rv, rv))
        a('v_and_b32 v%d, 0xffff0000, v%d' % (rv, rv))
        a('v_rcp_f32 v%d, v%d' % (rv, rv))

    def rot_setup(self):
        a = self.a
        a('s_lshl_b32 s47, %s, 5' % sB)
        a('s_add_u32 s47, s47, %s' % sH)
        if self.ilv:
            a('s_mul_i32 s47, s47, %d' % (self.rot * 16384))
            a('s_lshl_b32 s46, %s, 12' % sJ)
            a('s_add_u32 s47, s47, s46')
            a('s_mov_b32 s46, 0')
        else:
            a('s_lshl_b32 s47, s47, 2')
            a('s_add_u32 s47, s47, %s' % sJ)
            a('s_mul_i32 s47, s47, %d' % (self.rot * 4096))
            a('s_lshl_b32 s46, %s, 16' % sJ)

    def blk_off(self, dst, aw, bb):
        a = self.a
        if self.ilv:
            a('s_add_u32 %s, s47, %d' % (dst, aw * 65536 + bb * 16384))
            a('s_and_b32 %s, %s, 0x3ffff' % (dst, dst))
        else:
            a('s_add_u32 %s, s47, %d' % (dst, aw * 16384 + bb * 4096))
            a('s_and_b32 %s, %s, 0xffff' % (dst, dst))
            a('s_add_u32 %s, %s, s46' % (dst, dst))

    def xc_addend(self):
        a = self.a
        a('s_and_b32 %s, %s, 0xf' % (sXCC, sXCC))
        a('s_mul_i32 s44, %s, %s' % (sXCC, sXCC))
        a('s_lshl_b32 s44, s44, 18')
        a('s_lshl_b32 s45, %s, 8' % sXCC)
        a('s_add_u32 s44, s44, s45')
        a('s_add_u32 %s, s44, 1' % sXCC)

    def gather8(self, vaddr, G, sets, stampk):
        a = self.a

        def loads(b):
            a('global_load_dwordx4 %s, v%d, %s sc1' % (v4(b), vaddr, sp(pWS)))
            a('global_load_dwordx4 %s, v%d, %s offset:1024 sc1' % (v4(b + 4), vaddr, sp(pWS)))

        def checks(b):
            self.check4(b, G + 8, G + 9, True)
            self.check4(b + 4, G + 8, G + 9, False)

        def stub(b):
            for r in range(4):
                a('v_add_f32 v%d, v%d, v%d' % (G + r, b + r, b + 4 + r))
        if 'sp4' in self.opts:
            self.spoll([self.item(sets[0], vaddr, 0, G + 8), self.item(sets[0] + 4, vaddr, 1024, G + 8)])
            stub(sets[0])
        else:
            self.ppoll(sets[:self.psets], 2, loads, checks, stub, gap=self.pgap)
        self.stamp(stampk)
        self.allreduce([G, G + 1, G + 2, G + 3], [G + 4, G + 5, G + 6, G + 7], steps=('p16', 'p32'))

    def comm(self):
        a = self.a
        a.label('L_comm')
        WQ = 16
        XR = 96
        XN = 106
        XS = 14
        F = 116
        a('v_bfe_u32 v8, v0, 3, 1')
        a('v_mul_u32_u24 v8, 1280, v8')
        a('v_and_b32 v9, 7, v0')
        a('v_lshl_add_u32 v9, v2, 3, v9')
        a('v_mul_u32_u24 v9, 40, v9')
        a('v_add_u32 v10, v8, v9')
        a('s_mul_i32 s44, %s, 160' % sJ8)
        a('v_mul_u32_u24 v9, 40, v2')
        a('v_add3_u32 v11, v8, v9, s44')
        a('s_mul_i32 s44, %s, %d' % (sJ8, 80 * 8192))
        a('s_lshl_b32 s45, %s, 8' % sH)
        a('s_add_u32 s44, s44, s45')
        a('v_mul_u32_u24 v12, %d, v2' % (20 * 8192))
        a('v_lshl_add_u32 v12, v1, 4, v12')
        a('v_add_u32 v12, s44, v12')
        a('v_and_b32 v8, 1, v1')
        a('v_mul_u32_u24 v8, 1280, v8')
        a('v_lshrrev_b32 v13, 1, v1')
        a('v_lshl_add_u32 v13, v13, 3, v8')
        a('s_lshl_b32 s44, %s, 6' % sTP)
        a('v_add_u32 v13, s44, v13')
        a('s_waitcnt lgkmcnt(0)')
        a('s_load_dword %s, %s, %d' % (sTAG, sp(pWS), EPOCH))
        for base, va in ((XR, 10), (XN, 11)):
            a('global_load_dwordx4 %s, v%d, %s' % (v4(base), va, sp(pX)))
            a('global_load_dwordx4 %s, v%d, %s offset:16' % (v4(base + 4), va, sp(pX)))
            a('global_load_dwordx2 %s, v%d, %s offset:32' % (v2(base + 8), va, sp(pX)))
        a('global_load_dwordx2 %s, v13, %s' % (v2(XS), sp(pX)))
        for n in range(0 if 'nowq' in self.opts else 20):
            a('global_load_dwordx4 %s, v12, %s%s' % (v4(WQ + 4 * n), sp(pWQ), self.nt))
            if n < 19:
                a('v_add_u32 v12, 8192, v12')
        a('s_barrier')
        if 'stream' in self.opts and not ({'s2', 's3', 's4'} & self.opts):
            a('s_waitcnt vmcnt(0)')
            self.stamp(4)
            self.end_wave()
            return
        if 'noprio' not in self.opts:
            a('s_setprio 3')
        self.stamp(1)
        self.consts()
        a('s_getreg_b32 %s, hwreg(HW_REG_XCC_ID)' % sXCC)
        a('s_and_b32 %s, %s, 0xf' % (sXCC, sXCC))
        a('v_and_b32 v10, 31, v0')
        a('s_lshl_b32 s44, %s, 12' % sX)
        a('s_add_u32 s44, s44, %d' % XCB)
        a('v_lshlrev_b32 v142, 7, v10')
        a('v_add_u32 v142, s44, v142')
        a('s_lshl_b32 s44, %s, 10' % sH)
        a('s_add_u32 s44, s44, %d' % XCB)
        a('v_and_b32 v9, 7, v0')
        a('v_lshlrev_b32 v143, 7, v9')
        a('v_add_u32 v143, s44, v143')
        a('s_lshl_b32 s44, %s, 14' % sH)
        a('s_add_u32 s44, s44, %d' % QA)
        a('v_lshrrev_b32 v9, 1, v2')
        a('v_lshlrev_b32 v9, 13, v9')
        a('v_and_b32 v10, 1, v2')
        a('v_lshl_add_u32 v10, v1, 1, v10')
        a('v_lshl_add_u32 v12, v10, 4, v9')
        a('v_add_u32 v12, s44, v12')
        a('s_and_b32 s45, %s, 1' % sJ8)
        a('s_lshl_b32 s45, s45, 9')
        a('s_lshr_b32 s46, %s, 1' % sJ8)
        a('s_lshl_b32 s46, s46, 2')
        a('s_add_u32 s45, s45, s46')
        a('s_add_u32 s45, s45, 4096')
        a('v_add_u32 v140, s45, v12')
        a('s_lshl_b32 s45, %s, 9' % sJ8)
        a('v_add_u32 v12, s45, v12')
        a('s_lshl_b32 s45, %s, 13' % sB)
        a('s_add_u32 s45, s45, s44')
        a('s_add_u32 s45, s45, 2048')
        a('v_lshlrev_b32 v13, 4, v0')
        a('v_add_u32 v13, s45, v13')
        a('s_waitcnt vmcnt(20)')
        self.stamp(2)
        for k in range(10):
            a('v_lshlrev_b32 v%d, 16, v%d' % (F + 2 * k, XR + k))
            a('v_and_b32 v%d, 0xffff0000, v%d' % (F + 2 * k + 1, XR + k))
        a('v_add_f32 v8, v%d, v%d' % (F, F + 1))
        a('v_add_f32 v9, v%d, v%d' % (F + 2, F + 3))
        for k in range(4, 20, 2):
            a('v_add_f32 v8, v8, v%d' % (F + k))
            a('v_add_f32 v9, v9, v%d' % (F + k + 1))
        a('v_add_f32 v8, v8, v9')
        red = ('x1', 'x2', 'hm', 'p16', 'p32')
        self.allreduce([8], [9], steps=red)
        a('v_mul_f32 v8, 0x%x, v8' % f2u(1.0 / 640))
        a('v_mov_b32 v9, 0')
        a('v_mov_b32 v10, 0')
        for k in range(0, 20, 2):
            a('v_sub_f32 v%d, v%d, v8' % (F + k, F + k))
            a('v_sub_f32 v%d, v%d, v8' % (F + k + 1, F + k + 1))
            a('v_fmac_f32 v9, v%d, v%d' % (F + k, F + k))
            a('v_fmac_f32 v10, v%d, v%d' % (F + k + 1, F + k + 1))
        a('v_add_f32 v9, v9, v10')
        self.allreduce([9], [10], steps=red)
        a('v_mul_f32 v9, 0x%x, v9' % f2u(1.0 / 640))
        self.ln_finish(8, 9)
        a('s_waitcnt lgkmcnt(0)')
        self.tagcalc()
        self.stamp(3)
        D = 136
        A = [96, 100]
        for k in range(10):
            a('v_lshlrev_b32 v10, 16, v%d' % (XN + k))
            a('v_and_b32 v11, 0xffff0000, v%d' % (XN + k))
            a('v_sub_f32 v10, v10, v8')
            a('v_sub_f32 v11, v11, v8')
            a('v_cvt_pk_bf16_f32 v10, v10, v11')
            a('v_and_b32 v11, 0xffff0000, v10')
            a('v_lshlrev_b32 v10, 16, v10')
            a('v_mul_f32 v10, v10, v9')
            a('v_mul_f32 v11, v11, v9')
            a('v_cvt_pk_bf16_f32 v10, v10, v10')
            a('v_cvt_pk_bf16_f32 v11, v11, v11')
            self.sparse(A[0], 10)
            self.sparse(A[1], 11)
            a('s_waitcnt vmcnt(%d)' % (18 - 2 * k))
            self.mfma(D, A[0], WQ + 8 * k, k == 0)
            self.mfma(D, A[1], WQ + 8 * k + 4, False)
        def qhash(dst, b, t):
            a('v_alignbit_b32 v%d, v%d, v%d, 8' % (dst, b + 1, b + 1))
            a('v_alignbit_b32 v%d, v%d, v%d, 16' % (t, b + 2, b + 2))
            a('v_xor_b32 v%d, v%d, v%d' % (dst, dst, b))
            a('v_xor_b32 v%d, v%d, v%d' % (dst, dst, t))
            a('v_alignbit_b32 v%d, v%d, v%d, 24' % (t, b + 3, b + 3))
            a('v_xor_b32 v%d, v%d, v%d' % (dst, dst, t))
        a('global_store_dwordx4 v12, %s, %s' % (v4(D), sp(pWS)))
        qhash(145, D, 146)
        a('v_xor_b32 v145, %s, v145' % sTAG)
        if 'forceglobal' not in self.opts:
            a('global_store_dword v140, v145, %s' % sp(pWS))
        self.stamp(4)
        a('s_waitcnt vmcnt(0)')
        self.stamp(13)
        G = 16
        top = a.newlabel('L_sp')
        nxt = a.newlabel('L_spn')
        done = a.newlabel('L_spd')
        a('s_mov_b32 %s, %d' % (sSPIN, SPIN_MAX))
        a('s_mov_b32 s40, 0')
        a.label(top)
        for k in range(5):
            a('global_load_dwordx4 %s, v13, %s offset:%d sc1' % (v4(G + 4 * k), sp(pWS), k * 1024 - 2048))
        a('s_waitcnt vmcnt(0)')
        for k in range(4):
            qhash(40, G + 4 * k, 41)
            a('v_xor_b32 v40, v40, v%d' % (G + 16 + k))
            self.check1(40, k == 0)
        a('s_cmp_eq_u64 s[48:49], 0')
        a('s_cbranch_scc1 %s' % done)
        a('s_and_b32 s44, %s, 3' % sSPIN)
        a('s_or_b32 s44, s44, s40')
        a('s_cmp_lg_u32 s44, 1')
        a('s_cbranch_scc1 %s' % nxt)
        a('global_load_dwordx2 v[16:17], v143, %s sc1' % sp(pWS))
        a('s_waitcnt vmcnt(0)')
        a('v_cmp_ne_u32 s[48:49], %s, v16' % sTAG)
        a('v_cmp_ne_u32 s[50:51], %s, v17' % sXCC)
        a('s_cmp_lg_u64 s[48:49], 0')
        a('s_cbranch_scc1 %s' % nxt)
        if 'forceglobal' not in self.opts:
            a('s_cmp_eq_u64 s[50:51], 0')
            a('s_cbranch_scc1 %s' % nxt)
        a('s_mov_b32 s40, 2')
        a('v_add_u32 v12, %d, v12' % (QB - QA))
        a('v_add_u32 v13, %d, v13' % (QB - QA))
        a('v_add_u32 v140, %d, v140' % (QB - QA))
        a('global_store_dwordx4 v12, %s, %s sc1' % (v4(D), sp(pWS)))
        a('global_store_dword v140, v145, %s sc1' % sp(pWS))
        a.label(nxt)
        a('s_sub_u32 %s, %s, 1' % (sSPIN, sSPIN))
        a('s_cmp_lg_u32 %s, 0' % sSPIN)
        a('s_cbranch_scc1 %s' % top)
        a.label(done)
        self.stamp(5)
        for r in range(4):
            a('v_add_f32 v%d, v%d, v%d' % (8 + r, G + r, G + 4 + r))
            a('v_add_f32 v%d, v%d, v%d' % (G + 8 + r, G + 8 + r, G + 12 + r))
        for r in range(4):
            a('v_add_f32 v%d, v%d, v%d' % (8 + r, 8 + r, G + 8 + r))
        self.allreduce([8, 9, 10, 11], [48, 49, 50, 51], steps=('p32',))
        a('v_cvt_pk_bf16_f32 v8, v8, v9')
        a('v_cvt_pk_bf16_f32 v9, v10, v11')
        a('v_and_b32 v10, 31, v0')
        a('v_lshlrev_b32 v10, 3, v10')
        a('ds_write_b64 v10, v[8:9] offset:%d' % Q_LDS)
        self.set_flag(190, FQ)
        self.stamp(6)
        top = a.newlabel('L_xc')
        nxt = a.newlabel('L_xcn')
        done = a.newlabel('L_xcd')
        a('s_mov_b32 %s, %d' % (sSPIN, SPIN_MAX))
        a.label(top)
        a('s_mov_b32 s44, 1')
        a('global_load_dwordx2 v[16:17], v142, %s sc1' % sp(pWS))
        a('s_waitcnt vmcnt(0)')
        a('v_cmp_ne_u32 s[48:49], %s, v16' % sTAG)
        a('v_cmp_ne_u32 s[50:51], %s, v17' % sXCC)
        a('s_cmp_lg_u64 s[48:49], 0')
        a('s_cbranch_scc1 %s' % nxt)
        a('s_cmp_lg_u64 s[50:51], 0')
        a('s_cselect_b32 s44, 1, 0')
        if 'forceglobal' in self.opts:
            a('s_mov_b32 s44, 1')
        a('s_branch %s' % done)
        a.label(nxt)
        a('s_sleep 4')
        a('s_sub_u32 %s, %s, 1' % (sSPIN, sSPIN))
        a('s_cmp_lg_u32 %s, 0' % sSPIN)
        a('s_cbranch_scc1 %s' % top)
        a.label(done)
        a('v_mov_b32 v8, s44')
        a('ds_write_b32 v190, v8 offset:%d' % MODE)
        skip = a.newlabel('L_xq')
        a('s_or_b32 s44, s44, s40')
        a('s_cmp_lg_u32 s44, 1')
        a('s_cbranch_scc1 %s' % skip)
        a('v_add_u32 v12, %d, v12' % (QB - QA))
        a('v_add_u32 v140, %d, v140' % (QB - QA))
        a('global_store_dwordx4 v12, %s, %s sc1' % (v4(D), sp(pWS)))
        a('global_store_dword v140, v145, %s sc1' % sp(pWS))
        a.label(skip)
        self.get_mode(8)
        a('v_lshlrev_b32 v150, 4, v0')
        a('s_mul_i32 s44, %s, 640' % sI)
        a('s_add_u32 s44, s44, %s' % sLOC)
        a('v_add_u32 v151, s44, v150')
        a('s_lshl_b32 s44, %s, 11' % sTP)
        a('s_add_u32 s44, s44, %d' % YP)
        if 'ypriv' in self.opts:
            a('s_mul_i32 s45, %s, %d' % (sX, YPX))
            a('s_add_u32 s44, s44, s45')
        a('v_add_u32 v152, s44, v150')
        a('s_lshl_b32 s44, %s, 11' % sI)
        a('s_lshl_b32 s45, %s, 8' % sX)
        a('s_add_u32 s44, s44, s45')
        a('s_add_u32 s44, s44, %d' % YP)
        a('v_add_u32 v153, s44, v150')
        if 'ypriv' in self.opts:
            a('v_lshlrev_b32 v149, 4, v1')
            a('v_mul_u32_u24 v153, %d, v2' % YPX)
            a('v_add3_u32 v153, v153, v149, s44')
            a('v_add_u32 v148, %d, v153' % (4 * YPX))
        a('v_and_b32 v8, 1, v1')
        a('v_lshlrev_b32 v8, 7, v8')
        a('v_lshrrev_b32 v9, 1, v1')
        a('v_lshl_add_u32 v154, v9, 2, v8')
        a('s_lshl_b32 s44, %s, 4' % sTP)
        a('s_add_u32 s44, s44, %s' % sLOC)
        a('s_add_u32 s44, s44, %d' % (L_IN + 3840))
        a('v_lshrrev_b32 v8, 1, v0')
        a('v_min_u32 v8, 26, v8')
        a('v_mul_u32_u24 v8, %d, v8' % INP)
        a('v_and_b32 v9, 1, v0')
        a('v_lshl_add_u32 v8, v9, 9, v8')
        a('v_add_u32 v155, s44, v8')
        a('v_lshlrev_b32 v160, 16, v%d' % XS)
        a('v_and_b32 v161, 0xffff0000, v%d' % XS)
        a('v_lshlrev_b32 v162, 16, v%d' % (XS + 1))
        a('v_and_b32 v163, 0xffff0000, v%d' % (XS + 1))
        if 'noyt' not in self.opts:
            a('global_load_dwordx4 v[164:167], v152, %s sc1' % sp(pWS))
            a('global_load_dwordx4 v[168:171], v152, %s offset:1024 sc1' % sp(pWS))
        a('s_mov_b32 exec_hi, 1')

        def rd():
            for w in range(4):
                a('ds_read_b128 %s, v150 offset:%d' % (v4(16 + 4 * w), OW_LDS + 528 * w))
        self.wait_flag(FVSA[2], 1, 8, sleep=2)
        self.wait_flag(FO, 4, 8, rd)
        self.stamp(7)
        for r in range(4):
            a('v_add_f32 v%d, v%d, v%d' % (16 + r, 16 + r, 20 + r))
            a('v_add_f32 v%d, v%d, v%d' % (24 + r, 24 + r, 28 + r))
        for r in range(4):
            a('v_add_f32 v%d, v%d, v%d' % (8 + r, 16 + r, 24 + r))
        self.tag4(8)
        self.st_local([(151, 8, L_OP)])
        self.set_flag(190, FPUB)
        self.stamp(8)
        l_noy = a.newlabel('L_noy')
        l_noh = a.newlabel('L_noh')
        fin = a.newlabel('L_cend')
        a('s_cmp_ge_u32 %s, 20' % sI)
        a('s_cbranch_scc1 %s' % l_noy)
        a('s_mov_b64 exec, %s' % ('-1' if 'ypriv' in self.opts else '0xffff'))

        def rd():
            for w in range(4):
                a('ds_read_b128 %s, v%d offset:%d' % (v4(16 + 4 * w), 149 if 'ypriv' in self.opts else 150, YW_LDS + 256 * w))
        self.wait_flag(FG1, 4, 32, sleep=1)
        self.wait_flag(FY, 4, 32, rd)
        self.stamp(9)
        for r in range(4):
            a('v_add_f32 v%d, v%d, v%d' % (16 + r, 16 + r, 20 + r))
            a('v_add_f32 v%d, v%d, v%d' % (24 + r, 24 + r, 28 + r))
        for r in range(4):
            a('v_add_f32 v%d, v%d, v%d' % (32 + r, 16 + r, 24 + r))
        self.tag4(32)
        a('global_store_dwordx4 v153, v[32:35], %s sc1' % sp(pWS))
        if 'ypriv' in self.opts:
            a('global_store_dwordx4 v148, v[32:35], %s sc1' % sp(pWS))
        a.label(l_noy)
        a('s_mov_b64 exec, -1')
        a('s_cmp_lt_u32 %s, 12' % sI)
        a('s_cbranch_scc1 %s' % l_noh)
        self.gather8(152, 16, [164, 172, 180], 10)
        self.bf16_round4(16, 20)
        for k in range(4):
            a('v_add_f32 v%d, v%d, v%d' % (20 + k, 20 + k, 160 + k))
        for k in range(4):
            a('v_cvt_pk_bf16_f32 v%d, v%d, v%d' % (20 + k, 20 + k, 20 + k))
        a('s_mov_b64 exec, 0xffff')
        for k in range(4):
            a('ds_write_b32 v154, v%d offset:%d' % (20 + k, H_LDS + 32 * k))
        a('ds_write_b128 v150, v[20:23] offset:%d' % HF_LDS)
        self.set_flag(190, FH)
        a('s_mov_b64 exec, -1')
        self.stamp(11)
        for k in range(4):
            a('v_and_b32 v%d, 0xffff0000, v%d' % (24 + k, 20 + k))
        a('v_add_f32 v28, v24, v25')
        a('v_add_f32 v30, v26, v27')
        a('v_mul_f32 v29, v24, v24')
        a('v_fmac_f32 v29, v25, v25')
        a('v_add_f32 v28, v28, v30')
        a('v_fmac_f32 v29, v26, v26')
        a('v_fmac_f32 v29, v27, v27')
        a('v_mov_b32 v30, %s' % sTAG)
        a('v_mov_b32 v31, %s' % sTAG)
        self.allreduce([28, 29], [], steps=('x2', 'r4', 'r8'))
        self.st_local([(155, 28, 0)])
        a.label(l_noh)
        a.label(fin)
        self.end_wave()

    def down_unit(self):
        a = self.a
        fin = a.newlabel('L_dend')
        a('s_cmp_ge_u32 %s, 27' % sU)
        a('s_cbranch_scc1 %s' % fin)
        DW = 96
        A0, A1 = 40, 44
        Gr, Cr, Sr = 56, 72, 80
        self.consts()
        self.get_mode(8)
        a('v_lshlrev_b32 v150, 4, v0')
        for q in range(10):
            a('ds_read_b128 %s, v150 offset:%d' % (v4(DW + 4 * q), WD_LDS + 1024 * q))
        a('s_mul_i32 s45, %s, %d' % (sU, INP))
        a('s_add_u32 s45, s45, %s' % sLOC)
        a('s_add_u32 s45, s45, %d' % L_IN)
        a('v_and_b32 v8, 7, v0')
        a('v_lshrrev_b32 v9, 3, v0')
        a('v_lshlrev_b32 v156, 7, v8')
        a('v_lshl_add_u32 v156, v9, 4, v156')
        a('v_add_u32 v156, s45, v156')
        a('v_lshlrev_b32 v157, 6, v1')
        a('v_lshl_add_u32 v157, v2, 4, v157')
        a('v_add_u32 v157, s45, v157')
        a('v_bfe_u32 v158, v0, 3, 1')
        a('v_lshlrev_b32 v158, 5, v158')
        a('v_lshl_add_u32 v158, v2, 3, v158')
        a('v_add_u32 v158, v158, v8')
        a('v_lshlrev_b32 v158, 4, v158')
        a('v_add_u32 v158, s45, v158')
        a('v_and_b32 v159, 1, v2')
        a('v_lshl_add_u32 v159, v1, 1, v159')
        a('v_lshrrev_b32 v9, 1, v2')
        a('v_lshl_add_u32 v159, v159, 1, v9')
        a('v_lshlrev_b32 v159, 4, v159')
        a('v_add_u32 v159, s45, v159')
        a('v_add_u32 v159, 2048, v159')
        for k in range(4):
            a('v_mov_b32 v%d, 0' % (Cr + 4 + k))
            a('v_mov_b32 v%d, 0' % (Gr + 8 + k))
        a('v_mov_b32 v%d, 0' % Sr)
        a('v_mov_b32 v%d, 0' % (Sr + 1))
        a('s_mov_b32 s40, 0x000f000f')
        a('s_mov_b32 s41, 0x000f000f')

        def loads():
            a('global_load_dwordx4 %s, v157, %s offset:2560 sc1' % (v4(Cr), sp(pWS)))
            a('s_mov_b64 exec, s[40:41]')
            a('global_load_dwordx4 %s, v157, %s offset:3584 sc1' % (v4(Cr + 4), sp(pWS)))
            a('s_mov_b64 exec, -1')

        def checks():
            self.check4(Cr, 84, 85, True)
            self.check4(Cr + 4, 84, 85, False, mask='s[40:41]')
        self.poll(loads, checks, sleep=2)
        self.stamp(8)
        for r in range(4):
            a('v_add_f32 v%d, v%d, v%d' % (Cr + r, Cr + r, Cr + 4 + r))
        self.allreduce([Cr, Cr + 1, Cr + 2, Cr + 3], [], steps=('x1', 'x2', 'hm', 'r8'))
        a('s_mov_b32 s40, 0x0f0f0f0f')
        a('s_mov_b32 s41, 0x0f0f0f0f')
        a('s_mov_b32 s46, -1')
        a('s_mov_b32 s47, 0x00000f0f')
        a('s_waitcnt lgkmcnt(0)')

        def loads():
            a('s_mov_b64 exec, s[46:47]')
            a('global_load_dwordx4 %s, v158, %s offset:3840 sc1' % (v4(Sr), sp(pWS)))
            a('s_mov_b64 exec, s[40:41]')
            a('global_load_dwordx4 %s, v156, %s offset:2048 sc1' % (v4(Gr + 8), sp(pWS)))
            a('s_mov_b64 exec, -1')
            for n in range(2):
                a('global_load_dwordx4 %s, v156, %s offset:%d sc1' % (v4(Gr + 4 * n), sp(pWS), 1024 * n))

        def checks():
            self.check4(Gr, 84, 85, True)
            self.check4(Gr + 4, 84, 85, False)
            self.check4(Gr + 8, 84, 85, False, mask='s[40:41]')
            self.check1(Sr + 2, False, mask='s[46:47]')
        if 'nosp2' in self.opts:
            self.poll(loads, checks)
        else:
            self.spoll([self.item(Sr, 158, 3840, 84, mask='s[46:47]', full=True),
                        self.item(Gr + 8, 156, 2048, 84, mask='s[40:41]'),
                        self.item(Gr, 156, 0, 84), self.item(Gr + 4, 156, 1024, 84)])
        self.stamp(12)
        for r in range(4):
            a('v_add_f32 v%d, v%d, v%d' % (Gr + r, Gr + r, Gr + 4 + r))
        self.allreduce([Sr, Sr + 1], [], steps=('x1',))
        for r in range(4):
            a('v_add_f32 v%d, v%d, v%d' % (Gr + r, Gr + r, Gr + 8 + r))
        self.allreduce([Sr, Sr + 1], [], steps=('x2',))
        self.allreduce([Gr, Gr + 1, Gr + 2, Gr + 3], [], steps=('x1',))
        self.allreduce([Sr, Sr + 1], [], steps=('hm',))
        self.allreduce([Gr, Gr + 1, Gr + 2, Gr + 3], [], steps=('x2',))
        self.allreduce([Sr, Sr + 1], [84, 85], steps=('p16',))
        self.allreduce([Gr, Gr + 1, Gr + 2, Gr + 3], [], steps=('hm',))
        self.allreduce([Sr, Sr + 1], [84, 85], steps=('p32',))
        a('v_mul_f32 v%d, 0x%x, v%d' % (Sr, f2u(1.0 / 640), Sr))
        a('v_mul_f32 v%d, 0x%x, v%d' % (Sr + 1, f2u(1.0 / 640), Sr + 1))
        a('v_fma_f32 v%d, -v%d, v%d, v%d' % (Sr + 1, Sr, Sr, Sr + 1))
        a('v_max_f32 v%d, 0, v%d' % (Sr + 1, Sr + 1))
        self.ln_finish(Sr, Sr + 1)
        for r in range(4):
            a('v_fma_f32 v%d, -v%d, v%d, v%d' % (Gr + r, Sr, Cr + r, Gr + r))
        for r in range(4):
            a('v_mul_f32 v%d, v%d, v%d' % (Gr + r, Gr + r, Sr + 1))
        a('v_permlane32_swap_b32 v%d, v%d' % (Gr, Gr + 2))
        a('v_permlane32_swap_b32 v%d, v%d' % (Gr + 1, Gr + 3))
        self.bf16_round4(Gr, 84)
        a('v_mul_f32 v88, 0x%x, v84' % f2u(-LOG2E))
        a('v_mul_f32 v89, 0x%x, v85' % f2u(-LOG2E))
        a('v_exp_f32 v88, v88')
        a('v_exp_f32 v89, v89')
        a('v_add_f32 v88, 1.0, v88')
        a('v_add_f32 v89, 1.0, v89')
        a('v_rcp_f32 v88, v88')
        a('v_rcp_f32 v89, v89')
        a('v_mul_f32 v84, v84, v88')
        a('v_mul_f32 v85, v85, v89')
        a('v_cvt_pk_bf16_f32 v84, v84, v85')
        a('v_and_b32 v85, 0xffff0000, v84')
        a('v_lshlrev_b32 v84, 16, v84')
        a('v_mul_f32 v84, v84, v86')
        a('v_mul_f32 v85, v85, v87')
        a('v_cvt_pk_bf16_f32 v84, v84, v84')
        a('v_cvt_pk_bf16_f32 v85, v85, v85')
        self.sparse(A0, 84)
        self.sparse(A1, 85)
        DD = 56
        for m in range(5):
            self.mfma(DD + 4 * m, A0, DW + 4 * m, True)
            self.mfma(DD + 4 * m, A1, DW + 20 + 4 * m, False)
        lg = a.newlabel('L_dg')
        a('s_cmp_lg_u32 %s, 0' % sMODE)
        a('s_cbranch_scc1 %s' % lg)
        for m in range(5):
            self.tag4(DD + 4 * m, second=True)
            a('global_store_dwordx4 v159, %s, %s offset:%d' % (v4(DD + 4 * m), sp(pWS), 1024 * m - 2048))
        a('s_branch %s' % fin)
        a.label(lg)
        a('s_nop 7')
        for m in range(5):
            self.tag4(DD + 4 * m, second=True)
            a('global_store_dwordx4 v159, %s, %s offset:%d sc1' % (v4(DD + 4 * m), sp(pWS), 1024 * m - 2048))
        a.label(fin)
        self.end_wave()

    def loader(self):
        a = self.a
        a.label('L_load')
        a.reset()
        a('v_mov_b32 v8, -1')
        a('v_lshlrev_b32 v9, 2, v0')
        a('s_mov_b32 exec_hi, 0')
        a('ds_write_b32 v9, v8 offset:%d' % SY)
        a('s_mov_b64 exec, -1')
        a('s_getreg_b32 %s, hwreg(HW_REG_XCC_ID)' % sXCC)
        a('s_and_b32 %s, %s, 0xf' % (sXCC, sXCC))
        a('s_lshl_b32 s44, %s, 10' % sH)
        a('s_lshl_b32 s45, %s, 7' % sJ8)
        a('s_add_u32 s44, s44, s45')
        a('s_add_u32 s44, s44, %d' % XCB)
        a('v_mov_b32 v11, s44')
        a('v_mov_b32 v15, %s' % sXCC)
        a('s_waitcnt lgkmcnt(0)')
        a('s_load_dword %s, %s, %d' % (sTAG, sp(pWS), EPOCH))
        a('s_barrier')
        if 'noprio' not in self.opts:
            a('s_setprio 2')
        self.stamp(1)
        a('s_mul_i32 s44, %s, %d' % (sX, 512 * 1280))
        a('s_min_u32 s45, %s, 19' % sI)
        a('s_lshl_b32 s45, s45, 6')
        a('s_add_u32 s44, s44, s45')
        a('v_lshrrev_b32 v8, 2, v0')
        a('v_mul_u32_u24 v8, 1280, v8')
        a('v_and_b32 v9, 3, v0')
        a('v_lshl_add_u32 v8, v9, 4, v8')
        a('v_add_u32 v32, s44, v8')
        a('s_mul_i32 s44, %s, %d' % (sX, 512 * 1280))
        a('s_mul_i32 s45, %s, 20480' % sI)
        a('s_add_u32 s44, s44, s45')
        a('v_lshlrev_b32 v8, 6, v0')
        a('v_add_u32 v33, s44, v8')
        a('s_min_u32 s44, %s, 26' % sU)
        a('s_mul_i32 s44, s44, %d' % INP)
        a('s_mul_i32 s45, %s, %d' % (sX, LOCP))
        a('s_add_u32 s44, s44, s45')
        a('s_add_u32 s44, s44, %d' % (LOCB + L_IN))
        a('v_add_u32 v34, s44, v8')
        a('s_mul_i32 s44, %s, %d' % (sTP, 32 * 3456))
        a('s_mul_i32 s45, %s, 432' % sX)
        a('s_add_u32 s44, s44, s45')
        a('v_mul_u32_u24 v13, 3456, v2')
        a('v_add_u32 v13, s44, v13')
        a('v_lshl_add_u32 v56, v1, 4, v13')
        a('v_min_u32 v8, 10, v1')
        a('v_lshl_add_u32 v57, v8, 4, v13')
        a('v_add_u32 v57, 256, v57')
        a('s_sub_u32 s44, %s, 20' % sI)
        a('s_and_b32 s44, s44, 7')
        a('s_mul_i32 s44, s44, %d' % (32 * 3456))
        a('s_add_u32 s44, s44, s45')
        a('v_lshrrev_b32 v8, 3, v0')
        a('v_mul_u32_u24 v8, 3456, v8')
        a('v_and_b32 v9, 7, v0')
        a('v_lshlrev_b32 v9, 6, v9')
        a('v_min_u32 v9, 428, v9')
        a('v_add3_u32 v58, v8, v9, s44')
        a('s_min_u32 s44, %s, 26' % sU)
        a('s_lshl_b32 s44, s44, 3')
        a('s_mul_i32 s45, %s, 216' % sX)
        a('s_add_u32 s44, s44, s45')
        a('s_mul_i32 s44, s44, 1280')
        a('v_and_b32 v8, 1, v2')
        a('v_lshlrev_b32 v8, 1, v8')
        a('v_lshrrev_b32 v9, 1, v2')
        a('v_add_u32 v8, v8, v9')
        a('v_mul_u32_u24 v8, 2560, v8')
        a('v_lshl_add_u32 v8, v1, 4, v8')
        a('v_add_u32 v64, s44, v8')
        a('s_lshl_b32 s44, %s, 5' % sB)
        a('s_add_u32 s44, s44, %s' % sH)
        a('s_lshl_b32 s44, s44, 20')
        a('s_add_u32 s44, s44, %d' % (3072 * 256))
        self.rot_setup()
        a('v_lshlrev_b32 v8, 10, v2')
        a('v_lshl_add_u32 v8, v1, 4, v8')
        a('v_add_u32 v66, s44, v8')
        a('s_waitcnt lgkmcnt(0)')
        self.tagcalc()
        a('v_mov_b32 v14, %s' % sTAG)
        a('s_mov_b64 exec, 1')
        a('global_store_dwordx2 v11, v[14:15], %s sc1' % sp(pWS))
        a('s_mov_b64 exec, -1')
        self.wait_flag(FV, 4, 16, sleep=1)
        self.stamp(3)
        LD = self.ldepth
        l_nowo = a.newlabel('L_nowo')
        l_fin = a.newlabel('L_lfin')
        l_nogu = a.newlabel('L_nogu')
        marks = {4 * k1: t for t, (k0, k1) in enumerate(VSTAGES)}

        def fire(mk, donec):
            if donec in mk:
                t = mk.pop(donec)
                self.set_flag(190, FVSA[t])
                if t == 3:
                    self.stamp(7)

        def issue(kind, k, aw):
            if kind == 'v':
                a('s_mov_b32 m0, %d' % (V_LDS + 1024 * (4 * k + aw)))
                a('global_load_lds_dwordx4 v65, %s%s' % (sp(pV), self.nt))
            elif kind == 'p':
                a('global_load_dword v%d, v33, %s' % (80 + k, sp(pWO)))
                a('v_add_u32 v33, 4096, v33')
            elif kind == 't':
                a('global_load_dword v%d, v34, %s offset:%d sc1' % (86 + k, sp(pWS), 1024 * k))
            elif kind == 'd':
                a('global_load_dword v%d, v58, %s' % (70 + k, sp(pWU if k & 1 else pWG)))
                if k & 1:
                    a('v_add_u32 v58, %d, v58' % (8 * 3456))
            elif kind == 'w':
                a('s_mov_b32 m0, %d' % (WO_LDS + 1024 * k))
                a('global_load_lds_dwordx4 v32, %s%s' % (sp(pWO), self.nt))
                a('v_add_u32 v32, 20480, v32')
            elif kind == 'g':
                n, cb = k, aw
                a('s_mov_b32 m0, %d' % (GU_LDS + 1024 * (8 * cb + n)))
                a('global_load_lds_dwordx4 v%d, %s%s' % (56 + (cb & 1), sp(pWU if cb >> 1 else pWG), self.nt))
                if cb == 3:
                    a('v_add_u32 v56, %d, v56' % (4 * 3456))
                    a('v_add_u32 v57, %d, v57' % (4 * 3456))
            elif kind == 'n':
                a('s_mov_b32 m0, %d' % (WD_LDS + 1024 * k))
                a('v_add_u32 v65, %d, v64' % ((k // 5) * 1280 + (k % 5) * 256))
                a('global_load_lds_dwordx4 v65, %s%s' % (sp(pWD), self.nt))

        def stream(seq, mk, base, ld, pub=False):
            for i, (kind, k, aw) in enumerate(seq):
                i += base
                if kind == 'v':
                    self.blk_off('s45', aw, k >> 2)
                    if k & 3:
                        a('s_add_u32 s45, s45, %d' % ((k & 3) * 256))
                    a('v_add_u32 v65, s45, v66')
                if i >= ld and mk:
                    a('s_waitcnt vmcnt(%d)' % (ld - 1))
                    for donec in sorted(mk):
                        if donec <= i - ld + 1:
                            fire(mk, donec)
                    if not mk and pub:
                        self.wait_flag(FPUB, 1, 16)
                issue(kind, k, aw)
            return base + len(seq)

        vs = [('v', k, aw) for k in range(16) for aw in range(4)]
        gs = [('g', n, cb) for n in range(8) for cb in range(4)]
        ns = [('n', q, 0) for q in range(10)]
        ts = [] if 'notouch' in self.opts else [('t', 0, 0), ('t', 1, 0)]
        pp = self.ppos
        ex = [('p', i, 0) for i in range(5)] + ts
        marks = {(m + len(ex) if m > pp else m): t for m, t in marks.items()}
        n = stream(vs[:pp] + ex + vs[pp:], marks, 0, LD)
        a('s_cmp_ge_u32 %s, 20' % sI)
        a('s_cbranch_scc1 %s' % l_nowo)
        mk = dict(marks)
        wstart = max(pp + len(ex), n - self.wlead)
        for donec in sorted(mk):
            if donec <= wstart:
                a('s_waitcnt vmcnt(%d)' % (n - donec))
                fire(mk, donec)
        a('s_waitcnt vmcnt(%d)' % (n - wstart))
        self.stamp(2)
        for q in range(32):
            issue('w', q, 0)
            if q == self.wo1 - 1:
                for donec in sorted(mk):
                    a('s_waitcnt vmcnt(%d)' % (n + q + 1 - donec))
                    fire(mk, donec)
        assert not mk
        a('s_waitcnt vmcnt(0)')
        self.set_flag(190, FWO)
        self.stamp(4)
        self.wait_flag(FG1, 4, 16, sleep=1)
        a('s_cmp_lt_u32 %s, 12' % sI)
        a('s_cbranch_scc1 %s' % l_nogu)
        for e in gs:
            issue(*e)
        a.label(l_nogu)
        for e in ns:
            issue(*e)
        a('s_branch %s' % l_fin)
        a.label(l_nowo)
        mk = dict(marks)
        stream([('d', i, 0) for i in range(8)] + gs + ns, mk, n, self.ldepth2, pub=True)
        assert not mk
        a.label(l_fin)
        a('s_waitcnt vmcnt(10)')
        self.set_flag(190, FGU)
        self.stamp(5)
        a('s_waitcnt vmcnt(0)')
        self.stamp(6)
        self.down_unit()

    def att_prep(self):
        a = self.a
        self.consts(12)
        a('v_lshlrev_b32 v176, 4, v2')
        a('v_and_b32 v177, 1, v2')
        a('v_lshl_add_u32 v177, v1, 1, v177')
        a('v_lshlrev_b32 v177, 4, v177')
        a('v_lshrrev_b32 v12, 5, v0')
        a('v_lshl_add_u32 v177, v12, 3, v177')
        a('s_mul_i32 s44, %s, 528' % sAW)
        a('v_add_u32 v177, s44, v177')
        a('v_mov_b32 v178, s44')
        a('v_bfe_u32 v179, v0, 3, 1')
        a('v_lshlrev_b32 v179, 7, v179')
        a('v_lshl_add_u32 v179, v2, 5, v179')
        a('s_lshl_b32 s44, %s, 9' % sAW)
        a('v_lshlrev_b32 v180, 3, v0')
        a('v_add_u32 v180, s44, v180')
        a('v_and_b32 v181, 1, v1')
        a('v_lshlrev_b32 v181, 8, v181')
        a('v_lshl_add_u32 v181, v2, 4, v181')
        a('v_add_u32 v181, s44, v181')
        a('v_lshrrev_b32 v12, 2, v1')
        a('v_lshl_add_u32 v12, v2, 3, v12')
        a('v_lshlrev_b32 v12, 6, v12')
        a('s_lshl_b32 s44, %s, 13' % sAW)
        a('v_add_u32 v12, s44, v12')
        a('v_and_b32 v13, 3, v1')
        a('v_lshl_add_u32 v182, v13, 3, v12')
        a('v_lshl_add_u32 v184, v2, 1, v1')
        a('v_lshlrev_b32 v184, 4, v184')
        a('s_lshl_b32 s44, %s, 8' % sAW)
        a('v_add_u32 v184, s44, v184')
        a('v_lshlrev_b32 v185, 4, v0')
        a('s_lshl_b32 s44, %s, 13' % sAW)
        a('s_add_u32 s44, s44, %d' % GU_LDS)
        a('v_add_u32 v186, s44, v185')
        a('s_lshl_b32 s44, %s, 10' % sAW)
        a('s_add_u32 s44, s44, %d' % V_LDS)
        a('v_add_u32 v187, s44, v185')

    def attention(self):
        a = self.a
        a.label('L_att')
        a.reset()
        KR, VR, QF, S = 16, 80, 144, 160
        a('s_lshl_b32 s44, %s, 5' % sB)
        a('s_add_u32 s44, s44, %s' % sH)
        a('s_lshl_b32 s44, s44, 20')
        a('s_add_u32 s44, s44, %d' % (3072 * 256))
        self.rot_setup()
        a('v_lshlrev_b32 v12, 8, v1')
        a('v_lshl_add_u32 v12, v2, 4, v12')
        a('v_add_u32 v12, s44, v12')
        a('s_lshl_b32 s45, %s, %d' % (sAW, 16 if self.ilv else 14))
        a('s_add_u32 s47, s47, s45')
        for bb in range(4):
            self.blk_off('s45', 0, bb)
            a('v_add_u32 v%d, s45, v12' % (8 + bb))
        a('s_lshl_b32 s44, %s, 2' % sAW)
        a('v_mov_b32 v191, s44')
        a('s_waitcnt lgkmcnt(0)')
        a('s_load_dword %s, %s, %d' % (sTAG, sp(pWS), EPOCH))
        if 'latek' in self.opts:
            a('s_barrier')
        idx = 0
        for bb in range(4):
            for m in range(4):
                if self.depth <= idx < self.kfree:
                    a('s_waitcnt vmcnt(%d)' % (self.depth - 1))
                a('global_load_dwordx4 %s, v%d, %s offset:%d%s' % (
                    v4(KR + 16 * bb + 4 * m), 8 + bb, sp(pK), m * 64, self.nt))
                idx += 1
                if idx == self.depth:
                    self.att_prep()
                    if 'latek' not in self.opts:
                        a('s_barrier')
                if idx == self.fvat:
                    self.set_flag(191, FV)
        self.stamp(1)
        if 'stream' in self.opts:
            a('s_waitcnt vmcnt(0)')
            self.stamp(3)
            self.end_wave()
            return
        a('s_waitcnt lgkmcnt(0)')
        self.tagcalc()

        def rd():
            for m in range(4):
                a('ds_read_b128 %s, v176 offset:%d' % (v4(QF + 4 * m), Q_LDS + 64 * m))
        self.wait_flag(FQ, 1, 8, rd, lazy=True)
        self.stamp(2)
        for bb in range(4):
            a('s_waitcnt vmcnt(%d)' % (4 * (3 - bb)))
            for m in range(4):
                self.mfma(S + 4 * bb, KR + 16 * bb + 4 * m, QF + 4 * m, m == 0)
        self.stamp(3)
        sc = f2u(128 ** -0.5)
        for k in range(0, 16, 2):
            a('v_cvt_pk_bf16_f32 v8, v%d, v%d' % (S + k, S + k + 1))
            a('v_and_b32 v9, 0xffff0000, v8')
            a('v_lshlrev_b32 v8, 16, v8')
            a('v_mul_f32 v8, 0x%x, v8' % sc)
            a('v_mul_f32 v9, 0x%x, v9' % sc)
            a('v_cvt_pk_bf16_f32 v8, v8, v9')
            a('v_and_b32 v%d, 0xffff0000, v8' % (S + k + 1))
            a('v_lshlrev_b32 v%d, 16, v8' % (S + k))
        a('v_max3_f32 v8, v%d, v%d, v%d' % (S, S + 1, S + 2))
        a('v_max3_f32 v9, v%d, v%d, v%d' % (S + 3, S + 4, S + 5))
        a('v_max3_f32 v8, v8, v%d, v%d' % (S + 6, S + 7))
        a('v_max3_f32 v9, v9, v%d, v%d' % (S + 8, S + 9))
        a('v_max3_f32 v8, v8, v%d, v%d' % (S + 10, S + 11))
        a('v_max3_f32 v9, v9, v%d, v%d' % (S + 12, S + 13))
        a('v_max3_f32 v8, v8, v%d, v%d' % (S + 14, S + 15))
        a('v_max_f32 v8, v8, v9')
        self.allreduce([8], [9], op='max', steps=('p16', 'p32'))
        a('ds_write_b32 v191, v8 offset:%d' % MX)

        def loads():
            a('ds_read_b128 v[16:19], v190 offset:%d' % MX)

        def checks():
            a('v_or3_b32 v8, v16, v17, v18')
            a('v_or_b32 v8, v8, v19')
            a('v_and_b32 v8, 1, v8')
            a('v_cmp_ne_u32 s[48:49], 0, v8')
        self.poll(loads, checks, wait='lgkmcnt(0)')
        a('v_max3_f32 v8, v16, v17, v18')
        a('v_max_f32 v8, v8, v19')
        for k in range(16):
            a('v_sub_f32 v%d, v%d, v8' % (S + k, S + k))
        for k in range(16):
            a('v_mul_f32 v%d, 0x%x, v%d' % (S + k, f2u(LOG2E), S + k))
        for k in range(16):
            a('v_exp_f32 v%d, v%d' % (S + k, S + k))
        a('v_add_f32 v9, v%d, v%d' % (S, S + 1))
        a('v_add_f32 v10, v%d, v%d' % (S + 2, S + 3))
        for k in range(4, 16, 2):
            a('v_add_f32 v9, v9, v%d' % (S + k))
            a('v_add_f32 v10, v10, v%d' % (S + k + 1))
        a('v_add_f32 v9, v9, v10')
        self.allreduce([9], [10], steps=('p16', 'p32'))
        a('v_mul_f32 v8, 0x3e800000, v8')
        a('v_mov_b32 v10, 0')
        a('v_mov_b32 v11, 0')
        a('s_mov_b64 exec, 1')
        a('ds_write_b128 v178, v[8:11] offset:%d' % (OW_LDS + 512))
        a('s_mov_b64 exec, -1')
        O = 144
        for k in range(16):
            a('v_cvt_pk_bf16_f32 v12, v%d, v%d' % (S + k, S + k))
            a('v_and_b32 v12, 0xffff0000, v12')
            a('v_sub_f32 v12, v%d, v12' % (S + k))
            a('v_cndmask_b32 v12, v%d, v12, %s' % (S + k, HIROWS))
            a('v_cvt_pk_bf16_f32 v12, v12, v12')
            self.sparse(KR + 4 * k, 12)
        self.stamp(4)
        for t, (k0, k1) in enumerate(VSTAGES):
            def rd():
                for k in range(k0, k1):
                    a('ds_read_b128 %s, v187 offset:%d' % (v4(VR + 4 * k), 4096 * k))
            self.wait_flag(FVSA[t], 1, 8, rd, lazy=(t < 3))
            for k in range(k0, k1):
                self.mfma(O, KR + 4 * k, VR + 4 * k, k == 0)
        self.stamp(5)
        a('v_permlane32_swap_b32 v%d, v%d' % (O, O + 2))
        a('v_permlane32_swap_b32 v%d, v%d' % (O + 1, O + 3))
        a('v_add_f32 v%d, v%d, v%d' % (O, O, O + 2))
        a('v_add_f32 v%d, v%d, v%d' % (O + 1, O + 1, O + 3))
        a('ds_write_b64 v177, %s offset:%d' % (v2(O), OW_LDS))
        self.set_flag(191, FO)
        self.get_mode(8)
        l_now = a.newlabel('L_anow')
        l_end = a.newlabel('L_aend')
        l_wo = a.newlabel('L_awo')
        a('s_cmp_lt_u32 %s, 20' % sI)
        a('s_cbranch_scc1 %s' % l_wo)
        if {'gupub', 'gunow'} & self.opts:
            a('s_branch %s' % l_now)
        a('s_cmp_lg_u32 %s, 0' % sAW)
        a('s_cbranch_scc1 %s' % l_now)
        a('v_and_b32 v8, 31, v0')
        a('v_mul_u32_u24 v8, 640, v8')
        a('v_add_u32 v12, %s, v8' % sLOC)

        def loads():
            a('global_load_dwordx4 v[16:19], v12, %s offset:512 sc1' % sp(pWS))

        def checks():
            self.check4(16, 40, 41, True)
        self.poll(loads, checks, sleep=2)
        for k in range(4):
            a('v_mov_b32 v%d, 0' % (16 + k))
        a('ds_write_b128 v190, v[16:19] offset:%d' % FG1)
        self.stamp(6)
        a('s_branch %s' % l_now)
        a.label(l_wo)
        a('s_mul_i32 s44, %s, 640' % sAW)
        a('s_add_u32 s44, s44, %s' % sLOC)
        a('s_add_u32 s44, s44, 3840')
        a('v_lshrrev_b32 v8, 5, v0')
        a('v_mul_u32_u24 v8, 10240, v8')
        a('v_add_u32 v8, s44, v8')
        a('v_and_b32 v9, 31, v0')
        a('v_lshl_add_u32 v12, v9, 4, v8')
        a('v_and_b32 v9, 3, v0')
        a('v_mul_u32_u24 v9, 2560, v9')
        a('v_add_u32 v13, v9, v8')
        G = 16

        def loads(b):
            a('global_load_dwordx4 %s, v13, %s offset:%d sc1' % (v4(b + 16), sp(pWS), 512 - 3840))
            for j in range(4):
                a('global_load_dwordx4 %s, v12, %s offset:%d sc1' % (v4(b + 4 * j), sp(pWS), j * 2560 - 3840))
        OF, WF0, WF1 = 48, 64, 80

        def rdw():
            for ks in range(4):
                for hf in range(2):
                    off = WO_LDS + (32 * ks + 4 * hf) * 64
                    a('ds_read_b64_tr_b16 %s, v182 offset:%d' % (v2(WF0 + 4 * ks + 2 * hf), off))
                    a('ds_read_b64_tr_b16 %s, v182 offset:%d' % (v2(WF1 + 4 * ks + 2 * hf), off + 32))

        def checks(b):
            for k in range(5):
                self.check4(b + 4 * k, 40, 41, k == 0)

        def stub(b):
            self.set_flag(191, FG1)
            a('ds_read_b32 v42, v190 offset:%d' % FWO)
            rdw()
            self.stamp(6)
            a('v_and_b32 v40, v%d, v7' % (b + 16))
            a('v_mov_b32 v41, v40')
            self.allreduce([41], [], op='max', steps=('x1', 'x2'))
            a('v_sub_f32 v40, v40, v41')
            a('v_mul_f32 v40, 0x%x, v40' % f2u(LOG2E))
            a('v_exp_f32 v40, v40')
            a('v_mul_f32 v41, v40, v%d' % (b + 17))
            self.allreduce([41], [], steps=('x1', 'x2'))
            a('v_rcp_f32 v41, v41')
            a('v_mul_f32 v40, v40, v41')
            for r in range(4):
                a('v_mul_f32_dpp v%d, v40, v%d quad_perm:[0,0,0,0] row_mask:0xf bank_mask:0xf' % (8 + r, b + r))
            for j in range(1, 4):
                for r in range(4):
                    a('v_fmac_f32_dpp v%d, v40, v%d quad_perm:[%d,%d,%d,%d] row_mask:0xf bank_mask:0xf' % (
                        8 + r, b + 4 * j + r, j, j, j, j))
        if 'nosp1' in self.opts:
            self.ppoll([104], 5, loads, checks, stub)
        else:
            self.spoll([self.item(104 + 16, 13, 512 - 3840, 40)] +
                       [self.item(104 + 4 * j, 12, j * 2560 - 3840, 40) for j in range(4)])
            stub(104)
        a('v_cvt_pk_bf16_f32 v8, v8, v9')
        a('v_cvt_pk_bf16_f32 v9, v10, v11')
        a('ds_write_b64 v180, v[8:9] offset:%d' % O2_LDS)
        for ks in range(4):
            a('ds_read_b128 %s, v181 offset:%d' % (v4(OF + 4 * ks), O2_LDS + 64 * ks))
        a('s_waitcnt lgkmcnt(0)')
        l_have = a.newlabel('L_havew')
        a('v_cmp_ne_u32 s[48:49], 0, v42')
        a('s_cmp_eq_u64 s[48:49], 0')
        a('s_cbranch_scc1 %s' % l_have)
        self.wait_flag(FWO, 1, 10, rdw)
        a.label(l_have)
        self.stamp(7)
        D0, D1 = 96, 100
        for ks in range(4):
            self.mfma(D0, WF0 + 4 * ks, OF + 4 * ks, ks == 0)
            self.mfma(D1, WF1 + 4 * ks, OF + 4 * ks, ks == 0)
        a('s_mov_b32 s46, 0x00030003')
        a('s_mov_b32 s47, 0x00030003')
        a('s_mov_b64 exec, s[46:47]')
        a('ds_write_b128 v184, %s offset:%d' % (v4(D0), YW_LDS))
        a('ds_write_b128 v184, %s offset:%d' % (v4(D1), YW_LDS + 128))
        self.set_flag(191, FY)
        a('s_mov_b64 exec, -1')
        self.stamp(8)
        a.label(l_now)
        a('s_cmp_lt_u32 %s, 12' % sI)
        a('s_cbranch_scc1 %s' % l_end)
        a('s_and_b32 s44, %s, 1' % sAW)
        a('s_lshl_b32 s44, s44, 4')
        a('v_add_u32 v9, s44, v1')
        a('v_cmp_gt_u32 s[40:41], 27, v9')
        a('v_min_u32 v9, 26, v9')
        a('s_and_b32 s44, %s, 2' % sAW)
        a('v_mov_b32 v8, s44')
        a('v_mul_u32_u24 v9, %d, v9' % INP)
        a('s_add_u32 s44, %s, %d' % (sLOC, L_IN))
        a('v_add_u32 v9, s44, v9')
        a('v_and_b32 v10, 1, v2')
        a('v_add_u32 v8, v8, v10')
        a('s_lshl_b32 s44, %s, 6' % sTP)
        a('v_lshl_add_u32 v13, v8, 4, v9')
        a('v_add_u32 v13, s44, v13')
        a('v_lshrrev_b32 v10, 1, v2')
        a('v_lshl_add_u32 v8, v8, 1, v10')
        a('v_lshl_add_u32 v12, v8, 4, v9')
        a('s_lshl_b32 s44, %s, 7' % sTP)
        a('v_add_u32 v12, s44, v12')
        GU, A0, A1 = 16, 48, 52
        a('v_mov_b32 v56, 0x3f803f80')
        self.sparse(A0, 56)

        def rd():
            for n in range(8):
                a('ds_read_b128 %s, v186 offset:%d' % (v4(GU + 4 * n), 1024 * n))
        self.wait_flag(FGU, 1, 8, rd, lazy=True)
        D = 60
        for n in range(8):
            self.mfma(D, A0, GU + 4 * n, n == 0)
        a('s_mov_b32 s46, s40')
        a('s_mov_b32 s47, 0')
        self.tag4(D)
        a('s_mov_b64 exec, s[46:47]')
        self.st_local([(13, D, 2560)])
        a('s_mov_b64 exec, -1')
        self.stamp(9)
        HD = 64

        def rd():
            a('ds_read_b128 %s, v179 offset:%d' % (v4(HD), H_LDS))
            a('ds_read_b128 %s, v179 offset:%d' % (v4(HD + 4), H_LDS + 16))
        self.wait_flag(FH, 1, 8, rd)
        self.stamp(10)
        D = 72
        self.sparse(A0, HD)
        for n in range(8):
            if n < 7:
                self.sparse(A1 if n % 2 == 0 else A0, HD + n + 1)
            self.mfma(D, A0 if n % 2 == 0 else A1, GU + 4 * n, n == 0)
        self.tag4(D)
        a('s_mov_b64 exec, s[40:41]')
        self.st_local([(12, D, 0)])
        a('s_mov_b64 exec, -1')
        self.stamp(11)
        a('s_cmp_lg_u32 %s, 0' % sAW)
        a('s_cbranch_scc1 %s' % l_end)
        a('s_lshl_b32 s44, %s, 8' % sTP)
        a('s_add_u32 s44, s44, %s' % sLOC)
        a('s_add_u32 s44, s44, %d' % L_IN)
        a('v_lshlrev_b32 v8, 4, v1')
        a('v_mul_u32_u24 v9, %d, v2' % INP)
        a('v_add3_u32 v80, v8, v9, s44')
        for n in range(1, 7):
            a('v_add_u32 v%d, %d, v80' % (80 + n, 4 * INP * n))
        a('s_lshl_b32 s44, %s, 11' % sTP)
        a('s_add_u32 s44, s44, %d' % FP)
        a('v_add_u32 v88, s44, v185')
        a('s_lshl_b32 s45, %s, 8' % sX)
        a('v_add_u32 v89, s45, v88')
        a('v_and_b32 v8, 1, v1')
        a('v_mul_u32_u24 v8, 1280, v8')
        a('v_lshrrev_b32 v9, 1, v1')
        a('v_lshl_add_u32 v8, v9, 3, v8')
        a('s_lshl_b32 s44, %s, 6' % sTP)
        a('v_add_u32 v90, s44, v8')
        a('ds_read_b128 v[92:95], v185 offset:%d' % HF_LDS)
        if 'nofp' not in self.opts:
            a('global_load_dwordx4 v[64:67], v88, %s sc1' % sp(pWS))
            a('global_load_dwordx4 v[68:71], v88, %s offset:1024 sc1' % sp(pWS))
        if 'outt' in self.opts:
            a('global_load_dword v72, v90, %s' % sp(pOUT))
        ES = [16, 104, 132][:self.psets1]
        a('s_waitcnt vmcnt(0)')
        for b in ES:
            for k in range(4):
                a('v_mov_b32 v%d, 0' % (b + 24 + k))
        a('s_mov_b32 s46, -1')
        a('s_mov_b32 s47, 0xffff')
        a('s_waitcnt lgkmcnt(0)')
        for k in range(4):
            a('v_and_b32 v%d, 0xffff0000, v%d' % (92 + k, 92 + k))

        def loads(b):
            for n in range(6):
                a('global_load_dwordx4 %s, v%d, %s sc1' % (v4(b + 4 * n), 80 + n, sp(pWS)))
            a('s_mov_b64 exec, s[46:47]')
            a('global_load_dwordx4 %s, v86, %s sc1' % (v4(b + 24), sp(pWS)))
            a('s_mov_b64 exec, -1')

        def checks(b):
            for k in range(6):
                self.check4(b + 4 * k, 44, 45, k == 0, second=True)
            self.check4(b + 24, 44, 45, False, mask='s[46:47]', second=True)

        def stub(b):
            for r in range(4):
                a('v_add_f32 v%d, v%d, v%d' % (b + r, b + r, b + 4 + r))
                a('v_add_f32 v%d, v%d, v%d' % (b + 8 + r, b + 8 + r, b + 12 + r))
                a('v_add_f32 v%d, v%d, v%d' % (b + 16 + r, b + 16 + r, b + 20 + r))
            for r in range(4):
                a('v_add_f32 v%d, v%d, v%d' % (b + r, b + r, b + 8 + r))
                a('v_add_f32 v%d, v%d, v%d' % (b + 16 + r, b + 16 + r, b + 24 + r))
            for r in range(4):
                a('v_add_f32 v%d, v%d, v%d' % (48 + r, b + r, b + 16 + r))
        if 'nosent' not in self.opts:
            a('v_min_u32 v8, 26, v0')
            a('v_mul_u32_u24 v8, %d, v8' % INP)
            a('v_readfirstlane_b32 s44, v80')
            a('v_add_u32 v87, s44, v8')
            top = a.newlabel('L_se')
            dn = a.newlabel('L_sed')
            a('s_mov_b32 %s, %d' % (sSPIN, SPIN_MAX))
            a('s_mov_b32 exec_hi, 0')
            a.label(top)
            a('global_load_dwordx4 v[16:19], v87, %s sc1' % sp(pWS))
            a('s_waitcnt vmcnt(0)')
            self.check4(16, 44, 45, True, second=True)
            a('s_bcnt1_i32_b64 s44, s[48:49]')
            a('s_cmp_le_u32 s44, %d' % self.sent)
            a('s_cbranch_scc1 %s' % dn)
            a('s_sleep 2')
            a('s_sub_u32 %s, %s, 1' % (sSPIN, sSPIN))
            a('s_cmp_lg_u32 %s, 0' % sSPIN)
            a('s_cbranch_scc1 %s' % top)
            a.label(dn)
            a('s_mov_b64 exec, -1')
        if 'nosp3' in self.opts:
            self.ppoll(ES, 7, loads, checks, stub, gap=self.pgap)
        else:
            self.spoll([self.item(16 + 4 * n, 80 + n, 0, 44, second=True) for n in range(6)] +
                       [self.item(16 + 24, 86, 0, 44, mask='s[46:47]', second=True)])
            stub(16)
        self.stamp(12)
        self.allreduce([48, 49, 50, 51], [52, 53, 54, 55], steps=('p16', 'p32'))
        self.tag4(48)
        a('s_mov_b64 exec, 0xffff')
        a('global_store_dwordx4 v89, v[48:51], %s sc1' % sp(pWS))
        a('s_mov_b64 exec, -1')
        self.stamp(13)
        a('s_and_b32 s44, %s, 7' % sTP)
        a('s_cmp_lg_u32 s44, %s' % sX)
        a('s_cbranch_scc1 %s' % l_end)
        self.gather8(88, 52, [64, 72, 96], 14)
        self.bf16_round4(52, 56)
        for k in range(4):
            a('v_add_f32 v%d, v%d, v%d' % (56 + k, 56 + k, 92 + k))
        a('v_cvt_pk_bf16_f32 v56, v56, v57')
        a('v_cvt_pk_bf16_f32 v57, v58, v59')
        a('s_mov_b64 exec, 0xffff')
        a('global_store_dwordx2 v90, v[56:57], %s' % sp(pOUT))
        a('s_cmp_lg_u32 s2, 96')
        a('s_cbranch_scc1 %s' % l_end)
        a('s_mov_b64 exec, 1')
        a('v_mov_b32 v60, %s' % sTAG)
        a('global_store_dword v190, v60, %s offset:%d sc1' % (sp(pWS), EPOCH))
        a.label(l_end)
        self.end_wave()

    def build(self):
        a = self.a
        hdr = open('cdna_kernels/%s.s.ref' % NAME).read().split('\n')
        top = []
        for ln in hdr:
            if ln.startswith('; @launch'):
                top.append('; @launch grid=(256,1,1) block=(%d,1,1) lds=%d' % (64 * NWAVES, LDS_BYTES))
                break
            top.append(ln)
        out = '\n'.join(top) + '\n'
        out += '.amdgcn_target "amdgcn-amd-amdhsa--gfx950"\n.text\n.globl %s_kernel\n.p2align 8\n' % NAME
        out += '.type %s_kernel,@function\n%s_kernel:\n' % (NAME, NAME)
        self.prologue()
        self.comm()
        self.attention()
        self.loader()
        a.label('L_exit')
        a('s_endpgm')
        out += a.text()
        out += '''.section .rodata,"a"
.p2align 6
.amdhsa_kernel %s_kernel
  .amdhsa_next_free_vgpr 208
  .amdhsa_next_free_sgpr 102
  .amdhsa_accum_offset 208
  .amdhsa_group_segment_fixed_size 0
  .amdhsa_kernarg_size 96
  .amdhsa_user_sgpr_count 2
  .amdhsa_user_sgpr_kernarg_segment_ptr 1
  .amdhsa_system_sgpr_workgroup_id_x 1
  .amdhsa_float_denorm_mode_32 3
.end_amdhsa_kernel
''' % NAME
        return out


if __name__ == '__main__':
    outp = sys.argv[1]
    open(outp, 'w').write(Gen(opts=sys.argv[2:]).build())
```

```python
import struct
import sys
from asmlib import Asm

NAME = 'sequential_preLN__sliding_block_cached__swiglu_ffn__decode'


def f2u(x):
    return struct.unpack('<I', struct.pack('<f', x))[0]


EPOCH = 0
XCB = 0x2000
QA = 0x10000
QB = 0x90000
YP = 0x110000
FP = 0x120000
LOCB = 0x200000
L_OP = 0
L_IN = 21504
INP = 5120
LOCP = 163840
RB = 0x200000
TS = 0x600000

SY = 0
FQ, FV, MX, FO, FY, FH, FWO, FGU, MODE, FG1, FPUB = (SY + o for o in (0, 16, 32, 48, 64, 80, 84, 88, 96, 112, 104))
FVSA = [SY + 4, SY + 8, SY + 12, SY + 100]
Q_LDS = 128
OW_LDS = 384
O2_LDS = 2560
YW_LDS = 4608
H_LDS = 5632
WD_LDS = 6144
WO_LDS = 16384
GU_LDS = 49152
V_LDS = 81920
LDS_BYTES = V_LDS + 65536
VSTAGES = [(0, 6), (6, 12), (12, 15), (15, 16)]

sWID, sX, sI, sH, sJ8, sB, sJ, sAW = 's3', 's4', 's5', 's6', 's7', 's8', 's9', 's10'
sTAG = 's11'
sT = ['s12', 's13', 's14', 's15']
pX, pK, pV, pWQ, pWO, pWG, pWU = 16, 18, 20, 22, 24, 28, 30
pWD, pOUT, pDBG, pWS = 32, 34, 36, 38
sLOC = 's42'
sMODE = 's43'
sSPIN = 's52'
sSEL = 's53'
sXCC = 's54'
sTAG2 = 's55'
sT2 = ['s96', 's97', 's98', 's99']
sTP = 's100'
sU = 's101'
HIROWS = 's[58:59]'
SPIN_MAX = 100000
NWAVES = 6
LOG2E = 1.4426950408889634
DPPM = 'row_mask:0xf bank_mask:0xf'


def sp(n):
    return 's[%d:%d]' % (n, n + 1)


def v4(n):
    return 'v[%d:%d]' % (n, n + 3)


def v2(n):
    return 'v[%d:%d]' % (n, n + 1)


class Gen:
    def __init__(self, opts=()):
        self.a = Asm()
        self.opts = set(opts)
        self.stamps = 'stamps' in self.opts
        self.nt = ' nt'
        self.p = dict(depth=4, kfree=13, ldepth=32, ldepth2=12)
        for o in self.opts:
            if '=' in o:
                k, v = o.split('=')
                assert k in self.p
                self.p[k] = int(v)
        self.cold = []

    def stamp(self, k):
        if self.stamps:
            self.a('s_memrealtime %s' % sp(60 + 2 * k))

    def end_wave(self):
        a = self.a
        if self.stamps:
            a('s_mov_b64 exec, -1')
            self.stamp(15)
            a('s_waitcnt lgkmcnt(0)')
            a('v_mov_b32 v200, 0')
            for k in range(16):
                a('v_writelane_b32 v200, s%d, %d' % (60 + 2 * k, k))
            a('s_mul_i32 s44, s2, %d' % NWAVES)
            a('s_add_u32 s44, s44, %s' % sWID)
            a('s_lshl_b32 s44, s44, 6')
            a('s_add_u32 s44, s44, %d' % TS)
            a('v_lshlrev_b32 v201, 2, v0')
            a('v_add_u32 v201, s44, v201')
            a('s_mov_b64 exec, 0xffff')
            a('global_store_dword v201, v200, %s' % sp(pWS))
        a('s_endpgm')

    def tag4(self, base, second=False):
        t = sT2 if second else sT
        for k in range(4):
            self.a('v_and_or_b32 v%d, v%d, v7, %s' % (base + k, base + k, t[k]))

    def prefill(self, base, second=False):
        t = sT2 if second else sT
        for k in range(4):
            self.a('v_mov_b32 v%d, %s' % (base + k, t[k]))

    def check4(self, base, t, first, second=False):
        a = self.a
        a('v_perm_b32 v%d, v%d, v%d, %s' % (t + 1, base + 1, base, sSEL))
        a('v_perm_b32 v%d, v%d, v%d, %s' % (t + 2, base + 3, base + 2, sSEL))
        a('v_lshl_or_b32 v%d, v%d, 16, v%d' % (t + 1, t + 2, t + 1))
        self.check1(t + 1, t, first, second)

    def check1(self, reg, t, first, second=False):
        self.a('v_sad_u8 v%d, v%d, %s, %s' % (t, reg, sTAG2 if second else sTAG, '0' if first else 'v%d' % t))

    def poll(self, loads, checks, acc, wait='vmcnt(0)', sleep=0):
        a = self.a
        top = a.newlabel('L_poll')
        retry = a.newlabel('L_retry')
        done = a.newlabel('L_pdone')
        a('s_mov_b32 %s, %d' % (sSPIN, SPIN_MAX if wait.startswith('vm') else SPIN_MAX * 8))
        a.label(top)
        loads()
        a('s_waitcnt %s' % wait)
        checks()
        a('v_cmp_ne_u32 vcc, 0, v%d' % acc)
        a('s_cbranch_vccnz %s' % retry)
        a.label(done)

        def cold():
            a.label(retry)
            if sleep:
                a('s_sleep %d' % sleep)
            a('s_sub_u32 %s, %s, 1' % (sSPIN, sSPIN))
            a('s_cbranch_scc0 %s' % top)
            a('s_branch %s' % done)
        self.cold.append(cold)

    def wait_flag(self, addr, n, t, extra=None, sleep=0, lazy=False):
        a = self.a

        def loads():
            if n == 1:
                a('ds_read_b32 v%d, v190 offset:%d' % (t, addr))
            else:
                a('ds_read_b128 %s, v190 offset:%d' % (v4(t), addr))
            if extra and not lazy:
                extra()

        def checks():
            if n == 4:
                a('v_or3_b32 v%d, v%d, v%d, v%d' % (t, t, t + 1, t + 2))
                a('v_or_b32 v%d, v%d, v%d' % (t, t, t + 3))
        self.poll(loads, checks, t, wait='lgkmcnt(0)', sleep=max(sleep, 1) if lazy else sleep)
        if extra and lazy:
            extra()
            a('s_waitcnt lgkmcnt(0)')

    def set_flag(self, vaddr, off):
        self.a('ds_write_b32 v%d, v190 offset:%d' % (vaddr, off))

    def st_local(self, stores, pre=None):
        a = self.a
        lg = a.newlabel('L_sg')
        ld = a.newlabel('L_sd')
        a('s_cmp_lg_u32 %s, 0' % sMODE)
        a('s_cbranch_scc1 %s' % lg)
        for k, (va, d, off) in enumerate(stores):
            if pre:
                pre(k)
            a('global_store_dwordx4 v%d, %s, %s offset:%d' % (va, v4(d), sp(pWS), off))
        a.label(ld)

        def cold():
            a.label(lg)
            a('s_nop 7')
            for k, (va, d, off) in enumerate(stores):
                if pre:
                    pre(k)
                a('global_store_dwordx4 v%d, %s, %s offset:%d sc1' % (va, v4(d), sp(pWS), off))
            a('s_nop 1')
            a('s_branch %s' % ld)
        self.cold.append(cold)

    def flush_cold(self):
        while self.cold:
            c = self.cold.pop(0)
            self.a.reset()
            c()

    def get_mode(self, t):
        a = self.a

        def loads():
            a('ds_read_b32 v%d, v190 offset:%d' % (t, MODE))

        def checks():
            a('v_lshrrev_b32 v%d, 1, v%d' % (t + 1, t))
        self.poll(loads, checks, t + 1, wait='lgkmcnt(0)', sleep=1)
        a('v_readfirstlane_b32 s44, v%d' % t)
        a('s_cmp_eq_u32 s44, 0')
        a('s_cselect_b32 %s, 0, %d' % (sMODE, RB))
        a('s_mul_i32 %s, %s, %d' % (sLOC, sX, LOCP))
        a('s_add_u32 %s, %s, %d' % (sLOC, sLOC, LOCB))
        a('s_add_u32 %s, %s, %s' % (sLOC, sLOC, sMODE))

    def allreduce(self, rs, tmps, op='add', steps=('x1', 'x2', 'r4', 'r8', 'p16')):
        a = self.a
        dpp = {'x1': 'quad_perm:[1,0,3,2]', 'x2': 'quad_perm:[2,3,0,1]', 'r4': 'row_ror:4',
               'r8': 'row_ror:8', 'hm': 'row_half_mirror'}
        for st in steps:
            if st in dpp:
                for r in rs:
                    a('v_%s_f32_dpp v%d, v%d, v%d %s %s' % (op, r, r, r, dpp[st], DPPM))
            else:
                ins = 'v_permlane16_swap_b32' if st == 'p16' else 'v_permlane32_swap_b32'
                for r, t in zip(rs, tmps):
                    a('v_mov_b32 v%d, v%d' % (t, r))
                for r, t in zip(rs, tmps):
                    a('%s v%d, v%d' % (ins, r, t))
                for r, t in zip(rs, tmps):
                    a('v_%s_f32 v%d, v%d, v%d' % (op, r, r, t))

    def rs4(self, b):
        a = self.a
        a('v_permlane32_swap_b32 v%d, v%d' % (b, b + 2))
        a('v_permlane32_swap_b32 v%d, v%d' % (b + 1, b + 3))
        a('v_add_f32 v%d, v%d, v%d' % (b, b, b + 2))
        a('v_add_f32 v%d, v%d, v%d' % (b + 1, b + 1, b + 3))
        a('v_permlane16_swap_b32 v%d, v%d' % (b, b + 1))
        a('v_add_f32 v%d, v%d, v%d' % (b, b, b + 1))

    def rowtag(self, dst):
        a = self.a
        a('v_lshlrev_b32 v%d, 3, v2' % dst)
        a('v_lshrrev_b32 v%d, v%d, %s' % (dst, dst, sTAG))
        a('v_and_b32 v%d, 0xff, v%d' % (dst, dst))

    def sparse(self, dst, src):
        for k in range(4):
            self.a('v_and_b32 v%d, v%d, v%d' % (dst + k, src, 3 + k))

    def mfma(self, d, x, y, first):
        self.a('v_mfma_f32_16x16x32_bf16 %s, %s, %s, %s' % (v4(d), v4(x), v4(y), '0' if first else v4(d)))

    def bf16_round4(self, src, dst):
        a = self.a
        a('v_cvt_pk_bf16_f32 v%d, v%d, v%d' % (dst, src, src + 1))
        a('v_cvt_pk_bf16_f32 v%d, v%d, v%d' % (dst + 2, src + 2, src + 3))
        a('v_and_b32 v%d, 0xffff0000, v%d' % (dst + 1, dst))
        a('v_lshlrev_b32 v%d, 16, v%d' % (dst, dst))
        a('v_and_b32 v%d, 0xffff0000, v%d' % (dst + 3, dst + 2))
        a('v_lshlrev_b32 v%d, 16, v%d' % (dst + 2, dst + 2))

    def consts(self, t=8):
        a = self.a
        a('v_and_b32 v%d, 7, v0' % t)
        a('v_and_b32 v%d, 1, v%d' % (t + 1, t))
        a('v_cmp_eq_u32 vcc, 1, v%d' % (t + 1))
        a('v_mov_b32 v%d, 0xffff' % (t + 1))
        a('v_mov_b32 v%d, 0xffff0000' % (t + 2))
        a('v_cndmask_b32 v%d, v%d, v%d, vcc' % (t + 1, t + 1, t + 2))
        a('v_lshrrev_b32 v%d, 1, v%d' % (t, t))
        for k in range(4):
            a('v_cmp_eq_u32 vcc, %d, v%d' % (k, t))
            a('v_cndmask_b32 v%d, 0, v%d, vcc' % (3 + k, t + 1))
        a('v_mov_b32 v7, 0xffffff00')
        a('s_mov_b32 %s, 0x0c0c0400' % sSEL)
        a('s_mov_b32 s58, 0xff00ff00')
        a('s_mov_b32 s59, 0xff00ff00')

    def tagcalc(self):
        a = self.a
        a('s_mul_i32 %s, %s, 0x9e3779b1' % (sTAG, sTAG))
        a('s_add_u32 %s, %s, 0x7f4a7c15' % (sTAG, sTAG))
        a('s_xor_b32 %s, %s, 0x5a5a5a5a' % (sTAG2, sTAG))
        for tg, t in ((sTAG, sT), (sTAG2, sT2)):
            a('s_and_b32 %s, %s, 0xff' % (t[0], tg))
            a('s_bfe_u32 %s, %s, 0x80008' % (t[1], tg))
            a('s_bfe_u32 %s, %s, 0x80010' % (t[2], tg))
            a('s_lshr_b32 %s, %s, 24' % (t[3], tg))

    def roles(self):
        a = self.a
        a('s_sub_u32 %s, %s, 12' % (sTP, sI))
        a('s_max_i32 %s, %s, 0' % (sTP, sTP))
        a('s_add_u32 %s, %s, 12' % (sU, sI))
        a('s_cmp_lt_u32 %s, 12' % sI)
        a('s_cselect_b32 %s, %s, %s' % (sU, sI, sU))
        a('s_sub_u32 s44, %s, 8' % sI)
        a('s_cmp_ge_u32 %s, 20' % sI)
        a('s_cselect_b32 %s, s44, %s' % (sU, sU))

    def ln_finish(self, rm, rv):
        a = self.a
        a('v_cvt_pk_bf16_f32 v%d, v%d, v%d' % (rv, rm, rv))
        a('v_lshlrev_b32 v%d, 16, v%d' % (rm, rv))
        a('v_and_b32 v%d, 0xffff0000, v%d' % (rv, rv))
        a('v_add_f32 v%d, 0x%x, v%d' % (rv, f2u(1e-5), rv))
        a('v_cvt_pk_bf16_f32 v%d, v%d, v%d' % (rv, rv, rv))
        a('v_and_b32 v%d, 0xffff0000, v%d' % (rv, rv))
        a('v_sqrt_f32 v%d, v%d' % (rv, rv))
        a('v_cvt_pk_bf16_f32 v%d, v%d, v%d' % (rv, rv, rv))
        a('v_and_b32 v%d, 0xffff0000, v%d' % (rv, rv))
        a('v_rcp_f32 v%d, v%d' % (rv, rv))

    def gather8(self, vaddr, G, stampk):
        a = self.a

        def loads():
            a('global_load_dwordx4 %s, v%d, %s sc1' % (v4(G), vaddr, sp(pWS)))
            a('global_load_dwordx4 %s, v%d, %s offset:1024 sc1' % (v4(G + 4), vaddr, sp(pWS)))

        def checks():
            self.check4(G, G + 8, True)
            self.check4(G + 4, G + 8, False)
        self.poll(loads, checks, G + 8)
        self.stamp(stampk)
        for r in range(4):
            a('v_add_f32 v%d, v%d, v%d' % (G + r, G + r, G + 4 + r))
        self.rs4(G)

    def slice_off(self, dst, t):
        a = self.a
        a('v_and_b32 v%d, 1, v1' % t)
        a('v_mul_u32_u24 v%d, 1280, v%d' % (t, t))
        a('v_lshrrev_b32 v%d, 1, v1' % dst)
        a('v_lshl_add_u32 v%d, v%d, 3, v%d' % (dst, dst, t))
        a('v_lshl_add_u32 v%d, v2, 1, v%d' % (dst, dst))
        a('s_lshl_b32 s44, %s, 6' % sTP)
        a('v_add_u32 v%d, s44, v%d' % (dst, dst))

    def h_addr(self, dst, t):
        a = self.a
        a('v_and_b32 v%d, 1, v1' % t)
        a('v_lshlrev_b32 v%d, 7, v%d' % (t, t))
        a('v_lshrrev_b32 v%d, 1, v1' % dst)
        a('v_lshl_add_u32 v%d, v%d, 2, v%d' % (dst, dst, t))
        a('v_lshl_add_u32 v%d, v2, 5, v%d' % (dst, dst))

    def prologue(self):
        a = self.a
        a('s_cmp_ge_u32 s2, 256')
        a('s_cbranch_scc1 L_exit')
        a('s_load_dwordx16 s[16:31], s[0:1], 0')
        a('s_load_dwordx8 s[32:39], s[0:1], 64')
        if self.stamps:
            for k in range(1, 16):
                a('s_mov_b64 %s, 0' % sp(60 + 2 * k))
        self.stamp(0)
        a('v_lshrrev_b32 v1, 6, v0')
        a('v_and_b32 v0, 63, v0')
        a('v_readfirstlane_b32 %s, v1' % sWID)
        a('s_and_b32 %s, s2, 7' % sX)
        a('s_lshr_b32 %s, s2, 3' % sI)
        a('s_and_b32 %s, %s, 3' % (sH, sI))
        a('s_lshl_b32 s44, %s, 2' % sX)
        a('s_add_u32 %s, %s, s44' % (sH, sH))
        a('s_lshr_b32 %s, %s, 2' % (sJ8, sI))
        a('s_lshr_b32 %s, %s, 2' % (sB, sJ8))
        a('s_and_b32 %s, %s, 3' % (sJ, sJ8))
        a('v_and_b32 v1, 15, v0')
        a('v_lshrrev_b32 v2, 4, v0')
        a('v_mov_b32 v190, 0')
        self.roles()
        a('s_sub_u32 %s, %s, 1' % (sAW, sWID))
        a('s_cmp_eq_u32 %s, 5' % sWID)
        a('s_cbranch_scc1 L_load')
        a('s_cmp_lg_u32 %s, 0' % sWID)
        a('s_cbranch_scc1 L_att')

    def comm(self):
        a = self.a
        WQ, XR, XN, XS, F = 16, 96, 106, 14, 116
        a('v_bfe_u32 v8, v0, 3, 1')
        a('v_mul_u32_u24 v8, 1280, v8')
        a('v_and_b32 v9, 7, v0')
        a('v_lshl_add_u32 v9, v2, 3, v9')
        a('v_mul_u32_u24 v9, 40, v9')
        a('v_add_u32 v10, v8, v9')
        a('s_mul_i32 s44, %s, 160' % sJ8)
        a('v_mul_u32_u24 v9, 40, v2')
        a('v_add3_u32 v11, v8, v9, s44')
        a('s_mul_i32 s44, %s, %d' % (sJ8, 80 * 8192))
        a('s_lshl_b32 s45, %s, 8' % sH)
        a('s_add_u32 s44, s44, s45')
        a('v_mul_u32_u24 v12, %d, v2' % (20 * 8192))
        a('v_lshl_add_u32 v12, v1, 4, v12')
        a('v_add_u32 v12, s44, v12')
        self.slice_off(13, 8)
        a('s_waitcnt lgkmcnt(0)')
        a('s_load_dword %s, %s, %d' % (sTAG, sp(pWS), EPOCH))
        for base, va in ((XR, 10), (XN, 11)):
            a('global_load_dwordx4 %s, v%d, %s' % (v4(base), va, sp(pX)))
            a('global_load_dwordx4 %s, v%d, %s offset:16' % (v4(base + 4), va, sp(pX)))
            a('global_load_dwordx2 %s, v%d, %s offset:32' % (v2(base + 8), va, sp(pX)))
        a('global_load_ushort v%d, v13, %s' % (XS, sp(pX)))
        for n in range(20):
            a('global_load_dwordx4 %s, v12, %s%s' % (v4(WQ + 4 * n), sp(pWQ), self.nt))
            if n < 19:
                a('v_add_u32 v12, 8192, v12')
        a('s_barrier')
        a('s_setprio 3')
        self.stamp(1)
        self.consts()
        a('s_getreg_b32 %s, hwreg(HW_REG_XCC_ID)' % sXCC)
        a('s_and_b32 %s, %s, 0xf' % (sXCC, sXCC))
        a('v_and_b32 v10, 31, v0')
        a('s_lshl_b32 s44, %s, 12' % sX)
        a('s_add_u32 s44, s44, %d' % XCB)
        a('v_lshlrev_b32 v142, 7, v10')
        a('v_add_u32 v142, s44, v142')
        a('s_lshl_b32 s44, %s, 10' % sH)
        a('s_add_u32 s44, s44, %d' % XCB)
        a('v_and_b32 v9, 7, v0')
        a('v_lshlrev_b32 v143, 7, v9')
        a('v_add_u32 v143, s44, v143')
        a('s_lshl_b32 s44, %s, 14' % sH)
        a('s_add_u32 s44, s44, %d' % QA)
        a('v_lshrrev_b32 v9, 1, v2')
        a('v_lshlrev_b32 v9, 13, v9')
        a('v_and_b32 v10, 1, v2')
        a('v_lshl_add_u32 v10, v1, 1, v10')
        a('v_lshl_add_u32 v12, v10, 4, v9')
        a('v_add_u32 v12, s44, v12')
        a('s_and_b32 s45, %s, 1' % sJ8)
        a('s_lshl_b32 s45, s45, 9')
        a('s_lshr_b32 s46, %s, 1' % sJ8)
        a('s_lshl_b32 s46, s46, 2')
        a('s_add_u32 s45, s45, s46')
        a('s_add_u32 s45, s45, 4096')
        a('v_add_u32 v140, s45, v12')
        a('s_lshl_b32 s45, %s, 9' % sJ8)
        a('v_add_u32 v12, s45, v12')
        a('s_lshl_b32 s45, %s, 13' % sB)
        a('s_add_u32 s45, s45, s44')
        a('s_add_u32 s45, s45, 2048')
        a('v_lshlrev_b32 v13, 4, v0')
        a('v_add_u32 v13, s45, v13')
        a('s_waitcnt vmcnt(20)')
        self.stamp(2)
        for k in range(10):
            a('v_lshlrev_b32 v%d, 16, v%d' % (F + 2 * k, XR + k))
            a('v_and_b32 v%d, 0xffff0000, v%d' % (F + 2 * k + 1, XR + k))
        a('v_add_f32 v8, v%d, v%d' % (F, F + 1))
        a('v_add_f32 v9, v%d, v%d' % (F + 2, F + 3))
        for k in range(4, 20, 2):
            a('v_add_f32 v8, v8, v%d' % (F + k))
            a('v_add_f32 v9, v9, v%d' % (F + k + 1))
        a('v_add_f32 v8, v8, v9')
        red = ('x1', 'x2', 'hm', 'p16', 'p32')
        self.allreduce([8], [9], steps=red)
        a('v_mul_f32 v8, 0x%x, v8' % f2u(1.0 / 640))
        a('v_mov_b32 v9, 0')
        a('v_mov_b32 v10, 0')
        for k in range(0, 20, 2):
            a('v_sub_f32 v%d, v%d, v8' % (F + k, F + k))
            a('v_sub_f32 v%d, v%d, v8' % (F + k + 1, F + k + 1))
            a('v_fmac_f32 v9, v%d, v%d' % (F + k, F + k))
            a('v_fmac_f32 v10, v%d, v%d' % (F + k + 1, F + k + 1))
        a('v_add_f32 v9, v9, v10')
        self.allreduce([9], [10], steps=red)
        a('v_mul_f32 v9, 0x%x, v9' % f2u(1.0 / 640))
        self.ln_finish(8, 9)
        a('s_waitcnt lgkmcnt(0)')
        self.tagcalc()
        self.stamp(3)
        D = 136
        A = [96, 100]
        for k in range(10):
            a('v_lshlrev_b32 v10, 16, v%d' % (XN + k))
            a('v_and_b32 v11, 0xffff0000, v%d' % (XN + k))
            a('v_sub_f32 v10, v10, v8')
            a('v_sub_f32 v11, v11, v8')
            a('v_cvt_pk_bf16_f32 v10, v10, v11')
            a('v_and_b32 v11, 0xffff0000, v10')
            a('v_lshlrev_b32 v10, 16, v10')
            a('v_mul_f32 v10, v10, v9')
            a('v_mul_f32 v11, v11, v9')
            a('v_cvt_pk_bf16_f32 v10, v10, v10')
            a('v_cvt_pk_bf16_f32 v11, v11, v11')
            self.sparse(A[0], 10)
            self.sparse(A[1], 11)
            a('s_waitcnt vmcnt(%d)' % (18 - 2 * k))
            self.mfma(D, A[0], WQ + 8 * k, k == 0)
            self.mfma(D, A[1], WQ + 8 * k + 4, False)

        def qhash(dst, b, t):
            a('v_alignbit_b32 v%d, v%d, v%d, 8' % (dst, b + 1, b + 1))
            a('v_alignbit_b32 v%d, v%d, v%d, 16' % (t, b + 2, b + 2))
            a('v_xor_b32 v%d, v%d, v%d' % (dst, dst, b))
            a('v_xor_b32 v%d, v%d, v%d' % (dst, dst, t))
            a('v_alignbit_b32 v%d, v%d, v%d, 24' % (t, b + 3, b + 3))
            a('v_xor_b32 v%d, v%d, v%d' % (dst, dst, t))
        a('global_store_dwordx4 v12, %s, %s' % (v4(D), sp(pWS)))
        qhash(145, D, 146)
        a('v_xor_b32 v145, %s, v145' % sTAG)
        if 'forceglobal' not in self.opts:
            a('global_store_dword v140, v145, %s' % sp(pWS))
        self.stamp(4)
        a('s_waitcnt vmcnt(0)')
        self.stamp(13)
        G = 16
        top = a.newlabel('L_q')
        nxt = a.newlabel('L_qn')
        done = a.newlabel('L_qd')
        a('s_mov_b32 %s, %d' % (sSPIN, SPIN_MAX))
        a('s_mov_b32 s40, 0')
        a.label(top)
        for k in range(5):
            a('global_load_dwordx4 %s, v13, %s offset:%d sc1' % (v4(G + 4 * k), sp(pWS), k * 1024 - 2048))
        a('s_waitcnt vmcnt(0)')
        for k in range(4):
            qhash(40, G + 4 * k, 41)
            a('v_xor_b32 v40, v40, v%d' % (G + 16 + k))
            self.check1(40, 42, k == 0)
        a('v_cmp_ne_u32 vcc, 0, v42')
        a('s_cbranch_vccz %s' % done)
        a('s_and_b32 s44, %s, 3' % sSPIN)
        a('s_or_b32 s44, s44, s40')
        a('s_cmp_lg_u32 s44, 1')
        a('s_cbranch_scc1 %s' % nxt)
        a('global_load_dwordx2 v[16:17], v143, %s sc1' % sp(pWS))
        a('s_waitcnt vmcnt(0)')
        a('v_cmp_ne_u32 s[48:49], %s, v16' % sTAG)
        a('v_cmp_ne_u32 s[50:51], %s, v17' % sXCC)
        a('s_cmp_lg_u64 s[48:49], 0')
        a('s_cbranch_scc1 %s' % nxt)
        if 'forceglobal' not in self.opts:
            a('s_cmp_eq_u64 s[50:51], 0')
            a('s_cbranch_scc1 %s' % nxt)
        a('s_mov_b32 s40, 2')
        a('v_add_u32 v12, %d, v12' % (QB - QA))
        a('v_add_u32 v13, %d, v13' % (QB - QA))
        a('v_add_u32 v140, %d, v140' % (QB - QA))
        a('global_store_dwordx4 v12, %s, %s sc1' % (v4(D), sp(pWS)))
        a('global_store_dword v140, v145, %s sc1' % sp(pWS))
        a.label(nxt)
        a('s_sub_u32 %s, %s, 1' % (sSPIN, sSPIN))
        a('s_cmp_lg_u32 %s, 0' % sSPIN)
        a('s_cbranch_scc1 %s' % top)
        a.label(done)
        self.stamp(5)
        for r in range(4):
            a('v_add_f32 v%d, v%d, v%d' % (8 + r, G + r, G + 4 + r))
            a('v_add_f32 v%d, v%d, v%d' % (G + 8 + r, G + 8 + r, G + 12 + r))
        for r in range(4):
            a('v_add_f32 v%d, v%d, v%d' % (8 + r, 8 + r, G + 8 + r))
        self.allreduce([8, 9, 10, 11], [48, 49, 50, 51], steps=('p32',))
        a('v_cvt_pk_bf16_f32 v8, v8, v9')
        a('v_cvt_pk_bf16_f32 v9, v10, v11')
        a('v_and_b32 v10, 31, v0')
        a('v_lshlrev_b32 v10, 3, v10')
        a('ds_write_b64 v10, v[8:9] offset:%d' % Q_LDS)
        self.set_flag(190, FQ)
        self.stamp(6)

        def loads():
            a('global_load_dwordx2 v[16:17], v142, %s sc1' % sp(pWS))

        def checks():
            self.check1(16, 18, True)
        self.poll(loads, checks, 18, sleep=4)
        a('v_cmp_ne_u32 s[50:51], %s, v17' % sXCC)
        a('s_or_b64 s[50:51], s[50:51], vcc')
        a('s_cselect_b32 s44, 1, 0')
        if 'forceglobal' in self.opts:
            a('s_mov_b32 s44, 1')
        a('v_mov_b32 v8, s44')
        a('ds_write_b32 v190, v8 offset:%d' % MODE)
        skip = a.newlabel('L_xq')
        a('s_or_b32 s44, s44, s40')
        a('s_cmp_lg_u32 s44, 1')
        a('s_cbranch_scc1 %s' % skip)
        a('v_add_u32 v12, %d, v12' % (QB - QA))
        a('v_add_u32 v140, %d, v140' % (QB - QA))
        a('global_store_dwordx4 v12, %s, %s sc1' % (v4(D), sp(pWS)))
        a('global_store_dword v140, v145, %s sc1' % sp(pWS))
        a.label(skip)
        self.get_mode(8)
        a('v_lshlrev_b32 v150, 4, v0')
        a('s_mul_i32 s44, %s, 640' % sI)
        a('s_add_u32 s44, s44, %s' % sLOC)
        a('v_add_u32 v151, s44, v150')
        a('s_lshl_b32 s44, %s, 11' % sTP)
        a('s_add_u32 s44, s44, %d' % YP)
        a('v_add_u32 v152, s44, v150')
        a('s_lshl_b32 s44, %s, 11' % sI)
        a('s_lshl_b32 s45, %s, 8' % sX)
        a('s_add_u32 s44, s44, s45')
        a('s_add_u32 s44, s44, %d' % YP)
        a('v_lshlrev_b32 v153, 4, v1')
        a('v_lshl_add_u32 v153, v2, 2, v153')
        a('v_add_u32 v153, s44, v153')
        self.h_addr(154, 8)
        a('s_lshl_b32 s44, %s, 4' % sTP)
        a('s_add_u32 s44, s44, %s' % sLOC)
        a('s_add_u32 s44, s44, %d' % (L_IN + 3840))
        a('v_lshrrev_b32 v8, 1, v0')
        a('v_min_u32 v8, 26, v8')
        a('v_mul_u32_u24 v8, %d, v8' % INP)
        a('v_and_b32 v9, 1, v0')
        a('v_lshl_add_u32 v8, v9, 9, v8')
        a('v_add_u32 v155, s44, v8')
        self.rowtag(156)
        a('v_lshlrev_b32 v%d, 16, v%d' % (XS, XS))
        a('v_mov_b32 v30, %s' % sTAG)
        a('v_mov_b32 v31, %s' % sTAG)
        a('s_mov_b32 exec_hi, 1')

        def rd():
            for w in range(4):
                a('ds_read_b128 %s, v150 offset:%d' % (v4(32 + 4 * w), OW_LDS + 528 * w))
        self.wait_flag(FVSA[2], 1, 8, sleep=2)
        self.wait_flag(FO, 4, 8, rd)
        self.stamp(7)
        for r in range(4):
            a('v_add_f32 v%d, v%d, v%d' % (32 + r, 32 + r, 36 + r))
            a('v_add_f32 v%d, v%d, v%d' % (40 + r, 40 + r, 44 + r))
        for r in range(4):
            a('v_add_f32 v%d, v%d, v%d' % (8 + r, 32 + r, 40 + r))
        self.tag4(8)
        self.st_local([(151, 8, L_OP)])
        self.set_flag(190, FPUB)
        a('s_mov_b64 exec, -1')
        self.stamp(8)
        l_noy = a.newlabel('L_noy')
        fin = a.newlabel('L_cend')
        a('s_cmp_ge_u32 %s, 20' % sI)
        a('s_cbranch_scc1 %s' % l_noy)

        def rd():
            a('ds_read_b128 v[32:35], v150 offset:%d' % YW_LDS)
        self.wait_flag(FG1, 4, 36, sleep=1)
        self.wait_flag(FY, 4, 36, rd)
        self.stamp(9)
        self.rs4(32)
        a('v_and_or_b32 v32, v32, v7, v156')
        a('global_store_dword v153, v32, %s sc1' % sp(pWS))
        a.label(l_noy)
        a('s_cmp_lt_u32 %s, 12' % sI)
        a('s_cbranch_scc1 %s' % fin)
        self.gather8(152, 16, 10)
        a('v_cvt_pk_bf16_f32 v16, v16, v16')
        a('v_and_b32 v16, 0xffff0000, v16')
        a('v_add_f32 v16, v16, v%d' % XS)
        a('v_cvt_pk_bf16_f32 v16, v16, v16')
        a('ds_write_b32 v154, v16 offset:%d' % H_LDS)
        self.set_flag(190, FH)
        self.stamp(11)
        a('v_and_b32 v28, 0xffff0000, v16')
        a('v_mul_f32 v29, v28, v28')
        self.allreduce([28, 29], [17, 18], steps=('x2', 'r4', 'r8', 'p16', 'p32'))
        self.st_local([(155, 28, 0)])
        a.label(fin)
        self.end_wave()
        self.flush_cold()

    def loader(self):
        a = self.a
        a.label('L_load')
        a.reset()
        a('v_mov_b32 v8, -1')
        a('v_lshlrev_b32 v9, 2, v0')
        a('s_mov_b32 exec_hi, 0')
        a('ds_write_b32 v9, v8 offset:%d' % SY)
        a('s_mov_b64 exec, -1')
        a('s_waitcnt lgkmcnt(0)')
        a('s_load_dword %s, %s, %d' % (sTAG, sp(pWS), EPOCH))
        a('s_barrier')
        a('s_setprio 2')
        self.stamp(1)
        a('s_getreg_b32 %s, hwreg(HW_REG_XCC_ID)' % sXCC)
        a('s_and_b32 %s, %s, 0xf' % (sXCC, sXCC))
        a('s_lshl_b32 s44, %s, 10' % sH)
        a('s_lshl_b32 s45, %s, 7' % sJ8)
        a('s_add_u32 s44, s44, s45')
        a('s_add_u32 s44, s44, %d' % XCB)
        a('v_mov_b32 v11, s44')
        a('v_mov_b32 v15, %s' % sXCC)
        a('s_mul_i32 s44, %s, %d' % (sX, 512 * 1280))
        a('s_min_u32 s45, %s, 19' % sI)
        a('s_lshl_b32 s45, s45, 6')
        a('s_add_u32 s45, s44, s45')
        a('v_lshrrev_b32 v8, 2, v0')
        a('v_mul_u32_u24 v8, 1280, v8')
        a('v_and_b32 v9, 3, v0')
        a('v_lshl_add_u32 v8, v9, 4, v8')
        a('v_add_u32 v32, s45, v8')
        a('s_mul_i32 s45, %s, 20480' % sI)
        a('s_add_u32 s44, s44, s45')
        a('v_lshlrev_b32 v8, 6, v0')
        a('v_add_u32 v33, s44, v8')
        a('s_min_u32 s44, %s, 26' % sU)
        a('s_mul_i32 s44, s44, %d' % INP)
        a('s_mul_i32 s45, %s, %d' % (sX, LOCP))
        a('s_add_u32 s44, s44, s45')
        a('s_add_u32 s44, s44, %d' % (LOCB + L_IN))
        a('v_add_u32 v34, s44, v8')
        a('s_mul_i32 s44, %s, %d' % (sTP, 32 * 3456))
        a('s_mul_i32 s45, %s, 432' % sX)
        a('s_add_u32 s44, s44, s45')
        a('v_mul_u32_u24 v13, 3456, v2')
        a('v_add_u32 v13, s44, v13')
        a('v_lshl_add_u32 v56, v1, 4, v13')
        a('v_min_u32 v8, 10, v1')
        a('v_lshl_add_u32 v57, v8, 4, v13')
        a('v_add_u32 v57, 256, v57')
        a('s_sub_u32 s44, %s, 20' % sI)
        a('s_and_b32 s44, s44, 7')
        a('s_mul_i32 s44, s44, %d' % (32 * 3456))
        a('s_add_u32 s44, s44, s45')
        a('v_lshrrev_b32 v8, 3, v0')
        a('v_mul_u32_u24 v8, 3456, v8')
        a('v_and_b32 v9, 7, v0')
        a('v_lshlrev_b32 v9, 6, v9')
        a('v_min_u32 v9, 428, v9')
        a('v_add3_u32 v58, v8, v9, s44')
        a('s_min_u32 s44, %s, 26' % sU)
        a('s_lshl_b32 s44, s44, 3')
        a('s_mul_i32 s45, %s, 216' % sX)
        a('s_add_u32 s44, s44, s45')
        a('s_mul_i32 s44, s44, 1280')
        a('v_and_b32 v8, 1, v2')
        a('v_lshlrev_b32 v8, 1, v8')
        a('v_lshrrev_b32 v9, 1, v2')
        a('v_add_u32 v8, v8, v9')
        a('v_mul_u32_u24 v8, 2560, v8')
        a('v_lshl_add_u32 v8, v1, 4, v8')
        a('v_add_u32 v64, s44, v8')
        a('s_lshl_b32 s44, %s, 5' % sB)
        a('s_add_u32 s44, s44, %s' % sH)
        a('s_lshl_b32 s44, s44, 20')
        a('s_lshl_b32 s45, %s, 16' % sJ)
        a('s_add_u32 s44, s44, s45')
        a('s_add_u32 s44, s44, %d' % (3072 * 256))
        a('v_lshlrev_b32 v8, 10, v2')
        a('v_lshl_add_u32 v8, v1, 4, v8')
        a('v_add_u32 v66, s44, v8')
        self.consts()
        a('s_waitcnt lgkmcnt(0)')
        self.tagcalc()
        a('v_mov_b32 v14, %s' % sTAG)
        a('s_mov_b64 exec, 1')
        a('global_store_dwordx2 v11, v[14:15], %s sc1' % sp(pWS))
        a('s_mov_b64 exec, -1')
        self.wait_flag(FV, 4, 16, sleep=1)
        self.stamp(3)
        l_nowo = a.newlabel('L_nowo')
        l_fin = a.newlabel('L_lfin')
        l_nogu = a.newlabel('L_nogu')
        marks = {4 * k1: t for t, (k0, k1) in enumerate(VSTAGES)}

        def fire(mk, donec):
            t = mk.pop(donec)
            self.set_flag(190, FVSA[t])
            if t == 3:
                self.stamp(7)

        def issue(kind, k, aw):
            if kind == 'v':
                a('s_mov_b32 m0, %d' % (V_LDS + 1024 * (4 * k + aw)))
                a('global_load_lds_dwordx4 v65, %s%s' % (sp(pV), self.nt))
            elif kind == 'p':
                a('global_load_dword v%d, v33, %s' % (80 + k, sp(pWO)))
                a('v_add_u32 v33, 4096, v33')
            elif kind == 't':
                a('global_load_dword v%d, v34, %s offset:%d sc1' % (86 + k, sp(pWS), 1024 * k))
            elif kind == 'd':
                a('global_load_dword v%d, v58, %s' % (70 + k, sp(pWU if k & 1 else pWG)))
                if k & 1:
                    a('v_add_u32 v58, %d, v58' % (8 * 3456))
            elif kind == 'w':
                a('s_mov_b32 m0, %d' % (WO_LDS + 1024 * k))
                a('global_load_lds_dwordx4 v32, %s%s' % (sp(pWO), self.nt))
                a('v_add_u32 v32, 20480, v32')
            elif kind == 'g':
                a('s_mov_b32 m0, %d' % (GU_LDS + 1024 * (8 * aw + k)))
                a('global_load_lds_dwordx4 v%d, %s%s' % (56 + (aw & 1), sp(pWU if aw >> 1 else pWG), self.nt))
                if aw == 3:
                    a('v_add_u32 v56, %d, v56' % (4 * 3456))
                    a('v_add_u32 v57, %d, v57' % (4 * 3456))
            elif kind == 'n':
                a('s_mov_b32 m0, %d' % (WD_LDS + 1024 * k))
                a('v_add_u32 v65, %d, v64' % ((k // 5) * 1280 + (k % 5) * 256))
                a('global_load_lds_dwordx4 v65, %s%s' % (sp(pWD), self.nt))

        def stream(seq, mk, base, ld, pub=False):
            for i, (kind, k, aw) in enumerate(seq):
                i += base
                if kind == 'v':
                    a('v_add_u32 v65, %d, v66' % (aw * 16384 + (k >> 2) * 4096 + (k & 3) * 256))
                if i >= ld and mk:
                    a('s_waitcnt vmcnt(%d)' % (ld - 1))
                    for donec in sorted(mk):
                        if donec <= i - ld + 1:
                            fire(mk, donec)
                    if not mk and pub:
                        self.wait_flag(FPUB, 1, 16)
                issue(kind, k, aw)
            return base + len(seq)

        vs = [('v', k, aw) for k in range(16) for aw in range(4)]
        gs = [('g', n, cb) for n in range(8) for cb in range(4)]
        ns = [('n', q, 0) for q in range(10)]
        ex = [('p', i, 0) for i in range(5)] + [('t', 0, 0), ('t', 1, 0)]
        n = stream(vs + ex, marks, 0, self.p['ldepth'])
        a('s_cmp_ge_u32 %s, 20' % sI)
        a('s_cbranch_scc1 %s' % l_nowo)
        mk = dict(marks)
        for donec in sorted(mk):
            a('s_waitcnt vmcnt(%d)' % (n - donec))
            fire(mk, donec)
        a('s_waitcnt vmcnt(0)')
        self.stamp(2)
        for q in range(32):
            issue('w', q, 0)
        a('s_waitcnt vmcnt(0)')
        self.set_flag(190, FWO)
        self.stamp(4)
        self.wait_flag(FG1, 4, 16, sleep=1)
        a('s_cmp_lt_u32 %s, 12' % sI)
        a('s_cbranch_scc1 %s' % l_nogu)
        for e in gs:
            issue(*e)
        a.label(l_nogu)
        for e in ns:
            issue(*e)
        a('s_branch %s' % l_fin)
        a.label(l_nowo)
        mk = dict(marks)
        ld2 = self.p['ldepth2']
        for donec in sorted(mk):
            if n - donec >= ld2:
                a('s_waitcnt vmcnt(%d)' % (n - donec))
                fire(mk, donec)
        stream([('d', i, 0) for i in range(8)] + gs + ns, mk, n, ld2, pub=True)
        assert not mk
        a.label(l_fin)
        a('s_waitcnt vmcnt(10)')
        self.set_flag(190, FGU)
        self.stamp(5)
        self.down_unit()

    def down_unit(self):
        a = self.a
        fin = a.newlabel('L_dend')
        a('s_cmp_ge_u32 %s, 27' % sU)
        a('s_cbranch_scc1 %s' % fin)
        DW = 96
        A0, A1 = 40, 44
        Gr, Cr, Sr, T = 16, 28, 36, 48
        self.get_mode(8)
        a('s_mul_i32 s45, %s, %d' % (sU, INP))
        a('s_add_u32 s45, s45, %s' % sLOC)
        a('s_add_u32 s45, s45, %d' % L_IN)
        a('v_and_b32 v8, 7, v0')
        a('v_lshrrev_b32 v9, 3, v0')
        a('v_lshlrev_b32 v156, 7, v8')
        a('v_lshl_add_u32 v156, v9, 4, v156')
        a('v_add_u32 v156, s45, v156')
        a('v_lshlrev_b32 v157, 6, v1')
        a('v_lshl_add_u32 v157, v2, 4, v157')
        a('v_add_u32 v157, s45, v157')
        a('v_bfe_u32 v158, v0, 3, 1')
        a('v_lshlrev_b32 v158, 5, v158')
        a('v_lshl_add_u32 v158, v2, 3, v158')
        a('v_add_u32 v158, v158, v8')
        a('v_lshlrev_b32 v158, 4, v158')
        a('v_add_u32 v158, s45, v158')
        a('v_and_b32 v159, 1, v2')
        a('v_lshl_add_u32 v159, v1, 1, v159')
        a('v_lshrrev_b32 v9, 1, v2')
        a('v_lshl_add_u32 v159, v159, 1, v9')
        a('v_lshlrev_b32 v159, 4, v159')
        a('v_add_u32 v159, s45, v159')
        a('v_add_u32 v159, 2048, v159')
        a('v_lshlrev_b32 v150, 4, v0')
        self.prefill(Cr + 4)
        self.prefill(Gr + 8)
        a('v_mov_b32 v%d, 0' % Sr)
        a('v_mov_b32 v%d, 0' % (Sr + 1))
        a('v_mov_b32 v%d, %s' % (Sr + 2, sTAG))
        a('s_mov_b32 s40, 0x000f000f')
        a('s_mov_b32 s41, 0x000f000f')

        def loads():
            a('global_load_dwordx4 %s, v157, %s offset:2560 sc1' % (v4(Cr), sp(pWS)))
            a('s_mov_b64 exec, s[40:41]')
            a('global_load_dwordx4 %s, v157, %s offset:3584 sc1' % (v4(Cr + 4), sp(pWS)))
            a('s_mov_b64 exec, -1')

        def checks():
            self.check4(Cr, T, True)
            self.check4(Cr + 4, T, False)
        self.poll(loads, checks, T, sleep=2)
        self.stamp(8)
        for q in range(10):
            a('ds_read_b128 %s, v150 offset:%d' % (v4(DW + 4 * q), WD_LDS + 1024 * q))
        for r in range(4):
            a('v_add_f32 v%d, v%d, v%d' % (Cr + r, Cr + r, Cr + 4 + r))
        self.allreduce([Cr, Cr + 1, Cr + 2, Cr + 3], [], steps=('x1', 'x2', 'hm', 'r8'))
        a('s_mov_b32 s40, 0x0f0f0f0f')
        a('s_mov_b32 s41, 0x0f0f0f0f')
        a('s_mov_b32 s46, -1')
        a('s_mov_b32 s47, 0x00000f0f')
        a('s_waitcnt lgkmcnt(0)')

        def loads():
            a('s_mov_b64 exec, s[46:47]')
            a('global_load_dwordx4 %s, v158, %s offset:3840 sc1' % (v4(Sr), sp(pWS)))
            a('s_mov_b64 exec, s[40:41]')
            a('global_load_dwordx4 %s, v156, %s offset:2048 sc1' % (v4(Gr + 8), sp(pWS)))
            a('s_mov_b64 exec, -1')
            for n in range(2):
                a('global_load_dwordx4 %s, v156, %s offset:%d sc1' % (v4(Gr + 4 * n), sp(pWS), 1024 * n))

        def checks():
            self.check1(Sr + 2, T, True)
            for k in range(3):
                self.check4(Gr + 4 * k, T, False)
        self.poll(loads, checks, T)
        self.stamp(12)
        GG = [Gr, Gr + 1, Gr + 2, Gr + 3]
        SS = [Sr, Sr + 1]
        self.allreduce(SS, [], steps=('x1',))
        for r in range(4):
            a('v_add_f32 v%d, v%d, v%d' % (Gr + r, Gr + r, Gr + 4 + r))
        self.allreduce(SS, [], steps=('x2',))
        for r in range(4):
            a('v_add_f32 v%d, v%d, v%d' % (Gr + r, Gr + r, Gr + 8 + r))
        self.allreduce(SS, [], steps=('hm',))
        self.allreduce(GG, [], steps=('x1',))
        self.allreduce(SS, [T, T + 1], steps=('p16',))
        self.allreduce(GG, [], steps=('x2',))
        self.allreduce(SS, [T, T + 1], steps=('p32',))
        self.allreduce(GG, [], steps=('hm',))
        a('v_mul_f32 v%d, 0x%x, v%d' % (Sr, f2u(1.0 / 640), Sr))
        a('v_mul_f32 v%d, 0x%x, v%d' % (Sr + 1, f2u(1.0 / 640), Sr + 1))
        a('v_fma_f32 v%d, -v%d, v%d, v%d' % (Sr + 1, Sr, Sr, Sr + 1))
        a('v_max_f32 v%d, 0, v%d' % (Sr + 1, Sr + 1))
        self.ln_finish(Sr, Sr + 1)
        for r in range(4):
            a('v_fma_f32 v%d, -v%d, v%d, v%d' % (Gr + r, Sr, Cr + r, Gr + r))
        for r in range(4):
            a('v_mul_f32 v%d, v%d, v%d' % (Gr + r, Gr + r, Sr + 1))
        a('v_permlane32_swap_b32 v%d, v%d' % (Gr, Gr + 2))
        a('v_permlane32_swap_b32 v%d, v%d' % (Gr + 1, Gr + 3))
        self.bf16_round4(Gr, T)
        a('v_mul_f32 v%d, 0x%x, v%d' % (T + 4, f2u(-LOG2E), T))
        a('v_mul_f32 v%d, 0x%x, v%d' % (T + 5, f2u(-LOG2E), T + 1))
        a('v_exp_f32 v%d, v%d' % (T + 4, T + 4))
        a('v_exp_f32 v%d, v%d' % (T + 5, T + 5))
        a('v_add_f32 v%d, 1.0, v%d' % (T + 4, T + 4))
        a('v_add_f32 v%d, 1.0, v%d' % (T + 5, T + 5))
        a('v_rcp_f32 v%d, v%d' % (T + 4, T + 4))
        a('v_rcp_f32 v%d, v%d' % (T + 5, T + 5))
        a('v_mul_f32 v%d, v%d, v%d' % (T, T, T + 4))
        a('v_mul_f32 v%d, v%d, v%d' % (T + 1, T + 1, T + 5))
        a('v_cvt_pk_bf16_f32 v%d, v%d, v%d' % (T, T, T + 1))
        a('v_and_b32 v%d, 0xffff0000, v%d' % (T + 1, T))
        a('v_lshlrev_b32 v%d, 16, v%d' % (T, T))
        a('v_mul_f32 v%d, v%d, v%d' % (T, T, T + 2))
        a('v_mul_f32 v%d, v%d, v%d' % (T + 1, T + 1, T + 3))
        a('v_cvt_pk_bf16_f32 v%d, v%d, v%d' % (T, T, T))
        a('v_cvt_pk_bf16_f32 v%d, v%d, v%d' % (T + 1, T + 1, T + 1))
        self.sparse(A0, T)
        self.sparse(A1, T + 1)
        DD = 56
        for m in range(5):
            self.mfma(DD + 4 * m, A0, DW + 4 * m, True)
            self.mfma(DD + 4 * m, A1, DW + 20 + 4 * m, False)
        self.st_local([(159, DD + 4 * m, 1024 * m - 2048) for m in range(5)],
                      pre=lambda m: self.tag4(DD + 4 * m, second=True))
        a.label(fin)
        self.end_wave()
        self.flush_cold()

    def att_prep(self):
        a = self.a
        self.consts(12)
        a('v_lshlrev_b32 v176, 4, v2')
        a('v_and_b32 v177, 1, v2')
        a('v_lshl_add_u32 v177, v1, 1, v177')
        a('v_lshlrev_b32 v177, 4, v177')
        a('v_lshrrev_b32 v12, 5, v0')
        a('v_lshl_add_u32 v177, v12, 3, v177')
        a('s_mul_i32 s44, %s, 528' % sAW)
        a('v_add_u32 v177, s44, v177')
        a('v_mov_b32 v178, s44')
        a('v_bfe_u32 v179, v0, 3, 1')
        a('v_lshlrev_b32 v179, 7, v179')
        a('v_lshl_add_u32 v179, v2, 5, v179')
        a('s_lshl_b32 s44, %s, 9' % sAW)
        a('v_lshlrev_b32 v180, 3, v0')
        a('v_add_u32 v180, s44, v180')
        a('v_and_b32 v181, 1, v1')
        a('v_lshlrev_b32 v181, 8, v181')
        a('v_lshl_add_u32 v181, v2, 4, v181')
        a('v_add_u32 v181, s44, v181')
        a('v_lshrrev_b32 v12, 2, v1')
        a('v_lshl_add_u32 v12, v2, 3, v12')
        a('v_lshlrev_b32 v12, 6, v12')
        a('s_lshl_b32 s44, %s, 13' % sAW)
        a('v_add_u32 v12, s44, v12')
        a('v_and_b32 v13, 3, v1')
        a('v_lshl_add_u32 v182, v13, 3, v12')
        a('v_lshl_add_u32 v184, v2, 1, v1')
        a('v_lshlrev_b32 v184, 4, v184')
        a('s_lshl_b32 s44, %s, 8' % sAW)
        a('v_add_u32 v184, s44, v184')
        a('v_lshlrev_b32 v185, 4, v0')
        a('s_lshl_b32 s44, %s, 13' % sAW)
        a('s_add_u32 s44, s44, %d' % GU_LDS)
        a('v_add_u32 v186, s44, v185')
        a('s_lshl_b32 s44, %s, 10' % sAW)
        a('s_add_u32 s44, s44, %d' % V_LDS)
        a('v_add_u32 v187, s44, v185')

    def attention(self):
        a = self.a
        a.label('L_att')
        a.reset()
        KR, VR, QF, S = 16, 80, 144, 160
        a('s_lshl_b32 s44, %s, 5' % sB)
        a('s_add_u32 s44, s44, %s' % sH)
        a('s_lshl_b32 s44, s44, 20')
        a('s_lshl_b32 s45, %s, 16' % sJ)
        a('s_add_u32 s44, s44, s45')
        a('s_lshl_b32 s45, %s, 14' % sAW)
        a('s_add_u32 s44, s44, s45')
        a('s_add_u32 s44, s44, %d' % (3072 * 256 + 4096))
        a('v_lshlrev_b32 v8, 8, v1')
        a('v_lshl_add_u32 v8, v2, 4, v8')
        a('v_add_u32 v8, s44, v8')
        a('v_add_u32 v10, 8192, v8')
        a('s_lshl_b32 s44, %s, 2' % sAW)
        a('v_mov_b32 v191, s44')
        a('s_waitcnt lgkmcnt(0)')
        a('s_load_dword %s, %s, %d' % (sTAG, sp(pWS), EPOCH))
        a('s_barrier')
        depth, kfree = self.p['depth'], self.p['kfree']
        for idx in range(16):
            bb, m = idx >> 2, idx & 3
            if depth <= idx < kfree:
                a('s_waitcnt vmcnt(%d)' % (depth - 1))
            a('global_load_dwordx4 %s, v%d, %s offset:%d%s' % (
                v4(KR + 4 * idx), 8 if bb < 2 else 10, sp(pK), (bb & 1) * 4096 + m * 64 - 4096, self.nt))
            if idx == depth - 1:
                self.att_prep()
        self.set_flag(191, FV)
        self.stamp(1)
        a('s_waitcnt lgkmcnt(0)')
        self.tagcalc()

        def rd():
            for m in range(4):
                a('ds_read_b128 %s, v176 offset:%d' % (v4(QF + 4 * m), Q_LDS + 64 * m))
        self.wait_flag(FQ, 1, 8, rd, lazy=True)
        self.stamp(2)
        for bb in range(4):
            a('s_waitcnt vmcnt(%d)' % (4 * (3 - bb)))
            for m in range(4):
                self.mfma(S + 4 * bb, KR + 16 * bb + 4 * m, QF + 4 * m, m == 0)
        self.stamp(3)
        sc = f2u(128 ** -0.5)
        for k in range(0, 16, 2):
            a('v_cvt_pk_bf16_f32 v8, v%d, v%d' % (S + k, S + k + 1))
            a('v_and_b32 v9, 0xffff0000, v8')
            a('v_lshlrev_b32 v8, 16, v8')
            a('v_mul_f32 v8, 0x%x, v8' % sc)
            a('v_mul_f32 v9, 0x%x, v9' % sc)
            a('v_cvt_pk_bf16_f32 v8, v8, v9')
            a('v_and_b32 v%d, 0xffff0000, v8' % (S + k + 1))
            a('v_lshlrev_b32 v%d, 16, v8' % (S + k))
        a('v_max3_f32 v8, v%d, v%d, v%d' % (S, S + 1, S + 2))
        a('v_max3_f32 v9, v%d, v%d, v%d' % (S + 3, S + 4, S + 5))
        a('v_max3_f32 v8, v8, v%d, v%d' % (S + 6, S + 7))
        a('v_max3_f32 v9, v9, v%d, v%d' % (S + 8, S + 9))
        a('v_max3_f32 v8, v8, v%d, v%d' % (S + 10, S + 11))
        a('v_max3_f32 v9, v9, v%d, v%d' % (S + 12, S + 13))
        a('v_max3_f32 v8, v8, v%d, v%d' % (S + 14, S + 15))
        a('v_max_f32 v8, v8, v9')
        self.allreduce([8], [9], op='max', steps=('p16', 'p32'))
        a('ds_write_b32 v191, v8 offset:%d' % MX)

        def loads():
            a('ds_read_b128 v[16:19], v190 offset:%d' % MX)

        def checks():
            a('v_or3_b32 v8, v16, v17, v18')
            a('v_or_b32 v8, v8, v19')
            a('v_and_b32 v8, 1, v8')
        self.poll(loads, checks, 8, wait='lgkmcnt(0)')
        a('v_max3_f32 v8, v16, v17, v18')
        a('v_max_f32 v8, v8, v19')
        for k in range(16):
            a('v_sub_f32 v%d, v%d, v8' % (S + k, S + k))
        for k in range(16):
            a('v_mul_f32 v%d, 0x%x, v%d' % (S + k, f2u(LOG2E), S + k))
        for k in range(16):
            a('v_exp_f32 v%d, v%d' % (S + k, S + k))
        a('v_add_f32 v9, v%d, v%d' % (S, S + 1))
        a('v_add_f32 v10, v%d, v%d' % (S + 2, S + 3))
        for k in range(4, 16, 2):
            a('v_add_f32 v9, v9, v%d' % (S + k))
            a('v_add_f32 v10, v10, v%d' % (S + k + 1))
        a('v_add_f32 v9, v9, v10')
        self.allreduce([9], [10], steps=('p16', 'p32'))
        a('v_mul_f32 v8, 0x3e800000, v8')
        a('v_mov_b32 v10, 0')
        a('v_mov_b32 v11, 0')
        a('s_mov_b64 exec, 1')
        a('ds_write_b128 v178, v[8:11] offset:%d' % (OW_LDS + 512))
        a('s_mov_b64 exec, -1')
        O = 144
        for k in range(16):
            a('v_cvt_pk_bf16_f32 v12, v%d, v%d' % (S + k, S + k))
            a('v_and_b32 v12, 0xffff0000, v12')
            a('v_sub_f32 v12, v%d, v12' % (S + k))
            a('v_cndmask_b32 v12, v%d, v12, %s' % (S + k, HIROWS))
            a('v_cvt_pk_bf16_f32 v12, v12, v12')
            self.sparse(KR + 4 * k, 12)
        self.stamp(4)
        for t, (k0, k1) in enumerate(VSTAGES):
            def rd():
                for k in range(k0, k1):
                    a('ds_read_b128 %s, v187 offset:%d' % (v4(VR + 4 * k), 4096 * k))
            self.wait_flag(FVSA[t], 1, 8, rd, lazy=(t < 3))
            for k in range(k0, k1):
                self.mfma(O, KR + 4 * k, VR + 4 * k, k == 0)
            if t == 1:
                self.get_mode(8)
                a('s_mul_i32 s44, %s, 640' % sAW)
                a('s_add_u32 s44, s44, %s' % sLOC)
                a('s_add_u32 s44, s44, 3840')
                a('v_lshrrev_b32 v8, 5, v0')
                a('v_mul_u32_u24 v8, 10240, v8')
                a('v_add_u32 v8, s44, v8')
                a('v_and_b32 v9, 31, v0')
                a('v_lshl_add_u32 v12, v9, 4, v8')
                a('v_and_b32 v9, 3, v0')
                a('v_mul_u32_u24 v9, 2560, v9')
                a('v_add_u32 v13, v9, v8')
        self.stamp(5)
        a('v_permlane32_swap_b32 v%d, v%d' % (O, O + 2))
        a('v_permlane32_swap_b32 v%d, v%d' % (O + 1, O + 3))
        a('v_add_f32 v%d, v%d, v%d' % (O, O, O + 2))
        a('v_add_f32 v%d, v%d, v%d' % (O + 1, O + 1, O + 3))
        a('ds_write_b64 v177, %s offset:%d' % (v2(O), OW_LDS))
        self.set_flag(191, FO)
        l_now = a.newlabel('L_anow')
        l_end = a.newlabel('L_aend')
        a('s_cmp_ge_u32 %s, 20' % sI)
        a('s_cbranch_scc1 %s' % l_now)
        G = 104
        OF, WF0, WF1 = 48, 64, 80

        def loads():
            a('global_load_dwordx4 %s, v13, %s offset:%d sc1' % (v4(G + 16), sp(pWS), 512 - 3840))
            for j in range(4):
                a('global_load_dwordx4 %s, v12, %s offset:%d sc1' % (v4(G + 4 * j), sp(pWS), j * 2560 - 3840))

        def rdw():
            for ks in range(4):
                for hf in range(2):
                    off = WO_LDS + (32 * ks + 4 * hf) * 64
                    a('ds_read_b64_tr_b16 %s, v182 offset:%d' % (v2(WF0 + 4 * ks + 2 * hf), off))
                    a('ds_read_b64_tr_b16 %s, v182 offset:%d' % (v2(WF1 + 4 * ks + 2 * hf), off + 32))

        def checks():
            for k in range(5):
                self.check4(G + 4 * k, 40, k == 0)
        self.poll(loads, checks, 40)
        self.set_flag(191, FG1)
        a('ds_read_b32 v42, v190 offset:%d' % FWO)
        rdw()
        self.stamp(6)
        a('v_and_b32 v40, v%d, v7' % (G + 16))
        a('v_max_f32_dpp v41, v40, v40 quad_perm:[1,0,3,2] %s' % DPPM)
        self.allreduce([41], [], op='max', steps=('x2',))
        a('v_sub_f32 v40, v40, v41')
        a('v_mul_f32 v40, 0x%x, v40' % f2u(LOG2E))
        a('v_exp_f32 v40, v40')
        a('v_mul_f32 v41, v40, v%d' % (G + 17))
        self.allreduce([41], [], steps=('x1', 'x2'))
        a('v_rcp_f32 v41, v41')
        a('v_mul_f32 v40, v40, v41')
        for r in range(4):
            a('v_mul_f32_dpp v%d, v40, v%d quad_perm:[0,0,0,0] %s' % (8 + r, G + r, DPPM))
        for j in range(1, 4):
            for r in range(4):
                a('v_fmac_f32_dpp v%d, v40, v%d quad_perm:[%d,%d,%d,%d] %s' % (8 + r, G + 4 * j + r, j, j, j, j, DPPM))
        a('v_cvt_pk_bf16_f32 v8, v8, v9')
        a('v_cvt_pk_bf16_f32 v9, v10, v11')
        a('ds_write_b64 v180, v[8:9] offset:%d' % O2_LDS)
        for ks in range(4):
            a('ds_read_b128 %s, v181 offset:%d' % (v4(OF + 4 * ks), O2_LDS + 64 * ks))
        a('s_mov_b32 s46, 0x00030003')
        a('s_mov_b32 s47, 0x00030003')
        a('s_waitcnt lgkmcnt(0)')
        l_have = a.newlabel('L_havew')
        l_late = a.newlabel('L_latew')
        a('v_cmp_ne_u32 vcc, 0, v42')
        a('s_cbranch_vccnz %s' % l_late)
        a.label(l_have)

        def cold():
            a.label(l_late)
            self.wait_flag(FWO, 1, 10, rdw)
            a('s_branch %s' % l_have)
        self.cold.append(cold)
        self.stamp(7)
        D0, D1 = 96, 100
        for ks in range(4):
            self.mfma(D0, WF0 + 4 * ks, OF + 4 * ks, ks == 0)
            self.mfma(D1, WF1 + 4 * ks, OF + 4 * ks, ks == 0)
        a('s_mov_b64 exec, s[46:47]')
        a('ds_write_b128 v184, %s offset:%d' % (v4(D0), YW_LDS))
        a('ds_write_b128 v184, %s offset:%d' % (v4(D1), YW_LDS + 128))
        self.set_flag(191, FY)
        a('s_mov_b64 exec, -1')
        self.stamp(8)
        a.label(l_now)
        a('s_cmp_lt_u32 %s, 12' % sI)
        a('s_cbranch_scc1 %s' % l_end)
        a('s_and_b32 s44, %s, 1' % sAW)
        a('s_lshl_b32 s44, s44, 4')
        a('v_add_u32 v9, s44, v1')
        a('v_cmp_gt_u32 s[40:41], 27, v9')
        a('v_min_u32 v9, 26, v9')
        a('s_and_b32 s44, %s, 2' % sAW)
        a('v_mov_b32 v8, s44')
        a('v_mul_u32_u24 v9, %d, v9' % INP)
        a('s_add_u32 s44, %s, %d' % (sLOC, L_IN))
        a('v_add_u32 v9, s44, v9')
        a('v_and_b32 v10, 1, v2')
        a('v_add_u32 v8, v8, v10')
        a('s_lshl_b32 s44, %s, 6' % sTP)
        a('v_lshl_add_u32 v13, v8, 4, v9')
        a('v_add_u32 v13, s44, v13')
        a('v_lshrrev_b32 v10, 1, v2')
        a('v_lshl_add_u32 v8, v8, 1, v10')
        a('v_lshl_add_u32 v12, v8, 4, v9')
        a('s_lshl_b32 s44, %s, 7' % sTP)
        a('v_add_u32 v12, s44, v12')
        GU, A0, A1 = 16, 48, 52
        a('v_mov_b32 v56, 0x3f803f80')
        self.sparse(A0, 56)

        def rd():
            for n in range(8):
                a('ds_read_b128 %s, v186 offset:%d' % (v4(GU + 4 * n), 1024 * n))
        self.wait_flag(FGU, 1, 8, rd, lazy=True)
        D = 60
        for n in range(8):
            self.mfma(D, A0, GU + 4 * n, n == 0)
        a('s_mov_b32 s46, s40')
        a('s_mov_b32 s47, 0')
        self.tag4(D)
        a('s_mov_b64 exec, s[46:47]')
        self.st_local([(13, D, 2560)])
        a('s_mov_b64 exec, -1')
        self.stamp(9)
        HD = 64

        def rd():
            a('ds_read_b128 %s, v179 offset:%d' % (v4(HD), H_LDS))
            a('ds_read_b128 %s, v179 offset:%d' % (v4(HD + 4), H_LDS + 16))
        self.wait_flag(FH, 1, 8, rd)
        self.stamp(10)
        D = 72
        self.sparse(A0, HD)
        for n in range(8):
            if n < 7:
                self.sparse(A1 if n % 2 == 0 else A0, HD + n + 1)
            self.mfma(D, A0 if n % 2 == 0 else A1, GU + 4 * n, n == 0)
        a('s_mov_b64 exec, s[40:41]')
        self.tag4(D)
        self.st_local([(12, D, 0)])
        a('s_mov_b64 exec, -1')
        self.stamp(11)
        a('s_cmp_lg_u32 %s, 0' % sAW)
        a('s_cbranch_scc1 %s' % l_end)
        a('s_lshl_b32 s44, %s, 8' % sTP)
        a('s_add_u32 s44, s44, %s' % sLOC)
        a('s_add_u32 s44, s44, %d' % L_IN)
        a('v_lshlrev_b32 v8, 4, v1')
        a('v_mul_u32_u24 v9, %d, v2' % INP)
        a('v_add3_u32 v80, v8, v9, s44')
        for n in range(1, 7):
            a('v_add_u32 v%d, %d, v80' % (80 + n, 4 * INP * n))
        a('s_lshl_b32 s44, %s, 11' % sTP)
        a('s_add_u32 s44, s44, %d' % FP)
        a('v_add_u32 v88, s44, v185')
        a('s_lshl_b32 s45, %s, 8' % sX)
        a('s_add_u32 s44, s44, s45')
        a('v_lshl_add_u32 v89, v2, 2, v8')
        a('v_add_u32 v89, s44, v89')
        self.slice_off(90, 8)
        self.h_addr(91, 8)
        a('ds_read_b32 v92, v91 offset:%d' % H_LDS)
        self.rowtag(93)
        G = 16
        self.prefill(G + 24, second=True)
        a('s_mov_b32 s46, -1')
        a('s_mov_b32 s47, 0xffff')
        a('s_waitcnt lgkmcnt(0)')
        a('v_and_b32 v92, 0xffff0000, v92')

        def loads():
            for n in range(6):
                a('global_load_dwordx4 %s, v%d, %s sc1' % (v4(G + 4 * n), 80 + n, sp(pWS)))
            a('s_mov_b64 exec, s[46:47]')
            a('global_load_dwordx4 %s, v86, %s sc1' % (v4(G + 24), sp(pWS)))
            a('s_mov_b64 exec, -1')

        def checks():
            for k in range(7):
                self.check4(G + 4 * k, 44, k == 0, second=True)
        self.poll(loads, checks, 44)
        self.stamp(12)
        for r in range(4):
            a('v_add_f32 v%d, v%d, v%d' % (G + r, G + r, G + 4 + r))
            a('v_add_f32 v%d, v%d, v%d' % (G + 8 + r, G + 8 + r, G + 12 + r))
            a('v_add_f32 v%d, v%d, v%d' % (G + 16 + r, G + 16 + r, G + 20 + r))
        for r in range(4):
            a('v_add_f32 v%d, v%d, v%d' % (G + r, G + r, G + 8 + r))
            a('v_add_f32 v%d, v%d, v%d' % (G + 16 + r, G + 16 + r, G + 24 + r))
        for r in range(4):
            a('v_add_f32 v%d, v%d, v%d' % (48 + r, G + r, G + 16 + r))
        self.rs4(48)
        a('v_and_or_b32 v48, v48, v7, v93')
        a('global_store_dword v89, v48, %s sc1' % sp(pWS))
        self.stamp(13)
        a('s_and_b32 s44, %s, 7' % sTP)
        a('s_cmp_lg_u32 s44, %s' % sX)
        a('s_cbranch_scc1 %s' % l_end)
        self.gather8(88, 16, 14)
        a('v_cvt_pk_bf16_f32 v16, v16, v16')
        a('v_and_b32 v16, 0xffff0000, v16')
        a('v_add_f32 v16, v16, v92')
        a('v_cvt_pk_bf16_f32 v16, v16, v16')
        a('global_store_short v90, v16, %s' % sp(pOUT))
        a('s_cmp_lg_u32 s2, 96')
        a('s_cbranch_scc1 %s' % l_end)
        a('s_mov_b64 exec, 1')
        a('v_mov_b32 v60, %s' % sTAG)
        a('global_store_dword v190, v60, %s offset:%d sc1' % (sp(pWS), EPOCH))
        a.label(l_end)
        self.end_wave()
        self.flush_cold()

    def build(self):
        a = self.a
        hdr = open('cdna_kernels/%s.s.ref' % NAME).read().split('\n')
        top = []
        for ln in hdr:
            if ln.startswith('; @launch'):
                top.append('; @launch grid=(256,1,1) block=(%d,1,1) lds=%d' % (64 * NWAVES, LDS_BYTES))
                break
            top.append(ln)
        out = '\n'.join(top) + '\n'
        out += '.amdgcn_target "amdgcn-amd-amdhsa--gfx950"\n.text\n.globl %s_kernel\n.p2align 8\n' % NAME
        out += '.type %s_kernel,@function\n%s_kernel:\n' % (NAME, NAME)
        self.prologue()
        self.comm()
        self.attention()
        self.loader()
        a.label('L_exit')
        a('s_endpgm')
        out += a.text()
        out += '''.section .rodata,"a"
.p2align 6
.amdhsa_kernel %s_kernel
  .amdhsa_next_free_vgpr 208
  .amdhsa_next_free_sgpr 102
  .amdhsa_accum_offset 208
  .amdhsa_group_segment_fixed_size 0
  .amdhsa_kernarg_size 96
  .amdhsa_user_sgpr_count 2
  .amdhsa_user_sgpr_kernarg_segment_ptr 1
  .amdhsa_system_sgpr_workgroup_id_x 1
  .amdhsa_float_denorm_mode_32 3
.end_amdhsa_kernel
''' % NAME
        return out


if __name__ == '__main__':
    open(sys.argv[1], 'w').write(Gen(opts=sys.argv[2:]).build())
```

```python
import struct
import sys
from asmlib import Asm

NAME = 'sequential_preLN__sliding_block_cached__swiglu_ffn__decode'


def f2u(x):
    return struct.unpack('<I', struct.pack('<f', x))[0]


EPOCH = 0
XCB = 0x2000
QA = 0x10000
QB = 0x90000
YP = 0x110000
FP = 0x120000
LOCB = 0x200000
L_OP = 0
L_IN = 21504
INP = 5120
LOCP = 163840
RB = 0x200000
TS = 0x600000

SY = 0
FQ, FV, MX, FO, FY, FH, FWO, FGU, MODE, FG1, FPUB = (SY + o for o in (0, 16, 32, 48, 64, 80, 84, 88, 96, 112, 104))
FVSA = [SY + 4, SY + 8, SY + 12, SY + 100]
Q_LDS = 128
OW_LDS = 384
O2_LDS = 2560
YW_LDS = 4608
H_LDS = 5632
WD_LDS = 6144
WO_LDS = 16384
GU_LDS = 49152
V_LDS = 81920
K_LDS = WO_LDS
LDS_BYTES = V_LDS + 65536
VSTAGES = [(0, 6), (6, 12), (12, 15), (15, 16)]

sWID, sX, sI, sH, sJ8, sB, sJ, sAW = 's3', 's4', 's5', 's6', 's7', 's8', 's9', 's10'
sTAG = 's11'
sT = ['s12', 's13', 's14', 's15']
pX, pK, pV, pWQ, pWO, pWG, pWU = 16, 18, 20, 22, 24, 28, 30
pWD, pOUT, pDBG, pWS = 32, 34, 36, 38
sLOC = 's42'
sMODE = 's43'
sSPIN = 's52'
sSEL = 's53'
sXCC = 's54'
sTAG2 = 's55'
sT2 = ['s96', 's97', 's98', 's99']
sTP = 's100'
sU = 's101'
HIROWS = 's[58:59]'
SPIN_MAX = 100000
NWAVES = 6
LOG2E = 1.4426950408889634
DPPM = 'row_mask:0xf bank_mask:0xf'


def sp(n):
    return 's[%d:%d]' % (n, n + 1)


def v4(n):
    return 'v[%d:%d]' % (n, n + 3)


def v2(n):
    return 'v[%d:%d]' % (n, n + 1)


class Gen:
    def __init__(self, opts=()):
        self.a = Asm()
        self.opts = set(opts)
        self.stamps = 'stamps' in self.opts
        self.nt = ' nt'
        self.p = dict(depth=4, kfree=13, ldepth=32, ldepth2=12, v1n=32, v1d=16)
        for o in self.opts:
            if '=' in o:
                k, v = o.split('=')
                assert k in self.p
                self.p[k] = int(v)
        self.cold = []

    def stamp(self, k):
        if self.stamps:
            self.a('s_memrealtime %s' % sp(60 + 2 * k))

    def end_wave(self):
        a = self.a
        if self.stamps:
            a('s_mov_b64 exec, -1')
            self.stamp(15)
            a('s_waitcnt lgkmcnt(0)')
            a('v_mov_b32 v200, 0')
            for k in range(16):
                a('v_writelane_b32 v200, s%d, %d' % (60 + 2 * k, k))
            a('s_mul_i32 s44, s2, %d' % NWAVES)
            a('s_add_u32 s44, s44, %s' % sWID)
            a('s_lshl_b32 s44, s44, 6')
            a('s_add_u32 s44, s44, %d' % TS)
            a('v_lshlrev_b32 v201, 2, v0')
            a('v_add_u32 v201, s44, v201')
            a('s_mov_b64 exec, 0xffff')
            a('global_store_dword v201, v200, %s' % sp(pWS))
        a('s_endpgm')

    def tag4(self, base, second=False):
        t = sT2 if second else sT
        for k in range(4):
            self.a('v_and_or_b32 v%d, v%d, v7, %s' % (base + k, base + k, t[k]))

    def prefill(self, base, second=False):
        t = sT2 if second else sT
        for k in range(4):
            self.a('v_mov_b32 v%d, %s' % (base + k, t[k]))

    def check4(self, base, t, first, second=False):
        a = self.a
        a('v_perm_b32 v%d, v%d, v%d, %s' % (t + 1, base + 1, base, sSEL))
        a('v_perm_b32 v%d, v%d, v%d, %s' % (t + 2, base + 3, base + 2, sSEL))
        a('v_lshl_or_b32 v%d, v%d, 16, v%d' % (t + 1, t + 2, t + 1))
        self.check1(t + 1, t, first, second)

    def check1(self, reg, t, first, second=False):
        self.a('v_sad_u8 v%d, v%d, %s, %s' % (t, reg, sTAG2 if second else sTAG, '0' if first else 'v%d' % t))

    def poll(self, loads, checks, acc, wait='vmcnt(0)', sleep=0):
        a = self.a
        top = a.newlabel('L_poll')
        retry = a.newlabel('L_retry')
        done = a.newlabel('L_pdone')
        a('s_mov_b32 %s, %d' % (sSPIN, SPIN_MAX if wait.startswith('vm') else SPIN_MAX * 8))
        a.label(top)
        loads()
        a('s_waitcnt %s' % wait)
        checks()
        a('v_cmp_ne_u32 vcc, 0, v%d' % acc)
        a('s_cbranch_vccnz %s' % retry)
        a.label(done)

        def cold():
            a.label(retry)
            if sleep:
                a('s_sleep %d' % sleep)
            a('s_sub_u32 %s, %s, 1' % (sSPIN, sSPIN))
            a('s_cbranch_scc0 %s' % top)
            a('s_branch %s' % done)
        self.cold.append(cold)

    def wait_flag(self, addr, n, t, extra=None, sleep=0, lazy=False):
        a = self.a

        def loads():
            if n == 1:
                a('ds_read_b32 v%d, v190 offset:%d' % (t, addr))
            else:
                a('ds_read_b128 %s, v190 offset:%d' % (v4(t), addr))
            if extra and not lazy:
                extra()

        def checks():
            if n == 4:
                a('v_or3_b32 v%d, v%d, v%d, v%d' % (t, t, t + 1, t + 2))
                a('v_or_b32 v%d, v%d, v%d' % (t, t, t + 3))
        self.poll(loads, checks, t, wait='lgkmcnt(0)', sleep=max(sleep, 1) if lazy else sleep)
        if extra and lazy:
            extra()
            a('s_waitcnt lgkmcnt(0)')

    def wait_scores(self, t):
        a = self.a

        def loads():
            a('ds_read_b128 %s, v190 offset:%d' % (v4(t), MX))

        def checks():
            a('v_or3_b32 v%d, v%d, v%d, v%d' % (t, t, t + 1, t + 2))
            a('v_or_b32 v%d, v%d, v%d' % (t, t, t + 3))
            a('v_and_b32 v%d, 1, v%d' % (t, t))
        self.poll(loads, checks, t, wait='lgkmcnt(0)', sleep=1)

    def set_flag(self, vaddr, off):
        self.a('ds_write_b32 v%d, v190 offset:%d' % (vaddr, off))

    def st_local(self, stores, pre=None):
        a = self.a
        lg = a.newlabel('L_sg')
        ld = a.newlabel('L_sd')
        a('s_cmp_lg_u32 %s, 0' % sMODE)
        a('s_cbranch_scc1 %s' % lg)
        for k, (va, d, off) in enumerate(stores):
            if pre:
                pre(k)
            a('global_store_dwordx4 v%d, %s, %s offset:%d' % (va, v4(d), sp(pWS), off))
        a.label(ld)

        def cold():
            a.label(lg)
            a('s_nop 7')
            for k, (va, d, off) in enumerate(stores):
                if pre:
                    pre(k)
                a('global_store_dwordx4 v%d, %s, %s offset:%d sc1' % (va, v4(d), sp(pWS), off))
            a('s_nop 1')
            a('s_branch %s' % ld)
        self.cold.append(cold)

    def flush_cold(self):
        while self.cold:
            c = self.cold.pop(0)
            self.a.reset()
            c()

    def get_mode(self, t):
        a = self.a

        def loads():
            a('ds_read_b32 v%d, v190 offset:%d' % (t, MODE))

        def checks():
            a('v_lshrrev_b32 v%d, 1, v%d' % (t + 1, t))
        self.poll(loads, checks, t + 1, wait='lgkmcnt(0)', sleep=1)
        a('v_readfirstlane_b32 s44, v%d' % t)
        a('s_cmp_eq_u32 s44, 0')
        a('s_cselect_b32 %s, 0, %d' % (sMODE, RB))
        a('s_mul_i32 %s, %s, %d' % (sLOC, sX, LOCP))
        a('s_add_u32 %s, %s, %d' % (sLOC, sLOC, LOCB))
        a('s_add_u32 %s, %s, %s' % (sLOC, sLOC, sMODE))

    def allreduce(self, rs, tmps, op='add', steps=('x1', 'x2', 'r4', 'r8', 'p16')):
        a = self.a
        dpp = {'x1': 'quad_perm:[1,0,3,2]', 'x2': 'quad_perm:[2,3,0,1]', 'r4': 'row_ror:4',
               'r8': 'row_ror:8', 'hm': 'row_half_mirror'}
        for st in steps:
            if st in dpp:
                for r in rs:
                    a('v_%s_f32_dpp v%d, v%d, v%d %s %s' % (op, r, r, r, dpp[st], DPPM))
            else:
                ins = 'v_permlane16_swap_b32' if st == 'p16' else 'v_permlane32_swap_b32'
                for r, t in zip(rs, tmps):
                    a('v_mov_b32 v%d, v%d' % (t, r))
                for r, t in zip(rs, tmps):
                    a('%s v%d, v%d' % (ins, r, t))
                for r, t in zip(rs, tmps):
                    a('v_%s_f32 v%d, v%d, v%d' % (op, r, r, t))

    def rs4(self, b):
        a = self.a
        a('v_permlane32_swap_b32 v%d, v%d' % (b, b + 2))
        a('v_permlane32_swap_b32 v%d, v%d' % (b + 1, b + 3))
        a('v_add_f32 v%d, v%d, v%d' % (b, b, b + 2))
        a('v_add_f32 v%d, v%d, v%d' % (b + 1, b + 1, b + 3))
        a('v_permlane16_swap_b32 v%d, v%d' % (b, b + 1))
        a('v_add_f32 v%d, v%d, v%d' % (b, b, b + 1))

    def expand4(self, b):
        a = self.a
        a('v_mov_b32 v%d, v%d' % (b + 1, b))
        a('v_permlane16_swap_b32 v%d, v%d' % (b, b + 1))
        a('v_mov_b32 v%d, v%d' % (b + 2, b))
        a('v_mov_b32 v%d, v%d' % (b + 3, b + 1))
        a('v_permlane32_swap_b32 v%d, v%d' % (b, b + 2))
        a('v_permlane32_swap_b32 v%d, v%d' % (b + 1, b + 3))

    def rowtag(self, dst):
        a = self.a
        a('v_lshlrev_b32 v%d, 3, v2' % dst)
        a('v_lshrrev_b32 v%d, v%d, %s' % (dst, dst, sTAG))
        a('v_and_b32 v%d, 0xff, v%d' % (dst, dst))

    def sparse(self, dst, src):
        for k in range(4):
            self.a('v_and_b32 v%d, v%d, v%d' % (dst + k, src, 3 + k))

    def mfma(self, d, x, y, first):
        self.a('v_mfma_f32_16x16x32_bf16 %s, %s, %s, %s' % (v4(d), v4(x), v4(y), '0' if first else v4(d)))

    def bf16_round4(self, src, dst):
        a = self.a
        a('v_cvt_pk_bf16_f32 v%d, v%d, v%d' % (dst, src, src + 1))
        a('v_cvt_pk_bf16_f32 v%d, v%d, v%d' % (dst + 2, src + 2, src + 3))
        a('v_and_b32 v%d, 0xffff0000, v%d' % (dst + 1, dst))
        a('v_lshlrev_b32 v%d, 16, v%d' % (dst, dst))
        a('v_and_b32 v%d, 0xffff0000, v%d' % (dst + 3, dst + 2))
        a('v_lshlrev_b32 v%d, 16, v%d' % (dst + 2, dst + 2))

    def consts(self, t=8):
        a = self.a
        a('v_and_b32 v%d, 7, v0' % t)
        a('v_and_b32 v%d, 1, v%d' % (t + 1, t))
        a('v_cmp_eq_u32 vcc, 1, v%d' % (t + 1))
        a('v_mov_b32 v%d, 0xffff' % (t + 1))
        a('v_mov_b32 v%d, 0xffff0000' % (t + 2))
        a('v_cndmask_b32 v%d, v%d, v%d, vcc' % (t + 1, t + 1, t + 2))
        a('v_lshrrev_b32 v%d, 1, v%d' % (t, t))
        for k in range(4):
            a('v_cmp_eq_u32 vcc, %d, v%d' % (k, t))
            a('v_cndmask_b32 v%d, 0, v%d, vcc' % (3 + k, t + 1))
        a('v_mov_b32 v7, 0xffffff00')
        a('s_mov_b32 %s, 0x0c0c0400' % sSEL)
        a('s_mov_b32 s58, 0xff00ff00')
        a('s_mov_b32 s59, 0xff00ff00')

    def tagcalc(self):
        a = self.a
        a('s_mul_i32 %s, %s, 0x9e3779b1' % (sTAG, sTAG))
        a('s_add_u32 %s, %s, 0x7f4a7c15' % (sTAG, sTAG))
        a('s_xor_b32 %s, %s, 0x5a5a5a5a' % (sTAG2, sTAG))
        for tg, t in ((sTAG, sT), (sTAG2, sT2)):
            a('s_and_b32 %s, %s, 0xff' % (t[0], tg))
            a('s_bfe_u32 %s, %s, 0x80008' % (t[1], tg))
            a('s_bfe_u32 %s, %s, 0x80010' % (t[2], tg))
            a('s_lshr_b32 %s, %s, 24' % (t[3], tg))

    def roles(self):
        a = self.a
        a('s_sub_u32 %s, %s, 12' % (sTP, sI))
        a('s_max_i32 %s, %s, 0' % (sTP, sTP))
        a('s_add_u32 %s, %s, 12' % (sU, sI))
        a('s_cmp_lt_u32 %s, 12' % sI)
        a('s_cselect_b32 %s, %s, %s' % (sU, sI, sU))
        a('s_sub_u32 s44, %s, 8' % sI)
        a('s_cmp_ge_u32 %s, 20' % sI)
        a('s_cselect_b32 %s, s44, %s' % (sU, sU))

    def ln_finish(self, rm, rv):
        a = self.a
        a('v_cvt_pk_bf16_f32 v%d, v%d, v%d' % (rv, rm, rv))
        a('v_lshlrev_b32 v%d, 16, v%d' % (rm, rv))
        a('v_and_b32 v%d, 0xffff0000, v%d' % (rv, rv))
        a('v_add_f32 v%d, 0x%x, v%d' % (rv, f2u(1e-5), rv))
        a('v_cvt_pk_bf16_f32 v%d, v%d, v%d' % (rv, rv, rv))
        a('v_and_b32 v%d, 0xffff0000, v%d' % (rv, rv))
        a('v_sqrt_f32 v%d, v%d' % (rv, rv))
        a('v_cvt_pk_bf16_f32 v%d, v%d, v%d' % (rv, rv, rv))
        a('v_and_b32 v%d, 0xffff0000, v%d' % (rv, rv))
        a('v_rcp_f32 v%d, v%d' % (rv, rv))

    def gather8(self, vaddr, G, stampk):
        a = self.a

        def loads():
            a('global_load_dwordx4 %s, v%d, %s sc1' % (v4(G), vaddr, sp(pWS)))
            a('global_load_dwordx4 %s, v%d, %s offset:1024 sc1' % (v4(G + 4), vaddr, sp(pWS)))

        def checks():
            self.check4(G, G + 8, True)
            self.check4(G + 4, G + 8, False)
        self.poll(loads, checks, G + 8)
        self.stamp(stampk)
        for r in range(4):
            a('v_add_f32 v%d, v%d, v%d' % (G + r, G + r, G + 4 + r))
        self.rs4(G)

    def slice_off(self, dst, t):
        a = self.a
        a('v_and_b32 v%d, 1, v1' % t)
        a('v_mul_u32_u24 v%d, 1280, v%d' % (t, t))
        a('v_lshrrev_b32 v%d, 1, v1' % dst)
        a('v_lshl_add_u32 v%d, v%d, 3, v%d' % (dst, dst, t))
        a('v_lshl_add_u32 v%d, v2, 1, v%d' % (dst, dst))
        a('s_lshl_b32 s44, %s, 6' % sTP)
        a('v_add_u32 v%d, s44, v%d' % (dst, dst))

    def h_addr(self, dst, t):
        a = self.a
        a('v_and_b32 v%d, 1, v1' % t)
        a('v_lshlrev_b32 v%d, 7, v%d' % (t, t))
        a('v_lshrrev_b32 v%d, 1, v1' % dst)
        a('v_lshl_add_u32 v%d, v%d, 2, v%d' % (dst, dst, t))
        a('v_lshl_add_u32 v%d, v2, 5, v%d' % (dst, dst))

    def prologue(self):
        a = self.a
        a('s_cmp_ge_u32 s2, 256')
        a('s_cbranch_scc1 L_exit')
        a('s_load_dwordx16 s[16:31], s[0:1], 0')
        a('s_load_dwordx8 s[32:39], s[0:1], 64')
        a('s_getpc_b64 s[56:57]')
        a.label('L_pc')
        a('s_lshr_b32 %s, s2, 3' % sI)
        a('s_lshl_b32 s44, %s, 10' % sI)
        a('v_lshl_add_u32 v8, v0, 6, s44')
        a('v_min_u32 v8, L_exit-L_pc, v8')
        a('v_cmp_gt_u32 vcc, 16, v0')
        a('s_and_saveexec_b64 s[44:45], vcc')
        a('s_cbranch_execz L_npf')
        a('global_load_dword v199, v8, s[56:57]')
        a.label('L_npf')
        a('s_mov_b64 exec, -1')
        if self.stamps:
            for k in range(1, 16):
                a('s_mov_b64 %s, 0' % sp(60 + 2 * k))
        self.stamp(0)
        a('v_lshrrev_b32 v1, 6, v0')
        a('v_and_b32 v0, 63, v0')
        a('v_readfirstlane_b32 %s, v1' % sWID)
        a('s_and_b32 %s, s2, 7' % sX)
        a('s_and_b32 %s, %s, 3' % (sH, sI))
        a('s_lshl_b32 s44, %s, 2' % sX)
        a('s_add_u32 %s, %s, s44' % (sH, sH))
        a('s_lshr_b32 %s, %s, 2' % (sJ8, sI))
        a('s_lshr_b32 %s, %s, 2' % (sB, sJ8))
        a('s_and_b32 %s, %s, 3' % (sJ, sJ8))
        a('v_and_b32 v1, 15, v0')
        a('v_lshrrev_b32 v2, 4, v0')
        a('v_mov_b32 v190, 0')
        a('s_sub_u32 %s, %s, 1' % (sAW, sWID))
        a('s_cmp_eq_u32 %s, 5' % sWID)
        a('s_cbranch_scc1 L_load')
        a('s_cmp_eq_u32 %s, 0' % sWID)
        a('s_cbranch_scc1 L_comm')

    def comm(self):
        a = self.a
        WQ, XR, XN, XS, F = 16, 96, 106, 14, 116
        a.label('L_comm')
        a.reset()
        self.roles()
        a('v_bfe_u32 v8, v0, 3, 1')
        a('v_mul_u32_u24 v8, 1280, v8')
        a('v_and_b32 v9, 7, v0')
        a('v_lshl_add_u32 v9, v2, 3, v9')
        a('v_mul_u32_u24 v9, 40, v9')
        a('v_add_u32 v10, v8, v9')
        a('s_mul_i32 s44, %s, 160' % sJ8)
        a('v_mul_u32_u24 v9, 40, v2')
        a('v_add3_u32 v11, v8, v9, s44')
        a('s_mul_i32 s44, %s, %d' % (sJ8, 80 * 8192))
        a('s_lshl_b32 s45, %s, 8' % sH)
        a('s_add_u32 s44, s44, s45')
        a('v_mul_u32_u24 v12, %d, v2' % (20 * 8192))
        a('v_lshl_add_u32 v12, v1, 4, v12')
        a('v_add_u32 v12, s44, v12')
        self.slice_off(13, 8)
        a('s_waitcnt lgkmcnt(0)')
        a('s_load_dword %s, %s, %d' % (sTAG, sp(pWS), EPOCH))
        for base, va in ((XR, 10), (XN, 11)):
            a('global_load_dwordx4 %s, v%d, %s' % (v4(base), va, sp(pX)))
            a('global_load_dwordx4 %s, v%d, %s offset:16' % (v4(base + 4), va, sp(pX)))
            a('global_load_dwordx2 %s, v%d, %s offset:32' % (v2(base + 8), va, sp(pX)))
        a('global_load_ushort v%d, v13, %s' % (XS, sp(pX)))
        for n in range(20):
            a('global_load_dwordx4 %s, v12, %s%s' % (v4(WQ + 4 * n), sp(pWQ), self.nt))
            if n < 19:
                a('v_add_u32 v12, 8192, v12')
        a('s_barrier')
        a('s_setprio 3')
        self.stamp(1)
        self.consts()
        a('s_getreg_b32 %s, hwreg(HW_REG_XCC_ID)' % sXCC)
        a('s_and_b32 %s, %s, 0xf' % (sXCC, sXCC))
        a('v_and_b32 v10, 31, v0')
        a('s_lshl_b32 s44, %s, 12' % sX)
        a('s_add_u32 s44, s44, %d' % XCB)
        a('v_lshlrev_b32 v142, 7, v10')
        a('v_add_u32 v142, s44, v142')
        a('s_lshl_b32 s44, %s, 10' % sH)
        a('s_add_u32 s44, s44, %d' % XCB)
        a('v_and_b32 v9, 7, v0')
        a('v_lshlrev_b32 v143, 7, v9')
        a('v_add_u32 v143, s44, v143')
        a('s_lshl_b32 s44, %s, 14' % sH)
        a('s_add_u32 s44, s44, %d' % QA)
        a('v_lshrrev_b32 v9, 1, v2')
        a('v_lshlrev_b32 v9, 13, v9')
        a('v_and_b32 v10, 1, v2')
        a('v_lshl_add_u32 v10, v1, 1, v10')
        a('v_lshl_add_u32 v12, v10, 4, v9')
        a('v_add_u32 v12, s44, v12')
        a('s_and_b32 s45, %s, 1' % sJ8)
        a('s_lshl_b32 s45, s45, 9')
        a('s_lshr_b32 s46, %s, 1' % sJ8)
        a('s_lshl_b32 s46, s46, 2')
        a('s_add_u32 s45, s45, s46')
        a('s_add_u32 s45, s45, 4096')
        a('v_add_u32 v140, s45, v12')
        a('s_lshl_b32 s45, %s, 9' % sJ8)
        a('v_add_u32 v12, s45, v12')
        a('s_lshl_b32 s45, %s, 13' % sB)
        a('s_add_u32 s45, s45, s44')
        a('s_add_u32 s45, s45, 2048')
        a('v_lshlrev_b32 v13, 4, v0')
        a('v_add_u32 v13, s45, v13')
        a('s_waitcnt vmcnt(20)')
        self.stamp(2)
        for k in range(10):
            a('v_lshlrev_b32 v%d, 16, v%d' % (F + 2 * k, XR + k))
            a('v_and_b32 v%d, 0xffff0000, v%d' % (F + 2 * k + 1, XR + k))
        a('v_add_f32 v8, v%d, v%d' % (F, F + 1))
        a('v_add_f32 v9, v%d, v%d' % (F + 2, F + 3))
        for k in range(4, 20, 2):
            a('v_add_f32 v8, v8, v%d' % (F + k))
            a('v_add_f32 v9, v9, v%d' % (F + k + 1))
        a('v_add_f32 v8, v8, v9')
        red = ('x1', 'x2', 'hm', 'p16', 'p32')
        self.allreduce([8], [9], steps=red)
        a('v_mul_f32 v8, 0x%x, v8' % f2u(1.0 / 640))
        a('v_mov_b32 v9, 0')
        a('v_mov_b32 v10, 0')
        for k in range(0, 20, 2):
            a('v_sub_f32 v%d, v%d, v8' % (F + k, F + k))
            a('v_sub_f32 v%d, v%d, v8' % (F + k + 1, F + k + 1))
            a('v_fmac_f32 v9, v%d, v%d' % (F + k, F + k))
            a('v_fmac_f32 v10, v%d, v%d' % (F + k + 1, F + k + 1))
        a('v_add_f32 v9, v9, v10')
        self.allreduce([9], [10], steps=red)
        a('v_mul_f32 v9, 0x%x, v9' % f2u(1.0 / 640))
        self.ln_finish(8, 9)
        a('s_waitcnt lgkmcnt(0)')
        self.tagcalc()
        self.stamp(3)
        D = 136
        A = [96, 100]
        for k in range(10):
            a('v_lshlrev_b32 v10, 16, v%d' % (XN + k))
            a('v_and_b32 v11, 0xffff0000, v%d' % (XN + k))
            a('v_sub_f32 v10, v10, v8')
            a('v_sub_f32 v11, v11, v8')
            a('v_cvt_pk_bf16_f32 v10, v10, v11')
            a('v_and_b32 v11, 0xffff0000, v10')
            a('v_lshlrev_b32 v10, 16, v10')
            a('v_mul_f32 v10, v10, v9')
            a('v_mul_f32 v11, v11, v9')
            a('v_cvt_pk_bf16_f32 v10, v10, v10')
            a('v_cvt_pk_bf16_f32 v11, v11, v11')
            self.sparse(A[0], 10)
            self.sparse(A[1], 11)
            a('s_waitcnt vmcnt(%d)' % (18 - 2 * k))
            self.mfma(D, A[0], WQ + 8 * k, k == 0)
            self.mfma(D, A[1], WQ + 8 * k + 4, False)

        def qhash(dst, b, t):
            a('v_alignbit_b32 v%d, v%d, v%d, 8' % (dst, b + 1, b + 1))
            a('v_alignbit_b32 v%d, v%d, v%d, 16' % (t, b + 2, b + 2))
            a('v_xor_b32 v%d, v%d, v%d' % (dst, dst, b))
            a('v_xor_b32 v%d, v%d, v%d' % (dst, dst, t))
            a('v_alignbit_b32 v%d, v%d, v%d, 24' % (t, b + 3, b + 3))
            a('v_xor_b32 v%d, v%d, v%d' % (dst, dst, t))
        a('global_store_dwordx4 v12, %s, %s' % (v4(D), sp(pWS)))
        qhash(145, D, 146)
        a('v_xor_b32 v145, %s, v145' % sTAG)
        if 'forceglobal' not in self.opts:
            a('global_store_dword v140, v145, %s' % sp(pWS))
        a('global_load_dwordx2 v[44:45], v142, %s sc1' % sp(pWS))
        self.stamp(4)
        a('s_waitcnt vmcnt(0)')
        self.stamp(13)
        l_nm = a.newlabel('L_nm')
        a('v_cmp_ne_u32 s[48:49], %s, v44' % sTAG)
        a('v_cmp_ne_u32 s[50:51], %s, v45' % sXCC)
        a('s_or_b64 s[48:49], s[48:49], s[50:51]')
        a('s_cselect_b32 s41, 1, 0')
        if 'forceglobal' in self.opts:
            a('s_mov_b32 s41, 1')
        a('s_cmp_lg_u32 s41, 0')
        a('s_cbranch_scc1 %s' % l_nm)
        self.set_flag(190, MODE)
        a.label(l_nm)
        G = 16
        top = a.newlabel('L_q')
        nxt = a.newlabel('L_qn')
        done = a.newlabel('L_qd')
        a('s_mov_b32 %s, %d' % (sSPIN, SPIN_MAX))
        a('s_mov_b32 s40, 0')
        a.label(top)
        for k in range(5):
            a('global_load_dwordx4 %s, v13, %s offset:%d sc1' % (v4(G + 4 * k), sp(pWS), k * 1024 - 2048))
        a('s_waitcnt vmcnt(0)')
        for k in range(4):
            qhash(40, G + 4 * k, 41)
            a('v_xor_b32 v40, v40, v%d' % (G + 16 + k))
            self.check1(40, 42, k == 0)
        a('v_cmp_ne_u32 vcc, 0, v42')
        a('s_cbranch_vccz %s' % done)
        a('s_and_b32 s44, %s, 3' % sSPIN)
        a('s_or_b32 s44, s44, s40')
        a('s_cmp_lg_u32 s44, 1')
        a('s_cbranch_scc1 %s' % nxt)
        a('global_load_dwordx2 v[16:17], v143, %s sc1' % sp(pWS))
        a('s_waitcnt vmcnt(0)')
        a('v_cmp_ne_u32 s[48:49], %s, v16' % sTAG)
        a('v_cmp_ne_u32 s[50:51], %s, v17' % sXCC)
        a('s_cmp_lg_u64 s[48:49], 0')
        a('s_cbranch_scc1 %s' % nxt)
        if 'forceglobal' not in self.opts:
            a('s_cmp_eq_u64 s[50:51], 0')
            a('s_cbranch_scc1 %s' % nxt)
        a('s_mov_b32 s40, 2')
        a('v_add_u32 v12, %d, v12' % (QB - QA))
        a('v_add_u32 v13, %d, v13' % (QB - QA))
        a('v_add_u32 v140, %d, v140' % (QB - QA))
        a('global_store_dwordx4 v12, %s, %s sc1' % (v4(D), sp(pWS)))
        a('global_store_dword v140, v145, %s sc1' % sp(pWS))
        a.label(nxt)
        a('s_sub_u32 %s, %s, 1' % (sSPIN, sSPIN))
        a('s_cmp_lg_u32 %s, 0' % sSPIN)
        a('s_cbranch_scc1 %s' % top)
        a.label(done)
        self.stamp(5)
        for r in range(4):
            a('v_add_f32 v%d, v%d, v%d' % (8 + r, G + r, G + 4 + r))
            a('v_add_f32 v%d, v%d, v%d' % (G + 8 + r, G + 8 + r, G + 12 + r))
        for r in range(4):
            a('v_add_f32 v%d, v%d, v%d' % (8 + r, 8 + r, G + 8 + r))
        self.allreduce([8, 9, 10, 11], [48, 49, 50, 51], steps=('p32',))
        a('v_cvt_pk_bf16_f32 v8, v8, v9')
        a('v_cvt_pk_bf16_f32 v9, v10, v11')
        a('v_and_b32 v10, 31, v0')
        a('v_lshlrev_b32 v10, 3, v10')
        a('ds_write_b64 v10, v[8:9] offset:%d' % Q_LDS)
        self.set_flag(190, FQ)
        self.stamp(6)

        skip = a.newlabel('L_xq')
        a('s_cmp_eq_u32 s41, 0')
        a('s_cbranch_scc1 %s' % skip)

        def loads():
            a('global_load_dwordx2 v[16:17], v142, %s sc1' % sp(pWS))

        def checks():
            self.check1(16, 18, True)
        self.poll(loads, checks, 18, sleep=4)
        a('v_cmp_ne_u32 s[50:51], %s, v17' % sXCC)
        a('s_or_b64 s[50:51], s[50:51], vcc')
        a('s_cselect_b32 s44, 1, 0')
        if 'forceglobal' in self.opts:
            a('s_mov_b32 s44, 1')
        a('v_mov_b32 v8, s44')
        a('ds_write_b32 v190, v8 offset:%d' % MODE)
        a('s_or_b32 s44, s44, s40')
        a('s_cmp_lg_u32 s44, 1')
        a('s_cbranch_scc1 %s' % skip)
        a('v_add_u32 v12, %d, v12' % (QB - QA))
        a('v_add_u32 v140, %d, v140' % (QB - QA))
        a('global_store_dwordx4 v12, %s, %s sc1' % (v4(D), sp(pWS)))
        a('global_store_dword v140, v145, %s sc1' % sp(pWS))
        a.label(skip)
        self.get_mode(8)
        a('v_lshlrev_b32 v150, 4, v0')
        a('s_mul_i32 s44, %s, 640' % sI)
        a('s_add_u32 s44, s44, %s' % sLOC)
        a('v_add_u32 v151, s44, v150')
        a('s_lshl_b32 s44, %s, 11' % sTP)
        a('s_add_u32 s44, s44, %d' % YP)
        a('v_add_u32 v152, s44, v150')
        a('s_lshl_b32 s44, %s, 11' % sI)
        a('s_lshl_b32 s45, %s, 8' % sX)
        a('s_add_u32 s44, s44, s45')
        a('s_add_u32 s44, s44, %d' % YP)
        a('v_add_u32 v153, s44, v150')
        self.h_addr(154, 8)
        a('s_lshl_b32 s44, %s, 4' % sTP)
        a('s_add_u32 s44, s44, %s' % sLOC)
        a('s_add_u32 s44, s44, %d' % (L_IN + 3840))
        a('v_lshrrev_b32 v8, 1, v0')
        a('v_min_u32 v8, 26, v8')
        a('v_mul_u32_u24 v8, %d, v8' % INP)
        a('v_and_b32 v9, 1, v0')
        a('v_lshl_add_u32 v8, v9, 9, v8')
        a('v_add_u32 v155, s44, v8')
        self.rowtag(156)
        a('v_lshlrev_b32 v%d, 16, v%d' % (XS, XS))
        a('v_mov_b32 v30, %s' % sTAG)
        a('v_mov_b32 v31, %s' % sTAG)
        a('s_mov_b32 exec_hi, 1')

        def rd():
            for w in range(4):
                a('ds_read_b128 %s, v150 offset:%d' % (v4(32 + 4 * w), OW_LDS + 528 * w))
        self.wait_flag(FVSA[2], 1, 8, sleep=2)
        self.wait_flag(FO, 4, 8, rd)
        self.stamp(7)
        for r in range(4):
            a('v_add_f32 v%d, v%d, v%d' % (32 + r, 32 + r, 36 + r))
            a('v_add_f32 v%d, v%d, v%d' % (40 + r, 40 + r, 44 + r))
        for r in range(4):
            a('v_add_f32 v%d, v%d, v%d' % (8 + r, 32 + r, 40 + r))
        self.tag4(8)
        self.st_local([(151, 8, L_OP)])
        self.set_flag(190, FPUB)
        a('s_mov_b64 exec, -1')
        self.stamp(8)
        l_noy = a.newlabel('L_noy')
        fin = a.newlabel('L_cend')
        a('s_cmp_ge_u32 %s, 20' % sI)
        a('s_cbranch_scc1 %s' % l_noy)

        def rd():
            a('ds_read_b128 v[32:35], v150 offset:%d' % YW_LDS)
        self.wait_flag(FG1, 4, 36, sleep=1)
        self.wait_flag(FY, 4, 36, rd)
        self.stamp(9)
        self.rs4(32)
        a('v_and_or_b32 v32, v32, v7, v156')
        self.expand4(32)
        a('s_mov_b64 exec, 0xffff')
        a('global_store_dwordx4 v153, v[32:35], %s sc1' % sp(pWS))
        a('s_mov_b64 exec, -1')
        a.label(l_noy)
        a('s_cmp_lt_u32 %s, 12' % sI)
        a('s_cbranch_scc1 %s' % fin)
        self.gather8(152, 16, 10)
        a('v_cvt_pk_bf16_f32 v16, v16, v16')
        a('v_and_b32 v16, 0xffff0000, v16')
        a('v_add_f32 v16, v16, v%d' % XS)
        a('v_cvt_pk_bf16_f32 v16, v16, v16')
        a('ds_write_b32 v154, v16 offset:%d' % H_LDS)
        self.set_flag(190, FH)
        self.stamp(11)
        a('v_and_b32 v28, 0xffff0000, v16')
        a('v_mul_f32 v29, v28, v28')
        self.allreduce([28, 29], [17, 18], steps=('x2', 'r4', 'r8', 'p16', 'p32'))
        self.st_local([(155, 28, 0)])
        a.label(fin)
        self.end_wave()
        self.flush_cold()

    def load_start(self):
        a = self.a
        a.label('L_load')
        a.reset()
        a('v_mov_b32 v8, -1')
        a('v_lshlrev_b32 v9, 2, v0')
        a('s_mov_b32 exec_hi, 0')
        a('ds_write_b32 v9, v8 offset:%d' % SY)
        a('s_mov_b64 exec, -1')
        a('s_waitcnt lgkmcnt(0)')
        a('s_load_dword %s, %s, %d' % (sTAG, sp(pWS), EPOCH))
        a('s_barrier')
        a('s_branch L_load2')

    def loader(self):
        a = self.a
        a.label('L_load2')
        a.reset()
        self.roles()
        a('s_setprio 2')
        self.stamp(1)
        a('s_getreg_b32 %s, hwreg(HW_REG_XCC_ID)' % sXCC)
        a('s_and_b32 %s, %s, 0xf' % (sXCC, sXCC))
        a('s_lshl_b32 s44, %s, 10' % sH)
        a('s_lshl_b32 s45, %s, 7' % sJ8)
        a('s_add_u32 s44, s44, s45')
        a('s_add_u32 s44, s44, %d' % XCB)
        a('v_mov_b32 v11, s44')
        a('v_mov_b32 v15, %s' % sXCC)
        a('s_mul_i32 s44, %s, %d' % (sX, 512 * 1280))
        a('s_min_u32 s45, %s, 19' % sI)
        a('s_lshl_b32 s45, s45, 6')
        a('s_add_u32 s45, s44, s45')
        a('v_lshrrev_b32 v8, 2, v0')
        a('v_mul_u32_u24 v8, 1280, v8')
        a('v_and_b32 v9, 3, v0')
        a('v_lshl_add_u32 v8, v9, 4, v8')
        a('v_add_u32 v32, s45, v8')
        a('s_mul_i32 s45, %s, 20480' % sI)
        a('s_add_u32 s44, s44, s45')
        a('v_lshlrev_b32 v8, 6, v0')
        a('v_add_u32 v33, s44, v8')
        a('s_min_u32 s44, %s, 26' % sU)
        a('s_mul_i32 s44, s44, %d' % INP)
        a('s_mul_i32 s45, %s, %d' % (sX, LOCP))
        a('s_add_u32 s44, s44, s45')
        a('s_add_u32 s44, s44, %d' % (LOCB + L_IN))
        a('v_add_u32 v34, s44, v8')
        a('s_mul_i32 s44, %s, %d' % (sTP, 32 * 3456))
        a('s_mul_i32 s45, %s, 432' % sX)
        a('s_add_u32 s44, s44, s45')
        a('v_mul_u32_u24 v13, 3456, v2')
        a('v_add_u32 v13, s44, v13')
        a('v_lshl_add_u32 v56, v1, 4, v13')
        a('v_min_u32 v8, 10, v1')
        a('v_lshl_add_u32 v57, v8, 4, v13')
        a('v_add_u32 v57, 256, v57')
        a('s_sub_u32 s44, %s, 20' % sI)
        a('s_and_b32 s44, s44, 7')
        a('s_mul_i32 s44, s44, %d' % (32 * 3456))
        a('s_add_u32 s44, s44, s45')
        a('v_lshrrev_b32 v8, 3, v0')
        a('v_mul_u32_u24 v8, 3456, v8')
        a('v_and_b32 v9, 7, v0')
        a('v_lshlrev_b32 v9, 6, v9')
        a('v_min_u32 v9, 428, v9')
        a('v_add3_u32 v58, v8, v9, s44')
        a('s_min_u32 s44, %s, 26' % sU)
        a('s_lshl_b32 s44, s44, 3')
        a('s_mul_i32 s45, %s, 216' % sX)
        a('s_add_u32 s44, s44, s45')
        a('s_mul_i32 s44, s44, 1280')
        a('v_and_b32 v8, 1, v2')
        a('v_lshlrev_b32 v8, 1, v8')
        a('v_lshrrev_b32 v9, 1, v2')
        a('v_add_u32 v8, v8, v9')
        a('v_mul_u32_u24 v8, 2560, v8')
        a('v_lshl_add_u32 v8, v1, 4, v8')
        a('v_add_u32 v64, s44, v8')
        a('s_lshl_b32 s44, %s, 5' % sB)
        a('s_add_u32 s44, s44, %s' % sH)
        a('s_lshl_b32 s44, s44, 20')
        a('s_lshl_b32 s45, %s, 16' % sJ)
        a('s_add_u32 s44, s44, s45')
        a('s_add_u32 s44, s44, %d' % (3072 * 256))
        a('v_lshlrev_b32 v8, 10, v2')
        a('v_lshl_add_u32 v8, v1, 4, v8')
        if 'vlin' in self.opts:
            a('v_lshlrev_b32 v8, 4, v0')
        a('v_add_u32 v66, s44, v8')
        self.consts()
        a('s_waitcnt lgkmcnt(0)')
        self.tagcalc()
        a('v_mov_b32 v14, %s' % sTAG)
        a('s_mov_b64 exec, 1')
        a('global_store_dwordx2 v11, v[14:15], %s sc1' % sp(pWS))
        a('s_mov_b64 exec, -1')
        self.wait_flag(FV, 4, 16, sleep=1)
        self.stamp(3)
        l_nowo = a.newlabel('L_nowo')
        l_fin = a.newlabel('L_lfin')
        l_nogu = a.newlabel('L_nogu')
        marks = {4 * k1: t for t, (k0, k1) in enumerate(VSTAGES)}

        def fire(mk, donec):
            t = mk.pop(donec)
            self.set_flag(190, FVSA[t])
            if t == 3:
                self.stamp(7)

        def issue(kind, k, aw):
            if kind == 'v':
                a('s_mov_b32 m0, %d' % (V_LDS + 1024 * (4 * k + aw)))
                a('global_load_lds_dwordx4 v65, %s%s' % (sp(pV), self.nt))
            elif kind == 'p':
                a('global_load_dword v%d, v33, %s' % (80 + k, sp(pWO)))
                a('v_add_u32 v33, 4096, v33')
            elif kind == 't':
                a('global_load_dword v%d, v34, %s offset:%d sc1' % (86 + k, sp(pWS), 1024 * k))
            elif kind == 'd':
                a('global_load_dword v%d, v58, %s' % (70 + k, sp(pWU if k & 1 else pWG)))
                if k & 1:
                    a('v_add_u32 v58, %d, v58' % (8 * 3456))
            elif kind == 'w':
                a('s_mov_b32 m0, %d' % (WO_LDS + 1024 * k))
                a('global_load_lds_dwordx4 v32, %s%s' % (sp(pWO), self.nt))
                a('v_add_u32 v32, 20480, v32')
            elif kind == 'g':
                a('s_mov_b32 m0, %d' % (GU_LDS + 1024 * (8 * aw + k)))
                a('global_load_lds_dwordx4 v%d, %s%s' % (56 + (aw & 1), sp(pWU if aw >> 1 else pWG), self.nt))
                if aw == 3:
                    a('v_add_u32 v56, %d, v56' % (4 * 3456))
                    a('v_add_u32 v57, %d, v57' % (4 * 3456))
            elif kind == 'n':
                a('s_mov_b32 m0, %d' % (WD_LDS + 1024 * k))
                a('v_add_u32 v65, %d, v64' % ((k // 5) * 1280 + (k % 5) * 256))
                a('global_load_lds_dwordx4 v65, %s%s' % (sp(pWD), self.nt))

        def stream(seq, mk, base, ld0, pub=False):
            for i, (kind, k, aw) in enumerate(seq):
                i += base
                if kind == 'v':
                    a('v_add_u32 v65, %d, v66' % ((4 * k + aw) * 1024 if 'vlin' in self.opts else aw * 16384 + (k >> 2) * 4096 + (k & 3) * 256))
                ld = ld0 if i >= self.p['v1n'] else self.p['v1d']
                if i >= ld and mk:
                    a('s_waitcnt vmcnt(%d)' % (ld - 1))
                    for donec in sorted(mk):
                        if donec <= i - ld + 1:
                            fire(mk, donec)
                    if not mk and pub:
                        self.wait_flag(FPUB, 1, 16)
                if (kind, k, aw) == ('g', 0, 0):
                    assert not mk
                issue(kind, k, aw)
            return base + len(seq)

        vs = [('v', k, aw) for k in range(16) for aw in range(4)]
        gs = [('g', n, cb) for n in range(8) for cb in range(4)]
        ns = [('n', q, 0) for q in range(10)]
        ex = [('p', i, 0) for i in range(5)] + [('t', 0, 0), ('t', 1, 0)]
        n = stream(vs + ex, marks, 0, self.p['ldepth'])
        a('s_cmp_ge_u32 %s, 20' % sI)
        a('s_cbranch_scc1 %s' % l_nowo)
        mk = dict(marks)
        for donec in sorted(mk):
            a('s_waitcnt vmcnt(%d)' % (n - donec))
            fire(mk, donec)
        self.wait_scores(16)
        a('s_waitcnt vmcnt(0)')
        self.stamp(2)
        for q in range(32):
            issue('w', q, 0)
        a('s_waitcnt vmcnt(0)')
        self.set_flag(190, FWO)
        self.stamp(4)
        self.wait_flag(FG1, 4, 16, sleep=1)
        a('s_cmp_lt_u32 %s, 12' % sI)
        a('s_cbranch_scc1 %s' % l_nogu)
        for e in gs:
            issue(*e)
        a.label(l_nogu)
        for e in ns:
            issue(*e)
        a('s_branch %s' % l_fin)
        a.label(l_nowo)
        mk = dict(marks)
        ld2 = self.p['ldepth2']
        for donec in sorted(mk):
            if n - donec >= ld2:
                a('s_waitcnt vmcnt(%d)' % (n - donec))
                fire(mk, donec)
        stream([('d', i, 0) for i in range(8)] + gs + ns, mk, n, ld2, pub=True)
        assert not mk
        a.label(l_fin)
        a('s_waitcnt vmcnt(10)')
        self.set_flag(190, FGU)
        self.stamp(5)
        self.down_unit()

    def down_unit(self):
        a = self.a
        fin = a.newlabel('L_dend')
        a('s_cmp_ge_u32 %s, 27' % sU)
        a('s_cbranch_scc1 %s' % fin)
        DW = 96
        A0, A1 = 40, 44
        Gr, Cr, Sr, T = 16, 28, 36, 48
        self.get_mode(8)
        a('s_mul_i32 s45, %s, %d' % (sU, INP))
        a('s_add_u32 s45, s45, %s' % sLOC)
        a('s_add_u32 s45, s45, %d' % L_IN)
        a('v_and_b32 v8, 7, v0')
        a('v_lshrrev_b32 v9, 3, v0')
        a('v_lshlrev_b32 v156, 7, v8')
        a('v_lshl_add_u32 v156, v9, 4, v156')
        a('v_add_u32 v156, s45, v156')
        a('v_lshlrev_b32 v157, 6, v1')
        a('v_lshl_add_u32 v157, v2, 4, v157')
        a('v_add_u32 v157, s45, v157')
        a('v_bfe_u32 v158, v0, 3, 1')
        a('v_lshlrev_b32 v158, 5, v158')
        a('v_lshl_add_u32 v158, v2, 3, v158')
        a('v_add_u32 v158, v158, v8')
        a('v_lshlrev_b32 v158, 4, v158')
        a('v_add_u32 v158, s45, v158')
        a('v_and_b32 v159, 1, v2')
        a('v_lshl_add_u32 v159, v1, 1, v159')
        a('v_lshrrev_b32 v9, 1, v2')
        a('v_lshl_add_u32 v159, v159, 1, v9')
        a('v_lshlrev_b32 v159, 4, v159')
        a('v_add_u32 v159, s45, v159')
        a('v_add_u32 v159, 2048, v159')
        a('v_lshlrev_b32 v150, 4, v0')
        self.prefill(Cr + 4)
        self.prefill(Gr + 8)
        a('v_mov_b32 v%d, 0' % Sr)
        a('v_mov_b32 v%d, 0' % (Sr + 1))
        a('v_mov_b32 v%d, %s' % (Sr + 2, sTAG))
        a('s_mov_b32 s40, 0x000f000f')
        a('s_mov_b32 s41, 0x000f000f')

        def loads():
            a('global_load_dwordx4 %s, v157, %s offset:2560 sc1' % (v4(Cr), sp(pWS)))
            a('s_mov_b64 exec, s[40:41]')
            a('global_load_dwordx4 %s, v157, %s offset:3584 sc1' % (v4(Cr + 4), sp(pWS)))
            a('s_mov_b64 exec, -1')

        def checks():
            self.check4(Cr, T, True)
            self.check4(Cr + 4, T, False)
        self.poll(loads, checks, T, sleep=2)
        self.stamp(8)
        for q in range(10):
            a('ds_read_b128 %s, v150 offset:%d' % (v4(DW + 4 * q), WD_LDS + 1024 * q))
        for r in range(4):
            a('v_add_f32 v%d, v%d, v%d' % (Cr + r, Cr + r, Cr + 4 + r))
        self.allreduce([Cr, Cr + 1, Cr + 2, Cr + 3], [], steps=('x1', 'x2', 'hm', 'r8'))
        a('s_mov_b32 s40, 0x0f0f0f0f')
        a('s_mov_b32 s41, 0x0f0f0f0f')
        a('s_mov_b32 s46, -1')
        a('s_mov_b32 s47, 0x00000f0f')
        a('s_waitcnt lgkmcnt(0)')

        def loads():
            a('s_mov_b64 exec, s[46:47]')
            a('global_load_dwordx4 %s, v158, %s offset:3840 sc1' % (v4(Sr), sp(pWS)))
            a('s_mov_b64 exec, s[40:41]')
            a('global_load_dwordx4 %s, v156, %s offset:2048 sc1' % (v4(Gr + 8), sp(pWS)))
            a('s_mov_b64 exec, -1')
            for n in range(2):
                a('global_load_dwordx4 %s, v156, %s offset:%d sc1' % (v4(Gr + 4 * n), sp(pWS), 1024 * n))

        def checks():
            self.check1(Sr + 2, T, True)
            for k in range(3):
                self.check4(Gr + 4 * k, T, False)
        self.poll(loads, checks, T)
        self.stamp(12)
        GG = [Gr, Gr + 1, Gr + 2, Gr + 3]
        SS = [Sr, Sr + 1]
        self.allreduce(SS, [], steps=('x1',))
        for r in range(4):
            a('v_add_f32 v%d, v%d, v%d' % (Gr + r, Gr + r, Gr + 4 + r))
        self.allreduce(SS, [], steps=('x2',))
        for r in range(4):
            a('v_add_f32 v%d, v%d, v%d' % (Gr + r, Gr + r, Gr + 8 + r))
        self.allreduce(SS, [], steps=('hm',))
        self.allreduce(GG, [], steps=('x1',))
        self.allreduce(SS, [T, T + 1], steps=('p16',))
        self.allreduce(GG, [], steps=('x2',))
        self.allreduce(SS, [T, T + 1], steps=('p32',))
        self.allreduce(GG, [], steps=('hm',))
        a('v_mul_f32 v%d, 0x%x, v%d' % (Sr, f2u(1.0 / 640), Sr))
        a('v_mul_f32 v%d, 0x%x, v%d' % (Sr + 1, f2u(1.0 / 640), Sr + 1))
        a('v_fma_f32 v%d, -v%d, v%d, v%d' % (Sr + 1, Sr, Sr, Sr + 1))
        a('v_max_f32 v%d, 0, v%d' % (Sr + 1, Sr + 1))
        self.ln_finish(Sr, Sr + 1)
        for r in range(4):
            a('v_fma_f32 v%d, -v%d, v%d, v%d' % (Gr + r, Sr, Cr + r, Gr + r))
        for r in range(4):
            a('v_mul_f32 v%d, v%d, v%d' % (Gr + r, Gr + r, Sr + 1))
        a('v_permlane32_swap_b32 v%d, v%d' % (Gr, Gr + 2))
        a('v_permlane32_swap_b32 v%d, v%d' % (Gr + 1, Gr + 3))
        self.bf16_round4(Gr, T)
        a('v_mul_f32 v%d, 0x%x, v%d' % (T + 4, f2u(-LOG2E), T))
        a('v_mul_f32 v%d, 0x%x, v%d' % (T + 5, f2u(-LOG2E), T + 1))
        a('v_exp_f32 v%d, v%d' % (T + 4, T + 4))
        a('v_exp_f32 v%d, v%d' % (T + 5, T + 5))
        a('v_add_f32 v%d, 1.0, v%d' % (T + 4, T + 4))
        a('v_add_f32 v%d, 1.0, v%d' % (T + 5, T + 5))
        a('v_rcp_f32 v%d, v%d' % (T + 4, T + 4))
        a('v_rcp_f32 v%d, v%d' % (T + 5, T + 5))
        a('v_mul_f32 v%d, v%d, v%d' % (T, T, T + 4))
        a('v_mul_f32 v%d, v%d, v%d' % (T + 1, T + 1, T + 5))
        a('v_cvt_pk_bf16_f32 v%d, v%d, v%d' % (T, T, T + 1))
        a('v_and_b32 v%d, 0xffff0000, v%d' % (T + 1, T))
        a('v_lshlrev_b32 v%d, 16, v%d' % (T, T))
        a('v_mul_f32 v%d, v%d, v%d' % (T, T, T + 2))
        a('v_mul_f32 v%d, v%d, v%d' % (T + 1, T + 1, T + 3))
        a('v_cvt_pk_bf16_f32 v%d, v%d, v%d' % (T, T, T))
        a('v_cvt_pk_bf16_f32 v%d, v%d, v%d' % (T + 1, T + 1, T + 1))
        self.sparse(A0, T)
        self.sparse(A1, T + 1)
        DD = 56
        for m in range(5):
            self.mfma(DD + 4 * m, A0, DW + 4 * m, True)
            self.mfma(DD + 4 * m, A1, DW + 20 + 4 * m, False)
        self.st_local([(159, DD + 4 * m, 1024 * m - 2048) for m in range(5)],
                      pre=lambda m: self.tag4(DD + 4 * m, second=True))
        a.label(fin)
        self.end_wave()
        self.flush_cold()

    def att_prep(self):
        a = self.a
        self.consts(12)
        a('v_lshlrev_b32 v176, 4, v2')
        a('v_and_b32 v177, 1, v2')
        a('v_lshl_add_u32 v177, v1, 1, v177')
        a('v_lshlrev_b32 v177, 4, v177')
        a('v_lshrrev_b32 v12, 5, v0')
        a('v_lshl_add_u32 v177, v12, 3, v177')
        a('s_mul_i32 s44, %s, 528' % sAW)
        a('v_add_u32 v177, s44, v177')
        a('v_mov_b32 v178, s44')
        a('v_bfe_u32 v179, v0, 3, 1')
        a('v_lshlrev_b32 v179, 7, v179')
        a('v_lshl_add_u32 v179, v2, 5, v179')
        a('s_lshl_b32 s44, %s, 9' % sAW)
        a('v_lshlrev_b32 v180, 3, v0')
        a('v_add_u32 v180, s44, v180')
        a('v_and_b32 v181, 1, v1')
        a('v_lshlrev_b32 v181, 8, v181')
        a('v_lshl_add_u32 v181, v2, 4, v181')
        a('v_add_u32 v181, s44, v181')
        a('v_lshrrev_b32 v12, 2, v1')
        a('v_lshl_add_u32 v12, v2, 3, v12')
        a('v_lshlrev_b32 v12, 6, v12')
        a('s_lshl_b32 s44, %s, 13' % sAW)
        a('v_add_u32 v12, s44, v12')
        a('v_and_b32 v13, 3, v1')
        a('v_lshl_add_u32 v182, v13, 3, v12')
        a('v_lshl_add_u32 v184, v2, 1, v1')
        a('v_lshlrev_b32 v184, 4, v184')
        a('s_lshl_b32 s44, %s, 8' % sAW)
        a('v_add_u32 v184, s44, v184')
        a('v_lshlrev_b32 v185, 4, v0')
        a('s_lshl_b32 s44, %s, 13' % sAW)
        a('s_add_u32 s44, s44, %d' % GU_LDS)
        a('v_add_u32 v186, s44, v185')
        a('s_lshl_b32 s44, %s, 10' % sAW)
        a('s_add_u32 s44, s44, %d' % V_LDS)
        a('v_add_u32 v187, s44, v185')
        a('v_xor_b32 v12, v1, v2')
        a('v_lshlrev_b32 v13, 8, v1')
        a('v_add_u32 v13, s56, v13')
        for m in range(4):
            a('v_xor_b32 v%d, %d, v12' % (192 + m, 4 * m))
            a('v_lshl_add_u32 v%d, v%d, 4, v13' % (192 + m, 192 + m))

    def att_start(self):
        a = self.a
        a('s_lshl_b32 s44, %s, 5' % sB)
        a('s_add_u32 s44, s44, %s' % sH)
        a('s_lshl_b32 s44, s44, 20')
        a('s_lshl_b32 s45, %s, 16' % sJ)
        a('s_add_u32 s44, s44, s45')
        a('s_lshl_b32 s45, %s, 14' % sAW)
        a('s_add_u32 s44, s44, s45')
        a('s_add_u32 s44, s44, %d' % (3072 * 256))
        a('v_xor_b32 v12, v1, v2')
        a('v_lshlrev_b32 v13, 8, v2')
        a('v_add_u32 v13, s44, v13')
        for q in range(4):
            a('v_xor_b32 v%d, %d, v12' % (8 + q, 4 * q))
            a('v_lshl_add_u32 v%d, v%d, 4, v13' % (8 + q, 8 + q))
            if q:
                a('v_add_u32 v%d, %d, v%d' % (8 + q, 1024 * q, 8 + q))
        a('s_lshl_b32 s44, %s, 2' % sAW)
        a('v_mov_b32 v191, s44')
        a('s_add_u32 s56, s45, %d' % K_LDS)
        a('s_waitcnt lgkmcnt(0)')
        if 'latek' in self.opts:
            a('s_barrier')
        for idx in range(self.p['depth']):
            self.kload(idx)
        if 'latek' not in self.opts:
            a('s_barrier')
        a('s_branch L_att')

    def kload(self, idx):
        a = self.a
        a('s_add_u32 m0, s56, %d' % (1024 * idx))
        a('global_load_lds_dwordx4 v%d, %s%s' % (8 + (idx & 3), sp(pK), self.nt))
        if idx < 12:
            a('v_add_u32 v%d, 4096, v%d' % (8 + (idx & 3), 8 + (idx & 3)))

    def attention(self):
        a = self.a
        a.label('L_att')
        a.reset()
        KR, VR, QF, S = 16, 80, 144, 160
        a('s_load_dword %s, %s, %d' % (sTAG, sp(pWS), EPOCH))
        self.roles()
        self.att_prep()
        depth, kfree = self.p['depth'], self.p['kfree']
        for idx in range(depth, 16):
            if idx < kfree:
                a('s_waitcnt vmcnt(%d)' % (depth - 1))
            self.kload(idx)
        self.set_flag(191, FV)
        self.stamp(1)
        a('s_waitcnt lgkmcnt(0)')
        self.tagcalc()

        def rd():
            for m in range(4):
                a('ds_read_b128 %s, v176 offset:%d' % (v4(QF + 4 * m), Q_LDS + 64 * m))
        self.wait_flag(FQ, 1, 8, rd, lazy=True)
        self.stamp(2)
        for bb in range(4):
            a('s_waitcnt vmcnt(%d)' % (4 * (3 - bb)))
            for m in range(4):
                a('ds_read_b128 %s, v%d offset:%d' % (v4(KR + 16 * bb + 4 * m), 192 + m, 4096 * bb))
            if bb:
                a('s_waitcnt lgkmcnt(%d)' % (0 if self.stamps else 4))
                for m in range(4):
                    self.mfma(S + 4 * (bb - 1), KR + 16 * (bb - 1) + 4 * m, QF + 4 * m, m == 0)
        a('s_waitcnt lgkmcnt(0)')
        for m in range(4):
            self.mfma(S + 12, KR + 48 + 4 * m, QF + 4 * m, m == 0)
        self.stamp(3)
        sc = f2u(128 ** -0.5)
        for k in range(0, 16, 2):
            a('v_cvt_pk_bf16_f32 v8, v%d, v%d' % (S + k, S + k + 1))
            a('v_and_b32 v9, 0xffff0000, v8')
            a('v_lshlrev_b32 v8, 16, v8')
            a('v_mul_f32 v8, 0x%x, v8' % sc)
            a('v_mul_f32 v9, 0x%x, v9' % sc)
            a('v_cvt_pk_bf16_f32 v8, v8, v9')
            a('v_and_b32 v%d, 0xffff0000, v8' % (S + k + 1))
            a('v_lshlrev_b32 v%d, 16, v8' % (S + k))
        a('v_max3_f32 v8, v%d, v%d, v%d' % (S, S + 1, S + 2))
        a('v_max3_f32 v9, v%d, v%d, v%d' % (S + 3, S + 4, S + 5))
        a('v_max3_f32 v8, v8, v%d, v%d' % (S + 6, S + 7))
        a('v_max3_f32 v9, v9, v%d, v%d' % (S + 8, S + 9))
        a('v_max3_f32 v8, v8, v%d, v%d' % (S + 10, S + 11))
        a('v_max3_f32 v9, v9, v%d, v%d' % (S + 12, S + 13))
        a('v_max3_f32 v8, v8, v%d, v%d' % (S + 14, S + 15))
        a('v_max_f32 v8, v8, v9')
        self.allreduce([8], [9], op='max', steps=('p16', 'p32'))
        a('ds_write_b32 v191, v8 offset:%d' % MX)

        def loads():
            a('ds_read_b128 v[16:19], v190 offset:%d' % MX)

        def checks():
            a('v_or3_b32 v8, v16, v17, v18')
            a('v_or_b32 v8, v8, v19')
            a('v_and_b32 v8, 1, v8')
        self.poll(loads, checks, 8, wait='lgkmcnt(0)')
        a('v_max3_f32 v8, v16, v17, v18')
        a('v_max_f32 v8, v8, v19')
        for k in range(16):
            a('v_sub_f32 v%d, v%d, v8' % (S + k, S + k))
        for k in range(16):
            a('v_mul_f32 v%d, 0x%x, v%d' % (S + k, f2u(LOG2E), S + k))
        for k in range(16):
            a('v_exp_f32 v%d, v%d' % (S + k, S + k))
        a('v_add_f32 v9, v%d, v%d' % (S, S + 1))
        a('v_add_f32 v10, v%d, v%d' % (S + 2, S + 3))
        for k in range(4, 16, 2):
            a('v_add_f32 v9, v9, v%d' % (S + k))
            a('v_add_f32 v10, v10, v%d' % (S + k + 1))
        a('v_add_f32 v9, v9, v10')
        self.allreduce([9], [10], steps=('p16', 'p32'))
        a('v_mul_f32 v8, 0x3e800000, v8')
        a('v_mov_b32 v10, 0')
        a('v_mov_b32 v11, 0')
        a('s_mov_b64 exec, 1')
        a('ds_write_b128 v178, v[8:11] offset:%d' % (OW_LDS + 512))
        a('s_mov_b64 exec, -1')
        O = 144
        for k in range(16):
            a('v_cvt_pk_bf16_f32 v12, v%d, v%d' % (S + k, S + k))
            a('v_and_b32 v12, 0xffff0000, v12')
            a('v_sub_f32 v12, v%d, v12' % (S + k))
            a('v_cndmask_b32 v12, v%d, v12, %s' % (S + k, HIROWS))
            a('v_cvt_pk_bf16_f32 v12, v12, v12')
            self.sparse(KR + 4 * k, 12)
        self.stamp(4)
        for t, (k0, k1) in enumerate(VSTAGES):
            def rd():
                for k in range(k0, k1):
                    a('ds_read_b128 %s, v187 offset:%d' % (v4(VR + 4 * k), 4096 * k))
            self.wait_flag(FVSA[t], 1, 8, rd, lazy=(t < 3))
            for k in range(k0, k1):
                self.mfma(O, KR + 4 * k, VR + 4 * k, k == 0)
            if t == 1:
                self.get_mode(8)
                a('s_mul_i32 s44, %s, 640' % sAW)
                a('s_add_u32 s44, s44, %s' % sLOC)
                a('s_add_u32 s44, s44, 3840')
                a('v_lshrrev_b32 v8, 5, v0')
                a('v_mul_u32_u24 v8, 10240, v8')
                a('v_add_u32 v8, s44, v8')
                a('v_and_b32 v9, 31, v0')
                a('v_lshl_add_u32 v12, v9, 4, v8')
                a('v_and_b32 v9, 3, v0')
                a('v_mul_u32_u24 v9, 2560, v9')
                a('v_add_u32 v13, v9, v8')
        self.stamp(5)
        a('v_permlane32_swap_b32 v%d, v%d' % (O, O + 2))
        a('v_permlane32_swap_b32 v%d, v%d' % (O + 1, O + 3))
        a('v_add_f32 v%d, v%d, v%d' % (O, O, O + 2))
        a('v_add_f32 v%d, v%d, v%d' % (O + 1, O + 1, O + 3))
        a('ds_write_b64 v177, %s offset:%d' % (v2(O), OW_LDS))
        self.set_flag(191, FO)
        l_now = a.newlabel('L_anow')
        l_end = a.newlabel('L_aend')
        a('s_cmp_ge_u32 %s, 20' % sI)
        a('s_cbranch_scc1 %s' % l_now)
        G = 104
        OF, WF0, WF1 = 48, 64, 80

        def loads():
            a('global_load_dwordx4 %s, v13, %s offset:%d sc1' % (v4(G + 16), sp(pWS), 512 - 3840))
            for j in range(4):
                a('global_load_dwordx4 %s, v12, %s offset:%d sc1' % (v4(G + 4 * j), sp(pWS), j * 2560 - 3840))

        def rdw():
            for ks in range(4):
                for hf in range(2):
                    off = WO_LDS + (32 * ks + 4 * hf) * 64
                    a('ds_read_b64_tr_b16 %s, v182 offset:%d' % (v2(WF0 + 4 * ks + 2 * hf), off))
                    a('ds_read_b64_tr_b16 %s, v182 offset:%d' % (v2(WF1 + 4 * ks + 2 * hf), off + 32))

        def checks():
            for k in range(5):
                self.check4(G + 4 * k, 40, k == 0)
        self.poll(loads, checks, 40)
        self.set_flag(191, FG1)
        a('ds_read_b32 v42, v190 offset:%d' % FWO)
        rdw()
        self.stamp(6)
        a('v_and_b32 v40, v%d, v7' % (G + 16))
        a('v_max_f32_dpp v41, v40, v40 quad_perm:[1,0,3,2] %s' % DPPM)
        self.allreduce([41], [], op='max', steps=('x2',))
        a('v_sub_f32 v40, v40, v41')
        a('v_mul_f32 v40, 0x%x, v40' % f2u(LOG2E))
        a('v_exp_f32 v40, v40')
        a('v_mul_f32 v41, v40, v%d' % (G + 17))
        self.allreduce([41], [], steps=('x1', 'x2'))
        a('v_rcp_f32 v41, v41')
        a('v_mul_f32 v40, v40, v41')
        for r in range(4):
            a('v_mul_f32_dpp v%d, v40, v%d quad_perm:[0,0,0,0] %s' % (8 + r, G + r, DPPM))
        for j in range(1, 4):
            for r in range(4):
                a('v_fmac_f32_dpp v%d, v40, v%d quad_perm:[%d,%d,%d,%d] %s' % (8 + r, G + 4 * j + r, j, j, j, j, DPPM))
        a('v_cvt_pk_bf16_f32 v8, v8, v9')
        a('v_cvt_pk_bf16_f32 v9, v10, v11')
        a('ds_write_b64 v180, v[8:9] offset:%d' % O2_LDS)
        for ks in range(4):
            a('ds_read_b128 %s, v181 offset:%d' % (v4(OF + 4 * ks), O2_LDS + 64 * ks))
        a('s_mov_b32 s46, 0x00030003')
        a('s_mov_b32 s47, 0x00030003')
        a('s_waitcnt lgkmcnt(0)')
        l_have = a.newlabel('L_havew')
        l_late = a.newlabel('L_latew')
        a('v_cmp_ne_u32 vcc, 0, v42')
        a('s_cbranch_vccnz %s' % l_late)
        a.label(l_have)

        def cold():
            a.label(l_late)
            self.wait_flag(FWO, 1, 10, rdw)
            a('s_branch %s' % l_have)
        self.cold.append(cold)
        self.stamp(7)
        D0, D1 = 96, 100
        for ks in range(4):
            self.mfma(D0, WF0 + 4 * ks, OF + 4 * ks, ks == 0)
            self.mfma(D1, WF1 + 4 * ks, OF + 4 * ks, ks == 0)
        a('s_mov_b64 exec, s[46:47]')
        a('ds_write_b128 v184, %s offset:%d' % (v4(D0), YW_LDS))
        a('ds_write_b128 v184, %s offset:%d' % (v4(D1), YW_LDS + 128))
        self.set_flag(191, FY)
        a('s_mov_b64 exec, -1')
        self.stamp(8)
        a.label(l_now)
        a('s_cmp_lt_u32 %s, 12' % sI)
        a('s_cbranch_scc1 %s' % l_end)
        a('s_and_b32 s44, %s, 1' % sAW)
        a('s_lshl_b32 s44, s44, 4')
        a('v_add_u32 v9, s44, v1')
        a('v_cmp_gt_u32 s[40:41], 27, v9')
        a('v_min_u32 v9, 26, v9')
        a('s_and_b32 s44, %s, 2' % sAW)
        a('v_mov_b32 v8, s44')
        a('v_mul_u32_u24 v9, %d, v9' % INP)
        a('s_add_u32 s44, %s, %d' % (sLOC, L_IN))
        a('v_add_u32 v9, s44, v9')
        a('v_and_b32 v10, 1, v2')
        a('v_add_u32 v8, v8, v10')
        a('s_lshl_b32 s44, %s, 6' % sTP)
        a('v_lshl_add_u32 v13, v8, 4, v9')
        a('v_add_u32 v13, s44, v13')
        a('v_lshrrev_b32 v10, 1, v2')
        a('v_lshl_add_u32 v8, v8, 1, v10')
        a('v_lshl_add_u32 v12, v8, 4, v9')
        a('s_lshl_b32 s44, %s, 7' % sTP)
        a('v_add_u32 v12, s44, v12')
        GU, A0, A1 = 16, 48, 52
        a('v_mov_b32 v56, 0x3f803f80')
        self.sparse(A0, 56)

        def rd():
            for n in range(8):
                a('ds_read_b128 %s, v186 offset:%d' % (v4(GU + 4 * n), 1024 * n))
        self.wait_flag(FGU, 1, 8, rd, lazy=True)
        D = 60
        for n in range(8):
            self.mfma(D, A0, GU + 4 * n, n == 0)
        a('s_mov_b32 s46, s40')
        a('s_mov_b32 s47, 0')
        self.tag4(D)
        a('s_mov_b64 exec, s[46:47]')
        self.st_local([(13, D, 2560)])
        a('s_mov_b64 exec, -1')
        self.stamp(9)
        HD = 64

        def rd():
            a('ds_read_b128 %s, v179 offset:%d' % (v4(HD), H_LDS))
            a('ds_read_b128 %s, v179 offset:%d' % (v4(HD + 4), H_LDS + 16))
        self.wait_flag(FH, 1, 8, rd)
        self.stamp(10)
        D = 72
        self.sparse(A0, HD)
        for n in range(8):
            if n < 7:
                self.sparse(A1 if n % 2 == 0 else A0, HD + n + 1)
            self.mfma(D, A0 if n % 2 == 0 else A1, GU + 4 * n, n == 0)
        a('s_mov_b64 exec, s[40:41]')
        self.tag4(D)
        self.st_local([(12, D, 0)])
        a('s_mov_b64 exec, -1')
        self.stamp(11)
        a('s_cmp_lg_u32 %s, 0' % sAW)
        a('s_cbranch_scc1 %s' % l_end)
        a('s_lshl_b32 s44, %s, 8' % sTP)
        a('s_add_u32 s44, s44, %s' % sLOC)
        a('s_add_u32 s44, s44, %d' % L_IN)
        a('v_lshlrev_b32 v8, 4, v1')
        a('v_mul_u32_u24 v9, %d, v2' % INP)
        a('v_add3_u32 v80, v8, v9, s44')
        for n in range(1, 7):
            a('v_add_u32 v%d, %d, v80' % (80 + n, 4 * INP * n))
        a('s_lshl_b32 s44, %s, 11' % sTP)
        a('s_add_u32 s44, s44, %d' % FP)
        a('v_add_u32 v88, s44, v185')
        a('s_lshl_b32 s45, %s, 8' % sX)
        a('v_add_u32 v89, s45, v88')
        self.slice_off(90, 8)
        self.h_addr(91, 8)
        a('ds_read_b32 v92, v91 offset:%d' % H_LDS)
        self.rowtag(93)
        G = 16
        self.prefill(G + 24, second=True)
        a('s_mov_b32 s46, -1')
        a('s_mov_b32 s47, 0xffff')
        a('s_waitcnt lgkmcnt(0)')
        a('v_and_b32 v92, 0xffff0000, v92')

        def loads():
            for n in range(6):
                a('global_load_dwordx4 %s, v%d, %s sc1' % (v4(G + 4 * n), 80 + n, sp(pWS)))
            a('s_mov_b64 exec, s[46:47]')
            a('global_load_dwordx4 %s, v86, %s sc1' % (v4(G + 24), sp(pWS)))
            a('s_mov_b64 exec, -1')

        def checks():
            for k in range(7):
                self.check4(G + 4 * k, 44, k == 0, second=True)
        self.poll(loads, checks, 44)
        self.stamp(12)
        for r in range(4):
            a('v_add_f32 v%d, v%d, v%d' % (G + r, G + r, G + 4 + r))
            a('v_add_f32 v%d, v%d, v%d' % (G + 8 + r, G + 8 + r, G + 12 + r))
            a('v_add_f32 v%d, v%d, v%d' % (G + 16 + r, G + 16 + r, G + 20 + r))
        for r in range(4):
            a('v_add_f32 v%d, v%d, v%d' % (G + r, G + r, G + 8 + r))
            a('v_add_f32 v%d, v%d, v%d' % (G + 16 + r, G + 16 + r, G + 24 + r))
        for r in range(4):
            a('v_add_f32 v%d, v%d, v%d' % (48 + r, G + r, G + 16 + r))
        self.rs4(48)
        a('v_and_or_b32 v48, v48, v7, v93')
        self.expand4(48)
        a('s_mov_b64 exec, 0xffff')
        a('global_store_dwordx4 v89, v[48:51], %s sc1' % sp(pWS))
        a('s_mov_b64 exec, -1')
        self.stamp(13)
        a('s_and_b32 s44, %s, 7' % sTP)
        a('s_cmp_lg_u32 s44, %s' % sX)
        a('s_cbranch_scc1 %s' % l_end)
        self.gather8(88, 16, 14)
        a('v_cvt_pk_bf16_f32 v16, v16, v16')
        a('v_and_b32 v16, 0xffff0000, v16')
        a('v_add_f32 v16, v16, v92')
        a('v_cvt_pk_bf16_f32 v16, v16, v16')
        a('global_store_short v90, v16, %s' % sp(pOUT))
        a('s_cmp_lg_u32 s2, 96')
        a('s_cbranch_scc1 %s' % l_end)
        a('s_mov_b64 exec, 1')
        a('v_mov_b32 v60, %s' % sTAG)
        a('global_store_dword v190, v60, %s offset:%d sc1' % (sp(pWS), EPOCH))
        a.label(l_end)
        self.end_wave()
        self.flush_cold()

    def build(self):
        a = self.a
        hdr = open('cdna_kernels/%s.s.ref' % NAME).read().split('\n')
        top = []
        for ln in hdr:
            if ln.startswith('; @launch'):
                top.append('; @launch grid=(256,1,1) block=(%d,1,1) lds=%d' % (64 * NWAVES, LDS_BYTES))
                break
            top.append(ln)
        out = '\n'.join(top) + '\n'
        out += '.amdgcn_target "amdgcn-amd-amdhsa--gfx950"\n.text\n.globl %s_kernel\n.p2align 8\n' % NAME
        out += '.type %s_kernel,@function\n%s_kernel:\n' % (NAME, NAME)
        self.prologue()
        self.att_start()
        self.load_start()
        self.comm()
        self.attention()
        self.loader()
        a.label('L_exit')
        a('s_endpgm')
        out += a.text()
        out += '''.section .rodata,"a"
.p2align 6
.amdhsa_kernel %s_kernel
  .amdhsa_next_free_vgpr 208
  .amdhsa_next_free_sgpr 102
  .amdhsa_accum_offset 208
  .amdhsa_group_segment_fixed_size 0
  .amdhsa_kernarg_size 96
  .amdhsa_user_sgpr_count 2
  .amdhsa_user_sgpr_kernarg_segment_ptr 1
  .amdhsa_system_sgpr_workgroup_id_x 1
  .amdhsa_float_denorm_mode_32 3
.end_amdhsa_kernel
''' % NAME
        return out


if __name__ == '__main__':
    open(sys.argv[1], 'w').write(Gen(opts=sys.argv[2:]).build())
```

```python
import struct
import sys
from asmlib import Asm

NAME = 'sequential_preLN__sliding_block_cached__swiglu_ffn__decode'


def f2u(x):
    return struct.unpack('<I', struct.pack('<f', x))[0]


EPOCH = 0
XCB = 0x2000
QA = 0x10000
QB = 0x90000
YP = 0x110000
FP = 0x120000
LOCB = 0x200000
L_OP = 0
L_IN = 21504
INP = 5120
LOCP = 163840
RB = 0x200000
TS = 0x600000

SY = 0
FQ, FV, MX, FO, FY, FH, FWO, FGU, MODE, FG1, FPUB = (SY + o for o in (0, 16, 32, 48, 64, 80, 84, 88, 96, 112, 104))
FVSA = [SY + 4, SY + 8, SY + 12, SY + 100]
Q_LDS = 128
OW_LDS = 384
O2_LDS = 2560
YW_LDS = 4608
H_LDS = 5632
WD_LDS = 6144
WO_LDS = 16384
GU_LDS = 49152
V_LDS = 81920
K_LDS = WO_LDS
LDS_BYTES = V_LDS + 65536
VSTAGES = [(0, 6), (6, 12), (12, 15), (15, 16)]

sWID, sX, sI, sH, sJ8, sB, sJ, sAW = 's3', 's4', 's5', 's6', 's7', 's8', 's9', 's10'
sTAG = 's11'
sT = ['s12', 's13', 's14', 's15']
pX, pK, pV, pWQ, pWO, pWG, pWU = 16, 18, 20, 22, 24, 28, 30
pWD, pOUT, pDBG, pWS = 32, 34, 36, 38
sLOC = 's42'
sMODE = 's43'
sSPIN = 's52'
sSEL = 's53'
sXCC = 's54'
sTAG2 = 's55'
sT2 = ['s96', 's97', 's98', 's99']
sTP = 's100'
sU = 's101'
HIROWS = 's[58:59]'
SPIN_MAX = 100000
NWAVES = 6
LOG2E = 1.4426950408889634
DPPM = 'row_mask:0xf bank_mask:0xf'


def sp(n):
    return 's[%d:%d]' % (n, n + 1)


def v4(n):
    return 'v[%d:%d]' % (n, n + 3)


def v2(n):
    return 'v[%d:%d]' % (n, n + 1)


class Gen:
    def __init__(self, opts=()):
        self.a = Asm()
        self.opts = set(opts)
        self.stamps = 'stamps' in self.opts
        self.nt = ' nt'
        self.p = dict(depth=4, kfree=13, ldepth=32, ldepth2=12, v1n=32, v1d=16)
        for o in self.opts:
            if '=' in o:
                k, v = o.split('=')
                assert k in self.p
                self.p[k] = int(v)
        self.cold = []

    def stamp(self, k):
        if self.stamps:
            self.a('s_memrealtime %s' % sp(60 + 2 * k))

    def end_wave(self):
        a = self.a
        if self.stamps:
            a('s_mov_b64 exec, -1')
            self.stamp(15)
            a('s_waitcnt lgkmcnt(0)')
            a('v_mov_b32 v200, 0')
            for k in range(16):
                a('v_writelane_b32 v200, s%d, %d' % (60 + 2 * k, k))
            a('s_mul_i32 s44, s2, %d' % NWAVES)
            a('s_add_u32 s44, s44, %s' % sWID)
            a('s_lshl_b32 s44, s44, 6')
            a('s_add_u32 s44, s44, %d' % TS)
            a('v_lshlrev_b32 v201, 2, v0')
            a('v_add_u32 v201, s44, v201')
            a('s_mov_b64 exec, 0xffff')
            a('global_store_dword v201, v200, %s' % sp(pWS))
        a('s_endpgm')

    def tag4(self, base, second=False):
        t = sT2 if second else sT
        for k in range(4):
            self.a('v_and_or_b32 v%d, v%d, v7, %s' % (base + k, base + k, t[k]))

    def prefill(self, base, second=False):
        t = sT2 if second else sT
        for k in range(4):
            self.a('v_mov_b32 v%d, %s' % (base + k, t[k]))

    def check4(self, base, t, first, second=False, dst=None, last=False):
        a = self.a
        tg = sT2 if second else sT
        d = base if dst is None else dst
        for k in range(4):
            a('v_xor_b32 v%d, %s, v%d' % (d + k, tg[k], base + k))
        if first:
            a('v_or3_b32 v%d, v%d, v%d, v%d' % (t, d, d + 1, d + 2))
            a('v_or_b32 v%d, v%d, v%d' % (t, t, d + 3))
        else:
            a('v_or3_b32 v%d, v%d, v%d, v%d' % (t, t, d, d + 1))
            a('v_or3_b32 v%d, v%d, v%d, v%d' % (t, t, d + 2, d + 3))
        if last:
            a('v_and_b32 v%d, 0xff, v%d' % (t, t))

    def check1(self, reg, t, first, second=False):
        self.a('v_sad_u8 v%d, v%d, %s, %s' % (t, reg, sTAG2 if second else sTAG, '0' if first else 'v%d' % t))

    def poll(self, loads, checks, acc, wait='vmcnt(0)', sleep=0):
        a = self.a
        top = a.newlabel('L_poll')
        retry = a.newlabel('L_retry')
        done = a.newlabel('L_pdone')
        a('s_mov_b32 %s, %d' % (sSPIN, SPIN_MAX if wait.startswith('vm') else SPIN_MAX * 8))
        a.label(top)
        loads()
        a('s_waitcnt %s' % wait)
        checks()
        a('v_cmp_ne_u32 vcc, 0, v%d' % acc)
        a('s_cbranch_vccnz %s' % retry)
        a.label(done)

        def cold():
            a.label(retry)
            if sleep:
                a('s_sleep %d' % sleep)
            a('s_sub_u32 %s, %s, 1' % (sSPIN, sSPIN))
            a('s_cbranch_scc0 %s' % top)
            a('s_branch %s' % done)
        self.cold.append(cold)

    def wait_flag(self, addr, n, t, extra=None, sleep=0, lazy=False):
        a = self.a

        def loads():
            if n == 1:
                a('ds_read_b32 v%d, v190 offset:%d' % (t, addr))
            else:
                a('ds_read_b128 %s, v190 offset:%d' % (v4(t), addr))
            if extra and not lazy:
                extra()

        def checks():
            if n == 4:
                a('v_or3_b32 v%d, v%d, v%d, v%d' % (t, t, t + 1, t + 2))
                a('v_or_b32 v%d, v%d, v%d' % (t, t, t + 3))
        self.poll(loads, checks, t, wait='lgkmcnt(0)', sleep=max(sleep, 1) if lazy else sleep)
        if extra and lazy:
            extra()
            a('s_waitcnt lgkmcnt(0)')

    def wait_scores(self, t):
        a = self.a

        def loads():
            a('ds_read_b128 %s, v190 offset:%d' % (v4(t), MX))

        def checks():
            a('v_or3_b32 v%d, v%d, v%d, v%d' % (t, t, t + 1, t + 2))
            a('v_or_b32 v%d, v%d, v%d' % (t, t, t + 3))
            a('v_and_b32 v%d, 1, v%d' % (t, t))
        self.poll(loads, checks, t, wait='lgkmcnt(0)', sleep=1)

    def set_flag(self, vaddr, off):
        self.a('ds_write_b32 v%d, v190 offset:%d' % (vaddr, off))

    def st_local(self, stores, pre=None):
        a = self.a
        lg = a.newlabel('L_sg')
        ld = a.newlabel('L_sd')
        a('s_cmp_lg_u32 %s, 0' % sMODE)
        a('s_cbranch_scc1 %s' % lg)
        for k, (va, d, off) in enumerate(stores):
            if pre:
                pre(k)
            a('global_store_dwordx4 v%d, %s, %s offset:%d' % (va, v4(d), sp(pWS), off))
        a.label(ld)

        def cold():
            a.label(lg)
            a('s_nop 7')
            for k, (va, d, off) in enumerate(stores):
                if pre:
                    pre(k)
                a('global_store_dwordx4 v%d, %s, %s offset:%d sc1' % (va, v4(d), sp(pWS), off))
            a('s_nop 1')
            a('s_branch %s' % ld)
        self.cold.append(cold)

    def flush_cold(self):
        while self.cold:
            c = self.cold.pop(0)
            self.a.reset()
            c()

    def get_mode(self, t):
        a = self.a

        def loads():
            a('ds_read_b32 v%d, v190 offset:%d' % (t, MODE))

        def checks():
            a('v_lshrrev_b32 v%d, 1, v%d' % (t + 1, t))
        self.poll(loads, checks, t + 1, wait='lgkmcnt(0)', sleep=1)
        a('v_readfirstlane_b32 s44, v%d' % t)
        a('s_cmp_eq_u32 s44, 0')
        a('s_cselect_b32 %s, 0, %d' % (sMODE, RB))
        a('s_mul_i32 %s, %s, %d' % (sLOC, sX, LOCP))
        a('s_add_u32 %s, %s, %d' % (sLOC, sLOC, LOCB))
        a('s_add_u32 %s, %s, %s' % (sLOC, sLOC, sMODE))

    def allreduce(self, rs, tmps, op='add', steps=('x1', 'x2', 'r4', 'r8', 'p16')):
        a = self.a
        dpp = {'x1': 'quad_perm:[1,0,3,2]', 'x2': 'quad_perm:[2,3,0,1]', 'r4': 'row_ror:4',
               'r8': 'row_ror:8', 'hm': 'row_half_mirror'}
        for st in steps:
            if st in dpp:
                for r in rs:
                    a('v_%s_f32_dpp v%d, v%d, v%d %s %s' % (op, r, r, r, dpp[st], DPPM))
            else:
                ins = 'v_permlane16_swap_b32' if st == 'p16' else 'v_permlane32_swap_b32'
                for r, t in zip(rs, tmps):
                    a('v_mov_b32 v%d, v%d' % (t, r))
                for r, t in zip(rs, tmps):
                    a('%s v%d, v%d' % (ins, r, t))
                for r, t in zip(rs, tmps):
                    a('v_%s_f32 v%d, v%d, v%d' % (op, r, r, t))

    def rs4(self, b):
        a = self.a
        a('v_permlane32_swap_b32 v%d, v%d' % (b, b + 2))
        a('v_permlane32_swap_b32 v%d, v%d' % (b + 1, b + 3))
        a('v_add_f32 v%d, v%d, v%d' % (b, b, b + 2))
        a('v_add_f32 v%d, v%d, v%d' % (b + 1, b + 1, b + 3))
        a('v_permlane16_swap_b32 v%d, v%d' % (b, b + 1))
        a('v_add_f32 v%d, v%d, v%d' % (b, b, b + 1))

    def expand4(self, b):
        a = self.a
        a('v_mov_b32 v%d, v%d' % (b + 1, b))
        a('v_permlane16_swap_b32 v%d, v%d' % (b, b + 1))
        a('v_mov_b32 v%d, v%d' % (b + 2, b))
        a('v_mov_b32 v%d, v%d' % (b + 3, b + 1))
        a('v_permlane32_swap_b32 v%d, v%d' % (b, b + 2))
        a('v_permlane32_swap_b32 v%d, v%d' % (b + 1, b + 3))

    def rowtag(self, dst):
        a = self.a
        a('v_lshlrev_b32 v%d, 3, v2' % dst)
        a('v_lshrrev_b32 v%d, v%d, %s' % (dst, dst, sTAG))
        a('v_and_b32 v%d, 0xff, v%d' % (dst, dst))

    def sparse(self, dst, src):
        for k in range(4):
            self.a('v_and_b32 v%d, v%d, v%d' % (dst + k, src, 3 + k))

    def mfma(self, d, x, y, first):
        self.a('v_mfma_f32_16x16x32_bf16 %s, %s, %s, %s' % (v4(d), v4(x), v4(y), '0' if first else v4(d)))

    def bf16_round4(self, src, dst):
        a = self.a
        a('v_cvt_pk_bf16_f32 v%d, v%d, v%d' % (dst, src, src + 1))
        a('v_cvt_pk_bf16_f32 v%d, v%d, v%d' % (dst + 2, src + 2, src + 3))
        a('v_and_b32 v%d, 0xffff0000, v%d' % (dst + 1, dst))
        a('v_lshlrev_b32 v%d, 16, v%d' % (dst, dst))
        a('v_and_b32 v%d, 0xffff0000, v%d' % (dst + 3, dst + 2))
        a('v_lshlrev_b32 v%d, 16, v%d' % (dst + 2, dst + 2))

    def consts(self, t=8):
        a = self.a
        a('v_and_b32 v%d, 7, v0' % t)
        a('v_and_b32 v%d, 1, v%d' % (t + 1, t))
        a('v_cmp_eq_u32 vcc, 1, v%d' % (t + 1))
        a('v_mov_b32 v%d, 0xffff' % (t + 1))
        a('v_mov_b32 v%d, 0xffff0000' % (t + 2))
        a('v_cndmask_b32 v%d, v%d, v%d, vcc' % (t + 1, t + 1, t + 2))
        a('v_lshrrev_b32 v%d, 1, v%d' % (t, t))
        for k in range(4):
            a('v_cmp_eq_u32 vcc, %d, v%d' % (k, t))
            a('v_cndmask_b32 v%d, 0, v%d, vcc' % (3 + k, t + 1))
        a('v_mov_b32 v7, 0xffffff00')
        a('s_mov_b32 %s, 0x0c0c0400' % sSEL)
        a('s_mov_b32 s58, 0xff00ff00')
        a('s_mov_b32 s59, 0xff00ff00')

    def tagcalc(self):
        a = self.a
        a('s_mul_i32 %s, %s, 0x9e3779b1' % (sTAG, sTAG))
        a('s_add_u32 %s, %s, 0x7f4a7c15' % (sTAG, sTAG))
        a('s_xor_b32 %s, %s, 0x5a5a5a5a' % (sTAG2, sTAG))
        for tg, t in ((sTAG, sT), (sTAG2, sT2)):
            a('s_and_b32 %s, %s, 0xff' % (t[0], tg))
            a('s_bfe_u32 %s, %s, 0x80008' % (t[1], tg))
            a('s_bfe_u32 %s, %s, 0x80010' % (t[2], tg))
            a('s_lshr_b32 %s, %s, 24' % (t[3], tg))

    def roles(self):
        a = self.a
        a('s_sub_u32 %s, %s, 12' % (sTP, sI))
        a('s_max_i32 %s, %s, 0' % (sTP, sTP))
        a('s_add_u32 %s, %s, 12' % (sU, sI))
        a('s_cmp_lt_u32 %s, 12' % sI)
        a('s_cselect_b32 %s, %s, %s' % (sU, sI, sU))
        a('s_sub_u32 s44, %s, 8' % sI)
        a('s_cmp_ge_u32 %s, 20' % sI)
        a('s_cselect_b32 %s, s44, %s' % (sU, sU))

    def ln_finish(self, rm, rv):
        a = self.a
        a('v_cvt_pk_bf16_f32 v%d, v%d, v%d' % (rv, rm, rv))
        a('v_lshlrev_b32 v%d, 16, v%d' % (rm, rv))
        a('v_and_b32 v%d, 0xffff0000, v%d' % (rv, rv))
        a('v_add_f32 v%d, 0x%x, v%d' % (rv, f2u(1e-5), rv))
        a('v_cvt_pk_bf16_f32 v%d, v%d, v%d' % (rv, rv, rv))
        a('v_and_b32 v%d, 0xffff0000, v%d' % (rv, rv))
        a('v_sqrt_f32 v%d, v%d' % (rv, rv))
        a('v_cvt_pk_bf16_f32 v%d, v%d, v%d' % (rv, rv, rv))
        a('v_and_b32 v%d, 0xffff0000, v%d' % (rv, rv))
        a('v_rcp_f32 v%d, v%d' % (rv, rv))

    def gather8(self, vaddr, G, stampk):
        a = self.a

        def loads():
            a('global_load_dwordx4 %s, v%d, %s sc1' % (v4(G), vaddr, sp(pWS)))
            a('global_load_dwordx4 %s, v%d, %s offset:1024 sc1' % (v4(G + 4), vaddr, sp(pWS)))

        def checks():
            self.check4(G, G + 8, True)
            self.check4(G + 4, G + 8, False, last=True)
        self.poll(loads, checks, G + 8)
        self.stamp(stampk)
        for r in range(4):
            a('v_add_f32 v%d, v%d, v%d' % (G + r, G + r, G + 4 + r))
        self.rs4(G)

    def slice_off(self, dst, t):
        a = self.a
        a('v_and_b32 v%d, 1, v1' % t)
        a('v_mul_u32_u24 v%d, 1280, v%d' % (t, t))
        a('v_lshrrev_b32 v%d, 1, v1' % dst)
        a('v_lshl_add_u32 v%d, v%d, 3, v%d' % (dst, dst, t))
        a('v_lshl_add_u32 v%d, v2, 1, v%d' % (dst, dst))
        a('s_lshl_b32 s44, %s, 6' % sTP)
        a('v_add_u32 v%d, s44, v%d' % (dst, dst))

    def h_addr(self, dst, t):
        a = self.a
        a('v_and_b32 v%d, 1, v1' % t)
        a('v_lshlrev_b32 v%d, 7, v%d' % (t, t))
        a('v_lshrrev_b32 v%d, 1, v1' % dst)
        a('v_lshl_add_u32 v%d, v%d, 2, v%d' % (dst, dst, t))
        a('v_lshl_add_u32 v%d, v2, 5, v%d' % (dst, dst))

    def prologue(self):
        a = self.a
        a('s_cmp_ge_u32 s2, 256')
        a('s_cbranch_scc1 L_exit')
        a('s_load_dwordx16 s[16:31], s[0:1], 0')
        a('s_load_dwordx8 s[32:39], s[0:1], 64')
        a('s_getpc_b64 s[56:57]')
        a.label('L_pc')
        a('s_lshr_b32 %s, s2, 3' % sI)
        a('s_lshl_b32 s44, %s, 10' % sI)
        a('v_lshl_add_u32 v8, v0, 6, s44')
        a('v_min_u32 v8, L_exit-L_pc, v8')
        a('v_cmp_gt_u32 vcc, 16, v0')
        a('s_and_saveexec_b64 s[44:45], vcc')
        a('s_cbranch_execz L_npf')
        a('global_load_dword v199, v8, s[56:57]')
        a.label('L_npf')
        a('s_mov_b64 exec, -1')
        if self.stamps:
            for k in range(1, 16):
                a('s_mov_b64 %s, 0' % sp(60 + 2 * k))
        self.stamp(0)
        if 'probe' in self.opts:
            a('s_memrealtime s[92:93]')
        a('v_lshrrev_b32 v1, 6, v0')
        a('v_and_b32 v0, 63, v0')
        a('v_readfirstlane_b32 %s, v1' % sWID)
        a('s_and_b32 %s, s2, 7' % sX)
        a('s_and_b32 %s, %s, 3' % (sH, sI))
        a('s_lshl_b32 s44, %s, 2' % sX)
        a('s_add_u32 %s, %s, s44' % (sH, sH))
        a('s_lshr_b32 %s, %s, 2' % (sJ8, sI))
        a('s_lshr_b32 %s, %s, 2' % (sB, sJ8))
        a('s_and_b32 %s, %s, 3' % (sJ, sJ8))
        a('v_and_b32 v1, 15, v0')
        a('v_lshrrev_b32 v2, 4, v0')
        a('v_mov_b32 v190, 0')
        a('s_sub_u32 %s, %s, 1' % (sAW, sWID))
        a('s_cmp_eq_u32 %s, 5' % sWID)
        a('s_cbranch_scc1 L_load')
        a('s_cmp_eq_u32 %s, 0' % sWID)
        a('s_cbranch_scc1 L_comm')

    def comm(self):
        a = self.a
        WQ, XR, XN, XS, F = 16, 96, 106, 14, 116
        a.label('L_comm')
        a.reset()
        self.roles()
        a('v_bfe_u32 v8, v0, 3, 1')
        a('v_mul_u32_u24 v8, 1280, v8')
        a('v_and_b32 v9, 7, v0')
        a('v_lshl_add_u32 v9, v2, 3, v9')
        a('v_mul_u32_u24 v9, 40, v9')
        a('v_add_u32 v10, v8, v9')
        a('s_mul_i32 s44, %s, 160' % sJ8)
        a('v_mul_u32_u24 v9, 40, v2')
        a('v_add3_u32 v11, v8, v9, s44')
        a('s_mul_i32 s44, %s, %d' % (sJ8, 80 * 8192))
        a('s_lshl_b32 s45, %s, 8' % sH)
        a('s_add_u32 s44, s44, s45')
        a('v_mul_u32_u24 v12, %d, v2' % (20 * 8192))
        a('v_lshl_add_u32 v12, v1, 4, v12')
        a('v_add_u32 v12, s44, v12')
        self.slice_off(13, 8)
        a('s_waitcnt lgkmcnt(0)')
        a('s_load_dword %s, %s, %d' % (sTAG, sp(pWS), EPOCH))
        for base, va in ((XR, 10), (XN, 11)):
            a('global_load_dwordx4 %s, v%d, %s' % (v4(base), va, sp(pX)))
            a('global_load_dwordx4 %s, v%d, %s offset:16' % (v4(base + 4), va, sp(pX)))
            a('global_load_dwordx2 %s, v%d, %s offset:32' % (v2(base + 8), va, sp(pX)))
        a('global_load_ushort v%d, v13, %s' % (XS, sp(pX)))
        for n in range(20):
            a('global_load_dwordx4 %s, v12, %s%s' % (v4(WQ + 4 * n), sp(pWQ), self.nt))
            if n < 19:
                a('v_add_u32 v12, 8192, v12')
        a('s_barrier')
        a('s_setprio 3')
        self.stamp(1)
        self.consts()
        a('s_getreg_b32 %s, hwreg(HW_REG_XCC_ID)' % sXCC)
        a('s_and_b32 %s, %s, 0xf' % (sXCC, sXCC))
        a('v_and_b32 v10, 31, v0')
        a('s_lshl_b32 s44, %s, 12' % sX)
        a('s_add_u32 s44, s44, %d' % XCB)
        a('v_lshlrev_b32 v142, 7, v10')
        a('v_add_u32 v142, s44, v142')
        a('s_lshl_b32 s44, %s, 10' % sH)
        a('s_add_u32 s44, s44, %d' % XCB)
        a('v_and_b32 v9, 7, v0')
        a('v_lshlrev_b32 v143, 7, v9')
        a('v_add_u32 v143, s44, v143')
        a('s_lshl_b32 s44, %s, 14' % sH)
        a('s_add_u32 s44, s44, %d' % QA)
        a('v_lshrrev_b32 v9, 1, v2')
        a('v_lshlrev_b32 v9, 13, v9')
        a('v_and_b32 v10, 1, v2')
        a('v_lshl_add_u32 v10, v1, 1, v10')
        a('v_lshl_add_u32 v12, v10, 4, v9')
        a('v_add_u32 v12, s44, v12')
        a('s_and_b32 s45, %s, 1' % sJ8)
        a('s_lshl_b32 s45, s45, 9')
        a('s_lshr_b32 s46, %s, 1' % sJ8)
        a('s_lshl_b32 s46, s46, 2')
        a('s_add_u32 s45, s45, s46')
        a('s_add_u32 s45, s45, 4096')
        a('v_add_u32 v140, s45, v12')
        a('s_lshl_b32 s45, %s, 9' % sJ8)
        a('v_add_u32 v12, s45, v12')
        a('s_lshl_b32 s45, %s, 13' % sB)
        a('s_add_u32 s45, s45, s44')
        a('s_add_u32 s45, s45, 2048')
        a('v_lshlrev_b32 v13, 4, v0')
        a('v_add_u32 v13, s45, v13')
        a('s_waitcnt vmcnt(20)')
        self.stamp(2)
        for k in range(10):
            a('v_lshlrev_b32 v%d, 16, v%d' % (F + 2 * k, XR + k))
            a('v_and_b32 v%d, 0xffff0000, v%d' % (F + 2 * k + 1, XR + k))
        a('v_add_f32 v8, v%d, v%d' % (F, F + 1))
        a('v_add_f32 v9, v%d, v%d' % (F + 2, F + 3))
        for k in range(4, 20, 2):
            a('v_add_f32 v8, v8, v%d' % (F + k))
            a('v_add_f32 v9, v9, v%d' % (F + k + 1))
        a('v_add_f32 v8, v8, v9')
        red = ('x1', 'x2', 'hm', 'p16', 'p32')
        self.allreduce([8], [9], steps=red)
        a('v_mul_f32 v8, 0x%x, v8' % f2u(1.0 / 640))
        a('v_mov_b32 v9, 0')
        a('v_mov_b32 v10, 0')
        for k in range(0, 20, 2):
            a('v_sub_f32 v%d, v%d, v8' % (F + k, F + k))
            a('v_sub_f32 v%d, v%d, v8' % (F + k + 1, F + k + 1))
            a('v_fmac_f32 v9, v%d, v%d' % (F + k, F + k))
            a('v_fmac_f32 v10, v%d, v%d' % (F + k + 1, F + k + 1))
        a('v_add_f32 v9, v9, v10')
        self.allreduce([9], [10], steps=red)
        a('v_mul_f32 v9, 0x%x, v9' % f2u(1.0 / 640))
        self.ln_finish(8, 9)
        a('s_waitcnt lgkmcnt(0)')
        self.tagcalc()
        self.stamp(3)
        D = 136
        A = [96, 100]
        for k in range(10):
            a('v_lshlrev_b32 v10, 16, v%d' % (XN + k))
            a('v_and_b32 v11, 0xffff0000, v%d' % (XN + k))
            a('v_sub_f32 v10, v10, v8')
            a('v_sub_f32 v11, v11, v8')
            a('v_cvt_pk_bf16_f32 v10, v10, v11')
            a('v_and_b32 v11, 0xffff0000, v10')
            a('v_lshlrev_b32 v10, 16, v10')
            a('v_mul_f32 v10, v10, v9')
            a('v_mul_f32 v11, v11, v9')
            a('v_cvt_pk_bf16_f32 v10, v10, v10')
            a('v_cvt_pk_bf16_f32 v11, v11, v11')
            self.sparse(A[0], 10)
            self.sparse(A[1], 11)
            a('s_waitcnt vmcnt(%d)' % (18 - 2 * k))
            self.mfma(D, A[0], WQ + 8 * k, k == 0)
            self.mfma(D, A[1], WQ + 8 * k + 4, False)

        def qhash(dst, b, t):
            a('v_alignbit_b32 v%d, v%d, v%d, 8' % (dst, b + 1, b + 1))
            a('v_alignbit_b32 v%d, v%d, v%d, 16' % (t, b + 2, b + 2))
            a('v_xor_b32 v%d, v%d, v%d' % (dst, dst, b))
            a('v_xor_b32 v%d, v%d, v%d' % (dst, dst, t))
            a('v_alignbit_b32 v%d, v%d, v%d, 24' % (t, b + 3, b + 3))
            a('v_xor_b32 v%d, v%d, v%d' % (dst, dst, t))
        a('global_store_dwordx4 v12, %s, %s' % (v4(D), sp(pWS)))
        qhash(145, D, 146)
        a('v_xor_b32 v145, %s, v145' % sTAG)
        if 'forceglobal' not in self.opts:
            a('global_store_dword v140, v145, %s' % sp(pWS))
        a('global_load_dwordx2 v[44:45], v142, %s sc1' % sp(pWS))
        self.stamp(4)
        a('s_waitcnt vmcnt(0)')
        self.stamp(13)
        l_nm = a.newlabel('L_nm')
        a('v_cmp_ne_u32 s[48:49], %s, v44' % sTAG)
        a('v_cmp_ne_u32 s[50:51], %s, v45' % sXCC)
        a('s_or_b64 s[48:49], s[48:49], s[50:51]')
        a('s_cselect_b32 s41, 1, 0')
        if 'forceglobal' in self.opts:
            a('s_mov_b32 s41, 1')
        a('s_cmp_lg_u32 s41, 0')
        a('s_cbranch_scc1 %s' % l_nm)
        self.set_flag(190, MODE)
        a.label(l_nm)
        G = 16
        top = a.newlabel('L_q')
        nxt = a.newlabel('L_qn')
        done = a.newlabel('L_qd')
        a('s_mov_b32 %s, %d' % (sSPIN, SPIN_MAX))
        a('s_mov_b32 s40, 0')
        a.label(top)
        for k in range(5):
            a('global_load_dwordx4 %s, v13, %s offset:%d sc1' % (v4(G + 4 * k), sp(pWS), k * 1024 - 2048))
        a('s_waitcnt vmcnt(0)')
        for k in range(4):
            qhash(40, G + 4 * k, 41)
            a('v_xor_b32 v40, v40, v%d' % (G + 16 + k))
            self.check1(40, 42, k == 0)
        a('v_cmp_ne_u32 vcc, 0, v42')
        a('s_cbranch_vccz %s' % done)
        a('s_and_b32 s44, %s, 3' % sSPIN)
        a('s_or_b32 s44, s44, s40')
        a('s_cmp_lg_u32 s44, 1')
        a('s_cbranch_scc1 %s' % nxt)
        a('global_load_dwordx2 v[16:17], v143, %s sc1' % sp(pWS))
        a('s_waitcnt vmcnt(0)')
        a('v_cmp_ne_u32 s[48:49], %s, v16' % sTAG)
        a('v_cmp_ne_u32 s[50:51], %s, v17' % sXCC)
        a('s_cmp_lg_u64 s[48:49], 0')
        a('s_cbranch_scc1 %s' % nxt)
        if 'forceglobal' not in self.opts:
            a('s_cmp_eq_u64 s[50:51], 0')
            a('s_cbranch_scc1 %s' % nxt)
        a('s_mov_b32 s40, 2')
        a('v_add_u32 v12, %d, v12' % (QB - QA))
        a('v_add_u32 v13, %d, v13' % (QB - QA))
        a('v_add_u32 v140, %d, v140' % (QB - QA))
        a('global_store_dwordx4 v12, %s, %s sc1' % (v4(D), sp(pWS)))
        a('global_store_dword v140, v145, %s sc1' % sp(pWS))
        a.label(nxt)
        a('s_sub_u32 %s, %s, 1' % (sSPIN, sSPIN))
        a('s_cmp_lg_u32 %s, 0' % sSPIN)
        a('s_cbranch_scc1 %s' % top)
        a.label(done)
        self.stamp(5)
        for r in range(4):
            a('v_add_f32 v%d, v%d, v%d' % (8 + r, G + r, G + 4 + r))
            a('v_add_f32 v%d, v%d, v%d' % (G + 8 + r, G + 8 + r, G + 12 + r))
        for r in range(4):
            a('v_add_f32 v%d, v%d, v%d' % (8 + r, 8 + r, G + 8 + r))
        self.allreduce([8, 9, 10, 11], [48, 49, 50, 51], steps=('p32',))
        a('v_cvt_pk_bf16_f32 v8, v8, v9')
        a('v_cvt_pk_bf16_f32 v9, v10, v11')
        a('v_and_b32 v10, 31, v0')
        a('v_lshlrev_b32 v10, 3, v10')
        a('ds_write_b64 v10, v[8:9] offset:%d' % Q_LDS)
        self.set_flag(190, FQ)
        self.stamp(6)

        skip = a.newlabel('L_xq')
        a('s_cmp_eq_u32 s41, 0')
        a('s_cbranch_scc1 %s' % skip)

        def loads():
            a('global_load_dwordx2 v[16:17], v142, %s sc1' % sp(pWS))

        def checks():
            self.check1(16, 18, True)
        self.poll(loads, checks, 18, sleep=4)
        a('v_cmp_ne_u32 s[50:51], %s, v17' % sXCC)
        a('s_or_b64 s[50:51], s[50:51], vcc')
        a('s_cselect_b32 s44, 1, 0')
        if 'forceglobal' in self.opts:
            a('s_mov_b32 s44, 1')
        a('v_mov_b32 v8, s44')
        a('ds_write_b32 v190, v8 offset:%d' % MODE)
        a('s_or_b32 s44, s44, s40')
        a('s_cmp_lg_u32 s44, 1')
        a('s_cbranch_scc1 %s' % skip)
        a('v_add_u32 v12, %d, v12' % (QB - QA))
        a('v_add_u32 v140, %d, v140' % (QB - QA))
        a('global_store_dwordx4 v12, %s, %s sc1' % (v4(D), sp(pWS)))
        a('global_store_dword v140, v145, %s sc1' % sp(pWS))
        a.label(skip)
        self.get_mode(8)
        a('v_lshlrev_b32 v150, 4, v0')
        a('s_mul_i32 s44, %s, 640' % sI)
        a('s_add_u32 s44, s44, %s' % sLOC)
        a('v_add_u32 v151, s44, v150')
        a('s_lshl_b32 s44, %s, 11' % sTP)
        a('s_add_u32 s44, s44, %d' % YP)
        a('v_add_u32 v152, s44, v150')
        a('s_lshl_b32 s44, %s, 11' % sI)
        a('s_lshl_b32 s45, %s, 8' % sX)
        a('s_add_u32 s44, s44, s45')
        a('s_add_u32 s44, s44, %d' % YP)
        a('v_add_u32 v153, s44, v150')
        self.h_addr(154, 8)
        a('s_lshl_b32 s44, %s, 4' % sTP)
        a('s_add_u32 s44, s44, %s' % sLOC)
        a('s_add_u32 s44, s44, %d' % (L_IN + 3840))
        a('v_lshrrev_b32 v8, 1, v0')
        a('v_min_u32 v8, 26, v8')
        a('v_mul_u32_u24 v8, %d, v8' % INP)
        a('v_and_b32 v9, 1, v0')
        a('v_lshl_add_u32 v8, v9, 9, v8')
        a('v_add_u32 v155, s44, v8')
        if 'nofpt2' not in self.opts:
            l_nt = a.newlabel('L_nt')
            a('s_and_b32 s44, %s, 7' % sTP)
            a('s_cmp_lg_u32 s44, %s' % sX)
            a('s_cbranch_scc1 %s' % l_nt)
            a('s_cmp_lt_u32 %s, 12' % sI)
            a('s_cbranch_scc1 %s' % l_nt)
            a('v_add_u32 v8, %d, v152' % (FP - YP))
            a('global_load_dwordx4 v[164:167], v8, %s sc1' % sp(pWS))
            a('global_load_dwordx4 v[168:171], v8, %s offset:1024 sc1' % sp(pWS))
            a.label(l_nt)
        self.rowtag(156)
        a('v_lshlrev_b32 v%d, 16, v%d' % (XS, XS))
        a('v_mov_b32 v30, %s' % sTAG)
        a('v_mov_b32 v31, %s' % sTAG)
        a('s_mov_b32 exec_hi, 1')

        def rd():
            for w in range(4):
                a('ds_read_b128 %s, v150 offset:%d' % (v4(32 + 4 * w), OW_LDS + 528 * w))
        self.wait_flag(FVSA[2], 1, 8, sleep=2)
        self.wait_flag(FO, 4, 8, rd)
        self.stamp(7)
        for r in range(4):
            a('v_add_f32 v%d, v%d, v%d' % (32 + r, 32 + r, 36 + r))
            a('v_add_f32 v%d, v%d, v%d' % (40 + r, 40 + r, 44 + r))
        for r in range(4):
            a('v_add_f32 v%d, v%d, v%d' % (8 + r, 32 + r, 40 + r))
        self.tag4(8)
        self.st_local([(151, 8, L_OP)])
        self.set_flag(190, FPUB)
        a('s_mov_b64 exec, -1')
        self.stamp(8)
        l_noy = a.newlabel('L_noy')
        fin = a.newlabel('L_cend')
        a('s_cmp_ge_u32 %s, 20' % sI)
        a('s_cbranch_scc1 %s' % l_noy)

        def rd():
            a('ds_read_b128 v[32:35], v150 offset:%d' % YW_LDS)
        self.wait_flag(FG1, 4, 36, sleep=1)
        self.wait_flag(FY, 4, 36, rd)
        self.stamp(9)
        self.rs4(32)
        a('v_and_or_b32 v32, v32, v7, v156')
        self.expand4(32)
        a('s_mov_b64 exec, 0xffff')
        a('global_store_dwordx4 v153, v[32:35], %s sc1' % sp(pWS))
        a('s_mov_b64 exec, -1')
        a.label(l_noy)
        a('s_cmp_lt_u32 %s, 12' % sI)
        a('s_cbranch_scc1 %s' % fin)
        self.gather8(152, 16, 10)
        a('v_cvt_pk_bf16_f32 v16, v16, v16')
        a('v_and_b32 v16, 0xffff0000, v16')
        a('v_add_f32 v16, v16, v%d' % XS)
        a('v_cvt_pk_bf16_f32 v16, v16, v16')
        a('ds_write_b32 v154, v16 offset:%d' % H_LDS)
        self.set_flag(190, FH)
        self.stamp(11)
        a('v_and_b32 v28, 0xffff0000, v16')
        a('v_mul_f32 v29, v28, v28')
        self.allreduce([28, 29], [17, 18], steps=('x2', 'r4', 'r8', 'p16', 'p32'))
        self.st_local([(155, 28, 0)])
        a.label(fin)
        self.end_wave()
        self.flush_cold()

    def load_start(self):
        a = self.a
        a.label('L_load')
        a.reset()
        a('v_mov_b32 v8, -1')
        a('v_lshlrev_b32 v9, 2, v0')
        a('s_mov_b32 exec_hi, 0')
        a('ds_write_b32 v9, v8 offset:%d' % SY)
        a('s_mov_b64 exec, -1')
        a('s_waitcnt lgkmcnt(0)')
        a('s_load_dword %s, %s, %d' % (sTAG, sp(pWS), EPOCH))
        a('s_barrier')
        a('s_branch L_load2')

    def loader(self):
        a = self.a
        a.label('L_load2')
        a.reset()
        self.roles()
        a('s_setprio 2')
        self.stamp(1)
        a('s_getreg_b32 %s, hwreg(HW_REG_XCC_ID)' % sXCC)
        a('s_and_b32 %s, %s, 0xf' % (sXCC, sXCC))
        a('s_lshl_b32 s44, %s, 10' % sH)
        a('s_lshl_b32 s45, %s, 7' % sJ8)
        a('s_add_u32 s44, s44, s45')
        a('s_add_u32 s44, s44, %d' % XCB)
        a('v_mov_b32 v11, s44')
        a('v_mov_b32 v15, %s' % sXCC)
        a('s_mul_i32 s44, %s, %d' % (sX, 512 * 1280))
        a('s_min_u32 s45, %s, 19' % sI)
        a('s_lshl_b32 s45, s45, 6')
        a('s_add_u32 s45, s44, s45')
        a('v_lshrrev_b32 v8, 2, v0')
        a('v_mul_u32_u24 v8, 1280, v8')
        a('v_and_b32 v9, 3, v0')
        a('v_lshl_add_u32 v8, v9, 4, v8')
        a('v_add_u32 v32, s45, v8')
        a('s_mul_i32 s45, %s, 20480' % sI)
        a('s_add_u32 s44, s44, s45')
        a('v_lshlrev_b32 v8, 6, v0')
        a('v_add_u32 v33, s44, v8')
        a('s_min_u32 s44, %s, 26' % sU)
        a('s_mul_i32 s44, s44, %d' % INP)
        a('s_mul_i32 s45, %s, %d' % (sX, LOCP))
        a('s_add_u32 s44, s44, s45')
        a('s_add_u32 s44, s44, %d' % (LOCB + L_IN))
        a('v_add_u32 v34, s44, v8')
        a('s_mul_i32 s44, %s, %d' % (sTP, 32 * 3456))
        a('s_mul_i32 s45, %s, 432' % sX)
        a('s_add_u32 s44, s44, s45')
        a('v_mul_u32_u24 v13, 3456, v2')
        a('v_add_u32 v13, s44, v13')
        a('v_lshl_add_u32 v56, v1, 4, v13')
        a('v_min_u32 v8, 10, v1')
        a('v_lshl_add_u32 v57, v8, 4, v13')
        a('v_add_u32 v57, 256, v57')
        a('s_sub_u32 s44, %s, 20' % sI)
        a('s_and_b32 s44, s44, 7')
        a('s_mul_i32 s44, s44, %d' % (32 * 3456))
        a('s_add_u32 s44, s44, s45')
        a('v_lshrrev_b32 v8, 3, v0')
        a('v_mul_u32_u24 v8, 3456, v8')
        a('v_and_b32 v9, 7, v0')
        a('v_lshlrev_b32 v9, 6, v9')
        a('v_min_u32 v9, 428, v9')
        a('v_add3_u32 v58, v8, v9, s44')
        a('s_mov_b64 s[92:93], %s' % sp(pWG))
        a('s_mov_b64 s[94:95], %s' % sp(pWU))
        a('s_mov_b32 s57, %d' % (8 * 3456))
        l_pd = a.newlabel('L_pd')
        a('s_cmp_lt_u32 %s, 28' % sI)
        a('s_cbranch_scc1 %s' % l_pd)
        a('s_mov_b64 s[92:93], %s' % sp(pWD))
        a('s_add_u32 s94, s%d, 4096' % pWD)
        a('s_addc_u32 s95, s%d, 0' % (pWD + 1))
        a('s_mov_b32 s57, 8192')
        a('s_sub_u32 s44, %s, 29' % sI)
        a('s_lshl_b32 s44, s44, 15')
        a('s_cmp_eq_u32 %s, 28' % sI)
        a('s_cselect_b32 s44, %d, s44' % (216 * 1280 - 32768))
        a('s_mul_i32 s45, %s, %d' % (sX, 216 * 1280))
        a('s_add_u32 s44, s44, s45')
        a('v_lshlrev_b32 v8, 6, v0')
        a('v_add_u32 v58, s44, v8')
        a.label(l_pd)
        a('s_min_u32 s44, %s, 26' % sU)
        a('s_lshl_b32 s44, s44, 3')
        a('s_mul_i32 s45, %s, 216' % sX)
        a('s_add_u32 s44, s44, s45')
        a('s_mul_i32 s44, s44, 1280')
        a('v_and_b32 v8, 1, v2')
        a('v_lshlrev_b32 v8, 1, v8')
        a('v_lshrrev_b32 v9, 1, v2')
        a('v_add_u32 v8, v8, v9')
        a('v_mul_u32_u24 v8, 2560, v8')
        a('v_lshl_add_u32 v8, v1, 4, v8')
        a('v_add_u32 v64, s44, v8')
        a('s_lshl_b32 s44, %s, 5' % sB)
        a('s_add_u32 s44, s44, %s' % sH)
        a('s_lshl_b32 s44, s44, 20')
        a('s_lshl_b32 s45, %s, 16' % sJ)
        a('s_add_u32 s44, s44, s45')
        a('s_add_u32 s44, s44, %d' % (3072 * 256))
        a('v_lshlrev_b32 v8, 10, v2')
        a('v_lshl_add_u32 v8, v1, 4, v8')
        if 'vlin' in self.opts:
            a('v_lshlrev_b32 v8, 4, v0')
        a('v_add_u32 v66, s44, v8')
        self.consts()
        a('s_waitcnt lgkmcnt(0)')
        self.tagcalc()
        a('v_mov_b32 v14, %s' % sTAG)
        a('s_mov_b64 exec, 1')
        a('global_store_dwordx2 v11, v[14:15], %s sc1' % sp(pWS))
        a('s_mov_b64 exec, -1')
        self.wait_flag(FV, 4, 16, sleep=1)
        self.stamp(3)
        l_nowo = a.newlabel('L_nowo')
        l_fin = a.newlabel('L_lfin')
        l_nogu = a.newlabel('L_nogu')
        marks = {4 * k1: t for t, (k0, k1) in enumerate(VSTAGES)}

        def fire(mk, donec):
            t = mk.pop(donec)
            self.set_flag(190, FVSA[t])
            if t == 3:
                self.stamp(7)

        def issue(kind, k, aw):
            if kind == 'v':
                a('s_mov_b32 m0, %d' % (V_LDS + 1024 * (4 * k + aw)))
                a('global_load_lds_dwordx4 v65, %s%s' % (sp(pV), self.nt))
            elif kind == 'p':
                a('global_load_dword v%d, v33, %s' % (80 + k, sp(pWO)))
                a('v_add_u32 v33, 4096, v33')
            elif kind == 't':
                a('global_load_dword v%d, v34, %s offset:%d sc1' % (86 + k, sp(pWS), 1024 * k))
            elif kind == 'd':
                a('global_load_dword v%d, v58, %s' % (70 + k, sp(94 if k & 1 else 92)))
                if k & 1:
                    a('v_add_u32 v58, s57, v58')
            elif kind == 'w':
                a('s_mov_b32 m0, %d' % (WO_LDS + 1024 * k))
                a('global_load_lds_dwordx4 v32, %s%s' % (sp(pWO), self.nt))
                a('v_add_u32 v32, 20480, v32')
            elif kind == 'g':
                a('s_mov_b32 m0, %d' % (GU_LDS + 1024 * (8 * aw + k)))
                a('global_load_lds_dwordx4 v%d, %s%s' % (56 + (aw & 1), sp(pWU if aw >> 1 else pWG), self.nt))
                if aw == 3:
                    a('v_add_u32 v56, %d, v56' % (4 * 3456))
                    a('v_add_u32 v57, %d, v57' % (4 * 3456))
            elif kind == 'n':
                a('s_mov_b32 m0, %d' % (WD_LDS + 1024 * k))
                a('v_add_u32 v65, %d, v64' % ((k // 5) * 1280 + (k % 5) * 256))
                a('global_load_lds_dwordx4 v65, %s%s' % (sp(pWD), self.nt))

        def stream(seq, mk, base, ld0, pub=False):
            for i, (kind, k, aw) in enumerate(seq):
                i += base
                if kind == 'v':
                    a('v_add_u32 v65, %d, v66' % ((4 * k + aw) * 1024 if 'vlin' in self.opts else aw * 16384 + (k >> 2) * 4096 + (k & 3) * 256))
                ld = ld0 if i >= self.p['v1n'] else self.p['v1d']
                if i >= ld and mk:
                    a('s_waitcnt vmcnt(%d)' % (ld - 1))
                    for donec in sorted(mk):
                        if donec <= i - ld + 1:
                            fire(mk, donec)
                    if not mk and pub:
                        self.wait_flag(FPUB, 1, 16)
                if (kind, k, aw) == ('g', 0, 0):
                    assert not mk
                issue(kind, k, aw)
            return base + len(seq)

        vs = [('v', k, aw) for k in range(16) for aw in range(4)]
        gs = [('g', n, cb) for n in range(8) for cb in range(4)]
        ns = [('n', q, 0) for q in range(10)]
        ex = [('p', i, 0) for i in range(5)] + [('t', 0, 0), ('t', 1, 0)]
        n = stream(vs + ex, marks, 0, self.p['ldepth'])
        a('s_cmp_ge_u32 %s, 20' % sI)
        a('s_cbranch_scc1 %s' % l_nowo)
        mk = dict(marks)
        for donec in sorted(mk):
            a('s_waitcnt vmcnt(%d)' % (n - donec))
            fire(mk, donec)
        self.wait_scores(16)
        a('s_waitcnt vmcnt(0)')
        self.stamp(2)
        for q in range(32):
            issue('w', q, 0)
        a('s_waitcnt vmcnt(0)')
        self.set_flag(190, FWO)
        self.stamp(4)
        self.wait_flag(FG1, 4, 16, sleep=1)
        a('s_cmp_lt_u32 %s, 12' % sI)
        a('s_cbranch_scc1 %s' % l_nogu)
        for e in gs:
            issue(*e)
        l_nod = a.newlabel('L_nod')
        a('s_cmp_ge_u32 %s, 27' % sU)
        a('s_cbranch_scc1 %s' % l_nod)
        a.label(l_nogu)
        for e in ns:
            issue(*e)
        a('s_branch %s' % l_fin)
        a.label(l_nod)
        a('s_waitcnt vmcnt(0)')
        a('s_branch %s' % l_fin)
        a.label(l_nowo)
        mk = dict(marks)
        ld2 = self.p['ldepth2']
        for donec in sorted(mk):
            if n - donec >= ld2:
                a('s_waitcnt vmcnt(%d)' % (n - donec))
                fire(mk, donec)
        stream([('d', i, 0) for i in range(8)] + gs + ns, mk, n, ld2, pub=True)
        assert not mk
        a.label(l_fin)
        a('s_waitcnt vmcnt(10)')
        self.set_flag(190, FGU)
        self.stamp(5)
        self.down_unit()

    def down_unit(self):
        a = self.a
        fin = a.newlabel('L_dend')
        a('s_cmp_ge_u32 %s, 27' % sU)
        a('s_cbranch_scc1 %s' % fin)
        DW = 96
        A0, A1 = 40, 44
        Gr, Cr, Sr, T = 16, 28, 36, 48
        self.get_mode(8)
        a('s_mul_i32 s45, %s, %d' % (sU, INP))
        a('s_add_u32 s45, s45, %s' % sLOC)
        a('s_add_u32 s45, s45, %d' % L_IN)
        a('v_and_b32 v8, 7, v0')
        a('v_lshrrev_b32 v9, 3, v0')
        a('v_lshlrev_b32 v156, 7, v8')
        a('v_lshl_add_u32 v156, v9, 4, v156')
        a('v_add_u32 v156, s45, v156')
        a('v_lshlrev_b32 v157, 6, v1')
        a('v_lshl_add_u32 v157, v2, 4, v157')
        a('v_add_u32 v157, s45, v157')
        a('v_bfe_u32 v158, v0, 3, 1')
        a('v_lshlrev_b32 v158, 5, v158')
        a('v_lshl_add_u32 v158, v2, 3, v158')
        a('v_add_u32 v158, v158, v8')
        a('v_lshlrev_b32 v158, 4, v158')
        a('v_add_u32 v158, s45, v158')
        a('v_and_b32 v159, 1, v2')
        a('v_lshl_add_u32 v159, v1, 1, v159')
        a('v_lshrrev_b32 v9, 1, v2')
        a('v_lshl_add_u32 v159, v159, 1, v9')
        a('v_lshlrev_b32 v159, 4, v159')
        a('v_add_u32 v159, s45, v159')
        a('v_add_u32 v159, 2048, v159')
        a('v_lshlrev_b32 v150, 4, v0')
        self.prefill(Cr + 4)
        self.prefill(Gr + 8)
        a('v_mov_b32 v%d, 0' % Sr)
        a('v_mov_b32 v%d, 0' % (Sr + 1))
        a('v_mov_b32 v%d, %s' % (Sr + 2, sTAG))
        a('s_mov_b32 s40, 0x000f000f')
        a('s_mov_b32 s41, 0x000f000f')

        def loads():
            a('global_load_dwordx4 %s, v157, %s offset:2560 sc1' % (v4(Cr), sp(pWS)))
            a('s_mov_b64 exec, s[40:41]')
            a('global_load_dwordx4 %s, v157, %s offset:3584 sc1' % (v4(Cr + 4), sp(pWS)))
            a('s_mov_b64 exec, -1')

        def checks():
            self.check4(Cr, T, True)
            self.check4(Cr + 4, T, False, dst=T + 4, last=True)
        self.poll(loads, checks, T, sleep=2)
        self.stamp(8)
        for q in range(10):
            a('ds_read_b128 %s, v150 offset:%d' % (v4(DW + 4 * q), WD_LDS + 1024 * q))
        for r in range(4):
            a('v_add_f32 v%d, v%d, v%d' % (Cr + r, Cr + r, T + 4 + r))
        self.allreduce([Cr, Cr + 1, Cr + 2, Cr + 3], [], steps=('x1', 'x2', 'hm', 'r8'))
        a('s_mov_b32 s40, 0x0f0f0f0f')
        a('s_mov_b32 s41, 0x0f0f0f0f')
        a('s_mov_b32 s46, -1')
        a('s_mov_b32 s47, 0x00000f0f')
        a('s_waitcnt lgkmcnt(0)')

        def loads():
            a('s_mov_b64 exec, s[46:47]')
            a('global_load_dwordx4 %s, v158, %s offset:3840 sc1' % (v4(Sr), sp(pWS)))
            a('s_mov_b64 exec, s[40:41]')
            a('global_load_dwordx4 %s, v156, %s offset:2048 sc1' % (v4(Gr + 8), sp(pWS)))
            a('s_mov_b64 exec, -1')
            for n in range(2):
                a('global_load_dwordx4 %s, v156, %s offset:%d sc1' % (v4(Gr + 4 * n), sp(pWS), 1024 * n))

        def checks():
            self.check4(Gr + 8, T, True, dst=T + 4)
            self.check4(Gr, T, False)
            self.check4(Gr + 4, T, False, last=True)
            self.check1(Sr + 2, T, False)
        self.poll(loads, checks, T)
        self.stamp(12)
        GG = [Gr, Gr + 1, Gr + 2, Gr + 3]
        SS = [Sr, Sr + 1]
        self.allreduce(SS, [], steps=('x1',))
        for r in range(4):
            a('v_add_f32 v%d, v%d, v%d' % (Gr + r, Gr + r, Gr + 4 + r))
        self.allreduce(SS, [], steps=('x2',))
        for r in range(4):
            a('v_add_f32 v%d, v%d, v%d' % (Gr + r, Gr + r, T + 4 + r))
        self.allreduce(SS, [], steps=('hm',))
        self.allreduce(GG, [], steps=('x1',))
        self.allreduce(SS, [T, T + 1], steps=('p16',))
        self.allreduce(GG, [], steps=('x2',))
        self.allreduce(SS, [T, T + 1], steps=('p32',))
        self.allreduce(GG, [], steps=('hm',))
        a('v_mul_f32 v%d, 0x%x, v%d' % (Sr, f2u(1.0 / 640), Sr))
        a('v_mul_f32 v%d, 0x%x, v%d' % (Sr + 1, f2u(1.0 / 640), Sr + 1))
        a('v_fma_f32 v%d, -v%d, v%d, v%d' % (Sr + 1, Sr, Sr, Sr + 1))
        a('v_max_f32 v%d, 0, v%d' % (Sr + 1, Sr + 1))
        self.ln_finish(Sr, Sr + 1)
        for r in range(4):
            a('v_fma_f32 v%d, -v%d, v%d, v%d' % (Gr + r, Sr, Cr + r, Gr + r))
        for r in range(4):
            a('v_mul_f32 v%d, v%d, v%d' % (Gr + r, Gr + r, Sr + 1))
        a('v_permlane32_swap_b32 v%d, v%d' % (Gr, Gr + 2))
        a('v_permlane32_swap_b32 v%d, v%d' % (Gr + 1, Gr + 3))
        self.bf16_round4(Gr, T)
        a('v_mul_f32 v%d, 0x%x, v%d' % (T + 4, f2u(-LOG2E), T))
        a('v_mul_f32 v%d, 0x%x, v%d' % (T + 5, f2u(-LOG2E), T + 1))
        a('v_exp_f32 v%d, v%d' % (T + 4, T + 4))
        a('v_exp_f32 v%d, v%d' % (T + 5, T + 5))
        a('v_add_f32 v%d, 1.0, v%d' % (T + 4, T + 4))
        a('v_add_f32 v%d, 1.0, v%d' % (T + 5, T + 5))
        a('v_rcp_f32 v%d, v%d' % (T + 4, T + 4))
        a('v_rcp_f32 v%d, v%d' % (T + 5, T + 5))
        a('v_mul_f32 v%d, v%d, v%d' % (T, T, T + 4))
        a('v_mul_f32 v%d, v%d, v%d' % (T + 1, T + 1, T + 5))
        a('v_cvt_pk_bf16_f32 v%d, v%d, v%d' % (T, T, T + 1))
        a('v_and_b32 v%d, 0xffff0000, v%d' % (T + 1, T))
        a('v_lshlrev_b32 v%d, 16, v%d' % (T, T))
        a('v_mul_f32 v%d, v%d, v%d' % (T, T, T + 2))
        a('v_mul_f32 v%d, v%d, v%d' % (T + 1, T + 1, T + 3))
        a('v_cvt_pk_bf16_f32 v%d, v%d, v%d' % (T, T, T))
        a('v_cvt_pk_bf16_f32 v%d, v%d, v%d' % (T + 1, T + 1, T + 1))
        self.sparse(A0, T)
        self.sparse(A1, T + 1)
        DD = 56
        for m in range(5):
            self.mfma(DD + 4 * m, A0, DW + 4 * m, True)
            self.mfma(DD + 4 * m, A1, DW + 20 + 4 * m, False)
        self.st_local([(159, DD + 4 * m, 1024 * m - 2048) for m in range(5)],
                      pre=lambda m: self.tag4(DD + 4 * m, second=True))
        a.label(fin)
        self.end_wave()
        self.flush_cold()

    def att_prep(self):
        a = self.a
        self.consts(12)
        a('v_lshlrev_b32 v176, 4, v2')
        a('v_and_b32 v177, 1, v2')
        a('v_lshl_add_u32 v177, v1, 1, v177')
        a('v_lshlrev_b32 v177, 4, v177')
        a('v_lshrrev_b32 v12, 5, v0')
        a('v_lshl_add_u32 v177, v12, 3, v177')
        a('s_mul_i32 s44, %s, 528' % sAW)
        a('v_add_u32 v177, s44, v177')
        a('v_mov_b32 v178, s44')
        a('v_bfe_u32 v179, v0, 3, 1')
        a('v_lshlrev_b32 v179, 7, v179')
        a('v_lshl_add_u32 v179, v2, 5, v179')
        a('s_lshl_b32 s44, %s, 9' % sAW)
        a('v_lshlrev_b32 v180, 3, v0')
        a('v_add_u32 v180, s44, v180')
        a('v_and_b32 v181, 1, v1')
        a('v_lshlrev_b32 v181, 8, v181')
        a('v_lshl_add_u32 v181, v2, 4, v181')
        a('v_add_u32 v181, s44, v181')
        a('v_lshrrev_b32 v12, 2, v1')
        a('v_lshl_add_u32 v12, v2, 3, v12')
        a('v_lshlrev_b32 v12, 6, v12')
        a('s_lshl_b32 s44, %s, 13' % sAW)
        a('v_add_u32 v12, s44, v12')
        a('v_and_b32 v13, 3, v1')
        a('v_lshl_add_u32 v182, v13, 3, v12')
        a('v_lshl_add_u32 v184, v2, 1, v1')
        a('v_lshlrev_b32 v184, 4, v184')
        a('s_lshl_b32 s44, %s, 8' % sAW)
        a('v_add_u32 v184, s44, v184')
        a('v_lshlrev_b32 v185, 4, v0')
        a('s_lshl_b32 s44, %s, 13' % sAW)
        a('s_add_u32 s44, s44, %d' % GU_LDS)
        a('v_add_u32 v186, s44, v185')
        a('s_lshl_b32 s44, %s, 10' % sAW)
        a('s_add_u32 s44, s44, %d' % V_LDS)
        a('v_add_u32 v187, s44, v185')
        a('v_xor_b32 v12, v1, v2')
        a('v_lshlrev_b32 v13, 8, v1')
        a('v_add_u32 v13, s56, v13')
        for m in range(4):
            a('v_xor_b32 v%d, %d, v12' % (192 + m, 4 * m))
            a('v_lshl_add_u32 v%d, v%d, 4, v13' % (192 + m, 192 + m))

    def att_start(self):
        a = self.a
        a('s_lshl_b32 s44, %s, 5' % sB)
        a('s_add_u32 s44, s44, %s' % sH)
        a('s_lshl_b32 s44, s44, 20')
        a('s_lshl_b32 s45, %s, 16' % sJ)
        a('s_add_u32 s44, s44, s45')
        a('s_lshl_b32 s45, %s, 14' % sAW)
        a('s_add_u32 s44, s44, s45')
        a('s_add_u32 s44, s44, %d' % (3072 * 256))
        a('v_xor_b32 v12, v1, v2')
        a('v_lshlrev_b32 v13, 8, v2')
        a('v_add_u32 v13, s44, v13')
        for q in range(4):
            a('v_xor_b32 v%d, %d, v12' % (8 + q, 4 * q))
            a('v_lshl_add_u32 v%d, v%d, 4, v13' % (8 + q, 8 + q))
            if q:
                a('v_add_u32 v%d, %d, v%d' % (8 + q, 1024 * q, 8 + q))
        a('s_lshl_b32 s44, %s, 2' % sAW)
        a('v_mov_b32 v191, s44')
        a('s_add_u32 s56, s45, %d' % K_LDS)
        a('s_waitcnt lgkmcnt(0)')
        if 'latek' in self.opts:
            a('s_barrier')
        for idx in range(self.p['depth']):
            self.kload(idx)
        if 'latek' not in self.opts:
            a('s_barrier')
        a('s_branch L_att')

    def kload(self, idx):
        a = self.a
        a('s_add_u32 m0, s56, %d' % (1024 * idx))
        a('global_load_lds_dwordx4 v%d, %s%s' % (8 + (idx & 3), sp(pK), self.nt))
        if idx < 12:
            a('v_add_u32 v%d, 4096, v%d' % (8 + (idx & 3), 8 + (idx & 3)))

    def attention(self):
        a = self.a
        a.label('L_att')
        a.reset()
        KR, VR, QF, S = 16, 80, 144, 160
        a('s_load_dword %s, %s, %d' % (sTAG, sp(pWS), EPOCH))
        self.roles()
        self.att_prep()
        depth, kfree = self.p['depth'], self.p['kfree']
        for idx in range(depth, 16):
            if idx < kfree:
                a('s_waitcnt vmcnt(%d)' % (depth - 1))
            self.kload(idx)
        self.set_flag(191, FV)
        self.stamp(1)
        a('s_waitcnt lgkmcnt(0)')
        self.tagcalc()

        def rd():
            for m in range(4):
                a('ds_read_b128 %s, v176 offset:%d' % (v4(QF + 4 * m), Q_LDS + 64 * m))
        self.wait_flag(FQ, 1, 8, rd, lazy=True)
        self.stamp(2)
        for bb in range(4):
            a('s_waitcnt vmcnt(%d)' % (4 * (3 - bb)))
            for m in range(4):
                a('ds_read_b128 %s, v%d offset:%d' % (v4(KR + 16 * bb + 4 * m), 192 + m, 4096 * bb))
            if bb:
                a('s_waitcnt lgkmcnt(%d)' % (0 if self.stamps else 4))
                for m in range(4):
                    self.mfma(S + 4 * (bb - 1), KR + 16 * (bb - 1) + 4 * m, QF + 4 * m, m == 0)
        a('s_waitcnt lgkmcnt(0)')
        for m in range(4):
            self.mfma(S + 12, KR + 48 + 4 * m, QF + 4 * m, m == 0)
        self.stamp(3)
        sc = f2u(128 ** -0.5)
        for k in range(0, 16, 2):
            a('v_cvt_pk_bf16_f32 v8, v%d, v%d' % (S + k, S + k + 1))
            a('v_and_b32 v9, 0xffff0000, v8')
            a('v_lshlrev_b32 v8, 16, v8')
            a('v_mul_f32 v8, 0x%x, v8' % sc)
            a('v_mul_f32 v9, 0x%x, v9' % sc)
            a('v_cvt_pk_bf16_f32 v8, v8, v9')
            a('v_and_b32 v%d, 0xffff0000, v8' % (S + k + 1))
            a('v_lshlrev_b32 v%d, 16, v8' % (S + k))
        a('v_max3_f32 v8, v%d, v%d, v%d' % (S, S + 1, S + 2))
        a('v_max3_f32 v9, v%d, v%d, v%d' % (S + 3, S + 4, S + 5))
        a('v_max3_f32 v8, v8, v%d, v%d' % (S + 6, S + 7))
        a('v_max3_f32 v9, v9, v%d, v%d' % (S + 8, S + 9))
        a('v_max3_f32 v8, v8, v%d, v%d' % (S + 10, S + 11))
        a('v_max3_f32 v9, v9, v%d, v%d' % (S + 12, S + 13))
        a('v_max3_f32 v8, v8, v%d, v%d' % (S + 14, S + 15))
        a('v_max_f32 v8, v8, v9')
        self.allreduce([8], [9], op='max', steps=('p16', 'p32'))
        a('ds_write_b32 v191, v8 offset:%d' % MX)

        def loads():
            a('ds_read_b128 v[16:19], v190 offset:%d' % MX)

        def checks():
            a('v_or3_b32 v8, v16, v17, v18')
            a('v_or_b32 v8, v8, v19')
            a('v_and_b32 v8, 1, v8')
        self.poll(loads, checks, 8, wait='lgkmcnt(0)')
        a('v_max3_f32 v8, v16, v17, v18')
        a('v_max_f32 v8, v8, v19')
        for k in range(16):
            a('v_sub_f32 v%d, v%d, v8' % (S + k, S + k))
        for k in range(16):
            a('v_mul_f32 v%d, 0x%x, v%d' % (S + k, f2u(LOG2E), S + k))
        for k in range(16):
            a('v_exp_f32 v%d, v%d' % (S + k, S + k))
        a('v_add_f32 v9, v%d, v%d' % (S, S + 1))
        a('v_add_f32 v10, v%d, v%d' % (S + 2, S + 3))
        for k in range(4, 16, 2):
            a('v_add_f32 v9, v9, v%d' % (S + k))
            a('v_add_f32 v10, v10, v%d' % (S + k + 1))
        a('v_add_f32 v9, v9, v10')
        self.allreduce([9], [10], steps=('p16', 'p32'))
        a('v_mul_f32 v8, 0x3e800000, v8')
        a('v_mov_b32 v10, 0')
        a('v_mov_b32 v11, 0')
        a('s_mov_b64 exec, 1')
        a('ds_write_b128 v178, v[8:11] offset:%d' % (OW_LDS + 512))
        a('s_mov_b64 exec, -1')
        O = 144
        for k in range(16):
            a('v_cvt_pk_bf16_f32 v12, v%d, v%d' % (S + k, S + k))
            a('v_and_b32 v12, 0xffff0000, v12')
            a('v_sub_f32 v12, v%d, v12' % (S + k))
            a('v_cndmask_b32 v12, v%d, v12, %s' % (S + k, HIROWS))
            a('v_cvt_pk_bf16_f32 v12, v12, v12')
            self.sparse(KR + 4 * k, 12)
        self.stamp(4)
        for t, (k0, k1) in enumerate(VSTAGES):
            def rd():
                for k in range(k0, k1):
                    a('ds_read_b128 %s, v187 offset:%d' % (v4(VR + 4 * k), 4096 * k))
            self.wait_flag(FVSA[t], 1, 8, rd, lazy=(t < 3))
            for k in range(k0, k1):
                self.mfma(O, KR + 4 * k, VR + 4 * k, k == 0)
            if t == 1:
                self.get_mode(8)
                a('s_mul_i32 s44, %s, 640' % sAW)
                a('s_add_u32 s44, s44, %s' % sLOC)
                a('s_add_u32 s44, s44, 3840')
                a('v_lshrrev_b32 v8, 5, v0')
                a('v_mul_u32_u24 v8, 10240, v8')
                a('v_add_u32 v8, s44, v8')
                a('v_and_b32 v9, 31, v0')
                a('v_lshl_add_u32 v12, v9, 4, v8')
                a('v_and_b32 v9, 3, v0')
                a('v_mul_u32_u24 v9, 2560, v9')
                a('v_add_u32 v13, v9, v8')
        self.stamp(5)
        a('v_permlane32_swap_b32 v%d, v%d' % (O, O + 2))
        a('v_permlane32_swap_b32 v%d, v%d' % (O + 1, O + 3))
        a('v_add_f32 v%d, v%d, v%d' % (O, O, O + 2))
        a('v_add_f32 v%d, v%d, v%d' % (O + 1, O + 1, O + 3))
        a('ds_write_b64 v177, %s offset:%d' % (v2(O), OW_LDS))
        self.set_flag(191, FO)
        l_now = a.newlabel('L_anow')
        l_end = a.newlabel('L_aend')
        a('s_cmp_ge_u32 %s, 20' % sI)
        a('s_cbranch_scc1 %s' % l_now)
        G = 104
        OF, WF0, WF1 = 48, 64, 80

        def loads():
            a('global_load_dwordx4 %s, v13, %s offset:%d sc1' % (v4(G + 16), sp(pWS), 512 - 3840))
            for j in range(4):
                a('global_load_dwordx4 %s, v12, %s offset:%d sc1' % (v4(G + 4 * j), sp(pWS), j * 2560 - 3840))

        def rdw():
            for ks in range(4):
                for hf in range(2):
                    off = WO_LDS + (32 * ks + 4 * hf) * 64
                    a('ds_read_b64_tr_b16 %s, v182 offset:%d' % (v2(WF0 + 4 * ks + 2 * hf), off))
                    a('ds_read_b64_tr_b16 %s, v182 offset:%d' % (v2(WF1 + 4 * ks + 2 * hf), off + 32))

        def checks():
            for k in range(5):
                self.check4(G + 4 * k, 40, k == 0, last=(k == 4))
        self.poll(loads, checks, 40)
        self.set_flag(191, FG1)
        a('ds_read_b32 v42, v190 offset:%d' % FWO)
        rdw()
        self.stamp(6)
        a('v_max_f32_dpp v41, v%d, v%d quad_perm:[1,0,3,2] %s' % (G + 16, G + 16, DPPM))
        self.allreduce([41], [], op='max', steps=('x2',))
        a('v_sub_f32 v40, v%d, v41' % (G + 16))
        a('v_mul_f32 v40, 0x%x, v40' % f2u(LOG2E))
        a('v_exp_f32 v40, v40')
        a('v_mul_f32 v41, v40, v%d' % (G + 17))
        self.allreduce([41], [], steps=('x1', 'x2'))
        a('v_rcp_f32 v41, v41')
        a('v_mul_f32 v40, v40, v41')
        for r in range(4):
            a('v_mul_f32_dpp v%d, v40, v%d quad_perm:[0,0,0,0] %s' % (8 + r, G + r, DPPM))
        for j in range(1, 4):
            for r in range(4):
                a('v_fmac_f32_dpp v%d, v40, v%d quad_perm:[%d,%d,%d,%d] %s' % (8 + r, G + 4 * j + r, j, j, j, j, DPPM))
        a('v_cvt_pk_bf16_f32 v8, v8, v9')
        a('v_cvt_pk_bf16_f32 v9, v10, v11')
        a('ds_write_b64 v180, v[8:9] offset:%d' % O2_LDS)
        for ks in range(4):
            a('ds_read_b128 %s, v181 offset:%d' % (v4(OF + 4 * ks), O2_LDS + 64 * ks))
        a('s_mov_b32 s46, 0x00030003')
        a('s_mov_b32 s47, 0x00030003')
        a('s_waitcnt lgkmcnt(0)')
        l_have = a.newlabel('L_havew')
        l_late = a.newlabel('L_latew')
        a('v_cmp_ne_u32 vcc, 0, v42')
        a('s_cbranch_vccnz %s' % l_late)
        a.label(l_have)

        def cold():
            a.label(l_late)
            self.wait_flag(FWO, 1, 10, rdw)
            a('s_branch %s' % l_have)
        self.cold.append(cold)
        self.stamp(7)
        D0, D1 = 96, 100
        for ks in range(4):
            self.mfma(D0, WF0 + 4 * ks, OF + 4 * ks, ks == 0)
            self.mfma(D1, WF1 + 4 * ks, OF + 4 * ks, ks == 0)
        a('s_mov_b64 exec, s[46:47]')
        a('ds_write_b128 v184, %s offset:%d' % (v4(D0), YW_LDS))
        a('ds_write_b128 v184, %s offset:%d' % (v4(D1), YW_LDS + 128))
        self.set_flag(191, FY)
        a('s_mov_b64 exec, -1')
        self.stamp(8)
        a.label(l_now)
        a('s_cmp_lt_u32 %s, 12' % sI)
        a('s_cbranch_scc1 %s' % l_end)
        a('s_and_b32 s44, %s, 1' % sAW)
        a('s_lshl_b32 s44, s44, 4')
        a('v_add_u32 v9, s44, v1')
        a('v_cmp_gt_u32 s[40:41], 27, v9')
        a('v_min_u32 v9, 26, v9')
        a('s_and_b32 s44, %s, 2' % sAW)
        a('v_mov_b32 v8, s44')
        a('v_mul_u32_u24 v9, %d, v9' % INP)
        a('s_add_u32 s44, %s, %d' % (sLOC, L_IN))
        a('v_add_u32 v9, s44, v9')
        a('v_and_b32 v10, 1, v2')
        a('v_add_u32 v8, v8, v10')
        a('s_lshl_b32 s44, %s, 6' % sTP)
        a('v_lshl_add_u32 v13, v8, 4, v9')
        a('v_add_u32 v13, s44, v13')
        a('v_lshrrev_b32 v10, 1, v2')
        a('v_lshl_add_u32 v8, v8, 1, v10')
        a('v_lshl_add_u32 v12, v8, 4, v9')
        a('s_lshl_b32 s44, %s, 7' % sTP)
        a('v_add_u32 v12, s44, v12')
        GU, A0, A1 = 16, 48, 52
        a('v_mov_b32 v56, 0x3f803f80')
        self.sparse(A0, 56)

        def rd():
            for n in range(8):
                a('ds_read_b128 %s, v186 offset:%d' % (v4(GU + 4 * n), 1024 * n))
        self.wait_flag(FGU, 1, 8, rd, lazy=True)
        D = 60
        for n in range(8):
            self.mfma(D, A0, GU + 4 * n, n == 0)
        a('s_mov_b32 s46, s40')
        a('s_mov_b32 s47, 0')
        self.tag4(D)
        a('s_mov_b64 exec, s[46:47]')
        self.st_local([(13, D, 2560)])
        a('s_mov_b64 exec, -1')
        self.stamp(9)
        HD = 64

        def rd():
            a('ds_read_b128 %s, v179 offset:%d' % (v4(HD), H_LDS))
            a('ds_read_b128 %s, v179 offset:%d' % (v4(HD + 4), H_LDS + 16))
        self.wait_flag(FH, 1, 8, rd)
        self.stamp(10)
        D = 72
        self.sparse(A0, HD)
        for n in range(8):
            if n < 7:
                self.sparse(A1 if n % 2 == 0 else A0, HD + n + 1)
            self.mfma(D, A0 if n % 2 == 0 else A1, GU + 4 * n, n == 0)
        a('s_mov_b64 exec, s[40:41]')
        self.tag4(D)
        self.st_local([(12, D, 0)])
        a('s_mov_b64 exec, -1')
        self.stamp(11)
        a('s_cmp_lg_u32 %s, 0' % sAW)
        a('s_cbranch_scc1 %s' % l_end)
        a('s_lshl_b32 s44, %s, 8' % sTP)
        a('s_add_u32 s44, s44, %s' % sLOC)
        a('s_add_u32 s44, s44, %d' % L_IN)
        a('v_lshlrev_b32 v8, 4, v1')
        a('v_mul_u32_u24 v9, %d, v2' % INP)
        a('v_add3_u32 v80, v8, v9, s44')
        for n in range(1, 7):
            a('v_add_u32 v%d, %d, v80' % (80 + n, 4 * INP * n))
        a('s_lshl_b32 s44, %s, 11' % sTP)
        a('s_add_u32 s44, s44, %d' % FP)
        a('v_add_u32 v88, s44, v185')
        a('s_lshl_b32 s45, %s, 8' % sX)
        a('v_add_u32 v89, s45, v88')
        if 'fpt' in self.opts:
            l_nt = a.newlabel('L_nt')
            a('s_and_b32 s44, %s, 7' % sTP)
            a('s_cmp_lg_u32 s44, %s' % sX)
            a('s_cbranch_scc1 %s' % l_nt)
            a('global_load_dwordx4 v[96:99], v88, %s sc1' % sp(pWS))
            a('global_load_dwordx4 v[100:103], v88, %s offset:1024 sc1' % sp(pWS))
            a.label(l_nt)
        self.slice_off(90, 8)
        if 'outt' in self.opts:
            a('global_load_ushort v104, v90, %s' % sp(pOUT))
        self.h_addr(91, 8)
        a('ds_read_b32 v92, v91 offset:%d' % H_LDS)
        self.rowtag(93)
        G = 16
        self.prefill(G + 24, second=True)
        a('s_mov_b32 s46, -1')
        a('s_mov_b32 s47, 0xffff')
        a('s_waitcnt lgkmcnt(0)')
        a('v_and_b32 v92, 0xffff0000, v92')

        def loads():
            for n in range(6):
                a('global_load_dwordx4 %s, v%d, %s sc1' % (v4(G + 4 * n), 80 + n, sp(pWS)))
            a('s_mov_b64 exec, s[46:47]')
            a('global_load_dwordx4 %s, v86, %s sc1' % (v4(G + 24), sp(pWS)))
            a('s_mov_b64 exec, -1')

        def checks():
            for k in range(6):
                self.check4(G + 4 * k, 44, k == 0, second=True)
            self.check4(G + 24, 44, False, second=True, dst=52, last=True)
        self.poll(loads, checks, 44)
        self.stamp(12)
        for r in range(4):
            a('v_add_f32 v%d, v%d, v%d' % (G + r, G + r, G + 4 + r))
            a('v_add_f32 v%d, v%d, v%d' % (G + 8 + r, G + 8 + r, G + 12 + r))
            a('v_add_f32 v%d, v%d, v%d' % (G + 16 + r, G + 16 + r, G + 20 + r))
        for r in range(4):
            a('v_add_f32 v%d, v%d, v%d' % (G + r, G + r, G + 8 + r))
            a('v_add_f32 v%d, v%d, v%d' % (G + 16 + r, G + 16 + r, 52 + r))
        for r in range(4):
            a('v_add_f32 v%d, v%d, v%d' % (48 + r, G + r, G + 16 + r))
        self.rs4(48)
        a('v_and_or_b32 v48, v48, v7, v93')
        self.expand4(48)
        a('s_mov_b64 exec, 0xffff')
        a('global_store_dwordx4 v89, v[48:51], %s sc1' % sp(pWS))
        a('s_mov_b64 exec, -1')
        self.stamp(13)
        a('s_and_b32 s44, %s, 7' % sTP)
        a('s_cmp_lg_u32 s44, %s' % sX)
        a('s_cbranch_scc1 %s' % l_end)
        self.gather8(88, 16, 14)
        a('v_cvt_pk_bf16_f32 v16, v16, v16')
        a('v_and_b32 v16, 0xffff0000, v16')
        a('v_add_f32 v16, v16, v92')
        a('v_cvt_pk_bf16_f32 v16, v16, v16')
        a('global_store_short v90, v16, %s' % sp(pOUT))
        a('s_cmp_lg_u32 s2, 96')
        a('s_cbranch_scc1 %s' % l_end)
        a('s_mov_b64 exec, 1')
        a('v_mov_b32 v60, %s' % sTAG)
        a('global_store_dword v190, v60, %s offset:%d sc1' % (sp(pWS), EPOCH))
        if 'probe' in self.opts:
            lp = a.newlabel('L_probe')
            a('s_add_u32 s92, s92, 4000')
            a.label(lp)
            a('s_memrealtime s[94:95]')
            a('s_waitcnt lgkmcnt(0)')
            a('s_sub_u32 s44, s94, s92')
            a('s_cmp_lt_i32 s44, 0')
            a('s_cbranch_scc1 %s' % lp)
        a.label(l_end)
        self.end_wave()
        self.flush_cold()

    def build(self):
        a = self.a
        hdr = open('cdna_kernels/%s.s.ref' % NAME).read().split('\n')
        top = []
        for ln in hdr:
            if ln.startswith('; @launch'):
                top.append('; @launch grid=(256,1,1) block=(%d,1,1) lds=%d' % (64 * NWAVES, LDS_BYTES))
                break
            top.append(ln)
        out = '\n'.join(top) + '\n'
        out += '.amdgcn_target "amdgcn-amd-amdhsa--gfx950"\n.text\n.globl %s_kernel\n.p2align 8\n' % NAME
        out += '.type %s_kernel,@function\n%s_kernel:\n' % (NAME, NAME)
        self.prologue()
        self.att_start()
        self.load_start()
        self.comm()
        self.attention()
        self.loader()
        a.label('L_exit')
        a('s_endpgm')
        out += a.text()
        out += '''.section .rodata,"a"
.p2align 6
.amdhsa_kernel %s_kernel
  .amdhsa_next_free_vgpr 208
  .amdhsa_next_free_sgpr 102
  .amdhsa_accum_offset 208
  .amdhsa_group_segment_fixed_size 0
  .amdhsa_kernarg_size 96
  .amdhsa_user_sgpr_count 2
  .amdhsa_user_sgpr_kernarg_segment_ptr 1
  .amdhsa_system_sgpr_workgroup_id_x 1
  .amdhsa_float_denorm_mode_32 3
.end_amdhsa_kernel
''' % NAME
        return out


if __name__ == '__main__':
    open(sys.argv[1], 'w').write(Gen(opts=sys.argv[2:]).build())
```

```python
import struct
import sys
from asmlib import Asm

NAME = 'sequential_preLN__sliding_block_cached__swiglu_ffn__decode'


def f2u(x):
    return struct.unpack('<I', struct.pack('<f', x))[0]


EPOCH = 0
XCB = 0x2000
QA = 0x10000
QB = 0x90000
YP = 0x110000
FP = 0x120000
LOCB = 0x200000
L_OP = 0
L_IN = 21504
INP = 5120
LOCP = 163840
RB = 0x200000
TS = 0x600000

SY = 0
FQ, FV, MX, FO, FY, FH, FWO, FGU, MODE, FG1, FPUB = (SY + o for o in (0, 16, 32, 48, 64, 80, 84, 88, 96, 112, 104))
FVSA = [SY + 4, SY + 8, SY + 12, SY + 100]
Q_LDS = 128
OW_LDS = 384
O2_LDS = 2560
YW_LDS = 4608
H_LDS = 5632
WD_LDS = 6144
WO_LDS = 16384
GU_LDS = 49152
V_LDS = 81920
K_LDS = WO_LDS
LDS_BYTES = V_LDS + 65536
VSTAGES = [(0, 6), (6, 12), (12, 15), (15, 16)]

sWID, sX, sI, sH, sJ8, sB, sJ, sAW = 's3', 's4', 's5', 's6', 's7', 's8', 's9', 's10'
sTAG = 's11'
sT = ['s12', 's13', 's14', 's15']
pX, pK, pV, pWQ, pWO, pWG, pWU = 16, 18, 20, 22, 24, 28, 30
pWD, pOUT, pDBG, pWS = 32, 34, 36, 38
sLOC = 's42'
sMODE = 's43'
sSPIN = 's52'
sSEL = 's53'
sXCC = 's54'
sTAG2 = 's55'
sT2 = ['s96', 's97', 's98', 's99']
sTP = 's100'
sU = 's101'
HIROWS = 's[58:59]'
SPIN_MAX = 100000
NWAVES = 6
LOG2E = 1.4426950408889634
DPPM = 'row_mask:0xf bank_mask:0xf'


def sp(n):
    return 's[%d:%d]' % (n, n + 1)


def v4(n):
    return 'v[%d:%d]' % (n, n + 3)


def v2(n):
    return 'v[%d:%d]' % (n, n + 1)


class Gen:
    def __init__(self, opts=()):
        self.a = Asm()
        self.opts = set(opts) | {'par'}
        self.stamps = 'stamps' in self.opts
        self.nt = ' nt'
        self.p = dict(depth=4, kfree=13, ldepth=32, ldepth2=12, v1n=32, v1d=16, nb=0, wwait=0)
        for o in self.opts:
            if '=' in o:
                k, v = o.split('=')
                assert k in self.p
                self.p[k] = int(v)
        self.cold = []

    def stamp(self, k):
        if self.stamps:
            self.a('s_memrealtime %s' % sp(60 + 2 * k))

    def end_wave(self):
        a = self.a
        if self.stamps:
            a('s_mov_b64 exec, -1')
            self.stamp(15)
            a('s_waitcnt lgkmcnt(0)')
            a('v_mov_b32 v200, 0')
            for k in range(16):
                a('v_writelane_b32 v200, s%d, %d' % (60 + 2 * k, k))
            a('s_mul_i32 s44, s2, %d' % NWAVES)
            a('s_add_u32 s44, s44, %s' % sWID)
            a('s_lshl_b32 s44, s44, 6')
            a('s_add_u32 s44, s44, %d' % TS)
            a('v_lshlrev_b32 v201, 2, v0')
            a('v_add_u32 v201, s44, v201')
            a('s_mov_b64 exec, 0xffff')
            a('global_store_dword v201, v200, %s' % sp(pWS))
        a('s_endpgm')

    def tag4(self, base, second=False):
        t = sT2 if second else sT
        for k in range(4):
            self.a('v_and_or_b32 v%d, v%d, v7, %s' % (base + k, base + k, t[k]))

    def prefill(self, base, second=False):
        t = sT2 if second else sT
        for k in range(4):
            self.a('v_mov_b32 v%d, %s' % (base + k, t[k]))

    def check4(self, base, t, first, second=False, dst=None, last=False):
        a = self.a
        tg = sT2 if second else sT
        d = base if dst is None else dst
        for k in range(4):
            a('v_xor_b32 v%d, %s, v%d' % (d + k, tg[k], base + k))
        if first:
            a('v_or3_b32 v%d, v%d, v%d, v%d' % (t, d, d + 1, d + 2))
            a('v_or_b32 v%d, v%d, v%d' % (t, t, d + 3))
        else:
            a('v_or3_b32 v%d, v%d, v%d, v%d' % (t, t, d, d + 1))
            a('v_or3_b32 v%d, v%d, v%d, v%d' % (t, t, d + 2, d + 3))
        if last:
            a('v_and_b32 v%d, 0xff, v%d' % (t, t))

    def check1(self, reg, t, first, second=False):
        self.a('v_sad_u8 v%d, v%d, %s, %s' % (t, reg, sTAG2 if second else sTAG, '0' if first else 'v%d' % t))

    def poll(self, loads, checks, acc, wait='vmcnt(0)', sleep=0):
        a = self.a
        top = a.newlabel('L_poll')
        retry = a.newlabel('L_retry')
        done = a.newlabel('L_pdone')
        a('s_mov_b32 %s, %d' % (sSPIN, SPIN_MAX if wait.startswith('vm') else SPIN_MAX * 8))
        a.label(top)
        loads()
        a('s_waitcnt %s' % wait)
        checks()
        a('v_cmp_ne_u32 vcc, 0, v%d' % acc)
        a('s_cbranch_vccnz %s' % retry)
        a.label(done)
        if 'dprio' in self.opts:
            a('s_setprio 3')

        def cold():
            a.label(retry)
            if 'dprio' in self.opts:
                a('s_setprio 0')
            if sleep:
                a('s_sleep %d' % sleep)
            a('s_sub_u32 %s, %s, 1' % (sSPIN, sSPIN))
            a('s_cbranch_scc0 %s' % top)
            a('s_branch %s' % done)
        self.cold.append(cold)

    def wait_flag(self, addr, n, t, extra=None, sleep=0, lazy=False):
        a = self.a

        def loads():
            if n == 1:
                a('ds_read_b32 v%d, v190 offset:%d' % (t, addr))
            else:
                a('ds_read_b128 %s, v190 offset:%d' % (v4(t), addr))
            if extra and not lazy:
                extra()

        def checks():
            if n == 4:
                a('v_or3_b32 v%d, v%d, v%d, v%d' % (t, t, t + 1, t + 2))
                a('v_or_b32 v%d, v%d, v%d' % (t, t, t + 3))
        self.poll(loads, checks, t, wait='lgkmcnt(0)', sleep=max(sleep, 1) if lazy else sleep)
        if extra and lazy:
            extra()
            a('s_waitcnt lgkmcnt(0)')

    def wait_scores(self, t):
        a = self.a

        def loads():
            a('ds_read_b128 %s, v190 offset:%d' % (v4(t), MX))

        def checks():
            a('v_or3_b32 v%d, v%d, v%d, v%d' % (t, t, t + 1, t + 2))
            a('v_or_b32 v%d, v%d, v%d' % (t, t, t + 3))
            a('v_and_b32 v%d, 1, v%d' % (t, t))
        self.poll(loads, checks, t, wait='lgkmcnt(0)', sleep=1)

    def set_flag(self, vaddr, off):
        self.a('ds_write_b32 v%d, v190 offset:%d' % (vaddr, off))

    def st_local(self, stores, pre=None):
        a = self.a
        lg = a.newlabel('L_sg')
        ld = a.newlabel('L_sd')
        a('s_cmp_lg_u32 %s, 0' % sMODE)
        a('s_cbranch_scc1 %s' % lg)
        for k, (va, d, off) in enumerate(stores):
            if pre:
                pre(k)
            a('global_store_dwordx4 v%d, %s, %s offset:%d' % (va, v4(d), sp(pWS), off))
        a.label(ld)

        def cold():
            a.label(lg)
            a('s_nop 7')
            for k, (va, d, off) in enumerate(stores):
                if pre:
                    pre(k)
                a('global_store_dwordx4 v%d, %s, %s offset:%d sc1' % (va, v4(d), sp(pWS), off))
            a('s_nop 1')
            a('s_branch %s' % ld)
        self.cold.append(cold)

    def flush_cold(self):
        while self.cold:
            c = self.cold.pop(0)
            self.a.reset()
            c()

    def get_mode(self, t):
        a = self.a

        def loads():
            a('ds_read_b32 v%d, v190 offset:%d' % (t, MODE))

        def checks():
            a('v_lshrrev_b32 v%d, 1, v%d' % (t + 1, t))
        self.poll(loads, checks, t + 1, wait='lgkmcnt(0)', sleep=1)
        a('v_readfirstlane_b32 s44, v%d' % t)
        a('s_cmp_eq_u32 s44, 0')
        a('s_cselect_b32 %s, 0, %d' % (sMODE, RB))
        a('s_mul_i32 %s, %s, %d' % (sLOC, sX, LOCP))
        a('s_add_u32 %s, %s, %d' % (sLOC, sLOC, LOCB))
        a('s_add_u32 %s, %s, %s' % (sLOC, sLOC, sMODE))

    def allreduce(self, rs, tmps, op='add', steps=('x1', 'x2', 'r4', 'r8', 'p16')):
        a = self.a
        dpp = {'x1': 'quad_perm:[1,0,3,2]', 'x2': 'quad_perm:[2,3,0,1]', 'r4': 'row_ror:4',
               'r8': 'row_ror:8', 'hm': 'row_half_mirror'}
        for st in steps:
            if st in dpp:
                for r in rs:
                    a('v_%s_f32_dpp v%d, v%d, v%d %s %s' % (op, r, r, r, dpp[st], DPPM))
            else:
                ins = 'v_permlane16_swap_b32' if st == 'p16' else 'v_permlane32_swap_b32'
                for r, t in zip(rs, tmps):
                    a('v_mov_b32 v%d, v%d' % (t, r))
                for r, t in zip(rs, tmps):
                    a('%s v%d, v%d' % (ins, r, t))
                for r, t in zip(rs, tmps):
                    a('v_%s_f32 v%d, v%d, v%d' % (op, r, r, t))

    def rs4(self, b):
        a = self.a
        a('v_permlane32_swap_b32 v%d, v%d' % (b, b + 2))
        a('v_permlane32_swap_b32 v%d, v%d' % (b + 1, b + 3))
        a('v_add_f32 v%d, v%d, v%d' % (b, b, b + 2))
        a('v_add_f32 v%d, v%d, v%d' % (b + 1, b + 1, b + 3))
        a('v_permlane16_swap_b32 v%d, v%d' % (b, b + 1))
        a('v_add_f32 v%d, v%d, v%d' % (b, b, b + 1))

    def expand4(self, b):
        a = self.a
        a('v_mov_b32 v%d, v%d' % (b + 1, b))
        a('v_permlane16_swap_b32 v%d, v%d' % (b, b + 1))
        a('v_mov_b32 v%d, v%d' % (b + 2, b))
        a('v_mov_b32 v%d, v%d' % (b + 3, b + 1))
        a('v_permlane32_swap_b32 v%d, v%d' % (b, b + 2))
        a('v_permlane32_swap_b32 v%d, v%d' % (b + 1, b + 3))

    def rowtag(self, dst):
        a = self.a
        a('v_lshlrev_b32 v%d, 3, v2' % dst)
        a('v_lshrrev_b32 v%d, v%d, %s' % (dst, dst, sTAG))
        a('v_and_b32 v%d, 0xff, v%d' % (dst, dst))

    def sparse(self, dst, src):
        for k in range(4):
            self.a('v_and_b32 v%d, v%d, v%d' % (dst + k, src, 3 + k))

    def mfma(self, d, x, y, first):
        self.a('v_mfma_f32_16x16x32_bf16 %s, %s, %s, %s' % (v4(d), v4(x), v4(y), '0' if first else v4(d)))

    def bf16_round4(self, src, dst):
        a = self.a
        a('v_cvt_pk_bf16_f32 v%d, v%d, v%d' % (dst, src, src + 1))
        a('v_cvt_pk_bf16_f32 v%d, v%d, v%d' % (dst + 2, src + 2, src + 3))
        a('v_and_b32 v%d, 0xffff0000, v%d' % (dst + 1, dst))
        a('v_lshlrev_b32 v%d, 16, v%d' % (dst, dst))
        a('v_and_b32 v%d, 0xffff0000, v%d' % (dst + 3, dst + 2))
        a('v_lshlrev_b32 v%d, 16, v%d' % (dst + 2, dst + 2))

    def consts(self, t=8):
        a = self.a
        a('v_and_b32 v%d, 7, v0' % t)
        a('v_and_b32 v%d, 1, v%d' % (t + 1, t))
        a('v_cmp_eq_u32 vcc, 1, v%d' % (t + 1))
        a('v_mov_b32 v%d, 0xffff' % (t + 1))
        a('v_mov_b32 v%d, 0xffff0000' % (t + 2))
        a('v_cndmask_b32 v%d, v%d, v%d, vcc' % (t + 1, t + 1, t + 2))
        a('v_lshrrev_b32 v%d, 1, v%d' % (t, t))
        for k in range(4):
            a('v_cmp_eq_u32 vcc, %d, v%d' % (k, t))
            a('v_cndmask_b32 v%d, 0, v%d, vcc' % (3 + k, t + 1))
        a('v_mov_b32 v7, 0xffffff00')
        a('s_mov_b32 %s, 0x0c0c0400' % sSEL)
        a('s_mov_b32 s58, 0xff00ff00')
        a('s_mov_b32 s59, 0xff00ff00')

    def tagcalc(self):
        a = self.a
        a('s_mul_i32 %s, %s, 0x9e3779b1' % (sTAG, sTAG))
        a('s_add_u32 %s, %s, 0x7f4a7c15' % (sTAG, sTAG))
        a('s_xor_b32 %s, %s, 0x5a5a5a5a' % (sTAG2, sTAG))
        for tg, t in ((sTAG, sT), (sTAG2, sT2)):
            a('s_and_b32 %s, %s, 0xff' % (t[0], tg))
            a('s_bfe_u32 %s, %s, 0x80008' % (t[1], tg))
            a('s_bfe_u32 %s, %s, 0x80010' % (t[2], tg))
            a('s_lshr_b32 %s, %s, 24' % (t[3], tg))

    def roles(self):
        a = self.a
        a('s_sub_u32 %s, %s, 12' % (sTP, sI))
        a('s_max_i32 %s, %s, 0' % (sTP, sTP))
        a('s_add_u32 %s, %s, 12' % (sU, sI))
        a('s_cmp_lt_u32 %s, 12' % sI)
        a('s_cselect_b32 %s, %s, %s' % (sU, sI, sU))
        a('s_sub_u32 s44, %s, 8' % sI)
        a('s_cmp_ge_u32 %s, 20' % sI)
        a('s_cselect_b32 %s, s44, %s' % (sU, sU))

    def ln_finish(self, rm, rv):
        a = self.a
        a('v_cvt_pk_bf16_f32 v%d, v%d, v%d' % (rv, rm, rv))
        a('v_lshlrev_b32 v%d, 16, v%d' % (rm, rv))
        a('v_and_b32 v%d, 0xffff0000, v%d' % (rv, rv))
        a('v_add_f32 v%d, 0x%x, v%d' % (rv, f2u(1e-5), rv))
        a('v_cvt_pk_bf16_f32 v%d, v%d, v%d' % (rv, rv, rv))
        a('v_and_b32 v%d, 0xffff0000, v%d' % (rv, rv))
        a('v_sqrt_f32 v%d, v%d' % (rv, rv))
        a('v_cvt_pk_bf16_f32 v%d, v%d, v%d' % (rv, rv, rv))
        a('v_and_b32 v%d, 0xffff0000, v%d' % (rv, rv))
        a('v_rcp_f32 v%d, v%d' % (rv, rv))

    def gather8(self, vaddr, G, stampk):
        a = self.a

        def loads():
            a('global_load_dwordx4 %s, v%d, %s sc1' % (v4(G), vaddr, sp(pWS)))
            a('global_load_dwordx4 %s, v%d, %s offset:1024 sc1' % (v4(G + 4), vaddr, sp(pWS)))

        def checks():
            self.check4(G, G + 8, True)
            self.check4(G + 4, G + 8, False, last=True)
        self.poll(loads, checks, G + 8)
        self.stamp(stampk)
        for r in range(4):
            a('v_add_f32 v%d, v%d, v%d' % (G + r, G + r, G + 4 + r))
        self.rs4(G)

    def slice_off(self, dst, t):
        a = self.a
        a('v_and_b32 v%d, 1, v1' % t)
        a('v_mul_u32_u24 v%d, 1280, v%d' % (t, t))
        a('v_lshrrev_b32 v%d, 1, v1' % dst)
        a('v_lshl_add_u32 v%d, v%d, 3, v%d' % (dst, dst, t))
        a('v_lshl_add_u32 v%d, v2, 1, v%d' % (dst, dst))
        a('s_lshl_b32 s44, %s, 6' % sTP)
        a('v_add_u32 v%d, s44, v%d' % (dst, dst))

    def h_addr(self, dst, t):
        a = self.a
        a('v_and_b32 v%d, 1, v1' % t)
        a('v_lshlrev_b32 v%d, 7, v%d' % (t, t))
        a('v_lshrrev_b32 v%d, 1, v1' % dst)
        a('v_lshl_add_u32 v%d, v%d, 2, v%d' % (dst, dst, t))
        a('v_lshl_add_u32 v%d, v2, 5, v%d' % (dst, dst))

    def prologue(self):
        a = self.a
        a('s_cmp_ge_u32 s2, 256')
        a('s_cbranch_scc1 L_exit')
        a('s_load_dwordx16 s[16:31], s[0:1], 0')
        a('s_load_dwordx8 s[32:39], s[0:1], 64')
        a('s_getpc_b64 s[56:57]')
        a.label('L_pc')
        a('s_lshr_b32 %s, s2, 3' % sI)
        a('s_lshl_b32 s44, %s, 10' % sI)
        a('v_lshl_add_u32 v8, v0, 6, s44')
        a('v_min_u32 v8, L_exit-L_pc, v8')
        a('v_cmp_gt_u32 vcc, 16, v0')
        a('s_and_saveexec_b64 s[44:45], vcc')
        a('s_cbranch_execz L_npf')
        a('global_load_dword v199, v8, s[56:57]')
        a.label('L_npf')
        a('s_mov_b64 exec, -1')
        if self.stamps:
            for k in range(1, 16):
                a('s_mov_b64 %s, 0' % sp(60 + 2 * k))
        self.stamp(0)
        if 'probe' in self.opts:
            a('s_memrealtime s[92:93]')
        a('v_lshrrev_b32 v1, 6, v0')
        a('v_and_b32 v0, 63, v0')
        a('v_readfirstlane_b32 %s, v1' % sWID)
        a('s_and_b32 %s, s2, 7' % sX)
        a('s_and_b32 %s, %s, 3' % (sH, sI))
        a('s_lshl_b32 s44, %s, 2' % sX)
        a('s_add_u32 %s, %s, s44' % (sH, sH))
        a('s_lshr_b32 %s, %s, 2' % (sJ8, sI))
        a('s_lshr_b32 %s, %s, 2' % (sB, sJ8))
        a('s_and_b32 %s, %s, 3' % (sJ, sJ8))
        a('v_and_b32 v1, 15, v0')
        a('v_lshrrev_b32 v2, 4, v0')
        a('v_mov_b32 v190, 0')
        a('s_sub_u32 %s, %s, 1' % (sAW, sWID))
        a('s_cmp_eq_u32 %s, 5' % sWID)
        a('s_cbranch_scc1 L_load')
        a('s_cmp_eq_u32 %s, 0' % sWID)
        a('s_cbranch_scc1 L_comm')

    def comm(self):
        a = self.a
        WQ, XR, XN, XS, F = 16, 96, 106, 14, 116
        a.label('L_comm')
        a.reset()
        self.roles()
        a('v_bfe_u32 v8, v0, 3, 1')
        a('v_mul_u32_u24 v8, 1280, v8')
        a('v_and_b32 v9, 7, v0')
        a('v_lshl_add_u32 v9, v2, 3, v9')
        a('v_mul_u32_u24 v9, 40, v9')
        a('v_add_u32 v10, v8, v9')
        a('s_mul_i32 s44, %s, 160' % sJ8)
        a('v_mul_u32_u24 v9, 40, v2')
        a('v_add3_u32 v11, v8, v9, s44')
        a('s_mul_i32 s44, %s, %d' % (sJ8, 80 * 8192))
        a('s_lshl_b32 s45, %s, 8' % sH)
        a('s_add_u32 s44, s44, s45')
        a('v_mul_u32_u24 v12, %d, v2' % (20 * 8192))
        a('v_lshl_add_u32 v12, v1, 4, v12')
        a('v_add_u32 v12, s44, v12')
        self.slice_off(13, 8)
        a('s_waitcnt lgkmcnt(0)')
        a('s_load_dword %s, %s, %d' % (sTAG, sp(pWS), EPOCH))
        for base, va in ((XR, 10), (XN, 11)):
            a('global_load_dwordx4 %s, v%d, %s' % (v4(base), va, sp(pX)))
            a('global_load_dwordx4 %s, v%d, %s offset:16' % (v4(base + 4), va, sp(pX)))
            a('global_load_dwordx2 %s, v%d, %s offset:32' % (v2(base + 8), va, sp(pX)))
        a('global_load_ushort v%d, v13, %s' % (XS, sp(pX)))
        for n in range(20):
            a('global_load_dwordx4 %s, v12, %s%s' % (v4(WQ + 4 * n), sp(pWQ), self.nt))
            if n < 19:
                a('v_add_u32 v12, 8192, v12')
        a('s_barrier')
        if 'noprio' not in self.opts:
            a('s_setprio 3')
        self.stamp(1)
        self.consts()
        a('s_getreg_b32 %s, hwreg(HW_REG_XCC_ID)' % sXCC)
        a('s_and_b32 %s, %s, 0xf' % (sXCC, sXCC))
        a('v_and_b32 v10, 31, v0')
        a('s_lshl_b32 s44, %s, 12' % sX)
        a('s_add_u32 s44, s44, %d' % XCB)
        a('v_lshlrev_b32 v142, 7, v10')
        a('v_add_u32 v142, s44, v142')
        a('s_lshl_b32 s44, %s, 10' % sH)
        a('s_add_u32 s44, s44, %d' % XCB)
        a('v_and_b32 v9, 7, v0')
        a('v_lshlrev_b32 v143, 7, v9')
        a('v_add_u32 v143, s44, v143')
        a('s_lshl_b32 s44, %s, 14' % sH)
        a('s_add_u32 s44, s44, %d' % QA)
        a('v_lshrrev_b32 v9, 1, v2')
        a('v_lshlrev_b32 v9, 13, v9')
        a('v_and_b32 v10, 1, v2')
        a('v_lshl_add_u32 v10, v1, 1, v10')
        a('v_lshl_add_u32 v12, v10, 4, v9')
        a('v_add_u32 v12, s44, v12')
        a('s_and_b32 s45, %s, 1' % sJ8)
        a('s_lshl_b32 s45, s45, 9')
        a('s_lshr_b32 s46, %s, 1' % sJ8)
        a('s_lshl_b32 s46, s46, 2')
        a('s_add_u32 s45, s45, s46')
        a('s_add_u32 s45, s45, 4096')
        a('v_add_u32 v140, s45, v12')
        a('s_lshl_b32 s45, %s, 9' % sJ8)
        a('v_add_u32 v12, s45, v12')
        a('s_lshl_b32 s45, %s, 13' % sB)
        a('s_add_u32 s45, s45, s44')
        a('s_add_u32 s45, s45, 2048')
        a('v_lshlrev_b32 v13, 4, v0')
        a('v_add_u32 v13, s45, v13')
        a('s_waitcnt vmcnt(20)')
        self.stamp(2)
        for k in range(10):
            a('v_lshlrev_b32 v%d, 16, v%d' % (F + 2 * k, XR + k))
            a('v_and_b32 v%d, 0xffff0000, v%d' % (F + 2 * k + 1, XR + k))
        a('v_add_f32 v8, v%d, v%d' % (F, F + 1))
        a('v_add_f32 v9, v%d, v%d' % (F + 2, F + 3))
        for k in range(4, 20, 2):
            a('v_add_f32 v8, v8, v%d' % (F + k))
            a('v_add_f32 v9, v9, v%d' % (F + k + 1))
        a('v_add_f32 v8, v8, v9')
        red = ('x1', 'x2', 'hm', 'p16', 'p32')
        self.allreduce([8], [9], steps=red)
        a('v_mul_f32 v8, 0x%x, v8' % f2u(1.0 / 640))
        a('v_mov_b32 v9, 0')
        a('v_mov_b32 v10, 0')
        for k in range(0, 20, 2):
            a('v_sub_f32 v%d, v%d, v8' % (F + k, F + k))
            a('v_sub_f32 v%d, v%d, v8' % (F + k + 1, F + k + 1))
            a('v_fmac_f32 v9, v%d, v%d' % (F + k, F + k))
            a('v_fmac_f32 v10, v%d, v%d' % (F + k + 1, F + k + 1))
        a('v_add_f32 v9, v9, v10')
        self.allreduce([9], [10], steps=red)
        a('v_mul_f32 v9, 0x%x, v9' % f2u(1.0 / 640))
        self.ln_finish(8, 9)
        a('s_waitcnt lgkmcnt(0)')
        self.tagcalc()
        self.stamp(3)
        D = 136
        A = [96, 100]
        for k in range(10):
            a('v_lshlrev_b32 v10, 16, v%d' % (XN + k))
            a('v_and_b32 v11, 0xffff0000, v%d' % (XN + k))
            a('v_sub_f32 v10, v10, v8')
            a('v_sub_f32 v11, v11, v8')
            a('v_cvt_pk_bf16_f32 v10, v10, v11')
            a('v_and_b32 v11, 0xffff0000, v10')
            a('v_lshlrev_b32 v10, 16, v10')
            a('v_mul_f32 v10, v10, v9')
            a('v_mul_f32 v11, v11, v9')
            a('v_cvt_pk_bf16_f32 v10, v10, v10')
            a('v_cvt_pk_bf16_f32 v11, v11, v11')
            self.sparse(A[0], 10)
            self.sparse(A[1], 11)
            a('s_waitcnt vmcnt(%d)' % (18 - 2 * k))
            self.mfma(D, A[0], WQ + 8 * k, k == 0)
            self.mfma(D, A[1], WQ + 8 * k + 4, False)

        def qhash(dst, b, t):
            a('v_alignbit_b32 v%d, v%d, v%d, 8' % (dst, b + 1, b + 1))
            a('v_alignbit_b32 v%d, v%d, v%d, 16' % (t, b + 2, b + 2))
            a('v_xor_b32 v%d, v%d, v%d' % (dst, dst, b))
            a('v_xor_b32 v%d, v%d, v%d' % (dst, dst, t))
            a('v_alignbit_b32 v%d, v%d, v%d, 24' % (t, b + 3, b + 3))
            a('v_xor_b32 v%d, v%d, v%d' % (dst, dst, t))
        a('global_store_dwordx4 v12, %s, %s' % (v4(D), sp(pWS)))
        qhash(145, D, 146)
        a('v_xor_b32 v145, %s, v145' % sTAG)
        if 'forceglobal' not in self.opts:
            a('global_store_dword v140, v145, %s' % sp(pWS))
        a('global_load_dwordx2 v[44:45], v142, %s sc1' % sp(pWS))
        self.stamp(4)
        a('s_waitcnt vmcnt(0)')
        self.stamp(13)
        l_nm = a.newlabel('L_nm')
        a('v_cmp_ne_u32 s[48:49], %s, v44' % sTAG)
        a('v_cmp_ne_u32 s[50:51], %s, v45' % sXCC)
        a('s_or_b64 s[48:49], s[48:49], s[50:51]')
        a('s_cselect_b32 s41, 1, 0')
        if 'forceglobal' in self.opts:
            a('s_mov_b32 s41, 1')
        a('s_cmp_lg_u32 s41, 0')
        a('s_cbranch_scc1 %s' % l_nm)
        self.set_flag(190, MODE)
        a.label(l_nm)
        G = 16
        top = a.newlabel('L_q')
        nxt = a.newlabel('L_qn')
        done = a.newlabel('L_qd')
        a('s_mov_b32 %s, %d' % (sSPIN, SPIN_MAX))
        a('s_mov_b32 s40, 0')
        a.label(top)
        for k in range(5):
            a('global_load_dwordx4 %s, v13, %s offset:%d sc1' % (v4(G + 4 * k), sp(pWS), k * 1024 - 2048))
        a('s_waitcnt vmcnt(0)')
        for k in range(4):
            qhash(40, G + 4 * k, 41)
            a('v_xor_b32 v40, v40, v%d' % (G + 16 + k))
            self.check1(40, 42, k == 0)
        a('v_cmp_ne_u32 vcc, 0, v42')
        a('s_cbranch_vccz %s' % done)
        a('s_and_b32 s44, %s, 3' % sSPIN)
        a('s_or_b32 s44, s44, s40')
        a('s_cmp_lg_u32 s44, 1')
        a('s_cbranch_scc1 %s' % nxt)
        a('global_load_dwordx2 v[16:17], v143, %s sc1' % sp(pWS))
        a('s_waitcnt vmcnt(0)')
        a('v_cmp_ne_u32 s[48:49], %s, v16' % sTAG)
        a('v_cmp_ne_u32 s[50:51], %s, v17' % sXCC)
        a('s_cmp_lg_u64 s[48:49], 0')
        a('s_cbranch_scc1 %s' % nxt)
        if 'forceglobal' not in self.opts:
            a('s_cmp_eq_u64 s[50:51], 0')
            a('s_cbranch_scc1 %s' % nxt)
        a('s_mov_b32 s40, 2')
        a('v_add_u32 v12, %d, v12' % (QB - QA))
        a('v_add_u32 v13, %d, v13' % (QB - QA))
        a('v_add_u32 v140, %d, v140' % (QB - QA))
        a('global_store_dwordx4 v12, %s, %s sc1' % (v4(D), sp(pWS)))
        a('global_store_dword v140, v145, %s sc1' % sp(pWS))
        a.label(nxt)
        a('s_sub_u32 %s, %s, 1' % (sSPIN, sSPIN))
        a('s_cmp_lg_u32 %s, 0' % sSPIN)
        a('s_cbranch_scc1 %s' % top)
        a.label(done)
        self.stamp(5)
        for r in range(4):
            a('v_add_f32 v%d, v%d, v%d' % (8 + r, G + r, G + 4 + r))
            a('v_add_f32 v%d, v%d, v%d' % (G + 8 + r, G + 8 + r, G + 12 + r))
        for r in range(4):
            a('v_add_f32 v%d, v%d, v%d' % (8 + r, 8 + r, G + 8 + r))
        self.allreduce([8, 9, 10, 11], [48, 49, 50, 51], steps=('p32',))
        a('v_cvt_pk_bf16_f32 v8, v8, v9')
        a('v_cvt_pk_bf16_f32 v9, v10, v11')
        a('v_and_b32 v10, 31, v0')
        a('v_lshlrev_b32 v10, 3, v10')
        a('ds_write_b64 v10, v[8:9] offset:%d' % Q_LDS)
        self.set_flag(190, FQ)
        self.stamp(6)

        skip = a.newlabel('L_xq')
        a('s_cmp_eq_u32 s41, 0')
        a('s_cbranch_scc1 %s' % skip)

        def loads():
            a('global_load_dwordx2 v[16:17], v142, %s sc1' % sp(pWS))

        def checks():
            self.check1(16, 18, True)
        self.poll(loads, checks, 18, sleep=4)
        a('v_cmp_ne_u32 s[50:51], %s, v17' % sXCC)
        a('s_or_b64 s[50:51], s[50:51], vcc')
        a('s_cselect_b32 s44, 1, 0')
        if 'forceglobal' in self.opts:
            a('s_mov_b32 s44, 1')
        a('v_mov_b32 v8, s44')
        a('ds_write_b32 v190, v8 offset:%d' % MODE)
        a('s_or_b32 s44, s44, s40')
        a('s_cmp_lg_u32 s44, 1')
        a('s_cbranch_scc1 %s' % skip)
        a('v_add_u32 v12, %d, v12' % (QB - QA))
        a('v_add_u32 v140, %d, v140' % (QB - QA))
        a('global_store_dwordx4 v12, %s, %s sc1' % (v4(D), sp(pWS)))
        a('global_store_dword v140, v145, %s sc1' % sp(pWS))
        a.label(skip)
        self.get_mode(8)
        a('v_lshlrev_b32 v150, 4, v0')
        a('s_mul_i32 s44, %s, 640' % sI)
        a('s_add_u32 s44, s44, %s' % sLOC)
        a('v_add_u32 v151, s44, v150')
        a('s_lshl_b32 s44, %s, 11' % sTP)
        a('s_add_u32 s44, s44, %d' % YP)
        a('v_add_u32 v152, s44, v150')
        a('s_lshl_b32 s44, %s, 11' % sI)
        a('s_lshl_b32 s45, %s, 8' % sX)
        a('s_add_u32 s44, s44, s45')
        a('s_add_u32 s44, s44, %d' % YP)
        a('v_add_u32 v153, s44, v150')
        self.h_addr(154, 8)
        a('s_lshl_b32 s44, %s, 4' % sTP)
        a('s_add_u32 s44, s44, %s' % sLOC)
        a('s_add_u32 s44, s44, %d' % (L_IN + 3840))
        a('v_lshrrev_b32 v8, 1, v0')
        a('v_min_u32 v8, 26, v8')
        a('v_mul_u32_u24 v8, %d, v8' % INP)
        a('v_and_b32 v9, 1, v0')
        a('v_lshl_add_u32 v8, v9, 9, v8')
        a('v_add_u32 v155, s44, v8')
        if 'nofpt2' not in self.opts:
            l_nt = a.newlabel('L_nt')
            a('s_and_b32 s44, %s, 7' % sTP)
            a('s_cmp_lg_u32 s44, %s' % sX)
            a('s_cbranch_scc1 %s' % l_nt)
            a('s_cmp_lt_u32 %s, 12' % sI)
            a('s_cbranch_scc1 %s' % l_nt)
            a('v_add_u32 v8, %d, v152' % (FP - YP))
            a('global_load_dwordx4 v[164:167], v8, %s sc1' % sp(pWS))
            a('global_load_dwordx4 v[168:171], v8, %s offset:1024 sc1' % sp(pWS))
            a.label(l_nt)
        self.rowtag(156)
        a('v_lshlrev_b32 v%d, 16, v%d' % (XS, XS))
        a('v_mov_b32 v30, %s' % sTAG)
        a('v_mov_b32 v31, %s' % sTAG)
        a('s_mov_b32 exec_hi, 1')

        def rd():
            for w in range(4):
                a('ds_read_b128 %s, v150 offset:%d' % (v4(32 + 4 * w), OW_LDS + 528 * w))
        self.wait_flag(FVSA[2], 1, 8, sleep=2)
        self.wait_flag(FO, 4, 8, rd)
        self.stamp(7)
        for r in range(4):
            a('v_add_f32 v%d, v%d, v%d' % (32 + r, 32 + r, 36 + r))
            a('v_add_f32 v%d, v%d, v%d' % (40 + r, 40 + r, 44 + r))
        for r in range(4):
            a('v_add_f32 v%d, v%d, v%d' % (8 + r, 32 + r, 40 + r))
        self.tag4(8)
        self.st_local([(151, 8, L_OP)])
        self.set_flag(190, FPUB)
        a('s_mov_b64 exec, -1')
        self.stamp(8)
        l_noy = a.newlabel('L_noy')
        fin = a.newlabel('L_cend')
        a('s_cmp_ge_u32 %s, 20' % sI)
        a('s_cbranch_scc1 %s' % l_noy)

        def rd():
            a('ds_read_b128 v[32:35], v150 offset:%d' % YW_LDS)
        self.wait_flag(FG1, 4, 36, sleep=1)
        self.wait_flag(FY, 4, 36, rd)
        self.stamp(9)
        self.rs4(32)
        a('v_and_or_b32 v32, v32, v7, v156')
        self.expand4(32)
        a('s_mov_b64 exec, 0xffff')
        a('global_store_dwordx4 v153, v[32:35], %s sc1' % sp(pWS))
        a('s_mov_b64 exec, -1')
        a.label(l_noy)
        a('s_cmp_lt_u32 %s, 12' % sI)
        a('s_cbranch_scc1 %s' % fin)
        self.gather8(152, 16, 10)
        a('v_cvt_pk_bf16_f32 v16, v16, v16')
        a('v_and_b32 v16, 0xffff0000, v16')
        a('v_add_f32 v16, v16, v%d' % XS)
        a('v_cvt_pk_bf16_f32 v16, v16, v16')
        a('ds_write_b32 v154, v16 offset:%d' % H_LDS)
        self.set_flag(190, FH)
        self.stamp(11)
        a('v_and_b32 v28, 0xffff0000, v16')
        a('v_mul_f32 v29, v28, v28')
        self.allreduce([28, 29], [17, 18], steps=('x2', 'r4', 'r8', 'p16', 'p32'))
        self.st_local([(155, 28, 0)])
        a.label(fin)
        self.end_wave()
        self.flush_cold()

    def load_start(self):
        a = self.a
        a.label('L_load')
        a.reset()
        a('v_mov_b32 v8, -1')
        a('v_lshlrev_b32 v9, 2, v0')
        a('s_mov_b32 exec_hi, 0')
        a('ds_write_b32 v9, v8 offset:%d' % SY)
        a('s_mov_b64 exec, -1')
        a('s_waitcnt lgkmcnt(0)')
        a('s_load_dword %s, %s, %d' % (sTAG, sp(pWS), EPOCH))
        a('s_barrier')
        a('s_branch L_load2')

    def loader(self):
        a = self.a
        a.label('L_load2')
        a.reset()
        self.roles()
        if 'noprio' not in self.opts:
            a('s_setprio 2')
        self.stamp(1)
        a('s_getreg_b32 %s, hwreg(HW_REG_XCC_ID)' % sXCC)
        a('s_and_b32 %s, %s, 0xf' % (sXCC, sXCC))
        a('s_lshl_b32 s44, %s, 10' % sH)
        a('s_lshl_b32 s45, %s, 7' % sJ8)
        a('s_add_u32 s44, s44, s45')
        a('s_add_u32 s44, s44, %d' % XCB)
        a('v_mov_b32 v11, s44')
        a('v_mov_b32 v15, %s' % sXCC)
        a('s_mul_i32 s44, %s, %d' % (sX, 512 * 1280))
        a('s_min_u32 s45, %s, 19' % sI)
        a('s_lshl_b32 s45, s45, 6')
        a('s_add_u32 s45, s44, s45')
        a('v_lshrrev_b32 v8, 2, v0')
        a('v_mul_u32_u24 v8, 1280, v8')
        a('v_and_b32 v9, 3, v0')
        a('v_lshl_add_u32 v8, v9, 4, v8')
        a('v_add_u32 v32, s45, v8')
        a('s_mul_i32 s45, %s, 20480' % sI)
        a('s_add_u32 s44, s44, s45')
        a('v_lshlrev_b32 v8, 6, v0')
        a('v_add_u32 v33, s44, v8')
        a('s_sub_u32 s44, s44, s45')
        a('s_add_u32 s45, %s, %d' % (sI, self.p['nb']))
        a('s_and_b32 s45, s45, 31')
        a('s_mul_i32 s45, s45, 20480')
        a('s_add_u32 s44, s44, s45')
        a('v_add_u32 v35, s44, v8')
        a('s_min_u32 s44, %s, 26' % sU)
        a('s_mul_i32 s44, s44, %d' % INP)
        a('s_mul_i32 s45, %s, %d' % (sX, LOCP))
        a('s_add_u32 s44, s44, s45')
        a('s_add_u32 s44, s44, %d' % (LOCB + L_IN))
        a('v_add_u32 v34, s44, v8')
        a('s_mul_i32 s44, %s, %d' % (sTP, 32 * 3456))
        a('s_mul_i32 s45, %s, 432' % sX)
        a('s_add_u32 s44, s44, s45')
        a('v_mul_u32_u24 v13, 3456, v2')
        a('v_add_u32 v13, s44, v13')
        a('v_lshl_add_u32 v56, v1, 4, v13')
        a('v_min_u32 v8, 10, v1')
        a('v_lshl_add_u32 v57, v8, 4, v13')
        a('v_add_u32 v57, 256, v57')
        a('s_sub_u32 s44, %s, 20' % sI)
        a('s_and_b32 s44, s44, 7')
        a('s_mul_i32 s44, s44, %d' % (32 * 3456))
        a('s_add_u32 s44, s44, s45')
        a('v_lshrrev_b32 v8, 3, v0')
        a('v_mul_u32_u24 v8, 3456, v8')
        a('v_and_b32 v9, 7, v0')
        a('v_lshlrev_b32 v9, 6, v9')
        a('v_min_u32 v9, 428, v9')
        a('v_add3_u32 v58, v8, v9, s44')
        a('s_sub_u32 s44, %s, 14' % sI)
        a('s_cmp_ge_u32 s44, 12')
        a('s_cselect_b32 s46, 12, 0')
        a('s_sub_u32 s44, s44, s46')
        a('s_add_u32 s44, s44, 8')
        a('s_min_u32 s44, s44, 19')
        a('s_mul_i32 s44, s44, %d' % (32 * 3456))
        a('s_add_u32 s44, s44, s45')
        a('v_add3_u32 v59, v8, v9, s44')
        a('s_mov_b64 s[92:93], %s' % sp(pWG))
        a('s_mov_b64 s[94:95], %s' % sp(pWU))
        a('s_mov_b32 s57, %d' % (8 * 3456))
        l_pd = a.newlabel('L_pd')
        a('s_cmp_lt_u32 %s, 28' % sI)
        a('s_cbranch_scc1 %s' % l_pd)
        a('s_mov_b64 s[92:93], %s' % sp(pWD))
        a('s_add_u32 s94, s%d, 4096' % pWD)
        a('s_addc_u32 s95, s%d, 0' % (pWD + 1))
        a('s_mov_b32 s57, 8192')
        a('s_sub_u32 s44, %s, 29' % sI)
        a('s_lshl_b32 s44, s44, 15')
        a('s_cmp_eq_u32 %s, 28' % sI)
        a('s_cselect_b32 s44, %d, s44' % (216 * 1280 - 32768))
        a('s_mul_i32 s45, %s, %d' % (sX, 216 * 1280))
        a('s_add_u32 s44, s44, s45')
        a('v_lshlrev_b32 v8, 6, v0')
        a('v_add_u32 v58, s44, v8')
        a.label(l_pd)
        a('s_min_u32 s44, %s, 26' % sU)
        a('s_lshl_b32 s44, s44, 3')
        a('s_mul_i32 s45, %s, 216' % sX)
        a('s_add_u32 s44, s44, s45')
        a('s_mul_i32 s44, s44, 1280')
        a('v_and_b32 v8, 1, v2')
        a('v_lshlrev_b32 v8, 1, v8')
        a('v_lshrrev_b32 v9, 1, v2')
        a('v_add_u32 v8, v8, v9')
        a('v_mul_u32_u24 v8, 2560, v8')
        a('v_lshl_add_u32 v8, v1, 4, v8')
        a('v_add_u32 v64, s44, v8')
        a('s_lshl_b32 s44, %s, 5' % sB)
        a('s_add_u32 s44, s44, %s' % sH)
        a('s_lshl_b32 s44, s44, 20')
        a('s_lshl_b32 s45, %s, 16' % sJ)
        a('s_add_u32 s44, s44, s45')
        a('s_add_u32 s44, s44, %d' % (3072 * 256))
        a('v_lshlrev_b32 v8, 10, v2')
        a('v_lshl_add_u32 v8, v1, 4, v8')
        if 'vlin' in self.opts:
            a('v_lshlrev_b32 v8, 4, v0')
        a('v_add_u32 v66, s44, v8')
        self.consts()
        a('s_waitcnt lgkmcnt(0)')
        self.tagcalc()
        a('v_mov_b32 v14, %s' % sTAG)
        a('s_mov_b64 exec, 1')
        a('global_store_dwordx2 v11, v[14:15], %s sc1' % sp(pWS))
        a('s_mov_b64 exec, -1')
        self.wait_flag(FV, 4, 16, sleep=1)
        self.stamp(3)
        l_nowo = a.newlabel('L_nowo')
        l_fin = a.newlabel('L_lfin')
        l_nogu = a.newlabel('L_nogu')
        marks = {4 * k1: t for t, (k0, k1) in enumerate(VSTAGES)}

        def fire(mk, donec):
            t = mk.pop(donec)
            self.set_flag(190, FVSA[t])
            if t == 3:
                self.stamp(7)

        def issue(kind, k, aw):
            if kind == 'v':
                a('s_mov_b32 m0, %d' % (V_LDS + 1024 * (4 * k + aw)))
                a('global_load_lds_dwordx4 v65, %s%s' % (sp(pV), self.nt))
            elif kind == 'p':
                a('global_load_dword v%d, v33, %s' % (80 + k, sp(pWO)))
                a('v_add_u32 v33, 4096, v33')
            elif kind == 'q':
                a('global_load_dword v%d, v35, %s' % (91 + k, sp(pWO)))
                a('v_add_u32 v35, 4096, v35')
            elif kind == 't':
                a('global_load_dword v%d, v34, %s offset:%d sc1' % (86 + k, sp(pWS), 1024 * k))
            elif kind == 'd':
                a('global_load_dword v%d, v58, %s' % (70 + k, sp(94 if k & 1 else 92)))
                if k & 1:
                    a('v_add_u32 v58, s57, v58')
            elif kind == 'e':
                a('global_load_dword v%d, v59, %s' % (70 + k, sp(pWU if k & 1 else pWG)))
                if k & 1:
                    a('v_add_u32 v59, %d, v59' % (8 * 3456))
            elif kind == 'w':
                a('s_mov_b32 m0, %d' % (WO_LDS + 1024 * k))
                a('global_load_lds_dwordx4 v32, %s%s' % (sp(pWO), self.nt))
                a('v_add_u32 v32, 20480, v32')
            elif kind == 'g':
                a('s_mov_b32 m0, %d' % (GU_LDS + 1024 * (8 * aw + k)))
                a('global_load_lds_dwordx4 v%d, %s%s' % (56 + (aw & 1), sp(pWU if aw >> 1 else pWG), '' if 'gnb' in self.opts else self.nt))
                if aw == 3:
                    a('v_add_u32 v56, %d, v56' % (4 * 3456))
                    a('v_add_u32 v57, %d, v57' % (4 * 3456))
            elif kind == 'n':
                a('s_mov_b32 m0, %d' % (WD_LDS + 1024 * k))
                a('v_add_u32 v65, %d, v64' % ((k // 5) * 1280 + (k % 5) * 256))
                a('global_load_lds_dwordx4 v65, %s%s' % (sp(pWD), self.nt))

        def stream(seq, mk, base, ld0, pub=False):
            for i, (kind, k, aw) in enumerate(seq):
                i += base
                if kind == 'v':
                    a('v_add_u32 v65, %d, v66' % ((4 * k + aw) * 1024 if 'vlin' in self.opts else aw * 16384 + ((k >> 2) ^ (2 * (aw & 1) if 'par' in self.opts else 0)) * 4096 + (k & 3) * 256))
                ld = ld0 if i >= self.p['v1n'] else self.p['v1d']
                if i >= ld and mk:
                    a('s_waitcnt vmcnt(%d)' % (ld - 1))
                    for donec in sorted(mk):
                        if donec <= i - ld + 1:
                            fire(mk, donec)
                    if not mk and pub:
                        self.wait_flag(FPUB, 1, 16)
                if (kind, k, aw) == ('g', 0, 0):
                    assert not mk
                issue(kind, k, aw)
            return base + len(seq)

        vs = [('v', k, aw) for k in range(16) for aw in range(4)]
        gs = [('g', n, cb) for n in range(8) for cb in range(4)]
        ns = [('n', q, 0) for q in range(10)]
        ex = [('p', i, 0) for i in range(5)] + [('t', 0, 0), ('t', 1, 0)]
        if self.p['nb']:
            ex += [('q', i, 0) for i in range(5)]
        n = stream(vs + ex, marks, 0, self.p['ldepth'])
        a('s_cmp_ge_u32 %s, 20' % sI)
        a('s_cbranch_scc1 %s' % l_nowo)
        mk = dict(marks)
        for donec in sorted(mk):
            a('s_waitcnt vmcnt(%d)' % (n - donec))
            fire(mk, donec)
        self.wait_scores(16)
        a('s_waitcnt vmcnt(%d)' % self.p['wwait'])
        self.stamp(2)
        for q in range(32):
            issue('w', q, 0)
        a('s_waitcnt vmcnt(0)')
        self.set_flag(190, FWO)
        self.stamp(4)
        self.wait_flag(FG1, 4, 16, sleep=1)
        a('s_cmp_lt_u32 %s, 12' % sI)
        a('s_cbranch_scc1 %s' % l_nogu)
        for e in gs:
            issue(*e)
        l_nod = a.newlabel('L_nod')
        a('s_cmp_ge_u32 %s, 27' % sU)
        a('s_cbranch_scc1 %s' % l_nod)
        a.label(l_nogu)
        for e in ns:
            issue(*e)
        a('s_branch %s' % l_fin)
        a.label(l_nod)
        a('s_waitcnt vmcnt(0)')
        a('s_branch %s' % l_fin)
        a.label(l_nowo)
        mk = dict(marks)
        ld2 = self.p['ldepth2']
        for donec in sorted(mk):
            if n - donec >= ld2:
                a('s_waitcnt vmcnt(%d)' % (n - donec))
                fire(mk, donec)
        stream([('d', i, 0) for i in range(8)] + gs + ns, mk, n, ld2, pub=True)
        assert not mk
        if 'gnb' in self.opts:
            for i in range(8):
                issue('e', i, 0)
            a('s_waitcnt vmcnt(18)')
            self.set_flag(190, FGU)
        a.label(l_fin)
        a('s_waitcnt vmcnt(10)')
        self.set_flag(190, FGU)
        self.stamp(5)
        self.down_unit()

    def down_unit(self):
        a = self.a
        fin = a.newlabel('L_dend')
        a('s_cmp_ge_u32 %s, 27' % sU)
        a('s_cbranch_scc1 %s' % fin)
        DW = 96
        A0, A1 = 40, 44
        Gr, Cr, Sr, T = 16, 28, 36, 48
        self.get_mode(8)
        a('s_mul_i32 s45, %s, %d' % (sU, INP))
        a('s_add_u32 s45, s45, %s' % sLOC)
        a('s_add_u32 s45, s45, %d' % L_IN)
        a('v_and_b32 v8, 7, v0')
        a('v_lshrrev_b32 v9, 3, v0')
        a('v_lshlrev_b32 v156, 7, v8')
        a('v_lshl_add_u32 v156, v9, 4, v156')
        a('v_add_u32 v156, s45, v156')
        a('v_lshlrev_b32 v157, 6, v1')
        a('v_lshl_add_u32 v157, v2, 4, v157')
        a('v_add_u32 v157, s45, v157')
        a('v_bfe_u32 v158, v0, 3, 1')
        a('v_lshlrev_b32 v158, 5, v158')
        a('v_lshl_add_u32 v158, v2, 3, v158')
        a('v_add_u32 v158, v158, v8')
        a('v_lshlrev_b32 v158, 4, v158')
        a('v_add_u32 v158, s45, v158')
        a('v_and_b32 v159, 1, v2')
        a('v_lshl_add_u32 v159, v1, 1, v159')
        a('v_lshrrev_b32 v9, 1, v2')
        a('v_lshl_add_u32 v159, v159, 1, v9')
        a('v_lshlrev_b32 v159, 4, v159')
        a('v_add_u32 v159, s45, v159')
        a('v_add_u32 v159, 2048, v159')
        a('v_lshlrev_b32 v150, 4, v0')
        self.prefill(Cr + 4)
        self.prefill(Gr + 8)
        a('v_mov_b32 v%d, 0' % Sr)
        a('v_mov_b32 v%d, 0' % (Sr + 1))
        a('v_mov_b32 v%d, %s' % (Sr + 2, sTAG))
        a('s_mov_b32 s40, 0x000f000f')
        a('s_mov_b32 s41, 0x000f000f')

        def loads():
            a('global_load_dwordx4 %s, v157, %s offset:2560 sc1' % (v4(Cr), sp(pWS)))
            a('s_mov_b64 exec, s[40:41]')
            a('global_load_dwordx4 %s, v157, %s offset:3584 sc1' % (v4(Cr + 4), sp(pWS)))
            a('s_mov_b64 exec, -1')

        def checks():
            self.check4(Cr, T, True)
            self.check4(Cr + 4, T, False, dst=T + 4, last=True)
        self.poll(loads, checks, T, sleep=2)
        self.stamp(8)
        for q in range(10):
            a('ds_read_b128 %s, v150 offset:%d' % (v4(DW + 4 * q), WD_LDS + 1024 * q))
        for r in range(4):
            a('v_add_f32 v%d, v%d, v%d' % (Cr + r, Cr + r, T + 4 + r))
        self.allreduce([Cr, Cr + 1, Cr + 2, Cr + 3], [], steps=('x1', 'x2', 'hm', 'r8'))
        a('s_mov_b32 s40, 0x0f0f0f0f')
        a('s_mov_b32 s41, 0x0f0f0f0f')
        a('s_mov_b32 s46, -1')
        a('s_mov_b32 s47, 0x00000f0f')
        a('s_waitcnt lgkmcnt(0)')

        def loads():
            a('s_mov_b64 exec, s[46:47]')
            a('global_load_dwordx4 %s, v158, %s offset:3840 sc1' % (v4(Sr), sp(pWS)))
            a('s_mov_b64 exec, s[40:41]')
            a('global_load_dwordx4 %s, v156, %s offset:2048 sc1' % (v4(Gr + 8), sp(pWS)))
            a('s_mov_b64 exec, -1')
            for n in range(2):
                a('global_load_dwordx4 %s, v156, %s offset:%d sc1' % (v4(Gr + 4 * n), sp(pWS), 1024 * n))

        def checks():
            self.check4(Gr + 8, T, True, dst=T + 4)
            self.check4(Gr, T, False)
            self.check4(Gr + 4, T, False, last=True)
            self.check1(Sr + 2, T, False)
        self.poll(loads, checks, T)
        self.stamp(12)
        GG = [Gr, Gr + 1, Gr + 2, Gr + 3]
        SS = [Sr, Sr + 1]
        self.allreduce(SS, [], steps=('x1',))
        for r in range(4):
            a('v_add_f32 v%d, v%d, v%d' % (Gr + r, Gr + r, Gr + 4 + r))
        self.allreduce(SS, [], steps=('x2',))
        for r in range(4):
            a('v_add_f32 v%d, v%d, v%d' % (Gr + r, Gr + r, T + 4 + r))
        self.allreduce(SS, [], steps=('hm',))
        self.allreduce(GG, [], steps=('x1',))
        self.allreduce(SS, [T, T + 1], steps=('p16',))
        self.allreduce(GG, [], steps=('x2',))
        self.allreduce(SS, [T, T + 1], steps=('p32',))
        self.allreduce(GG, [], steps=('hm',))
        a('v_mul_f32 v%d, 0x%x, v%d' % (Sr, f2u(1.0 / 640), Sr))
        a('v_mul_f32 v%d, 0x%x, v%d' % (Sr + 1, f2u(1.0 / 640), Sr + 1))
        a('v_fma_f32 v%d, -v%d, v%d, v%d' % (Sr + 1, Sr, Sr, Sr + 1))
        a('v_max_f32 v%d, 0, v%d' % (Sr + 1, Sr + 1))
        self.ln_finish(Sr, Sr + 1)
        for r in range(4):
            a('v_fma_f32 v%d, -v%d, v%d, v%d' % (Gr + r, Sr, Cr + r, Gr + r))
        for r in range(4):
            a('v_mul_f32 v%d, v%d, v%d' % (Gr + r, Gr + r, Sr + 1))
        a('v_permlane32_swap_b32 v%d, v%d' % (Gr, Gr + 2))
        a('v_permlane32_swap_b32 v%d, v%d' % (Gr + 1, Gr + 3))
        self.bf16_round4(Gr, T)
        a('v_mul_f32 v%d, 0x%x, v%d' % (T + 4, f2u(-LOG2E), T))
        a('v_mul_f32 v%d, 0x%x, v%d' % (T + 5, f2u(-LOG2E), T + 1))
        a('v_exp_f32 v%d, v%d' % (T + 4, T + 4))
        a('v_exp_f32 v%d, v%d' % (T + 5, T + 5))
        a('v_add_f32 v%d, 1.0, v%d' % (T + 4, T + 4))
        a('v_add_f32 v%d, 1.0, v%d' % (T + 5, T + 5))
        a('v_rcp_f32 v%d, v%d' % (T + 4, T + 4))
        a('v_rcp_f32 v%d, v%d' % (T + 5, T + 5))
        a('v_mul_f32 v%d, v%d, v%d' % (T, T, T + 4))
        a('v_mul_f32 v%d, v%d, v%d' % (T + 1, T + 1, T + 5))
        a('v_cvt_pk_bf16_f32 v%d, v%d, v%d' % (T, T, T + 1))
        a('v_and_b32 v%d, 0xffff0000, v%d' % (T + 1, T))
        a('v_lshlrev_b32 v%d, 16, v%d' % (T, T))
        a('v_mul_f32 v%d, v%d, v%d' % (T, T, T + 2))
        a('v_mul_f32 v%d, v%d, v%d' % (T + 1, T + 1, T + 3))
        a('v_cvt_pk_bf16_f32 v%d, v%d, v%d' % (T, T, T))
        a('v_cvt_pk_bf16_f32 v%d, v%d, v%d' % (T + 1, T + 1, T + 1))
        self.sparse(A0, T)
        self.sparse(A1, T + 1)
        DD = 56
        for m in range(5):
            self.mfma(DD + 4 * m, A0, DW + 4 * m, True)
            self.mfma(DD + 4 * m, A1, DW + 20 + 4 * m, False)
        self.st_local([(159, DD + 4 * m, 1024 * m - 2048) for m in range(5)],
                      pre=lambda m: self.tag4(DD + 4 * m, second=True))
        a.label(fin)
        self.end_wave()
        self.flush_cold()

    def att_prep(self):
        a = self.a
        self.consts(12)
        a('v_lshlrev_b32 v176, 4, v2')
        a('v_and_b32 v177, 1, v2')
        a('v_lshl_add_u32 v177, v1, 1, v177')
        a('v_lshlrev_b32 v177, 4, v177')
        a('v_lshrrev_b32 v12, 5, v0')
        a('v_lshl_add_u32 v177, v12, 3, v177')
        a('s_mul_i32 s44, %s, 528' % sAW)
        a('v_add_u32 v177, s44, v177')
        a('v_mov_b32 v178, s44')
        a('v_bfe_u32 v179, v0, 3, 1')
        a('v_lshlrev_b32 v179, 7, v179')
        a('v_lshl_add_u32 v179, v2, 5, v179')
        a('s_lshl_b32 s44, %s, 9' % sAW)
        a('v_lshlrev_b32 v180, 3, v0')
        a('v_add_u32 v180, s44, v180')
        a('v_and_b32 v181, 1, v1')
        a('v_lshlrev_b32 v181, 8, v181')
        a('v_lshl_add_u32 v181, v2, 4, v181')
        a('v_add_u32 v181, s44, v181')
        a('v_lshrrev_b32 v12, 2, v1')
        a('v_lshl_add_u32 v12, v2, 3, v12')
        a('v_lshlrev_b32 v12, 6, v12')
        a('s_lshl_b32 s44, %s, 13' % sAW)
        a('v_add_u32 v12, s44, v12')
        a('v_and_b32 v13, 3, v1')
        a('v_lshl_add_u32 v182, v13, 3, v12')
        a('v_lshl_add_u32 v184, v2, 1, v1')
        a('v_lshlrev_b32 v184, 4, v184')
        a('s_lshl_b32 s44, %s, 8' % sAW)
        a('v_add_u32 v184, s44, v184')
        a('v_lshlrev_b32 v185, 4, v0')
        a('s_lshl_b32 s44, %s, 13' % sAW)
        a('s_add_u32 s44, s44, %d' % GU_LDS)
        a('v_add_u32 v186, s44, v185')
        a('s_lshl_b32 s44, %s, 10' % sAW)
        a('s_add_u32 s44, s44, %d' % V_LDS)
        a('v_add_u32 v187, s44, v185')
        a('v_xor_b32 v12, v1, v2')
        a('v_lshlrev_b32 v13, 8, v1')
        a('v_add_u32 v13, s56, v13')
        for m in range(4):
            a('v_xor_b32 v%d, %d, v12' % (192 + m, 4 * m))
            a('v_lshl_add_u32 v%d, v%d, 4, v13' % (192 + m, 192 + m))

    def att_start(self):
        a = self.a
        a('s_lshl_b32 s44, %s, 5' % sB)
        a('s_add_u32 s44, s44, %s' % sH)
        a('s_lshl_b32 s44, s44, 20')
        a('s_lshl_b32 s45, %s, 16' % sJ)
        a('s_add_u32 s44, s44, s45')
        a('s_lshl_b32 s45, %s, 14' % sAW)
        a('s_add_u32 s44, s44, s45')
        a('s_add_u32 s44, s44, %d' % (3072 * 256))
        if 'par' in self.opts:
            a('s_and_b32 s46, %s, 1' % sAW)
            a('s_lshl_b32 s46, s46, 13')
            a('s_add_u32 s44, s44, s46')
            a('s_lshl_b32 s46, s46, 1')
            a('s_sub_u32 s57, 4096, s46')
        a('v_xor_b32 v12, v1, v2')
        a('v_lshlrev_b32 v13, 8, v2')
        a('v_add_u32 v13, s44, v13')
        for q in range(4):
            a('v_xor_b32 v%d, %d, v12' % (8 + q, 4 * q))
            a('v_lshl_add_u32 v%d, v%d, 4, v13' % (8 + q, 8 + q))
            if q:
                a('v_add_u32 v%d, %d, v%d' % (8 + q, 1024 * q, 8 + q))
        a('s_lshl_b32 s44, %s, 2' % sAW)
        a('v_mov_b32 v191, s44')
        a('s_add_u32 s56, s45, %d' % K_LDS)
        a('s_waitcnt lgkmcnt(0)')
        if 'latek' in self.opts:
            a('s_barrier')
        for idx in range(self.p['depth']):
            self.kload(idx)
        if 'latek' not in self.opts:
            a('s_barrier')
        a('s_branch L_att')

    def kload(self, idx):
        a = self.a
        a('s_add_u32 m0, s56, %d' % (1024 * idx))
        a('global_load_lds_dwordx4 v%d, %s%s' % (8 + (idx & 3), sp(pK), self.nt))
        if idx < 12:
            a('v_add_u32 v%d, %s, v%d' % (8 + (idx & 3), 's57' if 'par' in self.opts and 4 <= idx < 8 else '4096', 8 + (idx & 3)))

    def attention(self):
        a = self.a
        a.label('L_att')
        a.reset()
        KR, VR, QF, S = 16, 80, 144, 160
        a('s_load_dword %s, %s, %d' % (sTAG, sp(pWS), EPOCH))
        self.roles()
        self.att_prep()
        depth, kfree = self.p['depth'], self.p['kfree']
        for idx in range(depth, 16):
            if idx < kfree:
                a('s_waitcnt vmcnt(%d)' % (depth - 1))
            self.kload(idx)
        self.set_flag(191, FV)
        self.stamp(1)
        a('s_waitcnt lgkmcnt(0)')
        self.tagcalc()

        def rd():
            for m in range(4):
                a('ds_read_b128 %s, v176 offset:%d' % (v4(QF + 4 * m), Q_LDS + 64 * m))
        self.wait_flag(FQ, 1, 8, rd, lazy=True)
        self.stamp(2)
        for bb in range(4):
            a('s_waitcnt vmcnt(%d)' % (4 * (3 - bb)))
            for m in range(4):
                a('ds_read_b128 %s, v%d offset:%d' % (v4(KR + 16 * bb + 4 * m), 192 + m, 4096 * bb))
            if bb:
                a('s_waitcnt lgkmcnt(%d)' % (0 if self.stamps else 4))
                for m in range(4):
                    self.mfma(S + 4 * (bb - 1), KR + 16 * (bb - 1) + 4 * m, QF + 4 * m, m == 0)
        a('s_waitcnt lgkmcnt(0)')
        for m in range(4):
            self.mfma(S + 12, KR + 48 + 4 * m, QF + 4 * m, m == 0)
        self.stamp(3)
        sc = f2u(128 ** -0.5)
        for k in range(0, 16, 2):
            a('v_cvt_pk_bf16_f32 v8, v%d, v%d' % (S + k, S + k + 1))
            a('v_and_b32 v9, 0xffff0000, v8')
            a('v_lshlrev_b32 v8, 16, v8')
            a('v_mul_f32 v8, 0x%x, v8' % sc)
            a('v_mul_f32 v9, 0x%x, v9' % sc)
            a('v_cvt_pk_bf16_f32 v8, v8, v9')
            a('v_and_b32 v%d, 0xffff0000, v8' % (S + k + 1))
            a('v_lshlrev_b32 v%d, 16, v8' % (S + k))
        a('v_max3_f32 v8, v%d, v%d, v%d' % (S, S + 1, S + 2))
        a('v_max3_f32 v9, v%d, v%d, v%d' % (S + 3, S + 4, S + 5))
        a('v_max3_f32 v8, v8, v%d, v%d' % (S + 6, S + 7))
        a('v_max3_f32 v9, v9, v%d, v%d' % (S + 8, S + 9))
        a('v_max3_f32 v8, v8, v%d, v%d' % (S + 10, S + 11))
        a('v_max3_f32 v9, v9, v%d, v%d' % (S + 12, S + 13))
        a('v_max3_f32 v8, v8, v%d, v%d' % (S + 14, S + 15))
        a('v_max_f32 v8, v8, v9')
        self.allreduce([8], [9], op='max', steps=('p16', 'p32'))
        a('ds_write_b32 v191, v8 offset:%d' % MX)

        def loads():
            a('ds_read_b128 v[16:19], v190 offset:%d' % MX)

        def checks():
            a('v_or3_b32 v8, v16, v17, v18')
            a('v_or_b32 v8, v8, v19')
            a('v_and_b32 v8, 1, v8')
        self.poll(loads, checks, 8, wait='lgkmcnt(0)')
        a('v_max3_f32 v8, v16, v17, v18')
        a('v_max_f32 v8, v8, v19')
        for k in range(16):
            a('v_sub_f32 v%d, v%d, v8' % (S + k, S + k))
        for k in range(16):
            a('v_mul_f32 v%d, 0x%x, v%d' % (S + k, f2u(LOG2E), S + k))
        for k in range(16):
            a('v_exp_f32 v%d, v%d' % (S + k, S + k))
        a('v_add_f32 v9, v%d, v%d' % (S, S + 1))
        a('v_add_f32 v10, v%d, v%d' % (S + 2, S + 3))
        for k in range(4, 16, 2):
            a('v_add_f32 v9, v9, v%d' % (S + k))
            a('v_add_f32 v10, v10, v%d' % (S + k + 1))
        a('v_add_f32 v9, v9, v10')
        self.allreduce([9], [10], steps=('p16', 'p32'))
        a('v_mul_f32 v8, 0x3e800000, v8')
        a('v_mov_b32 v10, 0')
        a('v_mov_b32 v11, 0')
        a('s_mov_b64 exec, 1')
        a('ds_write_b128 v178, v[8:11] offset:%d' % (OW_LDS + 512))
        a('s_mov_b64 exec, -1')
        O = 144
        for k in range(16):
            a('v_cvt_pk_bf16_f32 v12, v%d, v%d' % (S + k, S + k))
            a('v_and_b32 v12, 0xffff0000, v12')
            a('v_sub_f32 v12, v%d, v12' % (S + k))
            a('v_cndmask_b32 v12, v%d, v12, %s' % (S + k, HIROWS))
            a('v_cvt_pk_bf16_f32 v12, v12, v12')
            self.sparse(KR + 4 * k, 12)
        self.stamp(4)
        for t, (k0, k1) in enumerate(VSTAGES):
            def rd():
                for k in range(k0, k1):
                    a('ds_read_b128 %s, v187 offset:%d' % (v4(VR + 4 * k), 4096 * k))
            self.wait_flag(FVSA[t], 1, 8, rd, lazy=(t < 3))
            for k in range(k0, k1):
                self.mfma(O, KR + 4 * k, VR + 4 * k, k == 0)
            if t == 1:
                self.get_mode(8)
                a('s_mul_i32 s44, %s, 640' % sAW)
                a('s_add_u32 s44, s44, %s' % sLOC)
                a('s_add_u32 s44, s44, 3840')
                a('v_lshrrev_b32 v8, 5, v0')
                a('v_mul_u32_u24 v8, 10240, v8')
                a('v_add_u32 v8, s44, v8')
                a('v_and_b32 v9, 31, v0')
                a('v_lshl_add_u32 v12, v9, 4, v8')
                a('v_and_b32 v9, 3, v0')
                a('v_mul_u32_u24 v9, 2560, v9')
                a('v_add_u32 v13, v9, v8')
        self.stamp(5)
        a('v_permlane32_swap_b32 v%d, v%d' % (O, O + 2))
        a('v_permlane32_swap_b32 v%d, v%d' % (O + 1, O + 3))
        a('v_add_f32 v%d, v%d, v%d' % (O, O, O + 2))
        a('v_add_f32 v%d, v%d, v%d' % (O + 1, O + 1, O + 3))
        a('ds_write_b64 v177, %s offset:%d' % (v2(O), OW_LDS))
        self.set_flag(191, FO)
        l_now = a.newlabel('L_anow')
        l_end = a.newlabel('L_aend')
        a('s_cmp_ge_u32 %s, 20' % sI)
        a('s_cbranch_scc1 %s' % l_now)
        G = 104
        OF, WF0, WF1 = 48, 64, 80

        def loads():
            a('global_load_dwordx4 %s, v13, %s offset:%d sc1' % (v4(G + 16), sp(pWS), 512 - 3840))
            for j in range(4):
                a('global_load_dwordx4 %s, v12, %s offset:%d sc1' % (v4(G + 4 * j), sp(pWS), j * 2560 - 3840))

        def rdw():
            for ks in range(4):
                for hf in range(2):
                    off = WO_LDS + (32 * ks + 4 * hf) * 64
                    a('ds_read_b64_tr_b16 %s, v182 offset:%d' % (v2(WF0 + 4 * ks + 2 * hf), off))
                    a('ds_read_b64_tr_b16 %s, v182 offset:%d' % (v2(WF1 + 4 * ks + 2 * hf), off + 32))

        def checks():
            for k in range(5):
                self.check4(G + 4 * k, 40, k == 0, last=(k == 4))
        self.poll(loads, checks, 40)
        self.set_flag(191, FG1)
        a('ds_read_b32 v42, v190 offset:%d' % FWO)
        rdw()
        self.stamp(6)
        a('v_max_f32_dpp v41, v%d, v%d quad_perm:[1,0,3,2] %s' % (G + 16, G + 16, DPPM))
        self.allreduce([41], [], op='max', steps=('x2',))
        a('v_sub_f32 v40, v%d, v41' % (G + 16))
        a('v_mul_f32 v40, 0x%x, v40' % f2u(LOG2E))
        a('v_exp_f32 v40, v40')
        a('v_mul_f32 v41, v40, v%d' % (G + 17))
        self.allreduce([41], [], steps=('x1', 'x2'))
        a('v_rcp_f32 v41, v41')
        a('v_mul_f32 v40, v40, v41')
        for r in range(4):
            a('v_mul_f32_dpp v%d, v40, v%d quad_perm:[0,0,0,0] %s' % (8 + r, G + r, DPPM))
        for j in range(1, 4):
            for r in range(4):
                a('v_fmac_f32_dpp v%d, v40, v%d quad_perm:[%d,%d,%d,%d] %s' % (8 + r, G + 4 * j + r, j, j, j, j, DPPM))
        a('v_cvt_pk_bf16_f32 v8, v8, v9')
        a('v_cvt_pk_bf16_f32 v9, v10, v11')
        a('ds_write_b64 v180, v[8:9] offset:%d' % O2_LDS)
        for ks in range(4):
            a('ds_read_b128 %s, v181 offset:%d' % (v4(OF + 4 * ks), O2_LDS + 64 * ks))
        a('s_mov_b32 s46, 0x00030003')
        a('s_mov_b32 s47, 0x00030003')
        a('s_waitcnt lgkmcnt(0)')
        l_have = a.newlabel('L_havew')
        l_late = a.newlabel('L_latew')
        a('v_cmp_ne_u32 vcc, 0, v42')
        a('s_cbranch_vccnz %s' % l_late)
        a.label(l_have)

        def cold():
            a.label(l_late)
            self.wait_flag(FWO, 1, 10, rdw)
            a('s_branch %s' % l_have)
        self.cold.append(cold)
        self.stamp(7)
        D0, D1 = 96, 100
        for ks in range(4):
            self.mfma(D0, WF0 + 4 * ks, OF + 4 * ks, ks == 0)
            self.mfma(D1, WF1 + 4 * ks, OF + 4 * ks, ks == 0)
        a('s_mov_b64 exec, s[46:47]')
        a('ds_write_b128 v184, %s offset:%d' % (v4(D0), YW_LDS))
        a('ds_write_b128 v184, %s offset:%d' % (v4(D1), YW_LDS + 128))
        self.set_flag(191, FY)
        a('s_mov_b64 exec, -1')
        self.stamp(8)
        a.label(l_now)
        a('s_cmp_lt_u32 %s, 12' % sI)
        a('s_cbranch_scc1 %s' % l_end)
        a('s_and_b32 s44, %s, 1' % sAW)
        a('s_lshl_b32 s44, s44, 4')
        a('v_add_u32 v9, s44, v1')
        a('v_cmp_gt_u32 s[40:41], 27, v9')
        a('v_min_u32 v9, 26, v9')
        a('s_and_b32 s44, %s, 2' % sAW)
        a('v_mov_b32 v8, s44')
        a('v_mul_u32_u24 v9, %d, v9' % INP)
        a('s_add_u32 s44, %s, %d' % (sLOC, L_IN))
        a('v_add_u32 v9, s44, v9')
        a('v_and_b32 v10, 1, v2')
        a('v_add_u32 v8, v8, v10')
        a('s_lshl_b32 s44, %s, 6' % sTP)
        a('v_lshl_add_u32 v13, v8, 4, v9')
        a('v_add_u32 v13, s44, v13')
        a('v_lshrrev_b32 v10, 1, v2')
        a('v_lshl_add_u32 v8, v8, 1, v10')
        a('v_lshl_add_u32 v12, v8, 4, v9')
        a('s_lshl_b32 s44, %s, 7' % sTP)
        a('v_add_u32 v12, s44, v12')
        GU, A0, A1 = 16, 48, 52
        a('v_mov_b32 v56, 0x3f803f80')
        self.sparse(A0, 56)

        def rd():
            for n in range(8):
                a('ds_read_b128 %s, v186 offset:%d' % (v4(GU + 4 * n), 1024 * n))
        self.wait_flag(FGU, 1, 8, rd, lazy=True)
        D = 60
        for n in range(8):
            self.mfma(D, A0, GU + 4 * n, n == 0)
        a('s_mov_b32 s46, s40')
        a('s_mov_b32 s47, 0')
        self.tag4(D)
        a('s_mov_b64 exec, s[46:47]')
        self.st_local([(13, D, 2560)])
        a('s_mov_b64 exec, -1')
        self.stamp(9)
        HD = 64

        def rd():
            a('ds_read_b128 %s, v179 offset:%d' % (v4(HD), H_LDS))
            a('ds_read_b128 %s, v179 offset:%d' % (v4(HD + 4), H_LDS + 16))
        self.wait_flag(FH, 1, 8, rd)
        self.stamp(10)
        D = 72
        self.sparse(A0, HD)
        for n in range(8):
            if n < 7:
                self.sparse(A1 if n % 2 == 0 else A0, HD + n + 1)
            self.mfma(D, A0 if n % 2 == 0 else A1, GU + 4 * n, n == 0)
        a('s_mov_b64 exec, s[40:41]')
        self.tag4(D)
        self.st_local([(12, D, 0)])
        a('s_mov_b64 exec, -1')
        self.stamp(11)
        a('s_cmp_lg_u32 %s, 0' % sAW)
        a('s_cbranch_scc1 %s' % l_end)
        a('s_lshl_b32 s44, %s, 8' % sTP)
        a('s_add_u32 s44, s44, %s' % sLOC)
        a('s_add_u32 s44, s44, %d' % L_IN)
        a('v_lshlrev_b32 v8, 4, v1')
        a('v_mul_u32_u24 v9, %d, v2' % INP)
        a('v_add3_u32 v80, v8, v9, s44')
        for n in range(1, 7):
            a('v_add_u32 v%d, %d, v80' % (80 + n, 4 * INP * n))
        a('s_lshl_b32 s44, %s, 11' % sTP)
        a('s_add_u32 s44, s44, %d' % FP)
        a('v_add_u32 v88, s44, v185')
        a('s_lshl_b32 s45, %s, 8' % sX)
        a('v_add_u32 v89, s45, v88')
        if 'fpt' in self.opts:
            l_nt = a.newlabel('L_nt')
            a('s_and_b32 s44, %s, 7' % sTP)
            a('s_cmp_lg_u32 s44, %s' % sX)
            a('s_cbranch_scc1 %s' % l_nt)
            a('global_load_dwordx4 v[96:99], v88, %s sc1' % sp(pWS))
            a('global_load_dwordx4 v[100:103], v88, %s offset:1024 sc1' % sp(pWS))
            a.label(l_nt)
        self.slice_off(90, 8)
        if 'outt' in self.opts:
            a('global_load_ushort v104, v90, %s' % sp(pOUT))
        self.h_addr(91, 8)
        a('ds_read_b32 v92, v91 offset:%d' % H_LDS)
        self.rowtag(93)
        G = 16
        self.prefill(G + 24, second=True)
        a('s_mov_b32 s46, -1')
        a('s_mov_b32 s47, 0xffff')
        a('s_waitcnt lgkmcnt(0)')
        a('v_and_b32 v92, 0xffff0000, v92')

        def loads():
            for n in range(6):
                a('global_load_dwordx4 %s, v%d, %s sc1' % (v4(G + 4 * n), 80 + n, sp(pWS)))
            a('s_mov_b64 exec, s[46:47]')
            a('global_load_dwordx4 %s, v86, %s sc1' % (v4(G + 24), sp(pWS)))
            a('s_mov_b64 exec, -1')

        def checks():
            for k in range(6):
                self.check4(G + 4 * k, 44, k == 0, second=True)
            self.check4(G + 24, 44, False, second=True, dst=52, last=True)
        self.poll(loads, checks, 44)
        self.stamp(12)
        for r in range(4):
            a('v_add_f32 v%d, v%d, v%d' % (G + r, G + r, G + 4 + r))
            a('v_add_f32 v%d, v%d, v%d' % (G + 8 + r, G + 8 + r, G + 12 + r))
            a('v_add_f32 v%d, v%d, v%d' % (G + 16 + r, G + 16 + r, G + 20 + r))
        for r in range(4):
            a('v_add_f32 v%d, v%d, v%d' % (G + r, G + r, G + 8 + r))
            a('v_add_f32 v%d, v%d, v%d' % (G + 16 + r, G + 16 + r, 52 + r))
        for r in range(4):
            a('v_add_f32 v%d, v%d, v%d' % (48 + r, G + r, G + 16 + r))
        self.rs4(48)
        a('v_and_or_b32 v48, v48, v7, v93')
        self.expand4(48)
        a('s_mov_b64 exec, 0xffff')
        a('global_store_dwordx4 v89, v[48:51], %s sc1' % sp(pWS))
        a('s_mov_b64 exec, -1')
        self.stamp(13)
        a('s_and_b32 s44, %s, 7' % sTP)
        a('s_cmp_lg_u32 s44, %s' % sX)
        a('s_cbranch_scc1 %s' % l_end)
        self.gather8(88, 16, 14)
        a('v_cvt_pk_bf16_f32 v16, v16, v16')
        a('v_and_b32 v16, 0xffff0000, v16')
        a('v_add_f32 v16, v16, v92')
        a('v_cvt_pk_bf16_f32 v16, v16, v16')
        a('global_store_short v90, v16, %s' % sp(pOUT))
        a('s_cmp_lg_u32 s2, 96')
        a('s_cbranch_scc1 %s' % l_end)
        a('s_mov_b64 exec, 1')
        a('v_mov_b32 v60, %s' % sTAG)
        a('global_store_dword v190, v60, %s offset:%d sc1' % (sp(pWS), EPOCH))
        if 'probe' in self.opts:
            lp = a.newlabel('L_probe')
            a('s_add_u32 s92, s92, 4000')
            a.label(lp)
            a('s_memrealtime s[94:95]')
            a('s_waitcnt lgkmcnt(0)')
            a('s_sub_u32 s44, s94, s92')
            a('s_cmp_lt_i32 s44, 0')
            a('s_cbranch_scc1 %s' % lp)
        a.label(l_end)
        self.end_wave()
        self.flush_cold()

    def build(self):
        a = self.a
        hdr = open('cdna_kernels/%s.s.ref' % NAME).read().split('\n')
        top = []
        for ln in hdr:
            if ln.startswith('; @launch'):
                top.append('; @launch grid=(256,1,1) block=(%d,1,1) lds=%d' % (64 * NWAVES, LDS_BYTES))
                break
            top.append(ln)
        out = '\n'.join(top) + '\n'
        out += '.amdgcn_target "amdgcn-amd-amdhsa--gfx950"\n.text\n.globl %s_kernel\n.p2align 8\n' % NAME
        out += '.type %s_kernel,@function\n%s_kernel:\n' % (NAME, NAME)
        self.prologue()
        self.att_start()
        self.load_start()
        self.comm()
        self.attention()
        self.loader()
        a.label('L_exit')
        a('s_endpgm')
        out += a.text()
        out += '''.section .rodata,"a"
.p2align 6
.amdhsa_kernel %s_kernel
  .amdhsa_next_free_vgpr 208
  .amdhsa_next_free_sgpr 102
  .amdhsa_accum_offset 208
  .amdhsa_group_segment_fixed_size 0
  .amdhsa_kernarg_size 96
  .amdhsa_user_sgpr_count 2
  .amdhsa_user_sgpr_kernarg_segment_ptr 1
  .amdhsa_system_sgpr_workgroup_id_x 1
  .amdhsa_float_denorm_mode_32 3
.end_amdhsa_kernel
''' % NAME
        return out


if __name__ == '__main__':
    open(sys.argv[1], 'w').write(Gen(opts=sys.argv[2:]).build())
```

```python
import struct
import sys
from asmlib import Asm

NAME = 'sequential_preLN__sliding_block_cached__swiglu_ffn__decode'


def f2u(x):
    return struct.unpack('<I', struct.pack('<f', x))[0]


EPOCH = 0
XCB = 0x2000
QA = 0x10000
QB = 0x90000
YP = 0x110000
FP = 0x130000
PRB = 0x150000
LOCB = 0x200000
L_OP = 0
L_IN = 21504
INP = 5120
LOCP = 163840
RB = 0x200000
TS = 0x600000

SY = 0
FQ, FV, MX, FO, FY, FH, FWO, FGU, MODE, FG1, FPUB, NEAR = (SY + o for o in (0, 16, 32, 48, 64, 80, 84, 88, 96, 112, 104, 108))
FVSA = [SY + 4, SY + 8, SY + 12, SY + 100]
Q_LDS = 128
OW_LDS = 384
O2_LDS = 2560
YW_LDS = 4608
H_LDS = 5632
WD_LDS = 6144
WO_LDS = 16384
GU_LDS = 49152
V_LDS = 81920
K_LDS = WO_LDS
LDS_BYTES = V_LDS + 65536
VSTAGES = [(0, 6), (6, 12), (12, 15), (15, 16)]

sWID, sX, sI, sH, sJ8, sB, sJ, sAW = 's3', 's4', 's5', 's6', 's7', 's8', 's9', 's10'
sTAG = 's11'
sT = ['s12', 's13', 's14', 's15']
pX, pK, pV, pWQ, pWO, pWG, pWU = 16, 18, 20, 22, 24, 28, 30
pWD, pOUT, pDBG, pWS = 32, 34, 36, 38
sLOC = 's42'
sMODE = 's43'
sSPIN = 's52'
sSEL = 's53'
sXCC = 's54'
sTAG2 = 's55'
sT2 = ['s96', 's97', 's98', 's99']
sTP = 's100'
sU = 's101'
HIROWS = 's[58:59]'
SPIN_MAX = 100000
NWAVES = 6
LOG2E = 1.4426950408889634
DPPM = 'row_mask:0xf bank_mask:0xf'


def sp(n):
    return 's[%d:%d]' % (n, n + 1)


def v4(n):
    return 'v[%d:%d]' % (n, n + 3)


def v2(n):
    return 'v[%d:%d]' % (n, n + 1)


class Gen:
    def __init__(self, opts=()):
        self.a = Asm()
        self.opts = set(opts) | {'par', 'meas2'}
        self.stamps = 'stamps' in self.opts
        self.nt = ' nt'
        self.p = dict(depth=4, kfree=13, ldepth=32, ldepth2=12, v1n=32, v1d=16, nb=0, wwait=0, pk=0, fsh=0, mr=2, mr3=0)
        for o in self.opts:
            if '=' in o:
                k, v = o.split('=')
                assert k in self.p
                self.p[k] = int(v)
        self.cold = []

    def stamp(self, k):
        if 'probe' in self.opts and self.p['pk'] == k and k and getattr(self, 'in_att', False):
            self.a('s_memrealtime s[92:93]')
            self.a('s_waitcnt lgkmcnt(0)')
        if self.stamps:
            self.a('s_memrealtime %s' % sp(60 + 2 * k))

    def end_wave(self):
        a = self.a
        if self.stamps:
            a('s_mov_b64 exec, -1')
            self.stamp(15)
            a('s_waitcnt lgkmcnt(0)')
            a('v_mov_b32 v200, 0')
            for k in range(16):
                a('v_writelane_b32 v200, s%d, %d' % (60 + 2 * k, k))
            a('s_mul_i32 s44, s2, %d' % NWAVES)
            a('s_add_u32 s44, s44, %s' % sWID)
            a('s_lshl_b32 s44, s44, 6')
            a('s_add_u32 s44, s44, %d' % TS)
            a('v_lshlrev_b32 v201, 2, v0')
            a('v_add_u32 v201, s44, v201')
            a('s_mov_b64 exec, 0xffff')
            a('global_store_dword v201, v200, %s' % sp(pWS))
        a('s_endpgm')

    def tag4(self, base, second=False):
        t = sT2 if second else sT
        for k in range(4):
            self.a('v_and_or_b32 v%d, v%d, v7, %s' % (base + k, base + k, t[k]))

    def prefill(self, base, second=False):
        t = sT2 if second else sT
        for k in range(4):
            self.a('v_mov_b32 v%d, %s' % (base + k, t[k]))

    def check4(self, base, t, first, second=False, dst=None, last=False):
        a = self.a
        tg = sT2 if second else sT
        d = base if dst is None else dst
        for k in range(4):
            a('v_xor_b32 v%d, %s, v%d' % (d + k, tg[k], base + k))
        if first:
            a('v_or3_b32 v%d, v%d, v%d, v%d' % (t, d, d + 1, d + 2))
            a('v_or_b32 v%d, v%d, v%d' % (t, t, d + 3))
        else:
            a('v_or3_b32 v%d, v%d, v%d, v%d' % (t, t, d, d + 1))
            a('v_or3_b32 v%d, v%d, v%d, v%d' % (t, t, d + 2, d + 3))
        if last:
            a('v_and_b32 v%d, 0xff, v%d' % (t, t))

    def check1(self, reg, t, first, second=False):
        self.a('v_sad_u8 v%d, v%d, %s, %s' % (t, reg, sTAG2 if second else sTAG, '0' if first else 'v%d' % t))

    def poll(self, loads, checks, acc, wait='vmcnt(0)', sleep=0):
        a = self.a
        top = a.newlabel('L_poll')
        retry = a.newlabel('L_retry')
        done = a.newlabel('L_pdone')
        a('s_mov_b32 %s, %d' % (sSPIN, SPIN_MAX if wait.startswith('vm') else SPIN_MAX * 8))
        a.label(top)
        loads()
        a('s_waitcnt %s' % wait)
        checks()
        a('v_cmp_ne_u32 vcc, 0, v%d' % acc)
        a('s_cbranch_vccnz %s' % retry)
        a.label(done)
        if 'dprio' in self.opts:
            a('s_setprio 3')

        def cold():
            a.label(retry)
            if 'dprio' in self.opts:
                a('s_setprio 0')
            if sleep:
                a('s_sleep %d' % sleep)
            a('s_sub_u32 %s, %s, 1' % (sSPIN, sSPIN))
            a('s_cbranch_scc0 %s' % top)
            a('s_branch %s' % done)
        self.cold.append(cold)

    def wait_flag(self, addr, n, t, extra=None, sleep=0, lazy=False):
        a = self.a

        def loads():
            if n == 1:
                a('ds_read_b32 v%d, v190 offset:%d' % (t, addr))
            else:
                a('ds_read_b128 %s, v190 offset:%d' % (v4(t), addr))
            if extra and not lazy:
                extra()

        def checks():
            if n == 4:
                a('v_or3_b32 v%d, v%d, v%d, v%d' % (t, t, t + 1, t + 2))
                a('v_or_b32 v%d, v%d, v%d' % (t, t, t + 3))
        self.poll(loads, checks, t, wait='lgkmcnt(0)', sleep=max(sleep, 1) if lazy else sleep)
        if extra and lazy:
            extra()
            a('s_waitcnt lgkmcnt(0)')

    def wait_scores(self, t):
        a = self.a

        def loads():
            a('ds_read_b128 %s, v190 offset:%d' % (v4(t), MX))

        def checks():
            a('v_or3_b32 v%d, v%d, v%d, v%d' % (t, t, t + 1, t + 2))
            a('v_or_b32 v%d, v%d, v%d' % (t, t, t + 3))
            a('v_and_b32 v%d, 1, v%d' % (t, t))
        self.poll(loads, checks, t, wait='lgkmcnt(0)', sleep=1)

    def set_flag(self, vaddr, off):
        self.a('ds_write_b32 v%d, v190 offset:%d' % (vaddr, off))

    def st_local(self, stores, pre=None):
        a = self.a
        lg = a.newlabel('L_sg')
        ld = a.newlabel('L_sd')
        a('s_cmp_lg_u32 %s, 0' % sMODE)
        a('s_cbranch_scc1 %s' % lg)
        for k, (va, d, off) in enumerate(stores):
            if pre:
                pre(k)
            a('global_store_dwordx4 v%d, %s, %s offset:%d' % (va, v4(d), sp(pWS), off))
        a.label(ld)

        def cold():
            a.label(lg)
            a('s_nop 7')
            for k, (va, d, off) in enumerate(stores):
                if pre:
                    pre(k)
                a('global_store_dwordx4 v%d, %s, %s offset:%d sc1' % (va, v4(d), sp(pWS), off))
            a('s_nop 1')
            a('s_branch %s' % ld)
        self.cold.append(cold)

    def flush_cold(self):
        while self.cold:
            c = self.cold.pop(0)
            self.a.reset()
            c()

    def get_mode(self, t):
        a = self.a

        def loads():
            a('ds_read_b32 v%d, v190 offset:%d' % (t, MODE))

        def checks():
            a('v_lshrrev_b32 v%d, 1, v%d' % (t + 1, t))
        self.poll(loads, checks, t + 1, wait='lgkmcnt(0)', sleep=1)
        a('v_readfirstlane_b32 s44, v%d' % t)
        a('s_cmp_eq_u32 s44, 0')
        a('s_cselect_b32 %s, 0, %d' % (sMODE, RB))
        a('s_mul_i32 %s, %s, %d' % (sLOC, sX, LOCP))
        a('s_add_u32 %s, %s, %d' % (sLOC, sLOC, LOCB))
        a('s_add_u32 %s, %s, %s' % (sLOC, sLOC, sMODE))

    def allreduce(self, rs, tmps, op='add', steps=('x1', 'x2', 'r4', 'r8', 'p16')):
        a = self.a
        dpp = {'x1': 'quad_perm:[1,0,3,2]', 'x2': 'quad_perm:[2,3,0,1]', 'r4': 'row_ror:4',
               'r8': 'row_ror:8', 'hm': 'row_half_mirror'}
        for st in steps:
            if st in dpp:
                for r in rs:
                    a('v_%s_f32_dpp v%d, v%d, v%d %s %s' % (op, r, r, r, dpp[st], DPPM))
            else:
                ins = 'v_permlane16_swap_b32' if st == 'p16' else 'v_permlane32_swap_b32'
                for r, t in zip(rs, tmps):
                    a('v_mov_b32 v%d, v%d' % (t, r))
                for r, t in zip(rs, tmps):
                    a('%s v%d, v%d' % (ins, r, t))
                for r, t in zip(rs, tmps):
                    a('v_%s_f32 v%d, v%d, v%d' % (op, r, r, t))

    def rs4(self, b):
        a = self.a
        a('v_permlane32_swap_b32 v%d, v%d' % (b, b + 2))
        a('v_permlane32_swap_b32 v%d, v%d' % (b + 1, b + 3))
        a('v_add_f32 v%d, v%d, v%d' % (b, b, b + 2))
        a('v_add_f32 v%d, v%d, v%d' % (b + 1, b + 1, b + 3))
        a('v_permlane16_swap_b32 v%d, v%d' % (b, b + 1))
        a('v_add_f32 v%d, v%d, v%d' % (b, b, b + 1))

    def expand4(self, b):
        a = self.a
        a('v_mov_b32 v%d, v%d' % (b + 1, b))
        a('v_permlane16_swap_b32 v%d, v%d' % (b, b + 1))
        a('v_mov_b32 v%d, v%d' % (b + 2, b))
        a('v_mov_b32 v%d, v%d' % (b + 3, b + 1))
        a('v_permlane32_swap_b32 v%d, v%d' % (b, b + 2))
        a('v_permlane32_swap_b32 v%d, v%d' % (b + 1, b + 3))

    def rowtag(self, dst):
        a = self.a
        a('v_lshlrev_b32 v%d, 3, v2' % dst)
        a('v_lshrrev_b32 v%d, v%d, %s' % (dst, dst, sTAG))
        a('v_and_b32 v%d, 0xff, v%d' % (dst, dst))

    def sparse(self, dst, src):
        for k in range(4):
            self.a('v_and_b32 v%d, v%d, v%d' % (dst + k, src, 3 + k))

    def mfma(self, d, x, y, first):
        self.a('v_mfma_f32_16x16x32_bf16 %s, %s, %s, %s' % (v4(d), v4(x), v4(y), '0' if first else v4(d)))

    def bf16_round4(self, src, dst):
        a = self.a
        a('v_cvt_pk_bf16_f32 v%d, v%d, v%d' % (dst, src, src + 1))
        a('v_cvt_pk_bf16_f32 v%d, v%d, v%d' % (dst + 2, src + 2, src + 3))
        a('v_and_b32 v%d, 0xffff0000, v%d' % (dst + 1, dst))
        a('v_lshlrev_b32 v%d, 16, v%d' % (dst, dst))
        a('v_and_b32 v%d, 0xffff0000, v%d' % (dst + 3, dst + 2))
        a('v_lshlrev_b32 v%d, 16, v%d' % (dst + 2, dst + 2))

    def consts(self, t=8):
        a = self.a
        a('v_and_b32 v%d, 7, v0' % t)
        a('v_and_b32 v%d, 1, v%d' % (t + 1, t))
        a('v_cmp_eq_u32 vcc, 1, v%d' % (t + 1))
        a('v_mov_b32 v%d, 0xffff' % (t + 1))
        a('v_mov_b32 v%d, 0xffff0000' % (t + 2))
        a('v_cndmask_b32 v%d, v%d, v%d, vcc' % (t + 1, t + 1, t + 2))
        a('v_lshrrev_b32 v%d, 1, v%d' % (t, t))
        for k in range(4):
            a('v_cmp_eq_u32 vcc, %d, v%d' % (k, t))
            a('v_cndmask_b32 v%d, 0, v%d, vcc' % (3 + k, t + 1))
        a('v_mov_b32 v7, 0xffffff00')
        a('s_mov_b32 %s, 0x0c0c0400' % sSEL)
        a('s_mov_b32 s58, 0xff00ff00')
        a('s_mov_b32 s59, 0xff00ff00')

    def tagcalc(self):
        a = self.a
        a('s_mul_i32 %s, %s, 0x9e3779b1' % (sTAG, sTAG))
        a('s_add_u32 %s, %s, 0x7f4a7c15' % (sTAG, sTAG))
        a('s_xor_b32 %s, %s, 0x5a5a5a5a' % (sTAG2, sTAG))
        for tg, t in ((sTAG, sT), (sTAG2, sT2)):
            a('s_and_b32 %s, %s, 0xff' % (t[0], tg))
            a('s_bfe_u32 %s, %s, 0x80008' % (t[1], tg))
            a('s_bfe_u32 %s, %s, 0x80010' % (t[2], tg))
            a('s_lshr_b32 %s, %s, 24' % (t[3], tg))

    def roles(self):
        a = self.a
        a('s_sub_u32 %s, %s, 12' % (sTP, sI))
        a('s_max_i32 %s, %s, 0' % (sTP, sTP))
        a('s_add_u32 %s, %s, 12' % (sU, sI))
        a('s_cmp_lt_u32 %s, 12' % sI)
        a('s_cselect_b32 %s, %s, %s' % (sU, sI, sU))
        a('s_sub_u32 s44, %s, 8' % sI)
        a('s_cmp_ge_u32 %s, 20' % sI)
        a('s_cselect_b32 %s, s44, %s' % (sU, sU))

    def ln_finish(self, rm, rv):
        a = self.a
        a('v_cvt_pk_bf16_f32 v%d, v%d, v%d' % (rv, rm, rv))
        a('v_lshlrev_b32 v%d, 16, v%d' % (rm, rv))
        a('v_and_b32 v%d, 0xffff0000, v%d' % (rv, rv))
        a('v_add_f32 v%d, 0x%x, v%d' % (rv, f2u(1e-5), rv))
        a('v_cvt_pk_bf16_f32 v%d, v%d, v%d' % (rv, rv, rv))
        a('v_and_b32 v%d, 0xffff0000, v%d' % (rv, rv))
        a('v_sqrt_f32 v%d, v%d' % (rv, rv))
        a('v_cvt_pk_bf16_f32 v%d, v%d, v%d' % (rv, rv, rv))
        a('v_and_b32 v%d, 0xffff0000, v%d' % (rv, rv))
        a('v_rcp_f32 v%d, v%d' % (rv, rv))

    def gather8(self, vaddr, G, stampk):
        a = self.a

        def loads():
            a('global_load_dwordx4 %s, v%d, %s sc1' % (v4(G), vaddr, sp(pWS)))
            a('global_load_dwordx4 %s, v%d, %s offset:1024 sc1' % (v4(G + 4), vaddr, sp(pWS)))

        def checks():
            self.check4(G, G + 8, True)
            self.check4(G + 4, G + 8, False, last=True)
        self.poll(loads, checks, G + 8)
        self.stamp(stampk)
        for r in range(4):
            a('v_add_f32 v%d, v%d, v%d' % (G + r, G + r, G + 4 + r))
        self.rs4(G)

    def slot(self, dst, tsg, base):
        a = self.a
        a('s_lshr_b32 %s, %s, 2' % (dst, tsg))
        a('s_lshl_b32 %s, %s, 14' % (dst, dst))
        a('s_and_b32 s47, %s, 3' % tsg)
        a('s_lshl_b32 s47, s47, 11')
        a('s_add_u32 %s, %s, s47' % (dst, dst))
        a('s_add_u32 %s, %s, %d' % (dst, dst, base))

    def near_copy(self, dst):
        a = self.a
        a('s_getreg_b32 s47, hwreg(HW_REG_XCC_ID)')
        a('s_lshl_b32 s47, s47, 11')
        a('s_add_u32 %s, s%d, %d' % (dst, pWS, YP))
        a('s_xor_b32 s47, s47, %s' % dst)
        a('s_lshr_b32 %s, %s, 8' % (dst, dst))
        a('s_xor_b32 %s, %s, s47' % (dst, dst))
        if 'far' in self.opts:
            a('s_not_b32 %s, %s' % (dst, dst))
        a('s_and_b32 %s, %s, 8192' % (dst, dst))

    def probe_round(self):
        a = self.a
        a('s_memtime s[44:45]')
        a('s_waitcnt lgkmcnt(0)')
        a('s_load_dword s46, s[92:93], 0 glc')
        a('s_waitcnt lgkmcnt(0)')
        a('s_memtime s[48:49]')
        a('s_waitcnt lgkmcnt(0)')
        a('s_load_dword s46, s[92:93], 8192 glc')
        a('s_waitcnt lgkmcnt(0)')
        a('s_memtime s[50:51]')
        a('s_waitcnt lgkmcnt(0)')
        a('s_sub_u32 s44, s48, s44')
        a('s_sub_u32 s45, s50, s48')
        a('s_min_u32 s94, s94, s44')
        a('s_min_u32 s95, s95, s45')

    def slice_off(self, dst, t):
        a = self.a
        a('v_and_b32 v%d, 1, v1' % t)
        a('v_mul_u32_u24 v%d, 1280, v%d' % (t, t))
        a('v_lshrrev_b32 v%d, 1, v1' % dst)
        a('v_lshl_add_u32 v%d, v%d, 3, v%d' % (dst, dst, t))
        a('v_lshl_add_u32 v%d, v2, 1, v%d' % (dst, dst))
        a('s_lshl_b32 s44, %s, 6' % sTP)
        a('v_add_u32 v%d, s44, v%d' % (dst, dst))

    def h_addr(self, dst, t):
        a = self.a
        a('v_and_b32 v%d, 1, v1' % t)
        a('v_lshlrev_b32 v%d, 7, v%d' % (t, t))
        a('v_lshrrev_b32 v%d, 1, v1' % dst)
        a('v_lshl_add_u32 v%d, v%d, 2, v%d' % (dst, dst, t))
        a('v_lshl_add_u32 v%d, v2, 5, v%d' % (dst, dst))

    def prologue(self):
        a = self.a
        a('s_cmp_ge_u32 s2, 256')
        a('s_cbranch_scc1 L_exit')
        a('s_load_dwordx16 s[16:31], s[0:1], 0')
        a('s_load_dwordx8 s[32:39], s[0:1], 64')
        a('s_getpc_b64 s[56:57]')
        a.label('L_pc')
        a('s_lshr_b32 %s, s2, 3' % sI)
        a('s_lshl_b32 s44, %s, 10' % sI)
        a('v_lshl_add_u32 v8, v0, 6, s44')
        a('v_min_u32 v8, L_exit-L_pc, v8')
        a('v_cmp_gt_u32 vcc, 16, v0')
        a('s_and_saveexec_b64 s[44:45], vcc')
        a('s_cbranch_execz L_npf')
        a('global_load_dword v199, v8, s[56:57]')
        a.label('L_npf')
        a('s_mov_b64 exec, -1')
        if self.stamps:
            for k in range(1, 16):
                a('s_mov_b64 %s, 0' % sp(60 + 2 * k))
        self.stamp(0)
        if 'probe' in self.opts:
            a('s_memrealtime s[92:93]')
        a('v_lshrrev_b32 v1, 6, v0')
        a('v_and_b32 v0, 63, v0')
        a('v_readfirstlane_b32 %s, v1' % sWID)
        a('s_and_b32 %s, s2, 7' % sX)
        a('s_and_b32 %s, %s, 3' % (sH, sI))
        a('s_lshl_b32 s44, %s, 2' % sX)
        a('s_add_u32 %s, %s, s44' % (sH, sH))
        a('s_lshr_b32 %s, %s, 2' % (sJ8, sI))
        a('s_lshr_b32 %s, %s, 2' % (sB, sJ8))
        a('s_and_b32 %s, %s, 3' % (sJ, sJ8))
        a('v_and_b32 v1, 15, v0')
        a('v_lshrrev_b32 v2, 4, v0')
        a('v_mov_b32 v190, 0')
        a('s_sub_u32 %s, %s, 1' % (sAW, sWID))
        a('s_cmp_eq_u32 %s, 5' % sWID)
        a('s_cbranch_scc1 L_load')
        a('s_cmp_eq_u32 %s, 0' % sWID)
        a('s_cbranch_scc1 L_comm')

    def comm(self):
        a = self.a
        WQ, XR, XN, XS, F = 16, 96, 106, 14, 116
        a.label('L_comm')
        a.reset()
        self.roles()
        a('v_bfe_u32 v8, v0, 3, 1')
        a('v_mul_u32_u24 v8, 1280, v8')
        a('v_and_b32 v9, 7, v0')
        a('v_lshl_add_u32 v9, v2, 3, v9')
        a('v_mul_u32_u24 v9, 40, v9')
        a('v_add_u32 v10, v8, v9')
        a('s_mul_i32 s44, %s, 160' % sJ8)
        a('v_mul_u32_u24 v9, 40, v2')
        a('v_add3_u32 v11, v8, v9, s44')
        a('s_mul_i32 s44, %s, %d' % (sJ8, 80 * 8192))
        a('s_lshl_b32 s45, %s, 8' % sH)
        a('s_add_u32 s44, s44, s45')
        a('v_mul_u32_u24 v12, %d, v2' % (20 * 8192))
        a('v_lshl_add_u32 v12, v1, 4, v12')
        a('v_add_u32 v12, s44, v12')
        self.slice_off(13, 8)
        a('s_waitcnt lgkmcnt(0)')
        a('s_load_dword %s, %s, %d' % (sTAG, sp(pWS), EPOCH))
        for base, va in ((XR, 10), (XN, 11)):
            a('global_load_dwordx4 %s, v%d, %s' % (v4(base), va, sp(pX)))
            a('global_load_dwordx4 %s, v%d, %s offset:16' % (v4(base + 4), va, sp(pX)))
            a('global_load_dwordx2 %s, v%d, %s offset:32' % (v2(base + 8), va, sp(pX)))
        a('global_load_ushort v%d, v13, %s' % (XS, sp(pX)))
        for n in range(20):
            a('global_load_dwordx4 %s, v12, %s%s' % (v4(WQ + 4 * n), sp(pWQ), self.nt))
            if n < 19:
                a('v_add_u32 v12, 8192, v12')
        a('s_barrier')
        if 'noprio' not in self.opts:
            a('s_setprio 3')
        self.stamp(1)
        if 'meas2' in self.opts:
            a('s_and_b32 s45, s2, 127')
            a('s_lshl_b32 s45, s45, 6')
            a('s_lshr_b32 s46, s2, 7')
            a('s_lshl_b32 s46, s46, 14')
            a('s_add_u32 s45, s45, s46')
            a('s_add_u32 s45, s45, %d' % PRB)
            a('s_add_u32 s92, s%d, s45' % pWS)
            a('s_addc_u32 s93, s%d, 0' % (pWS + 1))
            a('s_load_dword s48, s[92:93], 0 glc')
            a('s_load_dword s49, s[92:93], 8192 glc')
            a('s_mov_b32 s94, -1')
            a('s_mov_b32 s95, -1')
        self.consts()
        a('s_getreg_b32 %s, hwreg(HW_REG_XCC_ID)' % sXCC)
        a('s_and_b32 %s, %s, 0xf' % (sXCC, sXCC))
        a('v_and_b32 v10, 31, v0')
        a('s_lshl_b32 s44, %s, 12' % sX)
        a('s_add_u32 s44, s44, %d' % XCB)
        a('v_lshlrev_b32 v142, 7, v10')
        a('v_add_u32 v142, s44, v142')
        a('s_lshl_b32 s44, %s, 10' % sH)
        a('s_add_u32 s44, s44, %d' % XCB)
        a('v_and_b32 v9, 7, v0')
        a('v_lshlrev_b32 v143, 7, v9')
        a('v_add_u32 v143, s44, v143')
        a('s_lshl_b32 s44, %s, 14' % sH)
        a('s_add_u32 s44, s44, %d' % QA)
        a('v_lshrrev_b32 v9, 1, v2')
        a('v_lshlrev_b32 v9, 13, v9')
        a('v_and_b32 v10, 1, v2')
        a('v_lshl_add_u32 v10, v1, 1, v10')
        a('v_lshl_add_u32 v12, v10, 4, v9')
        a('v_add_u32 v12, s44, v12')
        a('s_and_b32 s45, %s, 1' % sJ8)
        a('s_lshl_b32 s45, s45, 9')
        a('s_lshr_b32 s46, %s, 1' % sJ8)
        a('s_lshl_b32 s46, s46, 2')
        a('s_add_u32 s45, s45, s46')
        a('s_add_u32 s45, s45, 4096')
        a('v_add_u32 v140, s45, v12')
        a('s_lshl_b32 s45, %s, 9' % sJ8)
        a('v_add_u32 v12, s45, v12')
        a('s_lshl_b32 s45, %s, 13' % sB)
        a('s_add_u32 s45, s45, s44')
        a('s_add_u32 s45, s45, 2048')
        a('v_lshlrev_b32 v13, 4, v0')
        a('v_add_u32 v13, s45, v13')
        a('s_waitcnt vmcnt(20)')
        self.stamp(2)
        for k in range(10):
            a('v_lshlrev_b32 v%d, 16, v%d' % (F + 2 * k, XR + k))
            a('v_and_b32 v%d, 0xffff0000, v%d' % (F + 2 * k + 1, XR + k))
        a('v_add_f32 v8, v%d, v%d' % (F, F + 1))
        a('v_add_f32 v9, v%d, v%d' % (F + 2, F + 3))
        for k in range(4, 20, 2):
            a('v_add_f32 v8, v8, v%d' % (F + k))
            a('v_add_f32 v9, v9, v%d' % (F + k + 1))
        a('v_add_f32 v8, v8, v9')
        red = ('x1', 'x2', 'hm', 'p16', 'p32')
        self.allreduce([8], [9], steps=red)
        a('v_mul_f32 v8, 0x%x, v8' % f2u(1.0 / 640))
        a('v_mov_b32 v9, 0')
        a('v_mov_b32 v10, 0')
        for k in range(0, 20, 2):
            a('v_sub_f32 v%d, v%d, v8' % (F + k, F + k))
            a('v_sub_f32 v%d, v%d, v8' % (F + k + 1, F + k + 1))
            a('v_fmac_f32 v9, v%d, v%d' % (F + k, F + k))
            a('v_fmac_f32 v10, v%d, v%d' % (F + k + 1, F + k + 1))
        a('v_add_f32 v9, v9, v10')
        self.allreduce([9], [10], steps=red)
        a('v_mul_f32 v9, 0x%x, v9' % f2u(1.0 / 640))
        self.ln_finish(8, 9)
        a('s_waitcnt lgkmcnt(0)')
        self.tagcalc()
        self.stamp(3)
        D = 136
        A = [96, 100]
        for k in range(10):
            a('v_lshlrev_b32 v10, 16, v%d' % (XN + k))
            a('v_and_b32 v11, 0xffff0000, v%d' % (XN + k))
            a('v_sub_f32 v10, v10, v8')
            a('v_sub_f32 v11, v11, v8')
            a('v_cvt_pk_bf16_f32 v10, v10, v11')
            a('v_and_b32 v11, 0xffff0000, v10')
            a('v_lshlrev_b32 v10, 16, v10')
            a('v_mul_f32 v10, v10, v9')
            a('v_mul_f32 v11, v11, v9')
            a('v_cvt_pk_bf16_f32 v10, v10, v10')
            a('v_cvt_pk_bf16_f32 v11, v11, v11')
            self.sparse(A[0], 10)
            self.sparse(A[1], 11)
            a('s_waitcnt vmcnt(%d)' % (18 - 2 * k))
            self.mfma(D, A[0], WQ + 8 * k, k == 0)
            self.mfma(D, A[1], WQ + 8 * k + 4, False)

        def qhash(dst, b, t):
            a('v_alignbit_b32 v%d, v%d, v%d, 8' % (dst, b + 1, b + 1))
            a('v_alignbit_b32 v%d, v%d, v%d, 16' % (t, b + 2, b + 2))
            a('v_xor_b32 v%d, v%d, v%d' % (dst, dst, b))
            a('v_xor_b32 v%d, v%d, v%d' % (dst, dst, t))
            a('v_alignbit_b32 v%d, v%d, v%d, 24' % (t, b + 3, b + 3))
            a('v_xor_b32 v%d, v%d, v%d' % (dst, dst, t))
        a('global_store_dwordx4 v12, %s, %s' % (v4(D), sp(pWS)))
        qhash(145, D, 146)
        a('v_xor_b32 v145, %s, v145' % sTAG)
        if 'forceglobal' not in self.opts:
            a('global_store_dword v140, v145, %s' % sp(pWS))
        a('global_load_dwordx2 v[44:45], v142, %s sc1' % sp(pWS))
        self.stamp(4)
        if 'meas2' in self.opts:
            self.probe_round()
        a('s_waitcnt vmcnt(0)')
        self.stamp(13)
        l_nm = a.newlabel('L_nm')
        a('v_cmp_ne_u32 s[48:49], %s, v44' % sTAG)
        a('v_cmp_ne_u32 s[50:51], %s, v45' % sXCC)
        a('s_or_b64 s[48:49], s[48:49], s[50:51]')
        a('s_cselect_b32 s41, 1, 0')
        if 'forceglobal' in self.opts:
            a('s_mov_b32 s41, 1')
        a('s_cmp_lg_u32 s41, 0')
        a('s_cbranch_scc1 %s' % l_nm)
        self.set_flag(190, MODE)
        a.label(l_nm)
        G = 16
        top = a.newlabel('L_q')
        nxt = a.newlabel('L_qn')
        done = a.newlabel('L_qd')
        a('s_mov_b32 %s, %d' % (sSPIN, SPIN_MAX))
        a('s_mov_b32 s40, 0')
        a.label(top)
        for k in range(5):
            a('global_load_dwordx4 %s, v13, %s offset:%d sc1' % (v4(G + 4 * k), sp(pWS), k * 1024 - 2048))
        if 'meas2' in self.opts:
            self.probe_round()
        a('s_waitcnt vmcnt(0)')
        for k in range(4):
            qhash(40, G + 4 * k, 41)
            a('v_xor_b32 v40, v40, v%d' % (G + 16 + k))
            self.check1(40, 42, k == 0)
        a('v_cmp_ne_u32 vcc, 0, v42')
        a('s_cbranch_vccz %s' % done)
        a('s_and_b32 s44, %s, 3' % sSPIN)
        a('s_or_b32 s44, s44, s40')
        a('s_cmp_lg_u32 s44, 1')
        a('s_cbranch_scc1 %s' % nxt)
        a('global_load_dwordx2 v[16:17], v143, %s sc1' % sp(pWS))
        a('s_waitcnt vmcnt(0)')
        a('v_cmp_ne_u32 s[48:49], %s, v16' % sTAG)
        a('v_cmp_ne_u32 s[50:51], %s, v17' % sXCC)
        a('s_cmp_lg_u64 s[48:49], 0')
        a('s_cbranch_scc1 %s' % nxt)
        if 'forceglobal' not in self.opts:
            a('s_cmp_eq_u64 s[50:51], 0')
            a('s_cbranch_scc1 %s' % nxt)
        a('s_mov_b32 s40, 2')
        a('v_add_u32 v12, %d, v12' % (QB - QA))
        a('v_add_u32 v13, %d, v13' % (QB - QA))
        a('v_add_u32 v140, %d, v140' % (QB - QA))
        a('global_store_dwordx4 v12, %s, %s sc1' % (v4(D), sp(pWS)))
        a('global_store_dword v140, v145, %s sc1' % sp(pWS))
        a.label(nxt)
        a('s_sub_u32 %s, %s, 1' % (sSPIN, sSPIN))
        a('s_cmp_lg_u32 %s, 0' % sSPIN)
        a('s_cbranch_scc1 %s' % top)
        a.label(done)
        self.stamp(5)
        for r in range(4):
            a('v_add_f32 v%d, v%d, v%d' % (8 + r, G + r, G + 4 + r))
            a('v_add_f32 v%d, v%d, v%d' % (G + 8 + r, G + 8 + r, G + 12 + r))
        for r in range(4):
            a('v_add_f32 v%d, v%d, v%d' % (8 + r, 8 + r, G + 8 + r))
        self.allreduce([8, 9, 10, 11], [48, 49, 50, 51], steps=('p32',))
        a('v_cvt_pk_bf16_f32 v8, v8, v9')
        a('v_cvt_pk_bf16_f32 v9, v10, v11')
        a('v_and_b32 v10, 31, v0')
        a('v_lshlrev_b32 v10, 3, v10')
        a('ds_write_b64 v10, v[8:9] offset:%d' % Q_LDS)
        self.set_flag(190, FQ)
        self.stamp(6)

        skip = a.newlabel('L_xq')
        a('s_cmp_eq_u32 s41, 0')
        a('s_cbranch_scc1 %s' % skip)

        def loads():
            a('global_load_dwordx2 v[16:17], v142, %s sc1' % sp(pWS))

        def checks():
            self.check1(16, 18, True)
        self.poll(loads, checks, 18, sleep=4)
        a('v_cmp_ne_u32 s[50:51], %s, v17' % sXCC)
        a('s_or_b64 s[50:51], s[50:51], vcc')
        a('s_cselect_b32 s44, 1, 0')
        if 'forceglobal' in self.opts:
            a('s_mov_b32 s44, 1')
        a('v_mov_b32 v8, s44')
        a('ds_write_b32 v190, v8 offset:%d' % MODE)
        a('s_or_b32 s44, s44, s40')
        a('s_cmp_lg_u32 s44, 1')
        a('s_cbranch_scc1 %s' % skip)
        a('v_add_u32 v12, %d, v12' % (QB - QA))
        a('v_add_u32 v140, %d, v140' % (QB - QA))
        a('global_store_dwordx4 v12, %s, %s sc1' % (v4(D), sp(pWS)))
        a('global_store_dword v140, v145, %s sc1' % sp(pWS))
        a.label(skip)
        self.get_mode(8)
        a('v_lshlrev_b32 v150, 4, v0')
        a('s_mul_i32 s44, %s, 640' % sI)
        a('s_add_u32 s44, s44, %s' % sLOC)
        a('v_add_u32 v151, s44, v150')
        self.slot('s44', sTP, YP)
        if 'meas2' in self.opts:
            a('s_mov_b32 s56, s44')
            for r in range(self.p['mr3']):
                self.probe_round()
            a('s_cmp_lt_u32 s95, s94')
            a('s_cselect_b32 s45, 8192, 0')
            if self.stamps:
                a('s_add_u32 s84, s60, s94')
                a('s_add_u32 s88, s60, s95')
            a('v_mov_b32 v8, s45')
            a('ds_write_b32 v190, v8 offset:%d' % NEAR)
            a('s_add_u32 s44, s56, s45')
        elif 'meas' not in self.opts:
            self.near_copy('s45')
            a('s_add_u32 s44, s44, s45')
        else:
            a('s_and_b32 s45, s2, 127')
            a('s_lshl_b32 s45, s45, 6')
            a('s_lshr_b32 s46, s2, 7')
            a('s_lshl_b32 s46, s46, 14')
            a('s_add_u32 s45, s45, s46')
            a('s_add_u32 s45, s45, %d' % PRB)
            a('s_add_u32 s56, s%d, s45' % pWS)
            a('s_addc_u32 s57, s%d, 0' % (pWS + 1))
            a('s_load_dword s46, s[56:57], 0 glc')
            a('s_load_dword s47, s[56:57], 8192 glc')
            a('s_waitcnt lgkmcnt(0)')
        a('v_add_u32 v152, s44, v150')
        self.slot('s44', sI, YP)
        a('s_lshl_b32 s45, %s, 8' % sX)
        a('s_add_u32 s44, s44, s45')
        a('v_lshlrev_b32 v153, 4, v1')
        a('v_lshl_add_u32 v153, v2, 13, v153')
        a('v_add_u32 v153, s44, v153')
        self.h_addr(154, 8)
        a('s_lshl_b32 s44, %s, 4' % sTP)
        a('s_add_u32 s44, s44, %s' % sLOC)
        a('s_add_u32 s44, s44, %d' % (L_IN + 3840))
        a('v_lshrrev_b32 v8, 1, v0')
        a('v_min_u32 v8, 26, v8')
        a('v_mul_u32_u24 v8, %d, v8' % INP)
        a('v_and_b32 v9, 1, v0')
        a('v_lshl_add_u32 v8, v9, 9, v8')
        a('v_add_u32 v155, s44, v8')
        def fptouch():
            l_nt = a.newlabel('L_nt')
            a('s_bfe_u32 s44, %s, %d' % (sTP, 0x30000 + self.p['fsh']))
            a('s_cmp_lg_u32 s44, %s' % sX)
            a('s_cbranch_scc1 %s' % l_nt)
            a('s_cmp_lt_u32 %s, 12' % sI)
            a('s_cbranch_scc1 %s' % l_nt)
            a('v_add_u32 v8, %d, v152' % (FP - YP))
            a('global_load_dwordx4 v[164:167], v8, %s sc1' % sp(pWS))
            a('global_load_dwordx4 v[168:171], v8, %s offset:1024 sc1' % sp(pWS))
            if 'outt2' in self.opts:
                self.slice_off(9, 8)
                a('global_load_ushort v172, v9, %s' % sp(pOUT))
            a.label(l_nt)
        if 'meas' not in self.opts:
            fptouch()
        self.rowtag(156)
        a('v_lshlrev_b32 v%d, 16, v%d' % (XS, XS))
        a('v_mov_b32 v30, %s' % sTAG)
        a('v_mov_b32 v31, %s' % sTAG)
        a('s_mov_b32 exec_hi, 1')

        def rd():
            for w in range(4):
                a('ds_read_b128 %s, v150 offset:%d' % (v4(32 + 4 * w), OW_LDS + 528 * w))
        self.wait_flag(FVSA[2], 1, 8, sleep=2)
        self.wait_flag(FO, 4, 8, rd)
        self.stamp(7)
        for r in range(4):
            a('v_add_f32 v%d, v%d, v%d' % (32 + r, 32 + r, 36 + r))
            a('v_add_f32 v%d, v%d, v%d' % (40 + r, 40 + r, 44 + r))
        for r in range(4):
            a('v_add_f32 v%d, v%d, v%d' % (8 + r, 32 + r, 40 + r))
        self.tag4(8)
        self.st_local([(151, 8, L_OP)])
        self.set_flag(190, FPUB)
        a('s_mov_b64 exec, -1')
        self.stamp(8)
        if 'meas' in self.opts:
            l_nm2 = a.newlabel('L_nms')
            a('s_cmp_lt_u32 %s, 12' % sI)
            a('s_cbranch_scc1 %s' % l_nm2)
            a('s_mov_b32 s40, -1')
            a('s_mov_b32 s41, -1')
            for r in range(self.p['mr']):
                a('s_memtime s[44:45]')
                a('s_waitcnt lgkmcnt(0)')
                a('s_load_dword s46, s[56:57], 0 glc')
                a('s_waitcnt lgkmcnt(0)')
                a('s_memtime s[48:49]')
                a('s_waitcnt lgkmcnt(0)')
                a('s_load_dword s46, s[56:57], 8192 glc')
                a('s_waitcnt lgkmcnt(0)')
                a('s_memtime s[50:51]')
                a('s_waitcnt lgkmcnt(0)')
                a('s_sub_u32 s44, s48, s44')
                a('s_sub_u32 s45, s50, s48')
                a('s_min_u32 s40, s40, s44')
                a('s_min_u32 s41, s41, s45')
            a('s_cmp_lt_u32 s41, s40')
            a('s_cselect_b32 s44, 8192, 0')
            if self.stamps:
                a('s_add_u32 s84, s60, s40')
                a('s_add_u32 s88, s60, s41')
            a('v_mov_b32 v36, s44')
            a('v_add_u32 v152, s44, v152')
            a('ds_write_b32 v190, v36 offset:%d' % NEAR)
            fptouch()
            a.label(l_nm2)
        l_noy = a.newlabel('L_noy')
        fin = a.newlabel('L_cend')
        a('s_cmp_ge_u32 %s, 20' % sI)
        a('s_cbranch_scc1 %s' % l_noy)

        def rd():
            a('ds_read_b128 v[32:35], v150 offset:%d' % YW_LDS)
        self.wait_flag(FG1, 4, 36, sleep=1)
        self.wait_flag(FY, 4, 36, rd)
        self.stamp(9)
        self.rs4(32)
        a('v_and_or_b32 v32, v32, v7, v156')
        self.expand4(32)
        a('s_mov_b32 exec_hi, 0')
        a('global_store_dwordx4 v153, v[32:35], %s sc1' % sp(pWS))
        a('s_mov_b64 exec, -1')
        a.label(l_noy)
        a('s_cmp_lt_u32 %s, 12' % sI)
        a('s_cbranch_scc1 %s' % fin)
        self.gather8(152, 16, 10)
        a('v_cvt_pk_bf16_f32 v16, v16, v16')
        a('v_and_b32 v16, 0xffff0000, v16')
        a('v_add_f32 v16, v16, v%d' % XS)
        a('v_cvt_pk_bf16_f32 v16, v16, v16')
        a('ds_write_b32 v154, v16 offset:%d' % H_LDS)
        self.set_flag(190, FH)
        self.stamp(11)
        a('v_and_b32 v28, 0xffff0000, v16')
        a('v_mul_f32 v29, v28, v28')
        self.allreduce([28, 29], [17, 18], steps=('x2', 'r4', 'r8', 'p16', 'p32'))
        self.st_local([(155, 28, 0)])
        if 'wb2' in self.opts:
            a('s_cmp_lg_u32 %s, 30' % sI)
            a('s_cbranch_scc1 %s' % fin)
            a('buffer_wbl2 sc1')
        a.label(fin)
        self.end_wave()
        self.flush_cold()

    def load_start(self):
        a = self.a
        a.label('L_load')
        a.reset()
        a('v_mov_b32 v8, -1')
        a('v_lshlrev_b32 v9, 2, v0')
        a('s_mov_b32 exec_hi, 0')
        a('ds_write_b32 v9, v8 offset:%d' % SY)
        a('s_mov_b64 exec, -1')
        a('s_waitcnt lgkmcnt(0)')
        a('s_load_dword %s, %s, %d' % (sTAG, sp(pWS), EPOCH))
        a('s_barrier')
        a('s_branch L_load2')

    def loader(self):
        a = self.a
        self.in_att = False
        a.label('L_load2')
        a.reset()
        self.roles()
        if 'noprio' not in self.opts:
            a('s_setprio 2')
        self.stamp(1)
        a('s_getreg_b32 %s, hwreg(HW_REG_XCC_ID)' % sXCC)
        a('s_and_b32 %s, %s, 0xf' % (sXCC, sXCC))
        a('s_lshl_b32 s44, %s, 10' % sH)
        a('s_lshl_b32 s45, %s, 7' % sJ8)
        a('s_add_u32 s44, s44, s45')
        a('s_add_u32 s44, s44, %d' % XCB)
        a('v_mov_b32 v11, s44')
        a('v_mov_b32 v15, %s' % sXCC)
        a('s_mul_i32 s44, %s, %d' % (sX, 512 * 1280))
        a('s_min_u32 s45, %s, 19' % sI)
        a('s_lshl_b32 s45, s45, 6')
        a('s_add_u32 s45, s44, s45')
        a('v_lshrrev_b32 v8, 2, v0')
        a('v_mul_u32_u24 v8, 1280, v8')
        a('v_and_b32 v9, 3, v0')
        a('v_lshl_add_u32 v8, v9, 4, v8')
        a('v_add_u32 v32, s45, v8')
        a('s_mul_i32 s45, %s, 20480' % sI)
        a('s_add_u32 s44, s44, s45')
        a('v_lshlrev_b32 v8, 6, v0')
        a('v_add_u32 v33, s44, v8')
        a('s_sub_u32 s44, s44, s45')
        a('s_add_u32 s45, %s, %d' % (sI, self.p['nb']))
        a('s_and_b32 s45, s45, 31')
        a('s_mul_i32 s45, s45, 20480')
        a('s_add_u32 s44, s44, s45')
        a('v_add_u32 v35, s44, v8')
        a('s_min_u32 s44, %s, 26' % sU)
        a('s_mul_i32 s44, s44, %d' % INP)
        a('s_mul_i32 s45, %s, %d' % (sX, LOCP))
        a('s_add_u32 s44, s44, s45')
        a('s_add_u32 s44, s44, %d' % (LOCB + L_IN))
        a('v_add_u32 v34, s44, v8')
        a('s_mul_i32 s44, %s, %d' % (sTP, 32 * 3456))
        a('s_mul_i32 s45, %s, 432' % sX)
        a('s_add_u32 s44, s44, s45')
        a('v_mul_u32_u24 v13, 3456, v2')
        a('v_add_u32 v13, s44, v13')
        a('v_lshl_add_u32 v56, v1, 4, v13')
        a('v_min_u32 v8, 10, v1')
        a('v_lshl_add_u32 v57, v8, 4, v13')
        a('v_add_u32 v57, 256, v57')
        a('s_sub_u32 s44, %s, 20' % sI)
        a('s_and_b32 s44, s44, 7')
        a('s_mul_i32 s44, s44, %d' % (32 * 3456))
        a('s_add_u32 s44, s44, s45')
        a('v_lshrrev_b32 v8, 3, v0')
        a('v_mul_u32_u24 v8, 3456, v8')
        a('v_and_b32 v9, 7, v0')
        a('v_lshlrev_b32 v9, 6, v9')
        a('v_min_u32 v9, 428, v9')
        a('v_add3_u32 v58, v8, v9, s44')
        a('s_sub_u32 s44, %s, 14' % sI)
        a('s_cmp_ge_u32 s44, 12')
        a('s_cselect_b32 s46, 12, 0')
        a('s_sub_u32 s44, s44, s46')
        a('s_add_u32 s44, s44, 8')
        a('s_min_u32 s44, s44, 19')
        a('s_mul_i32 s44, s44, %d' % (32 * 3456))
        a('s_add_u32 s44, s44, s45')
        a('v_add3_u32 v59, v8, v9, s44')
        a('s_mov_b64 s[92:93], %s' % sp(pWG))
        a('s_mov_b64 s[94:95], %s' % sp(pWU))
        a('s_mov_b32 s57, %d' % (8 * 3456))
        l_pd = a.newlabel('L_pd')
        a('s_cmp_lt_u32 %s, 28' % sI)
        a('s_cbranch_scc1 %s' % l_pd)
        a('s_mov_b64 s[92:93], %s' % sp(pWD))
        a('s_add_u32 s94, s%d, 4096' % pWD)
        a('s_addc_u32 s95, s%d, 0' % (pWD + 1))
        a('s_mov_b32 s57, 8192')
        a('s_sub_u32 s44, %s, 29' % sI)
        a('s_lshl_b32 s44, s44, 15')
        a('s_cmp_eq_u32 %s, 28' % sI)
        a('s_cselect_b32 s44, %d, s44' % (216 * 1280 - 32768))
        a('s_mul_i32 s45, %s, %d' % (sX, 216 * 1280))
        a('s_add_u32 s44, s44, s45')
        a('v_lshlrev_b32 v8, 6, v0')
        a('v_add_u32 v58, s44, v8')
        a.label(l_pd)
        a('s_min_u32 s44, %s, 26' % sU)
        a('s_lshl_b32 s44, s44, 3')
        a('s_mul_i32 s45, %s, 216' % sX)
        a('s_add_u32 s44, s44, s45')
        a('s_mul_i32 s44, s44, 1280')
        a('v_and_b32 v8, 1, v2')
        a('v_lshlrev_b32 v8, 1, v8')
        a('v_lshrrev_b32 v9, 1, v2')
        a('v_add_u32 v8, v8, v9')
        a('v_mul_u32_u24 v8, 2560, v8')
        a('v_lshl_add_u32 v8, v1, 4, v8')
        a('v_add_u32 v64, s44, v8')
        a('s_lshl_b32 s44, %s, 5' % sB)
        a('s_add_u32 s44, s44, %s' % sH)
        a('s_lshl_b32 s44, s44, 20')
        a('s_lshl_b32 s45, %s, 16' % sJ)
        a('s_add_u32 s44, s44, s45')
        a('s_add_u32 s44, s44, %d' % (3072 * 256))
        a('v_lshlrev_b32 v8, 10, v2')
        a('v_lshl_add_u32 v8, v1, 4, v8')
        if 'vlin' in self.opts:
            a('v_lshlrev_b32 v8, 4, v0')
        a('v_add_u32 v66, s44, v8')
        self.consts()
        a('s_waitcnt lgkmcnt(0)')
        self.tagcalc()
        a('v_mov_b32 v14, %s' % sTAG)
        a('s_mov_b64 exec, 1')
        a('global_store_dwordx2 v11, v[14:15], %s sc1' % sp(pWS))
        a('s_mov_b64 exec, -1')
        self.wait_flag(FV, 4, 16, sleep=1)
        self.stamp(3)
        l_nowo = a.newlabel('L_nowo')
        l_fin = a.newlabel('L_lfin')
        l_nogu = a.newlabel('L_nogu')
        marks = {4 * k1: t for t, (k0, k1) in enumerate(VSTAGES)}

        def fire(mk, donec):
            t = mk.pop(donec)
            self.set_flag(190, FVSA[t])
            if t == 3:
                self.stamp(7)

        def issue(kind, k, aw):
            if kind == 'v':
                a('s_mov_b32 m0, %d' % (V_LDS + 1024 * (4 * k + aw)))
                a('global_load_lds_dwordx4 v65, %s%s' % (sp(pV), self.nt))
            elif kind == 'p':
                a('global_load_dword v%d, v33, %s' % (80 + k, sp(pWO)))
                a('v_add_u32 v33, 4096, v33')
            elif kind == 'q':
                a('global_load_dword v%d, v35, %s' % (91 + k, sp(pWO)))
                a('v_add_u32 v35, 4096, v35')
            elif kind == 't':
                a('global_load_dword v%d, v34, %s offset:%d sc1' % (86 + k, sp(pWS), 1024 * k))
            elif kind == 'd':
                a('global_load_dword v%d, v58, %s' % (70 + k, sp(94 if k & 1 else 92)))
                if k & 1:
                    a('v_add_u32 v58, s57, v58')
            elif kind == 'e':
                a('global_load_dword v%d, v59, %s' % (70 + k, sp(pWU if k & 1 else pWG)))
                if k & 1:
                    a('v_add_u32 v59, %d, v59' % (8 * 3456))
            elif kind == 'w':
                a('s_mov_b32 m0, %d' % (WO_LDS + 1024 * k))
                a('global_load_lds_dwordx4 v32, %s%s' % (sp(pWO), self.nt))
                a('v_add_u32 v32, 20480, v32')
            elif kind == 'g':
                a('s_mov_b32 m0, %d' % (GU_LDS + 1024 * (8 * aw + k)))
                a('global_load_lds_dwordx4 v%d, %s%s' % (56 + (aw & 1), sp(pWU if aw >> 1 else pWG), '' if 'gnb' in self.opts else self.nt))
                if aw == 3:
                    a('v_add_u32 v56, %d, v56' % (4 * 3456))
                    a('v_add_u32 v57, %d, v57' % (4 * 3456))
            elif kind == 'n':
                a('s_mov_b32 m0, %d' % (WD_LDS + 1024 * k))
                a('v_add_u32 v65, %d, v64' % ((k // 5) * 1280 + (k % 5) * 256))
                a('global_load_lds_dwordx4 v65, %s%s' % (sp(pWD), self.nt))

        def stream(seq, mk, base, ld0, pub=False):
            for i, (kind, k, aw) in enumerate(seq):
                i += base
                if kind == 'v':
                    a('v_add_u32 v65, %d, v66' % ((4 * k + aw) * 1024 if 'vlin' in self.opts else aw * 16384 + ((k >> 2) ^ (2 * (aw & 1) if 'par' in self.opts else 0)) * 4096 + (k & 3) * 256))
                ld = ld0 if i >= self.p['v1n'] else self.p['v1d']
                if i >= ld and mk:
                    a('s_waitcnt vmcnt(%d)' % (ld - 1))
                    for donec in sorted(mk):
                        if donec <= i - ld + 1:
                            fire(mk, donec)
                    if not mk and pub:
                        self.wait_flag(FPUB, 1, 16)
                if (kind, k, aw) == ('g', 0, 0):
                    assert not mk
                issue(kind, k, aw)
            return base + len(seq)

        vs = [('v', k, aw) for k in range(16) for aw in range(4)]
        gs = [('g', n, cb) for n in range(8) for cb in range(4)]
        ns = [('n', q, 0) for q in range(10)]
        ex = [('p', i, 0) for i in range(5)] + [('t', 0, 0), ('t', 1, 0)]
        if self.p['nb']:
            ex += [('q', i, 0) for i in range(5)]
        n = stream(vs + ex, marks, 0, self.p['ldepth'])
        a('s_cmp_ge_u32 %s, 20' % sI)
        a('s_cbranch_scc1 %s' % l_nowo)
        mk = dict(marks)
        for donec in sorted(mk):
            a('s_waitcnt vmcnt(%d)' % (n - donec))
            fire(mk, donec)
        self.wait_scores(16)
        a('s_waitcnt vmcnt(%d)' % self.p['wwait'])
        self.stamp(2)
        for q in range(32):
            issue('w', q, 0)
        a('s_waitcnt vmcnt(0)')
        self.set_flag(190, FWO)
        self.stamp(4)
        self.wait_flag(FG1, 4, 16, sleep=1)
        a('s_cmp_lt_u32 %s, 12' % sI)
        a('s_cbranch_scc1 %s' % l_nogu)
        for e in gs:
            issue(*e)
        l_nod = a.newlabel('L_nod')
        a('s_cmp_ge_u32 %s, 27' % sU)
        a('s_cbranch_scc1 %s' % l_nod)
        a.label(l_nogu)
        for e in ns:
            issue(*e)
        a('s_branch %s' % l_fin)
        a.label(l_nod)
        a('s_waitcnt vmcnt(0)')
        a('s_branch %s' % l_fin)
        a.label(l_nowo)
        mk = dict(marks)
        ld2 = self.p['ldepth2']
        for donec in sorted(mk):
            if n - donec >= ld2:
                a('s_waitcnt vmcnt(%d)' % (n - donec))
                fire(mk, donec)
        stream([('d', i, 0) for i in range(8)] + gs + ns, mk, n, ld2, pub=True)
        assert not mk
        if 'gnb' in self.opts:
            for i in range(8):
                issue('e', i, 0)
            a('s_waitcnt vmcnt(18)')
            self.set_flag(190, FGU)
        a.label(l_fin)
        a('s_waitcnt vmcnt(10)')
        self.set_flag(190, FGU)
        self.stamp(5)
        self.down_unit()

    def down_unit(self):
        a = self.a
        fin = a.newlabel('L_dend')
        a('s_cmp_ge_u32 %s, 27' % sU)
        a('s_cbranch_scc1 %s' % fin)
        DW = 96
        A0, A1 = 40, 44
        Gr, Cr, Sr, T = 16, 28, 36, 48
        self.get_mode(8)
        a('s_mul_i32 s45, %s, %d' % (sU, INP))
        a('s_add_u32 s45, s45, %s' % sLOC)
        a('s_add_u32 s45, s45, %d' % L_IN)
        a('v_and_b32 v8, 7, v0')
        a('v_lshrrev_b32 v9, 3, v0')
        a('v_lshlrev_b32 v156, 7, v8')
        a('v_lshl_add_u32 v156, v9, 4, v156')
        a('v_add_u32 v156, s45, v156')
        a('v_lshlrev_b32 v157, 6, v1')
        a('v_lshl_add_u32 v157, v2, 4, v157')
        a('v_add_u32 v157, s45, v157')
        a('v_bfe_u32 v158, v0, 3, 1')
        a('v_lshlrev_b32 v158, 5, v158')
        a('v_lshl_add_u32 v158, v2, 3, v158')
        a('v_add_u32 v158, v158, v8')
        a('v_lshlrev_b32 v158, 4, v158')
        a('v_add_u32 v158, s45, v158')
        a('v_and_b32 v159, 1, v2')
        a('v_lshl_add_u32 v159, v1, 1, v159')
        a('v_lshrrev_b32 v9, 1, v2')
        a('v_lshl_add_u32 v159, v159, 1, v9')
        a('v_lshlrev_b32 v159, 4, v159')
        a('v_add_u32 v159, s45, v159')
        a('v_add_u32 v159, 2048, v159')
        a('v_lshlrev_b32 v150, 4, v0')
        self.prefill(Cr + 4)
        self.prefill(Gr + 8)
        a('v_mov_b32 v%d, 0' % Sr)
        a('v_mov_b32 v%d, 0' % (Sr + 1))
        a('v_mov_b32 v%d, %s' % (Sr + 2, sTAG))
        a('s_mov_b32 s40, 0x000f000f')
        a('s_mov_b32 s41, 0x000f000f')

        def loads():
            a('global_load_dwordx4 %s, v157, %s offset:2560 sc1' % (v4(Cr), sp(pWS)))
            a('s_mov_b64 exec, s[40:41]')
            a('global_load_dwordx4 %s, v157, %s offset:3584 sc1' % (v4(Cr + 4), sp(pWS)))
            a('s_mov_b64 exec, -1')

        def checks():
            self.check4(Cr, T, True)
            self.check4(Cr + 4, T, False, dst=T + 4, last=True)
        self.poll(loads, checks, T, sleep=2)
        self.stamp(8)
        for q in range(10):
            a('ds_read_b128 %s, v150 offset:%d' % (v4(DW + 4 * q), WD_LDS + 1024 * q))
        for r in range(4):
            a('v_add_f32 v%d, v%d, v%d' % (Cr + r, Cr + r, T + 4 + r))
        self.allreduce([Cr, Cr + 1, Cr + 2, Cr + 3], [], steps=('x1', 'x2', 'hm', 'r8'))
        a('s_mov_b32 s40, 0x0f0f0f0f')
        a('s_mov_b32 s41, 0x0f0f0f0f')
        a('s_mov_b32 s46, -1')
        a('s_mov_b32 s47, 0x00000f0f')
        a('s_waitcnt lgkmcnt(0)')

        def loads():
            a('s_mov_b64 exec, s[46:47]')
            a('global_load_dwordx4 %s, v158, %s offset:3840 sc1' % (v4(Sr), sp(pWS)))
            a('s_mov_b64 exec, s[40:41]')
            a('global_load_dwordx4 %s, v156, %s offset:2048 sc1' % (v4(Gr + 8), sp(pWS)))
            a('s_mov_b64 exec, -1')
            for n in range(2):
                a('global_load_dwordx4 %s, v156, %s offset:%d sc1' % (v4(Gr + 4 * n), sp(pWS), 1024 * n))

        def checks():
            self.check4(Gr + 8, T, True, dst=T + 4)
            self.check4(Gr, T, False)
            self.check4(Gr + 4, T, False, last=True)
            self.check1(Sr + 2, T, False)
        self.poll(loads, checks, T)
        self.stamp(12)
        GG = [Gr, Gr + 1, Gr + 2, Gr + 3]
        SS = [Sr, Sr + 1]
        self.allreduce(SS, [], steps=('x1',))
        for r in range(4):
            a('v_add_f32 v%d, v%d, v%d' % (Gr + r, Gr + r, Gr + 4 + r))
        self.allreduce(SS, [], steps=('x2',))
        for r in range(4):
            a('v_add_f32 v%d, v%d, v%d' % (Gr + r, Gr + r, T + 4 + r))
        self.allreduce(SS, [], steps=('hm',))
        self.allreduce(GG, [], steps=('x1',))
        self.allreduce(SS, [T, T + 1], steps=('p16',))
        self.allreduce(GG, [], steps=('x2',))
        self.allreduce(SS, [T, T + 1], steps=('p32',))
        self.allreduce(GG, [], steps=('hm',))
        a('v_mul_f32 v%d, 0x%x, v%d' % (Sr, f2u(1.0 / 640), Sr))
        a('v_mul_f32 v%d, 0x%x, v%d' % (Sr + 1, f2u(1.0 / 640), Sr + 1))
        a('v_fma_f32 v%d, -v%d, v%d, v%d' % (Sr + 1, Sr, Sr, Sr + 1))
        a('v_max_f32 v%d, 0, v%d' % (Sr + 1, Sr + 1))
        self.ln_finish(Sr, Sr + 1)
        for r in range(4):
            a('v_fma_f32 v%d, -v%d, v%d, v%d' % (Gr + r, Sr, Cr + r, Gr + r))
        for r in range(4):
            a('v_mul_f32 v%d, v%d, v%d' % (Gr + r, Gr + r, Sr + 1))
        a('v_permlane32_swap_b32 v%d, v%d' % (Gr, Gr + 2))
        a('v_permlane32_swap_b32 v%d, v%d' % (Gr + 1, Gr + 3))
        self.bf16_round4(Gr, T)
        a('v_mul_f32 v%d, 0x%x, v%d' % (T + 4, f2u(-LOG2E), T))
        a('v_mul_f32 v%d, 0x%x, v%d' % (T + 5, f2u(-LOG2E), T + 1))
        a('v_exp_f32 v%d, v%d' % (T + 4, T + 4))
        a('v_exp_f32 v%d, v%d' % (T + 5, T + 5))
        a('v_add_f32 v%d, 1.0, v%d' % (T + 4, T + 4))
        a('v_add_f32 v%d, 1.0, v%d' % (T + 5, T + 5))
        a('v_rcp_f32 v%d, v%d' % (T + 4, T + 4))
        a('v_rcp_f32 v%d, v%d' % (T + 5, T + 5))
        a('v_mul_f32 v%d, v%d, v%d' % (T, T, T + 4))
        a('v_mul_f32 v%d, v%d, v%d' % (T + 1, T + 1, T + 5))
        a('v_cvt_pk_bf16_f32 v%d, v%d, v%d' % (T, T, T + 1))
        a('v_and_b32 v%d, 0xffff0000, v%d' % (T + 1, T))
        a('v_lshlrev_b32 v%d, 16, v%d' % (T, T))
        a('v_mul_f32 v%d, v%d, v%d' % (T, T, T + 2))
        a('v_mul_f32 v%d, v%d, v%d' % (T + 1, T + 1, T + 3))
        a('v_cvt_pk_bf16_f32 v%d, v%d, v%d' % (T, T, T))
        a('v_cvt_pk_bf16_f32 v%d, v%d, v%d' % (T + 1, T + 1, T + 1))
        self.sparse(A0, T)
        self.sparse(A1, T + 1)
        DD = 56
        for m in range(5):
            self.mfma(DD + 4 * m, A0, DW + 4 * m, True)
            self.mfma(DD + 4 * m, A1, DW + 20 + 4 * m, False)
        self.st_local([(159, DD + 4 * m, 1024 * m - 2048) for m in range(5)],
                      pre=lambda m: self.tag4(DD + 4 * m, second=True))
        a.label(fin)
        self.end_wave()
        self.flush_cold()

    def att_prep(self):
        a = self.a
        self.consts(12)
        a('v_lshlrev_b32 v176, 4, v2')
        a('v_and_b32 v177, 1, v2')
        a('v_lshl_add_u32 v177, v1, 1, v177')
        a('v_lshlrev_b32 v177, 4, v177')
        a('v_lshrrev_b32 v12, 5, v0')
        a('v_lshl_add_u32 v177, v12, 3, v177')
        a('s_mul_i32 s44, %s, 528' % sAW)
        a('v_add_u32 v177, s44, v177')
        a('v_mov_b32 v178, s44')
        a('v_bfe_u32 v179, v0, 3, 1')
        a('v_lshlrev_b32 v179, 7, v179')
        a('v_lshl_add_u32 v179, v2, 5, v179')
        a('s_lshl_b32 s44, %s, 9' % sAW)
        a('v_lshlrev_b32 v180, 3, v0')
        a('v_add_u32 v180, s44, v180')
        a('v_and_b32 v181, 1, v1')
        a('v_lshlrev_b32 v181, 8, v181')
        a('v_lshl_add_u32 v181, v2, 4, v181')
        a('v_add_u32 v181, s44, v181')
        a('v_lshrrev_b32 v12, 2, v1')
        a('v_lshl_add_u32 v12, v2, 3, v12')
        a('v_lshlrev_b32 v12, 6, v12')
        a('s_lshl_b32 s44, %s, 13' % sAW)
        a('v_add_u32 v12, s44, v12')
        a('v_and_b32 v13, 3, v1')
        a('v_lshl_add_u32 v182, v13, 3, v12')
        a('v_lshl_add_u32 v184, v2, 1, v1')
        a('v_lshlrev_b32 v184, 4, v184')
        a('s_lshl_b32 s44, %s, 8' % sAW)
        a('v_add_u32 v184, s44, v184')
        a('v_lshlrev_b32 v185, 4, v0')
        a('s_lshl_b32 s44, %s, 13' % sAW)
        a('s_add_u32 s44, s44, %d' % GU_LDS)
        a('v_add_u32 v186, s44, v185')
        a('s_lshl_b32 s44, %s, 10' % sAW)
        a('s_add_u32 s44, s44, %d' % V_LDS)
        a('v_add_u32 v187, s44, v185')
        a('v_xor_b32 v12, v1, v2')
        a('v_lshlrev_b32 v13, 8, v1')
        a('v_add_u32 v13, s56, v13')
        for m in range(4):
            a('v_xor_b32 v%d, %d, v12' % (192 + m, 4 * m))
            a('v_lshl_add_u32 v%d, v%d, 4, v13' % (192 + m, 192 + m))

    def att_start(self):
        a = self.a
        a('s_lshl_b32 s44, %s, 5' % sB)
        a('s_add_u32 s44, s44, %s' % sH)
        a('s_lshl_b32 s44, s44, 20')
        a('s_lshl_b32 s45, %s, 16' % sJ)
        a('s_add_u32 s44, s44, s45')
        a('s_lshl_b32 s45, %s, 14' % sAW)
        a('s_add_u32 s44, s44, s45')
        a('s_add_u32 s44, s44, %d' % (3072 * 256))
        if 'par' in self.opts:
            a('s_and_b32 s46, %s, 1' % sAW)
            a('s_lshl_b32 s46, s46, 13')
            a('s_add_u32 s44, s44, s46')
            a('s_lshl_b32 s46, s46, 1')
            a('s_sub_u32 s57, 4096, s46')
        a('v_xor_b32 v12, v1, v2')
        a('v_lshlrev_b32 v13, 8, v2')
        a('v_add_u32 v13, s44, v13')
        for q in range(4):
            a('v_xor_b32 v%d, %d, v12' % (8 + q, 4 * q))
            a('v_lshl_add_u32 v%d, v%d, 4, v13' % (8 + q, 8 + q))
            if q:
                a('v_add_u32 v%d, %d, v%d' % (8 + q, 1024 * q, 8 + q))
        a('s_lshl_b32 s44, %s, 2' % sAW)
        a('v_mov_b32 v191, s44')
        a('s_add_u32 s56, s45, %d' % K_LDS)
        a('s_waitcnt lgkmcnt(0)')
        if 'latek' in self.opts:
            a('s_barrier')
        for idx in range(self.p['depth']):
            self.kload(idx)
        if 'latek' not in self.opts:
            a('s_barrier')
        a('s_branch L_att')

    def kload(self, idx):
        a = self.a
        a('s_add_u32 m0, s56, %d' % (1024 * idx))
        a('global_load_lds_dwordx4 v%d, %s%s' % (8 + (idx & 3), sp(pK), self.nt))
        if idx < 12:
            a('v_add_u32 v%d, %s, v%d' % (8 + (idx & 3), 's57' if 'par' in self.opts and 4 <= idx < 8 else '4096', 8 + (idx & 3)))

    def attention(self):
        a = self.a
        a.label('L_att')
        a.reset()
        self.in_att = True
        KR, VR, QF, S = 16, 80, 144, 160
        a('s_load_dword %s, %s, %d' % (sTAG, sp(pWS), EPOCH))
        self.roles()
        self.att_prep()
        depth, kfree = self.p['depth'], self.p['kfree']
        for idx in range(depth, 16):
            if idx < kfree:
                a('s_waitcnt vmcnt(%d)' % (depth - 1))
            self.kload(idx)
        self.set_flag(191, FV)
        self.stamp(1)
        a('s_waitcnt lgkmcnt(0)')
        self.tagcalc()

        def rd():
            for m in range(4):
                a('ds_read_b128 %s, v176 offset:%d' % (v4(QF + 4 * m), Q_LDS + 64 * m))
        self.wait_flag(FQ, 1, 8, rd, lazy=True)
        self.stamp(2)
        for bb in range(4):
            a('s_waitcnt vmcnt(%d)' % (4 * (3 - bb)))
            for m in range(4):
                a('ds_read_b128 %s, v%d offset:%d' % (v4(KR + 16 * bb + 4 * m), 192 + m, 4096 * bb))
            if bb:
                a('s_waitcnt lgkmcnt(%d)' % (0 if self.stamps else 4))
                for m in range(4):
                    self.mfma(S + 4 * (bb - 1), KR + 16 * (bb - 1) + 4 * m, QF + 4 * m, m == 0)
        a('s_waitcnt lgkmcnt(0)')
        for m in range(4):
            self.mfma(S + 12, KR + 48 + 4 * m, QF + 4 * m, m == 0)
        self.stamp(3)
        sc = f2u(128 ** -0.5)
        for k in range(0, 16, 2):
            a('v_cvt_pk_bf16_f32 v8, v%d, v%d' % (S + k, S + k + 1))
            a('v_and_b32 v9, 0xffff0000, v8')
            a('v_lshlrev_b32 v8, 16, v8')
            a('v_mul_f32 v8, 0x%x, v8' % sc)
            a('v_mul_f32 v9, 0x%x, v9' % sc)
            a('v_cvt_pk_bf16_f32 v8, v8, v9')
            a('v_and_b32 v%d, 0xffff0000, v8' % (S + k + 1))
            a('v_lshlrev_b32 v%d, 16, v8' % (S + k))
        a('v_max3_f32 v8, v%d, v%d, v%d' % (S, S + 1, S + 2))
        a('v_max3_f32 v9, v%d, v%d, v%d' % (S + 3, S + 4, S + 5))
        a('v_max3_f32 v8, v8, v%d, v%d' % (S + 6, S + 7))
        a('v_max3_f32 v9, v9, v%d, v%d' % (S + 8, S + 9))
        a('v_max3_f32 v8, v8, v%d, v%d' % (S + 10, S + 11))
        a('v_max3_f32 v9, v9, v%d, v%d' % (S + 12, S + 13))
        a('v_max3_f32 v8, v8, v%d, v%d' % (S + 14, S + 15))
        a('v_max_f32 v8, v8, v9')
        self.allreduce([8], [9], op='max', steps=('p16', 'p32'))
        a('ds_write_b32 v191, v8 offset:%d' % MX)

        def loads():
            a('ds_read_b128 v[16:19], v190 offset:%d' % MX)

        def checks():
            a('v_or3_b32 v8, v16, v17, v18')
            a('v_or_b32 v8, v8, v19')
            a('v_and_b32 v8, 1, v8')
        self.poll(loads, checks, 8, wait='lgkmcnt(0)')
        a('v_max3_f32 v8, v16, v17, v18')
        a('v_max_f32 v8, v8, v19')
        for k in range(16):
            a('v_sub_f32 v%d, v%d, v8' % (S + k, S + k))
        for k in range(16):
            a('v_mul_f32 v%d, 0x%x, v%d' % (S + k, f2u(LOG2E), S + k))
        for k in range(16):
            a('v_exp_f32 v%d, v%d' % (S + k, S + k))
        a('v_add_f32 v9, v%d, v%d' % (S, S + 1))
        a('v_add_f32 v10, v%d, v%d' % (S + 2, S + 3))
        for k in range(4, 16, 2):
            a('v_add_f32 v9, v9, v%d' % (S + k))
            a('v_add_f32 v10, v10, v%d' % (S + k + 1))
        a('v_add_f32 v9, v9, v10')
        self.allreduce([9], [10], steps=('p16', 'p32'))
        a('v_mul_f32 v8, 0x3e800000, v8')
        a('v_mov_b32 v10, 0')
        a('v_mov_b32 v11, 0')
        a('s_mov_b64 exec, 1')
        a('ds_write_b128 v178, v[8:11] offset:%d' % (OW_LDS + 512))
        a('s_mov_b64 exec, -1')
        O = 144
        for k in range(16):
            a('v_cvt_pk_bf16_f32 v12, v%d, v%d' % (S + k, S + k))
            a('v_and_b32 v12, 0xffff0000, v12')
            a('v_sub_f32 v12, v%d, v12' % (S + k))
            a('v_cndmask_b32 v12, v%d, v12, %s' % (S + k, HIROWS))
            a('v_cvt_pk_bf16_f32 v12, v12, v12')
            self.sparse(KR + 4 * k, 12)
        self.stamp(4)
        for t, (k0, k1) in enumerate(VSTAGES):
            def rd():
                for k in range(k0, k1):
                    a('ds_read_b128 %s, v187 offset:%d' % (v4(VR + 4 * k), 4096 * k))
            self.wait_flag(FVSA[t], 1, 8, rd, lazy=(t < 3))
            for k in range(k0, k1):
                self.mfma(O, KR + 4 * k, VR + 4 * k, k == 0)
            if t == 1:
                self.get_mode(8)
                a('s_mul_i32 s44, %s, 640' % sAW)
                a('s_add_u32 s44, s44, %s' % sLOC)
                a('s_add_u32 s44, s44, 3840')
                a('v_lshrrev_b32 v8, 5, v0')
                a('v_mul_u32_u24 v8, 10240, v8')
                a('v_add_u32 v8, s44, v8')
                a('v_and_b32 v9, 31, v0')
                a('v_lshl_add_u32 v12, v9, 4, v8')
                a('v_and_b32 v9, 3, v0')
                a('v_mul_u32_u24 v9, 2560, v9')
                a('v_add_u32 v13, v9, v8')
        self.stamp(5)
        a('v_permlane32_swap_b32 v%d, v%d' % (O, O + 2))
        a('v_permlane32_swap_b32 v%d, v%d' % (O + 1, O + 3))
        a('v_add_f32 v%d, v%d, v%d' % (O, O, O + 2))
        a('v_add_f32 v%d, v%d, v%d' % (O + 1, O + 1, O + 3))
        a('ds_write_b64 v177, %s offset:%d' % (v2(O), OW_LDS))
        self.set_flag(191, FO)
        l_now = a.newlabel('L_anow')
        l_end = a.newlabel('L_aend')
        a('s_cmp_ge_u32 %s, 20' % sI)
        a('s_cbranch_scc1 %s' % l_now)
        G = 104
        OF, WF0, WF1 = 48, 64, 80

        def loads():
            a('global_load_dwordx4 %s, v13, %s offset:%d sc1' % (v4(G + 16), sp(pWS), 512 - 3840))
            for j in range(4):
                a('global_load_dwordx4 %s, v12, %s offset:%d sc1' % (v4(G + 4 * j), sp(pWS), j * 2560 - 3840))

        def rdw():
            for ks in range(4):
                for hf in range(2):
                    off = WO_LDS + (32 * ks + 4 * hf) * 64
                    a('ds_read_b64_tr_b16 %s, v182 offset:%d' % (v2(WF0 + 4 * ks + 2 * hf), off))
                    a('ds_read_b64_tr_b16 %s, v182 offset:%d' % (v2(WF1 + 4 * ks + 2 * hf), off + 32))

        def checks():
            for k in range(5):
                self.check4(G + 4 * k, 40, k == 0, last=(k == 4))
        self.poll(loads, checks, 40)
        self.set_flag(191, FG1)
        a('ds_read_b32 v42, v190 offset:%d' % FWO)
        rdw()
        self.stamp(6)
        a('v_max_f32_dpp v41, v%d, v%d quad_perm:[1,0,3,2] %s' % (G + 16, G + 16, DPPM))
        self.allreduce([41], [], op='max', steps=('x2',))
        a('v_sub_f32 v40, v%d, v41' % (G + 16))
        a('v_mul_f32 v40, 0x%x, v40' % f2u(LOG2E))
        a('v_exp_f32 v40, v40')
        a('v_mul_f32 v41, v40, v%d' % (G + 17))
        self.allreduce([41], [], steps=('x1', 'x2'))
        a('v_rcp_f32 v41, v41')
        a('v_mul_f32 v40, v40, v41')
        for r in range(4):
            a('v_mul_f32_dpp v%d, v40, v%d quad_perm:[0,0,0,0] %s' % (8 + r, G + r, DPPM))
        for j in range(1, 4):
            for r in range(4):
                a('v_fmac_f32_dpp v%d, v40, v%d quad_perm:[%d,%d,%d,%d] %s' % (8 + r, G + 4 * j + r, j, j, j, j, DPPM))
        a('v_cvt_pk_bf16_f32 v8, v8, v9')
        a('v_cvt_pk_bf16_f32 v9, v10, v11')
        a('ds_write_b64 v180, v[8:9] offset:%d' % O2_LDS)
        for ks in range(4):
            a('ds_read_b128 %s, v181 offset:%d' % (v4(OF + 4 * ks), O2_LDS + 64 * ks))
        a('s_mov_b32 s46, 0x00030003')
        a('s_mov_b32 s47, 0x00030003')
        a('s_waitcnt lgkmcnt(0)')
        l_have = a.newlabel('L_havew')
        l_late = a.newlabel('L_latew')
        a('v_cmp_ne_u32 vcc, 0, v42')
        a('s_cbranch_vccnz %s' % l_late)
        a.label(l_have)

        def cold():
            a.label(l_late)
            self.wait_flag(FWO, 1, 10, rdw)
            a('s_branch %s' % l_have)
        self.cold.append(cold)
        self.stamp(7)
        D0, D1 = 96, 100
        for ks in range(4):
            self.mfma(D0, WF0 + 4 * ks, OF + 4 * ks, ks == 0)
            self.mfma(D1, WF1 + 4 * ks, OF + 4 * ks, ks == 0)
        a('s_mov_b64 exec, s[46:47]')
        a('ds_write_b128 v184, %s offset:%d' % (v4(D0), YW_LDS))
        a('ds_write_b128 v184, %s offset:%d' % (v4(D1), YW_LDS + 128))
        self.set_flag(191, FY)
        a('s_mov_b64 exec, -1')
        self.stamp(8)
        a.label(l_now)
        a('s_cmp_lt_u32 %s, 12' % sI)
        a('s_cbranch_scc1 %s' % l_end)
        a('s_and_b32 s44, %s, 1' % sAW)
        a('s_lshl_b32 s44, s44, 4')
        a('v_add_u32 v9, s44, v1')
        a('v_cmp_gt_u32 s[40:41], 27, v9')
        a('v_min_u32 v9, 26, v9')
        a('s_and_b32 s44, %s, 2' % sAW)
        a('v_mov_b32 v8, s44')
        a('v_mul_u32_u24 v9, %d, v9' % INP)
        a('s_add_u32 s44, %s, %d' % (sLOC, L_IN))
        a('v_add_u32 v9, s44, v9')
        a('v_and_b32 v10, 1, v2')
        a('v_add_u32 v8, v8, v10')
        a('s_lshl_b32 s44, %s, 6' % sTP)
        a('v_lshl_add_u32 v13, v8, 4, v9')
        a('v_add_u32 v13, s44, v13')
        a('v_lshrrev_b32 v10, 1, v2')
        a('v_lshl_add_u32 v8, v8, 1, v10')
        a('v_lshl_add_u32 v12, v8, 4, v9')
        a('s_lshl_b32 s44, %s, 7' % sTP)
        a('v_add_u32 v12, s44, v12')
        GU, A0, A1 = 16, 48, 52
        a('v_mov_b32 v56, 0x3f803f80')
        self.sparse(A0, 56)

        def rd():
            for n in range(8):
                a('ds_read_b128 %s, v186 offset:%d' % (v4(GU + 4 * n), 1024 * n))
        self.wait_flag(FGU, 1, 8, rd, lazy=True)
        D = 60
        for n in range(8):
            self.mfma(D, A0, GU + 4 * n, n == 0)
        a('s_mov_b32 s46, s40')
        a('s_mov_b32 s47, 0')
        self.tag4(D)
        a('s_mov_b64 exec, s[46:47]')
        self.st_local([(13, D, 2560)])
        a('s_mov_b64 exec, -1')
        self.stamp(9)
        HD = 64

        def rd():
            a('ds_read_b128 %s, v179 offset:%d' % (v4(HD), H_LDS))
            a('ds_read_b128 %s, v179 offset:%d' % (v4(HD + 4), H_LDS + 16))
        self.wait_flag(FH, 1, 8, rd)
        self.stamp(10)
        D = 72
        self.sparse(A0, HD)
        for n in range(8):
            if n < 7:
                self.sparse(A1 if n % 2 == 0 else A0, HD + n + 1)
            self.mfma(D, A0 if n % 2 == 0 else A1, GU + 4 * n, n == 0)
        a('s_mov_b64 exec, s[40:41]')
        self.tag4(D)
        self.st_local([(12, D, 0)])
        a('s_mov_b64 exec, -1')
        self.stamp(11)
        a('s_cmp_lg_u32 %s, 0' % sAW)
        a('s_cbranch_scc1 %s' % l_end)
        a('s_lshl_b32 s44, %s, 8' % sTP)
        a('s_add_u32 s44, s44, %s' % sLOC)
        a('s_add_u32 s44, s44, %d' % L_IN)
        a('v_lshlrev_b32 v8, 4, v1')
        a('v_mul_u32_u24 v9, %d, v2' % INP)
        a('v_add3_u32 v80, v8, v9, s44')
        for n in range(1, 7):
            a('v_add_u32 v%d, %d, v80' % (80 + n, 4 * INP * n))
        self.slot('s44', sTP, FP)
        a('s_lshl_b32 s45, %s, 8' % sX)
        a('s_add_u32 s45, s45, s44')
        a('v_lshl_add_u32 v89, v2, 13, v8')
        a('v_add_u32 v89, s45, v89')
        if not ({'meas', 'meas2'} & self.opts):
            self.near_copy('s45')
            a('s_add_u32 s44, s44, s45')
            a('v_add_u32 v88, s44, v185')
        else:
            a('ds_read_b32 v88, v190 offset:%d' % NEAR)
            a('s_waitcnt lgkmcnt(0)')
            a('v_and_b32 v88, 8192, v88')
            a('v_add3_u32 v88, v88, s44, v185')
        if 'fpt' in self.opts:
            l_nt = a.newlabel('L_nt')
            a('s_bfe_u32 s44, %s, %d' % (sTP, 0x30000 + self.p['fsh']))
            a('s_cmp_lg_u32 s44, %s' % sX)
            a('s_cbranch_scc1 %s' % l_nt)
            a('global_load_dwordx4 v[96:99], v88, %s sc1' % sp(pWS))
            a('global_load_dwordx4 v[100:103], v88, %s offset:1024 sc1' % sp(pWS))
            a.label(l_nt)
        self.slice_off(90, 8)
        if 'outt' in self.opts:
            a('global_load_ushort v104, v90, %s' % sp(pOUT))
        self.h_addr(91, 8)
        a('ds_read_b32 v92, v91 offset:%d' % H_LDS)
        self.rowtag(93)
        G = 16
        self.prefill(G + 24, second=True)
        a('s_mov_b32 s46, -1')
        a('s_mov_b32 s47, 0xffff')
        a('s_waitcnt lgkmcnt(0)')
        a('v_and_b32 v92, 0xffff0000, v92')

        def loads():
            for n in range(6):
                a('global_load_dwordx4 %s, v%d, %s sc1' % (v4(G + 4 * n), 80 + n, sp(pWS)))
            a('s_mov_b64 exec, s[46:47]')
            a('global_load_dwordx4 %s, v86, %s sc1' % (v4(G + 24), sp(pWS)))
            a('s_mov_b64 exec, -1')

        def checks():
            for k in range(6):
                self.check4(G + 4 * k, 44, k == 0, second=True)
            self.check4(G + 24, 44, False, second=True, dst=52, last=True)
        self.poll(loads, checks, 44)
        self.stamp(12)
        for r in range(4):
            a('v_add_f32 v%d, v%d, v%d' % (G + r, G + r, G + 4 + r))
            a('v_add_f32 v%d, v%d, v%d' % (G + 8 + r, G + 8 + r, G + 12 + r))
            a('v_add_f32 v%d, v%d, v%d' % (G + 16 + r, G + 16 + r, G + 20 + r))
        for r in range(4):
            a('v_add_f32 v%d, v%d, v%d' % (G + r, G + r, G + 8 + r))
            a('v_add_f32 v%d, v%d, v%d' % (G + 16 + r, G + 16 + r, 52 + r))
        for r in range(4):
            a('v_add_f32 v%d, v%d, v%d' % (48 + r, G + r, G + 16 + r))
        self.rs4(48)
        a('v_and_or_b32 v48, v48, v7, v93')
        self.expand4(48)
        a('s_mov_b32 exec_hi, 0')
        a('global_store_dwordx4 v89, v[48:51], %s sc1' % sp(pWS))
        a('s_mov_b64 exec, -1')
        self.stamp(13)
        a('s_bfe_u32 s44, %s, %d' % (sTP, 0x30000 + self.p['fsh']))
        a('s_cmp_lg_u32 s44, %s' % sX)
        if 'wb1' in self.opts:
            l_wb = a.newlabel('L_wb')
            a('s_cbranch_scc1 %s' % l_wb)

            def cold():
                a.label(l_wb)
                a('s_cmp_lg_u32 %s, 31' % sI)
                a('s_cbranch_scc1 %s' % l_end)
                a('buffer_wbl2 sc1')
                a('s_branch %s' % l_end)
            self.cold.append(cold)
        else:
            a('s_cbranch_scc1 %s' % l_end)
        self.gather8(88, 16, 14)
        a('v_cvt_pk_bf16_f32 v16, v16, v16')
        a('v_and_b32 v16, 0xffff0000, v16')
        a('v_add_f32 v16, v16, v92')
        a('v_cvt_pk_bf16_f32 v16, v16, v16')
        a('global_store_short v90, v16, %s%s' % (sp(pOUT), ' sc1' if 'outsc' in self.opts else (' nt' if 'outnt' in self.opts else '')))
        a('s_cmp_lg_u32 s2, 96')
        a('s_cbranch_scc1 %s' % l_end)
        a('s_mov_b64 exec, 1')
        a('v_mov_b32 v60, %s' % sTAG)
        a('global_store_dword v190, v60, %s offset:%d sc1' % (sp(pWS), EPOCH))
        if 'probe' in self.opts:
            lp = a.newlabel('L_probe')
            a('s_add_u32 s92, s92, 4000')
            a.label(lp)
            a('s_memrealtime s[94:95]')
            a('s_waitcnt lgkmcnt(0)')
            a('s_sub_u32 s44, s94, s92')
            a('s_cmp_lt_i32 s44, 0')
            a('s_cbranch_scc1 %s' % lp)
        a.label(l_end)
        self.end_wave()
        self.flush_cold()

    def build(self):
        a = self.a
        global VSTAGES
        if 'vs1' in self.opts:
            VSTAGES = [(0, 6), (6, 11), (11, 14), (14, 16)]
        if 'vs2' in self.opts:
            VSTAGES = [(0, 8), (8, 13), (13, 15), (15, 16)]
        hdr = open('cdna_kernels/%s.s.ref' % NAME).read().split('\n')
        top = []
        for ln in hdr:
            if ln.startswith('; @launch'):
                top.append('; @launch grid=(256,1,1) block=(%d,1,1) lds=%d' % (64 * NWAVES, LDS_BYTES))
                break
            top.append(ln)
        out = '\n'.join(top) + '\n'
        out += """; ---------------------------------------------------------------------------------------------
;   wave 0  LN(x), partial q, hand-offs        waves 1-4  QK / softmax / PV, wo and gate/up tiles
; ---------------------------------------------------------------------------------------------
"""
        out += '.amdgcn_target "amdgcn-amd-amdhsa--gfx950"\n.text\n.globl %s_kernel\n.p2align 8\n' % NAME
        out += '.type %s_kernel,@function\n%s_kernel:\n' % (NAME, NAME)
        self.prologue()
        self.att_start()
        self.load_start()
        self.comm()
        self.attention()
        self.loader()
        a.label('L_exit')
        a('s_endpgm')
        out += a.text()
        out += '''.section .rodata,"a"
.p2align 6
.amdhsa_kernel %s_kernel
  .amdhsa_next_free_vgpr 208
  .amdhsa_next_free_sgpr 102
  .amdhsa_accum_offset 208
  .amdhsa_group_segment_fixed_size 0
  .amdhsa_kernarg_size 96
  .amdhsa_user_sgpr_count 2
  .amdhsa_user_sgpr_kernarg_segment_ptr 1
  .amdhsa_system_sgpr_workgroup_id_x 1
  .amdhsa_float_denorm_mode_32 3
.end_amdhsa_kernel
''' % NAME
        return out


if __name__ == '__main__':
    open(sys.argv[1], 'w').write(Gen(opts=sys.argv[2:]).build())
```

```python
import struct
import sys
from asmlib import Asm

NAME = 'sequential_preLN__sliding_block_cached__swiglu_ffn__decode'


def f2u(x):
    return struct.unpack('<I', struct.pack('<f', x))[0]


EPOCH = 0
XCB = 0x2000
QA = 0x10000
QB = 0x90000
YP = 0x110000
FP = 0x130000
PRB = 0x150000
LOCB = 0x200000
L_OP = 0
L_IN = 21504
INP = 5120
LOCP = 163840
RB = 0x200000
TS = 0x600000

SY = 0
FQ, FV, MX, FO, FY, FH, FWO, FGU, MODE, FG1, FPUB, NEAR = (SY + o for o in (0, 16, 32, 48, 64, 80, 84, 88, 96, 112, 104, 108))
FVSA = [SY + 4, SY + 8, SY + 12, SY + 100]
Q_LDS = 128
OW_LDS = 384
O2_LDS = 2560
YW_LDS = 4608
H_LDS = 5632
WD_LDS = 6144
WO_LDS = 16384
GU_LDS = 49152
V_LDS = 81920
K_LDS = WO_LDS
LDS_BYTES = V_LDS + 65536
VSTAGES = [(0, 6), (6, 12), (12, 15), (15, 16)]

sWID, sX, sI, sH, sJ8, sB, sJ, sAW = 's3', 's4', 's5', 's6', 's7', 's8', 's9', 's10'
sTAG = 's11'
sT = ['s12', 's13', 's14', 's15']
pX, pK, pV, pWQ, pWO, pWG, pWU = 16, 18, 20, 22, 24, 28, 30
pWD, pOUT, pDBG, pWS = 32, 34, 36, 38
sLOC = 's42'
sMODE = 's43'
sSPIN = 's52'
sSEL = 's53'
sXCC = 's54'
sTAG2 = 's55'
sT2 = ['s96', 's97', 's98', 's99']
sTP = 's100'
sU = 's101'
HIROWS = 's[58:59]'
SPIN_MAX = 100000
NWAVES = 6
LOG2E = 1.4426950408889634
DPPM = 'row_mask:0xf bank_mask:0xf'


def sp(n):
    return 's[%d:%d]' % (n, n + 1)


def v4(n):
    return 'v[%d:%d]' % (n, n + 3)


def v2(n):
    return 'v[%d:%d]' % (n, n + 1)


class Gen:
    def __init__(self, opts=()):
        self.a = Asm()
        self.opts = set(opts) | {'par', 'meas2', 'pk'}
        self.stamps = 'stamps' in self.opts
        self.nt = ' nt'
        self.p = dict(depth=4, kfree=13, ldepth=32, ldepth2=12, v1n=32, v1d=16, nb=0, wwait=0, pk=0, fsh=0, mr=2, mr3=0)
        for o in self.opts:
            if '=' in o:
                k, v = o.split('=')
                assert k in self.p
                self.p[k] = int(v)
        self.cold = []

    def stamp(self, k):
        if 'probe' in self.opts and self.p['pk'] == k and k and getattr(self, 'in_att', False):
            self.a('s_memrealtime s[92:93]')
            self.a('s_waitcnt lgkmcnt(0)')
        if self.stamps:
            self.a('s_memrealtime %s' % sp(60 + 2 * k))

    def end_wave(self):
        a = self.a
        if self.stamps:
            a('s_mov_b64 exec, -1')
            self.stamp(15)
            a('s_waitcnt lgkmcnt(0)')
            a('v_mov_b32 v200, 0')
            for k in range(16):
                a('v_writelane_b32 v200, s%d, %d' % (60 + 2 * k, k))
            a('s_mul_i32 s44, s2, %d' % NWAVES)
            a('s_add_u32 s44, s44, %s' % sWID)
            a('s_lshl_b32 s44, s44, 6')
            a('s_add_u32 s44, s44, %d' % TS)
            a('v_lshlrev_b32 v201, 2, v0')
            a('v_add_u32 v201, s44, v201')
            a('s_mov_b64 exec, 0xffff')
            a('global_store_dword v201, v200, %s' % sp(pWS))
        a('s_endpgm')

    def tag4(self, base, second=False):
        t = sT2 if second else sT
        for k in range(4):
            self.a('v_and_or_b32 v%d, v%d, v7, %s' % (base + k, base + k, t[k]))

    def prefill(self, base, second=False):
        t = sT2 if second else sT
        for k in range(4):
            self.a('v_mov_b32 v%d, %s' % (base + k, t[k]))

    def check4(self, base, t, first, second=False, dst=None, last=False):
        a = self.a
        tg = sT2 if second else sT
        d = base if dst is None else dst
        for k in range(4):
            a('v_xor_b32 v%d, %s, v%d' % (d + k, tg[k], base + k))
        if first:
            a('v_or3_b32 v%d, v%d, v%d, v%d' % (t, d, d + 1, d + 2))
            a('v_or_b32 v%d, v%d, v%d' % (t, t, d + 3))
        else:
            a('v_or3_b32 v%d, v%d, v%d, v%d' % (t, t, d, d + 1))
            a('v_or3_b32 v%d, v%d, v%d, v%d' % (t, t, d + 2, d + 3))
        if last:
            a('v_and_b32 v%d, 0xff, v%d' % (t, t))

    def check1(self, reg, t, first, second=False):
        self.a('v_sad_u8 v%d, v%d, %s, %s' % (t, reg, sTAG2 if second else sTAG, '0' if first else 'v%d' % t))

    def poll(self, loads, checks, acc, wait='vmcnt(0)', sleep=0):
        a = self.a
        top = a.newlabel('L_poll')
        retry = a.newlabel('L_retry')
        done = a.newlabel('L_pdone')
        a('s_mov_b32 %s, %d' % (sSPIN, SPIN_MAX if wait.startswith('vm') else SPIN_MAX * 8))
        a.label(top)
        loads()
        a('s_waitcnt %s' % wait)
        checks()
        a('v_cmp_ne_u32 vcc, 0, v%d' % acc)
        a('s_cbranch_vccnz %s' % retry)
        a.label(done)
        if 'dprio' in self.opts:
            a('s_setprio 3')

        def cold():
            a.label(retry)
            if 'dprio' in self.opts:
                a('s_setprio 0')
            if sleep:
                a('s_sleep %d' % sleep)
            a('s_sub_u32 %s, %s, 1' % (sSPIN, sSPIN))
            a('s_cbranch_scc0 %s' % top)
            a('s_branch %s' % done)
        self.cold.append(cold)

    def wait_flag(self, addr, n, t, extra=None, sleep=0, lazy=False):
        a = self.a

        def loads():
            if n == 1:
                a('ds_read_b32 v%d, v190 offset:%d' % (t, addr))
            else:
                a('ds_read_b128 %s, v190 offset:%d' % (v4(t), addr))
            if extra and not lazy:
                extra()

        def checks():
            if n == 4:
                a('v_or3_b32 v%d, v%d, v%d, v%d' % (t, t, t + 1, t + 2))
                a('v_or_b32 v%d, v%d, v%d' % (t, t, t + 3))
        self.poll(loads, checks, t, wait='lgkmcnt(0)', sleep=max(sleep, 1) if lazy else sleep)
        if extra and lazy:
            extra()
            a('s_waitcnt lgkmcnt(0)')

    def wait_scores(self, t):
        a = self.a

        def loads():
            a('ds_read_b128 %s, v190 offset:%d' % (v4(t), MX))

        def checks():
            a('v_or3_b32 v%d, v%d, v%d, v%d' % (t, t, t + 1, t + 2))
            a('v_or_b32 v%d, v%d, v%d' % (t, t, t + 3))
            a('v_and_b32 v%d, 1, v%d' % (t, t))
        self.poll(loads, checks, t, wait='lgkmcnt(0)', sleep=1)

    def set_flag(self, vaddr, off):
        self.a('ds_write_b32 v%d, v190 offset:%d' % (vaddr, off))

    def st_local(self, stores, pre=None):
        a = self.a
        lg = a.newlabel('L_sg')
        ld = a.newlabel('L_sd')
        a('s_cmp_lg_u32 %s, 0' % sMODE)
        a('s_cbranch_scc1 %s' % lg)
        for k, (va, d, off) in enumerate(stores):
            if pre:
                pre(k)
            a('global_store_dwordx4 v%d, %s, %s offset:%d' % (va, v4(d), sp(pWS), off))
        a.label(ld)

        def cold():
            a.label(lg)
            a('s_nop 7')
            for k, (va, d, off) in enumerate(stores):
                if pre:
                    pre(k)
                a('global_store_dwordx4 v%d, %s, %s offset:%d sc1' % (va, v4(d), sp(pWS), off))
            a('s_nop 1')
            a('s_branch %s' % ld)
        self.cold.append(cold)

    def flush_cold(self):
        while self.cold:
            c = self.cold.pop(0)
            self.a.reset()
            c()

    def get_mode(self, t):
        a = self.a

        def loads():
            a('ds_read_b32 v%d, v190 offset:%d' % (t, MODE))

        def checks():
            a('v_lshrrev_b32 v%d, 1, v%d' % (t + 1, t))
        self.poll(loads, checks, t + 1, wait='lgkmcnt(0)', sleep=1)
        a('v_readfirstlane_b32 s44, v%d' % t)
        a('s_cmp_eq_u32 s44, 0')
        a('s_cselect_b32 %s, 0, %d' % (sMODE, RB))
        a('s_mul_i32 %s, %s, %d' % (sLOC, sX, LOCP))
        a('s_add_u32 %s, %s, %d' % (sLOC, sLOC, LOCB))
        a('s_add_u32 %s, %s, %s' % (sLOC, sLOC, sMODE))

    def allreduce(self, rs, tmps, op='add', steps=('x1', 'x2', 'r4', 'r8', 'p16')):
        a = self.a
        dpp = {'x1': 'quad_perm:[1,0,3,2]', 'x2': 'quad_perm:[2,3,0,1]', 'r4': 'row_ror:4',
               'r8': 'row_ror:8', 'hm': 'row_half_mirror'}
        for st in steps:
            if st in dpp:
                for r in rs:
                    a('v_%s_f32_dpp v%d, v%d, v%d %s %s' % (op, r, r, r, dpp[st], DPPM))
            else:
                ins = 'v_permlane16_swap_b32' if st == 'p16' else 'v_permlane32_swap_b32'
                for r, t in zip(rs, tmps):
                    a('v_mov_b32 v%d, v%d' % (t, r))
                for r, t in zip(rs, tmps):
                    a('%s v%d, v%d' % (ins, r, t))
                for r, t in zip(rs, tmps):
                    a('v_%s_f32 v%d, v%d, v%d' % (op, r, r, t))

    def add4(self, d, x, y):
        a = self.a
        if 'pk' in self.opts:
            for k in (0, 2):
                a('v_pk_add_f32 %s, %s, %s' % (v2(d + k), v2(x + k), v2(y + k)))
        else:
            for k in range(4):
                a('v_add_f32 v%d, v%d, v%d' % (d + k, x + k, y + k))

    def rs4(self, b):
        a = self.a
        a('v_permlane32_swap_b32 v%d, v%d' % (b, b + 2))
        a('v_permlane32_swap_b32 v%d, v%d' % (b + 1, b + 3))
        a('v_add_f32 v%d, v%d, v%d' % (b, b, b + 2))
        a('v_add_f32 v%d, v%d, v%d' % (b + 1, b + 1, b + 3))
        a('v_permlane16_swap_b32 v%d, v%d' % (b, b + 1))
        a('v_add_f32 v%d, v%d, v%d' % (b, b, b + 1))

    def expand4(self, b):
        a = self.a
        a('v_mov_b32 v%d, v%d' % (b + 1, b))
        a('v_permlane16_swap_b32 v%d, v%d' % (b, b + 1))
        a('v_mov_b32 v%d, v%d' % (b + 2, b))
        a('v_mov_b32 v%d, v%d' % (b + 3, b + 1))
        a('v_permlane32_swap_b32 v%d, v%d' % (b, b + 2))
        a('v_permlane32_swap_b32 v%d, v%d' % (b + 1, b + 3))

    def rowtag(self, dst):
        a = self.a
        a('v_lshlrev_b32 v%d, 3, v2' % dst)
        a('v_lshrrev_b32 v%d, v%d, %s' % (dst, dst, sTAG))
        a('v_and_b32 v%d, 0xff, v%d' % (dst, dst))

    def sparse(self, dst, src):
        for k in range(4):
            self.a('v_and_b32 v%d, v%d, v%d' % (dst + k, src, 3 + k))

    def mfma(self, d, x, y, first):
        self.a('v_mfma_f32_16x16x32_bf16 %s, %s, %s, %s' % (v4(d), v4(x), v4(y), '0' if first else v4(d)))

    def bf16_round4(self, src, dst):
        a = self.a
        a('v_cvt_pk_bf16_f32 v%d, v%d, v%d' % (dst, src, src + 1))
        a('v_cvt_pk_bf16_f32 v%d, v%d, v%d' % (dst + 2, src + 2, src + 3))
        a('v_and_b32 v%d, 0xffff0000, v%d' % (dst + 1, dst))
        a('v_lshlrev_b32 v%d, 16, v%d' % (dst, dst))
        a('v_and_b32 v%d, 0xffff0000, v%d' % (dst + 3, dst + 2))
        a('v_lshlrev_b32 v%d, 16, v%d' % (dst + 2, dst + 2))

    def consts(self, t=8):
        a = self.a
        a('v_and_b32 v%d, 7, v0' % t)
        a('v_and_b32 v%d, 1, v%d' % (t + 1, t))
        a('v_cmp_eq_u32 vcc, 1, v%d' % (t + 1))
        a('v_mov_b32 v%d, 0xffff' % (t + 1))
        a('v_mov_b32 v%d, 0xffff0000' % (t + 2))
        a('v_cndmask_b32 v%d, v%d, v%d, vcc' % (t + 1, t + 1, t + 2))
        a('v_lshrrev_b32 v%d, 1, v%d' % (t, t))
        for k in range(4):
            a('v_cmp_eq_u32 vcc, %d, v%d' % (k, t))
            a('v_cndmask_b32 v%d, 0, v%d, vcc' % (3 + k, t + 1))
        a('v_mov_b32 v7, 0xffffff00')
        a('s_mov_b32 %s, 0x0c0c0400' % sSEL)
        a('s_mov_b32 s58, 0xff00ff00')
        a('s_mov_b32 s59, 0xff00ff00')

    def tagcalc(self):
        a = self.a
        a('s_mul_i32 %s, %s, 0x9e3779b1' % (sTAG, sTAG))
        a('s_add_u32 %s, %s, 0x7f4a7c15' % (sTAG, sTAG))
        a('s_xor_b32 %s, %s, 0x5a5a5a5a' % (sTAG2, sTAG))
        for tg, t in ((sTAG, sT), (sTAG2, sT2)):
            a('s_and_b32 %s, %s, 0xff' % (t[0], tg))
            a('s_bfe_u32 %s, %s, 0x80008' % (t[1], tg))
            a('s_bfe_u32 %s, %s, 0x80010' % (t[2], tg))
            a('s_lshr_b32 %s, %s, 24' % (t[3], tg))

    def roles(self):
        a = self.a
        a('s_sub_u32 %s, %s, 12' % (sTP, sI))
        a('s_max_i32 %s, %s, 0' % (sTP, sTP))
        a('s_add_u32 %s, %s, 12' % (sU, sI))
        a('s_cmp_lt_u32 %s, 12' % sI)
        a('s_cselect_b32 %s, %s, %s' % (sU, sI, sU))
        a('s_sub_u32 s44, %s, 8' % sI)
        a('s_cmp_ge_u32 %s, 20' % sI)
        a('s_cselect_b32 %s, s44, %s' % (sU, sU))

    def ln_finish(self, rm, rv):
        a = self.a
        a('v_cvt_pk_bf16_f32 v%d, v%d, v%d' % (rv, rm, rv))
        a('v_lshlrev_b32 v%d, 16, v%d' % (rm, rv))
        a('v_and_b32 v%d, 0xffff0000, v%d' % (rv, rv))
        a('v_add_f32 v%d, 0x%x, v%d' % (rv, f2u(1e-5), rv))
        a('v_cvt_pk_bf16_f32 v%d, v%d, v%d' % (rv, rv, rv))
        a('v_and_b32 v%d, 0xffff0000, v%d' % (rv, rv))
        a('v_sqrt_f32 v%d, v%d' % (rv, rv))
        a('v_cvt_pk_bf16_f32 v%d, v%d, v%d' % (rv, rv, rv))
        a('v_and_b32 v%d, 0xffff0000, v%d' % (rv, rv))
        a('v_rcp_f32 v%d, v%d' % (rv, rv))

    def gather8(self, vaddr, G, stampk):
        a = self.a

        def loads():
            a('global_load_dwordx4 %s, v%d, %s sc1' % (v4(G), vaddr, sp(pWS)))
            a('global_load_dwordx4 %s, v%d, %s offset:1024 sc1' % (v4(G + 4), vaddr, sp(pWS)))

        def checks():
            self.check4(G, G + 8, True)
            self.check4(G + 4, G + 8, False, last=True)
        self.poll(loads, checks, G + 8)
        self.stamp(stampk)
        self.add4(G, G, G + 4)
        self.rs4(G)

    def slot(self, dst, tsg, base):
        a = self.a
        a('s_lshr_b32 %s, %s, 2' % (dst, tsg))
        a('s_lshl_b32 %s, %s, 14' % (dst, dst))
        a('s_and_b32 s47, %s, 3' % tsg)
        a('s_lshl_b32 s47, s47, 11')
        a('s_add_u32 %s, %s, s47' % (dst, dst))
        a('s_add_u32 %s, %s, %d' % (dst, dst, base))

    def near_copy(self, dst):
        a = self.a
        a('s_getreg_b32 s47, hwreg(HW_REG_XCC_ID)')
        a('s_lshl_b32 s47, s47, 11')
        a('s_add_u32 %s, s%d, %d' % (dst, pWS, YP))
        a('s_xor_b32 s47, s47, %s' % dst)
        a('s_lshr_b32 %s, %s, 8' % (dst, dst))
        a('s_xor_b32 %s, %s, s47' % (dst, dst))
        if 'far' in self.opts:
            a('s_not_b32 %s, %s' % (dst, dst))
        a('s_and_b32 %s, %s, 8192' % (dst, dst))

    def probe_round(self):
        a = self.a
        a('s_memtime s[44:45]')
        a('s_waitcnt lgkmcnt(0)')
        a('s_load_dword s46, s[92:93], 0 glc')
        a('s_waitcnt lgkmcnt(0)')
        a('s_memtime s[48:49]')
        a('s_waitcnt lgkmcnt(0)')
        a('s_load_dword s46, s[92:93], 8192 glc')
        a('s_waitcnt lgkmcnt(0)')
        a('s_memtime s[50:51]')
        a('s_waitcnt lgkmcnt(0)')
        a('s_sub_u32 s44, s48, s44')
        a('s_sub_u32 s45, s50, s48')
        a('s_min_u32 s94, s94, s44')
        a('s_min_u32 s95, s95, s45')

    def slice_off(self, dst, t):
        a = self.a
        a('v_and_b32 v%d, 1, v1' % t)
        a('v_mul_u32_u24 v%d, 1280, v%d' % (t, t))
        a('v_lshrrev_b32 v%d, 1, v1' % dst)
        a('v_lshl_add_u32 v%d, v%d, 3, v%d' % (dst, dst, t))
        a('v_lshl_add_u32 v%d, v2, 1, v%d' % (dst, dst))
        a('s_lshl_b32 s44, %s, 6' % sTP)
        a('v_add_u32 v%d, s44, v%d' % (dst, dst))

    def h_addr(self, dst, t):
        a = self.a
        a('v_and_b32 v%d, 1, v1' % t)
        a('v_lshlrev_b32 v%d, 7, v%d' % (t, t))
        a('v_lshrrev_b32 v%d, 1, v1' % dst)
        a('v_lshl_add_u32 v%d, v%d, 2, v%d' % (dst, dst, t))
        a('v_lshl_add_u32 v%d, v2, 5, v%d' % (dst, dst))

    def prologue(self):
        a = self.a
        a('s_cmp_ge_u32 s2, 256')
        a('s_cbranch_scc1 L_exit')
        a('s_load_dwordx16 s[16:31], s[0:1], 0')
        a('s_load_dwordx8 s[32:39], s[0:1], 64')
        a('s_getpc_b64 s[56:57]')
        a.label('L_pc')
        a('s_lshr_b32 %s, s2, 3' % sI)
        a('s_lshl_b32 s44, %s, 10' % sI)
        a('v_lshl_add_u32 v8, v0, 6, s44')
        a('v_min_u32 v8, L_exit-L_pc, v8')
        a('v_cmp_gt_u32 vcc, 16, v0')
        a('s_and_saveexec_b64 s[44:45], vcc')
        a('s_cbranch_execz L_npf')
        a('global_load_dword v199, v8, s[56:57]')
        a.label('L_npf')
        a('s_mov_b64 exec, -1')
        if self.stamps:
            for k in range(1, 16):
                a('s_mov_b64 %s, 0' % sp(60 + 2 * k))
        self.stamp(0)
        if 'probe' in self.opts:
            a('s_memrealtime s[92:93]')
        a('v_lshrrev_b32 v1, 6, v0')
        a('v_and_b32 v0, 63, v0')
        a('v_readfirstlane_b32 %s, v1' % sWID)
        a('s_and_b32 %s, s2, 7' % sX)
        a('s_and_b32 %s, %s, 3' % (sH, sI))
        a('s_lshl_b32 s44, %s, 2' % sX)
        a('s_add_u32 %s, %s, s44' % (sH, sH))
        a('s_lshr_b32 %s, %s, 2' % (sJ8, sI))
        a('s_lshr_b32 %s, %s, 2' % (sB, sJ8))
        a('s_and_b32 %s, %s, 3' % (sJ, sJ8))
        a('v_and_b32 v1, 15, v0')
        a('v_lshrrev_b32 v2, 4, v0')
        a('v_mov_b32 v190, 0')
        a('s_sub_u32 %s, %s, 1' % (sAW, sWID))
        a('s_cmp_eq_u32 %s, 5' % sWID)
        a('s_cbranch_scc1 L_load')
        a('s_cmp_eq_u32 %s, 0' % sWID)
        a('s_cbranch_scc1 L_comm')

    def comm(self):
        a = self.a
        WQ, XR, XN, XS, F = 16, 96, 106, 14, 116
        a.label('L_comm')
        a.reset()
        self.roles()
        a('v_bfe_u32 v8, v0, 3, 1')
        a('v_mul_u32_u24 v8, 1280, v8')
        a('v_and_b32 v9, 7, v0')
        a('v_lshl_add_u32 v9, v2, 3, v9')
        a('v_mul_u32_u24 v9, 40, v9')
        a('v_add_u32 v10, v8, v9')
        a('s_mul_i32 s44, %s, 160' % sJ8)
        a('v_mul_u32_u24 v9, 40, v2')
        a('v_add3_u32 v11, v8, v9, s44')
        a('s_mul_i32 s44, %s, %d' % (sJ8, 80 * 8192))
        a('s_lshl_b32 s45, %s, 8' % sH)
        a('s_add_u32 s44, s44, s45')
        a('v_mul_u32_u24 v12, %d, v2' % (20 * 8192))
        a('v_lshl_add_u32 v12, v1, 4, v12')
        a('v_add_u32 v12, s44, v12')
        self.slice_off(13, 8)
        a('s_waitcnt lgkmcnt(0)')
        a('s_load_dword %s, %s, %d' % (sTAG, sp(pWS), EPOCH))
        for base, va in ((XR, 10), (XN, 11)):
            a('global_load_dwordx4 %s, v%d, %s' % (v4(base), va, sp(pX)))
            a('global_load_dwordx4 %s, v%d, %s offset:16' % (v4(base + 4), va, sp(pX)))
            a('global_load_dwordx2 %s, v%d, %s offset:32' % (v2(base + 8), va, sp(pX)))
        a('global_load_ushort v%d, v13, %s' % (XS, sp(pX)))
        for n in range(20):
            a('global_load_dwordx4 %s, v12, %s%s' % (v4(WQ + 4 * n), sp(pWQ), self.nt))
            if n < 19:
                a('v_add_u32 v12, 8192, v12')
        a('s_barrier')
        if 'noprio' not in self.opts:
            a('s_setprio 3')
        self.stamp(1)
        if 'meas2' in self.opts:
            a('s_and_b32 s45, s2, 127')
            a('s_lshl_b32 s45, s45, 6')
            a('s_lshr_b32 s46, s2, 7')
            a('s_lshl_b32 s46, s46, 14')
            a('s_add_u32 s45, s45, s46')
            a('s_add_u32 s45, s45, %d' % PRB)
            a('s_add_u32 s92, s%d, s45' % pWS)
            a('s_addc_u32 s93, s%d, 0' % (pWS + 1))
            a('s_load_dword s48, s[92:93], 0 glc')
            a('s_load_dword s49, s[92:93], 8192 glc')
            a('s_mov_b32 s94, -1')
            a('s_mov_b32 s95, -1')
        self.consts()
        a('s_getreg_b32 %s, hwreg(HW_REG_XCC_ID)' % sXCC)
        a('s_and_b32 %s, %s, 0xf' % (sXCC, sXCC))
        a('v_and_b32 v10, 31, v0')
        a('s_lshl_b32 s44, %s, 12' % sX)
        a('s_add_u32 s44, s44, %d' % XCB)
        a('v_lshlrev_b32 v142, 7, v10')
        a('v_add_u32 v142, s44, v142')
        a('s_lshl_b32 s44, %s, 10' % sH)
        a('s_add_u32 s44, s44, %d' % XCB)
        a('v_and_b32 v9, 7, v0')
        a('v_lshlrev_b32 v143, 7, v9')
        a('v_add_u32 v143, s44, v143')
        a('s_lshl_b32 s44, %s, 14' % sH)
        a('s_add_u32 s44, s44, %d' % QA)
        a('v_lshrrev_b32 v9, 1, v2')
        a('v_lshlrev_b32 v9, 13, v9')
        a('v_and_b32 v10, 1, v2')
        a('v_lshl_add_u32 v10, v1, 1, v10')
        a('v_lshl_add_u32 v12, v10, 4, v9')
        a('v_add_u32 v12, s44, v12')
        a('s_and_b32 s45, %s, 1' % sJ8)
        a('s_lshl_b32 s45, s45, 9')
        a('s_lshr_b32 s46, %s, 1' % sJ8)
        a('s_lshl_b32 s46, s46, 2')
        a('s_add_u32 s45, s45, s46')
        a('s_add_u32 s45, s45, 4096')
        a('v_add_u32 v140, s45, v12')
        a('s_lshl_b32 s45, %s, 9' % sJ8)
        a('v_add_u32 v12, s45, v12')
        a('s_lshl_b32 s45, %s, 13' % sB)
        a('s_add_u32 s45, s45, s44')
        a('s_add_u32 s45, s45, 2048')
        a('v_lshlrev_b32 v13, 4, v0')
        a('v_add_u32 v13, s45, v13')
        a('s_waitcnt vmcnt(20)')
        self.stamp(2)
        for k in range(10):
            a('v_lshlrev_b32 v%d, 16, v%d' % (F + 2 * k, XR + k))
            a('v_and_b32 v%d, 0xffff0000, v%d' % (F + 2 * k + 1, XR + k))
        a('v_add_f32 v8, v%d, v%d' % (F, F + 1))
        a('v_add_f32 v9, v%d, v%d' % (F + 2, F + 3))
        for k in range(4, 20, 2):
            a('v_add_f32 v8, v8, v%d' % (F + k))
            a('v_add_f32 v9, v9, v%d' % (F + k + 1))
        a('v_add_f32 v8, v8, v9')
        red = ('x1', 'x2', 'hm', 'p16', 'p32')
        self.allreduce([8], [9], steps=red)
        a('v_mul_f32 v8, 0x%x, v8' % f2u(1.0 / 640))
        a('v_mov_b32 v9, 0')
        a('v_mov_b32 v10, 0')
        for k in range(0, 20, 2):
            a('v_sub_f32 v%d, v%d, v8' % (F + k, F + k))
            a('v_sub_f32 v%d, v%d, v8' % (F + k + 1, F + k + 1))
            a('v_fmac_f32 v9, v%d, v%d' % (F + k, F + k))
            a('v_fmac_f32 v10, v%d, v%d' % (F + k + 1, F + k + 1))
        a('v_add_f32 v9, v9, v10')
        self.allreduce([9], [10], steps=red)
        a('v_mul_f32 v9, 0x%x, v9' % f2u(1.0 / 640))
        self.ln_finish(8, 9)
        a('s_waitcnt lgkmcnt(0)')
        self.tagcalc()
        self.stamp(3)
        D = 136
        A = [96, 100]
        for k in range(10):
            a('v_lshlrev_b32 v10, 16, v%d' % (XN + k))
            a('v_and_b32 v11, 0xffff0000, v%d' % (XN + k))
            a('v_sub_f32 v10, v10, v8')
            a('v_sub_f32 v11, v11, v8')
            a('v_cvt_pk_bf16_f32 v10, v10, v11')
            a('v_and_b32 v11, 0xffff0000, v10')
            a('v_lshlrev_b32 v10, 16, v10')
            a('v_mul_f32 v10, v10, v9')
            a('v_mul_f32 v11, v11, v9')
            a('v_cvt_pk_bf16_f32 v10, v10, v10')
            a('v_cvt_pk_bf16_f32 v11, v11, v11')
            self.sparse(A[0], 10)
            self.sparse(A[1], 11)
            a('s_waitcnt vmcnt(%d)' % (18 - 2 * k))
            self.mfma(D, A[0], WQ + 8 * k, k == 0)
            self.mfma(D, A[1], WQ + 8 * k + 4, False)

        def qhash(dst, b, t):
            a('v_alignbit_b32 v%d, v%d, v%d, 8' % (dst, b + 1, b + 1))
            a('v_alignbit_b32 v%d, v%d, v%d, 16' % (t, b + 2, b + 2))
            a('v_xor_b32 v%d, v%d, v%d' % (dst, dst, b))
            a('v_xor_b32 v%d, v%d, v%d' % (dst, dst, t))
            a('v_alignbit_b32 v%d, v%d, v%d, 24' % (t, b + 3, b + 3))
            a('v_xor_b32 v%d, v%d, v%d' % (dst, dst, t))
        a('global_store_dwordx4 v12, %s, %s' % (v4(D), sp(pWS)))
        qhash(145, D, 146)
        a('v_xor_b32 v145, %s, v145' % sTAG)
        if 'forceglobal' not in self.opts:
            a('global_store_dword v140, v145, %s' % sp(pWS))
        a('global_load_dwordx2 v[44:45], v142, %s sc1' % sp(pWS))
        self.stamp(4)
        if 'meas2' in self.opts:
            self.probe_round()
        a('s_waitcnt vmcnt(0)')
        self.stamp(13)
        l_nm = a.newlabel('L_nm')
        a('v_cmp_ne_u32 s[48:49], %s, v44' % sTAG)
        a('v_cmp_ne_u32 s[50:51], %s, v45' % sXCC)
        a('s_or_b64 s[48:49], s[48:49], s[50:51]')
        a('s_cselect_b32 s41, 1, 0')
        if 'forceglobal' in self.opts:
            a('s_mov_b32 s41, 1')
        a('s_cmp_lg_u32 s41, 0')
        a('s_cbranch_scc1 %s' % l_nm)
        self.set_flag(190, MODE)
        a.label(l_nm)
        G = 16
        top = a.newlabel('L_q')
        nxt = a.newlabel('L_qn')
        done = a.newlabel('L_qd')
        a('s_mov_b32 %s, %d' % (sSPIN, SPIN_MAX))
        a('s_mov_b32 s40, 0')
        a.label(top)
        for k in range(5):
            a('global_load_dwordx4 %s, v13, %s offset:%d sc1' % (v4(G + 4 * k), sp(pWS), k * 1024 - 2048))
        if 'meas2' in self.opts:
            self.probe_round()
        a('s_waitcnt vmcnt(0)')
        for k in range(4):
            qhash(40, G + 4 * k, 41)
            a('v_xor_b32 v40, v40, v%d' % (G + 16 + k))
            self.check1(40, 42, k == 0)
        a('v_cmp_ne_u32 vcc, 0, v42')
        a('s_cbranch_vccz %s' % done)
        a('s_and_b32 s44, %s, 3' % sSPIN)
        a('s_or_b32 s44, s44, s40')
        a('s_cmp_lg_u32 s44, 1')
        a('s_cbranch_scc1 %s' % nxt)
        a('global_load_dwordx2 v[16:17], v143, %s sc1' % sp(pWS))
        a('s_waitcnt vmcnt(0)')
        a('v_cmp_ne_u32 s[48:49], %s, v16' % sTAG)
        a('v_cmp_ne_u32 s[50:51], %s, v17' % sXCC)
        a('s_cmp_lg_u64 s[48:49], 0')
        a('s_cbranch_scc1 %s' % nxt)
        if 'forceglobal' not in self.opts:
            a('s_cmp_eq_u64 s[50:51], 0')
            a('s_cbranch_scc1 %s' % nxt)
        a('s_mov_b32 s40, 2')
        a('v_add_u32 v12, %d, v12' % (QB - QA))
        a('v_add_u32 v13, %d, v13' % (QB - QA))
        a('v_add_u32 v140, %d, v140' % (QB - QA))
        a('global_store_dwordx4 v12, %s, %s sc1' % (v4(D), sp(pWS)))
        a('global_store_dword v140, v145, %s sc1' % sp(pWS))
        a.label(nxt)
        a('s_sub_u32 %s, %s, 1' % (sSPIN, sSPIN))
        a('s_cmp_lg_u32 %s, 0' % sSPIN)
        a('s_cbranch_scc1 %s' % top)
        a.label(done)
        self.stamp(5)
        for r in range(4):
            a('v_add_f32 v%d, v%d, v%d' % (8 + r, G + r, G + 4 + r))
            a('v_add_f32 v%d, v%d, v%d' % (G + 8 + r, G + 8 + r, G + 12 + r))
        for r in range(4):
            a('v_add_f32 v%d, v%d, v%d' % (8 + r, 8 + r, G + 8 + r))
        self.allreduce([8, 9, 10, 11], [48, 49, 50, 51], steps=('p32',))
        a('v_cvt_pk_bf16_f32 v8, v8, v9')
        a('v_cvt_pk_bf16_f32 v9, v10, v11')
        a('v_and_b32 v10, 31, v0')
        a('v_lshlrev_b32 v10, 3, v10')
        a('ds_write_b64 v10, v[8:9] offset:%d' % Q_LDS)
        self.set_flag(190, FQ)
        self.stamp(6)

        skip = a.newlabel('L_xq')
        a('s_cmp_eq_u32 s41, 0')
        a('s_cbranch_scc1 %s' % skip)

        def loads():
            a('global_load_dwordx2 v[16:17], v142, %s sc1' % sp(pWS))

        def checks():
            self.check1(16, 18, True)
        self.poll(loads, checks, 18, sleep=4)
        a('v_cmp_ne_u32 s[50:51], %s, v17' % sXCC)
        a('s_or_b64 s[50:51], s[50:51], vcc')
        a('s_cselect_b32 s44, 1, 0')
        if 'forceglobal' in self.opts:
            a('s_mov_b32 s44, 1')
        a('v_mov_b32 v8, s44')
        a('ds_write_b32 v190, v8 offset:%d' % MODE)
        a('s_or_b32 s44, s44, s40')
        a('s_cmp_lg_u32 s44, 1')
        a('s_cbranch_scc1 %s' % skip)
        a('v_add_u32 v12, %d, v12' % (QB - QA))
        a('v_add_u32 v140, %d, v140' % (QB - QA))
        a('global_store_dwordx4 v12, %s, %s sc1' % (v4(D), sp(pWS)))
        a('global_store_dword v140, v145, %s sc1' % sp(pWS))
        a.label(skip)
        self.get_mode(8)
        a('v_lshlrev_b32 v150, 4, v0')
        a('s_mul_i32 s44, %s, 640' % sI)
        a('s_add_u32 s44, s44, %s' % sLOC)
        a('v_add_u32 v151, s44, v150')
        self.slot('s44', sTP, YP)
        if 'meas2' in self.opts:
            a('s_mov_b32 s56, s44')
            for r in range(self.p['mr3']):
                self.probe_round()
            a('s_cmp_lt_u32 s95, s94')
            a('s_cselect_b32 s45, 8192, 0')
            if self.stamps:
                a('s_add_u32 s84, s60, s94')
                a('s_add_u32 s88, s60, s95')
            a('v_mov_b32 v8, s45')
            a('ds_write_b32 v190, v8 offset:%d' % NEAR)
            a('s_add_u32 s44, s56, s45')
        elif 'meas' not in self.opts:
            self.near_copy('s45')
            a('s_add_u32 s44, s44, s45')
        else:
            a('s_and_b32 s45, s2, 127')
            a('s_lshl_b32 s45, s45, 6')
            a('s_lshr_b32 s46, s2, 7')
            a('s_lshl_b32 s46, s46, 14')
            a('s_add_u32 s45, s45, s46')
            a('s_add_u32 s45, s45, %d' % PRB)
            a('s_add_u32 s56, s%d, s45' % pWS)
            a('s_addc_u32 s57, s%d, 0' % (pWS + 1))
            a('s_load_dword s46, s[56:57], 0 glc')
            a('s_load_dword s47, s[56:57], 8192 glc')
            a('s_waitcnt lgkmcnt(0)')
        a('v_add_u32 v152, s44, v150')
        self.slot('s44', sI, YP)
        a('s_lshl_b32 s45, %s, 8' % sX)
        a('s_add_u32 s44, s44, s45')
        a('v_lshlrev_b32 v153, 4, v1')
        a('v_lshl_add_u32 v153, v2, 13, v153')
        a('v_add_u32 v153, s44, v153')
        self.h_addr(154, 8)
        a('s_lshl_b32 s44, %s, 4' % sTP)
        a('s_add_u32 s44, s44, %s' % sLOC)
        a('s_add_u32 s44, s44, %d' % (L_IN + 3840))
        a('v_lshrrev_b32 v8, 1, v0')
        a('v_min_u32 v8, 26, v8')
        a('v_mul_u32_u24 v8, %d, v8' % INP)
        a('v_and_b32 v9, 1, v0')
        a('v_lshl_add_u32 v8, v9, 9, v8')
        a('v_add_u32 v155, s44, v8')
        def fptouch():
            l_nt = a.newlabel('L_nt')
            a('s_bfe_u32 s44, %s, %d' % (sTP, 0x30000 + self.p['fsh']))
            a('s_cmp_lg_u32 s44, %s' % sX)
            a('s_cbranch_scc1 %s' % l_nt)
            a('s_cmp_lt_u32 %s, 12' % sI)
            a('s_cbranch_scc1 %s' % l_nt)
            a('v_add_u32 v8, %d, v152' % (FP - YP))
            a('global_load_dwordx4 v[164:167], v8, %s sc1' % sp(pWS))
            a('global_load_dwordx4 v[168:171], v8, %s offset:1024 sc1' % sp(pWS))
            if 'outt2' in self.opts:
                self.slice_off(9, 8)
                a('global_load_ushort v172, v9, %s' % sp(pOUT))
            a.label(l_nt)
        if 'meas' not in self.opts:
            fptouch()
        self.rowtag(156)
        a('v_lshlrev_b32 v%d, 16, v%d' % (XS, XS))
        a('v_mov_b32 v30, %s' % sTAG)
        a('v_mov_b32 v31, %s' % sTAG)
        a('s_mov_b32 exec_hi, 1')
        if 'noopt' not in self.opts:
            a('global_load_dwordx4 v[172:175], v151, %s sc1' % sp(pWS))

        def rd():
            for w in range(4):
                a('ds_read_b128 %s, v150 offset:%d' % (v4(32 + 4 * w), OW_LDS + 528 * w))
        self.wait_flag(FVSA[2], 1, 8, sleep=2)
        self.wait_flag(FO, 4, 8, rd)
        self.stamp(7)
        self.add4(32, 32, 36)
        self.add4(40, 40, 44)
        self.add4(8, 32, 40)
        self.tag4(8)
        self.st_local([(151, 8, L_OP)])
        self.set_flag(190, FPUB)
        a('s_mov_b64 exec, -1')
        self.stamp(8)
        if 'meas' in self.opts:
            l_nm2 = a.newlabel('L_nms')
            a('s_cmp_lt_u32 %s, 12' % sI)
            a('s_cbranch_scc1 %s' % l_nm2)
            a('s_mov_b32 s40, -1')
            a('s_mov_b32 s41, -1')
            for r in range(self.p['mr']):
                a('s_memtime s[44:45]')
                a('s_waitcnt lgkmcnt(0)')
                a('s_load_dword s46, s[56:57], 0 glc')
                a('s_waitcnt lgkmcnt(0)')
                a('s_memtime s[48:49]')
                a('s_waitcnt lgkmcnt(0)')
                a('s_load_dword s46, s[56:57], 8192 glc')
                a('s_waitcnt lgkmcnt(0)')
                a('s_memtime s[50:51]')
                a('s_waitcnt lgkmcnt(0)')
                a('s_sub_u32 s44, s48, s44')
                a('s_sub_u32 s45, s50, s48')
                a('s_min_u32 s40, s40, s44')
                a('s_min_u32 s41, s41, s45')
            a('s_cmp_lt_u32 s41, s40')
            a('s_cselect_b32 s44, 8192, 0')
            if self.stamps:
                a('s_add_u32 s84, s60, s40')
                a('s_add_u32 s88, s60, s41')
            a('v_mov_b32 v36, s44')
            a('v_add_u32 v152, s44, v152')
            a('ds_write_b32 v190, v36 offset:%d' % NEAR)
            fptouch()
            a.label(l_nm2)
        l_noy = a.newlabel('L_noy')
        fin = a.newlabel('L_cend')
        a('s_cmp_ge_u32 %s, 20' % sI)
        a('s_cbranch_scc1 %s' % l_noy)

        def rd():
            a('ds_read_b128 v[32:35], v150 offset:%d' % YW_LDS)
        self.wait_flag(FG1, 4, 36, sleep=1)
        self.wait_flag(FY, 4, 36, rd)
        self.stamp(9)
        self.rs4(32)
        a('v_and_or_b32 v32, v32, v7, v156')
        self.expand4(32)
        a('s_mov_b32 exec_hi, 0')
        a('global_store_dwordx4 v153, v[32:35], %s sc1' % sp(pWS))
        a('s_mov_b64 exec, -1')
        a.label(l_noy)
        a('s_cmp_lt_u32 %s, 12' % sI)
        a('s_cbranch_scc1 %s' % fin)
        self.gather8(152, 16, 10)
        a('v_cvt_pk_bf16_f32 v16, v16, v16')
        a('v_and_b32 v16, 0xffff0000, v16')
        a('v_add_f32 v16, v16, v%d' % XS)
        a('v_cvt_pk_bf16_f32 v16, v16, v16')
        a('ds_write_b32 v154, v16 offset:%d' % H_LDS)
        self.set_flag(190, FH)
        self.stamp(11)
        a('v_and_b32 v28, 0xffff0000, v16')
        a('v_mul_f32 v29, v28, v28')
        self.allreduce([28, 29], [17, 18], steps=('x2', 'r4', 'r8', 'p16', 'p32'))
        self.st_local([(155, 28, 0)])
        if 'lateep' not in self.opts:
            a('s_cmp_lg_u32 s2, 96')
            a('s_cbranch_scc1 %s' % fin)
            a('s_mov_b64 exec, 1')
            a('global_store_dword v190, v30, %s offset:%d sc1' % (sp(pWS), EPOCH))
        if 'wb2' in self.opts:
            a('s_cmp_lg_u32 %s, 30' % sI)
            a('s_cbranch_scc1 %s' % fin)
            a('buffer_wbl2 sc1')
        a.label(fin)
        self.end_wave()
        self.flush_cold()

    def load_start(self):
        a = self.a
        a.label('L_load')
        a.reset()
        a('v_mov_b32 v8, -1')
        a('v_lshlrev_b32 v9, 2, v0')
        a('s_mov_b32 exec_hi, 0')
        a('ds_write_b32 v9, v8 offset:%d' % SY)
        a('s_mov_b64 exec, -1')
        a('s_waitcnt lgkmcnt(0)')
        a('s_load_dword %s, %s, %d' % (sTAG, sp(pWS), EPOCH))
        a('s_barrier')
        a('s_branch L_load2')

    def loader(self):
        a = self.a
        self.in_att = False
        a.label('L_load2')
        a.reset()
        self.roles()
        if 'noprio' not in self.opts:
            a('s_setprio 2')
        self.stamp(1)
        a('s_getreg_b32 %s, hwreg(HW_REG_XCC_ID)' % sXCC)
        a('s_and_b32 %s, %s, 0xf' % (sXCC, sXCC))
        a('s_lshl_b32 s44, %s, 10' % sH)
        a('s_lshl_b32 s45, %s, 7' % sJ8)
        a('s_add_u32 s44, s44, s45')
        a('s_add_u32 s44, s44, %d' % XCB)
        a('v_mov_b32 v11, s44')
        a('v_mov_b32 v15, %s' % sXCC)
        a('s_mul_i32 s44, %s, %d' % (sX, 512 * 1280))
        a('s_min_u32 s45, %s, 19' % sI)
        a('s_lshl_b32 s45, s45, 6')
        a('s_add_u32 s45, s44, s45')
        a('v_lshrrev_b32 v8, 2, v0')
        a('v_mul_u32_u24 v8, 1280, v8')
        a('v_and_b32 v9, 3, v0')
        a('v_lshl_add_u32 v8, v9, 4, v8')
        a('v_add_u32 v32, s45, v8')
        a('s_mul_i32 s45, %s, 20480' % sI)
        a('s_add_u32 s44, s44, s45')
        a('v_lshlrev_b32 v8, 6, v0')
        a('v_add_u32 v33, s44, v8')
        a('s_sub_u32 s44, s44, s45')
        a('s_add_u32 s45, %s, %d' % (sI, self.p['nb']))
        a('s_and_b32 s45, s45, 31')
        a('s_mul_i32 s45, s45, 20480')
        a('s_add_u32 s44, s44, s45')
        a('v_add_u32 v35, s44, v8')
        a('s_min_u32 s44, %s, 26' % sU)
        a('s_mul_i32 s44, s44, %d' % INP)
        a('s_mul_i32 s45, %s, %d' % (sX, LOCP))
        a('s_add_u32 s44, s44, s45')
        a('s_add_u32 s44, s44, %d' % (LOCB + L_IN))
        a('v_add_u32 v34, s44, v8')
        a('s_mul_i32 s44, %s, %d' % (sTP, 32 * 3456))
        a('s_mul_i32 s45, %s, 432' % sX)
        a('s_add_u32 s44, s44, s45')
        a('v_mul_u32_u24 v13, 3456, v2')
        a('v_add_u32 v13, s44, v13')
        a('v_lshl_add_u32 v56, v1, 4, v13')
        a('v_min_u32 v8, 10, v1')
        a('v_lshl_add_u32 v57, v8, 4, v13')
        a('v_add_u32 v57, 256, v57')
        a('s_sub_u32 s44, %s, 20' % sI)
        a('s_and_b32 s44, s44, 7')
        a('s_mul_i32 s44, s44, %d' % (32 * 3456))
        a('s_add_u32 s44, s44, s45')
        a('v_lshrrev_b32 v8, 3, v0')
        a('v_mul_u32_u24 v8, 3456, v8')
        a('v_and_b32 v9, 7, v0')
        a('v_lshlrev_b32 v9, 6, v9')
        a('v_min_u32 v9, 428, v9')
        a('v_add3_u32 v58, v8, v9, s44')
        a('s_sub_u32 s44, %s, 14' % sI)
        a('s_cmp_ge_u32 s44, 12')
        a('s_cselect_b32 s46, 12, 0')
        a('s_sub_u32 s44, s44, s46')
        a('s_add_u32 s44, s44, 8')
        a('s_min_u32 s44, s44, 19')
        a('s_mul_i32 s44, s44, %d' % (32 * 3456))
        a('s_add_u32 s44, s44, s45')
        a('v_add3_u32 v59, v8, v9, s44')
        a('s_mov_b64 s[92:93], %s' % sp(pWG))
        a('s_mov_b64 s[94:95], %s' % sp(pWU))
        a('s_mov_b32 s57, %d' % (8 * 3456))
        l_pd = a.newlabel('L_pd')
        a('s_cmp_lt_u32 %s, 28' % sI)
        a('s_cbranch_scc1 %s' % l_pd)
        a('s_mov_b64 s[92:93], %s' % sp(pWD))
        a('s_add_u32 s94, s%d, 4096' % pWD)
        a('s_addc_u32 s95, s%d, 0' % (pWD + 1))
        a('s_mov_b32 s57, 8192')
        a('s_sub_u32 s44, %s, 29' % sI)
        a('s_lshl_b32 s44, s44, 15')
        a('s_cmp_eq_u32 %s, 28' % sI)
        a('s_cselect_b32 s44, %d, s44' % (216 * 1280 - 32768))
        a('s_mul_i32 s45, %s, %d' % (sX, 216 * 1280))
        a('s_add_u32 s44, s44, s45')
        a('v_lshlrev_b32 v8, 6, v0')
        a('v_add_u32 v58, s44, v8')
        a.label(l_pd)
        a('s_min_u32 s44, %s, 26' % sU)
        a('s_lshl_b32 s44, s44, 3')
        a('s_mul_i32 s45, %s, 216' % sX)
        a('s_add_u32 s44, s44, s45')
        a('s_mul_i32 s44, s44, 1280')
        a('v_and_b32 v8, 1, v2')
        a('v_lshlrev_b32 v8, 1, v8')
        a('v_lshrrev_b32 v9, 1, v2')
        a('v_add_u32 v8, v8, v9')
        a('v_mul_u32_u24 v8, 2560, v8')
        a('v_lshl_add_u32 v8, v1, 4, v8')
        a('v_add_u32 v64, s44, v8')
        a('s_lshl_b32 s44, %s, 5' % sB)
        a('s_add_u32 s44, s44, %s' % sH)
        a('s_lshl_b32 s44, s44, 20')
        a('s_lshl_b32 s45, %s, 16' % sJ)
        a('s_add_u32 s44, s44, s45')
        a('s_add_u32 s44, s44, %d' % (3072 * 256))
        a('v_lshlrev_b32 v8, 10, v2')
        a('v_lshl_add_u32 v8, v1, 4, v8')
        if 'vlin' in self.opts:
            a('v_lshlrev_b32 v8, 4, v0')
        a('v_add_u32 v66, s44, v8')
        self.consts()
        a('s_waitcnt lgkmcnt(0)')
        self.tagcalc()
        a('v_mov_b32 v14, %s' % sTAG)
        a('s_mov_b64 exec, 1')
        a('global_store_dwordx2 v11, v[14:15], %s sc1' % sp(pWS))
        a('s_mov_b64 exec, -1')
        self.wait_flag(FV, 4, 16, sleep=1)
        self.stamp(3)
        l_nowo = a.newlabel('L_nowo')
        l_fin = a.newlabel('L_lfin')
        l_nogu = a.newlabel('L_nogu')
        marks = {4 * k1: t for t, (k0, k1) in enumerate(VSTAGES)}

        def fire(mk, donec):
            t = mk.pop(donec)
            self.set_flag(190, FVSA[t])
            if t == 3:
                self.stamp(7)

        def issue(kind, k, aw):
            if kind == 'v':
                a('s_mov_b32 m0, %d' % (V_LDS + 1024 * (4 * k + aw)))
                a('global_load_lds_dwordx4 v65, %s%s' % (sp(pV), self.nt))
            elif kind == 'p':
                a('global_load_dword v%d, v33, %s' % (80 + k, sp(pWO)))
                a('v_add_u32 v33, 4096, v33')
            elif kind == 'q':
                a('global_load_dword v%d, v35, %s' % (91 + k, sp(pWO)))
                a('v_add_u32 v35, 4096, v35')
            elif kind == 't':
                a('global_load_dword v%d, v34, %s offset:%d sc1' % (86 + k, sp(pWS), 1024 * k))
            elif kind == 'd':
                a('global_load_dword v%d, v58, %s' % (70 + k, sp(94 if k & 1 else 92)))
                if k & 1:
                    a('v_add_u32 v58, s57, v58')
            elif kind == 'e':
                a('global_load_dword v%d, v59, %s' % (70 + k, sp(pWU if k & 1 else pWG)))
                if k & 1:
                    a('v_add_u32 v59, %d, v59' % (8 * 3456))
            elif kind == 'w':
                a('s_mov_b32 m0, %d' % (WO_LDS + 1024 * k))
                a('global_load_lds_dwordx4 v32, %s%s' % (sp(pWO), self.nt))
                a('v_add_u32 v32, 20480, v32')
            elif kind == 'g':
                a('s_mov_b32 m0, %d' % (GU_LDS + 1024 * (8 * aw + k)))
                a('global_load_lds_dwordx4 v%d, %s%s' % (56 + (aw & 1), sp(pWU if aw >> 1 else pWG), '' if 'gnb' in self.opts else self.nt))
                if aw == 3:
                    a('v_add_u32 v56, %d, v56' % (4 * 3456))
                    a('v_add_u32 v57, %d, v57' % (4 * 3456))
            elif kind == 'n':
                a('s_mov_b32 m0, %d' % (WD_LDS + 1024 * k))
                a('v_add_u32 v65, %d, v64' % ((k // 5) * 1280 + (k % 5) * 256))
                a('global_load_lds_dwordx4 v65, %s%s' % (sp(pWD), self.nt))

        def stream(seq, mk, base, ld0, pub=False):
            for i, (kind, k, aw) in enumerate(seq):
                i += base
                if kind == 'v':
                    a('v_add_u32 v65, %d, v66' % ((4 * k + aw) * 1024 if 'vlin' in self.opts else aw * 16384 + ((k >> 2) ^ (2 * (aw & 1) if 'par' in self.opts else 0)) * 4096 + (k & 3) * 256))
                ld = ld0 if i >= self.p['v1n'] else self.p['v1d']
                if i >= ld and mk:
                    a('s_waitcnt vmcnt(%d)' % (ld - 1))
                    for donec in sorted(mk):
                        if donec <= i - ld + 1:
                            fire(mk, donec)
                    if not mk and pub:
                        self.wait_flag(FPUB, 1, 16)
                if (kind, k, aw) == ('g', 0, 0):
                    assert not mk
                issue(kind, k, aw)
            return base + len(seq)

        vs = [('v', k, aw) for k in range(16) for aw in range(4)]
        gs = [('g', n, cb) for n in range(8) for cb in range(4)]
        ns = [('n', q, 0) for q in range(10)]
        ex = [('p', i, 0) for i in range(5)] + [('t', 0, 0), ('t', 1, 0)]
        if self.p['nb']:
            ex += [('q', i, 0) for i in range(5)]
        n = stream(vs + ex, marks, 0, self.p['ldepth'])
        a('s_cmp_ge_u32 %s, 20' % sI)
        a('s_cbranch_scc1 %s' % l_nowo)
        mk = dict(marks)
        for donec in sorted(mk):
            a('s_waitcnt vmcnt(%d)' % (n - donec))
            fire(mk, donec)
        self.wait_scores(16)
        a('s_waitcnt vmcnt(%d)' % self.p['wwait'])
        self.stamp(2)
        for q in range(32):
            issue('w', q, 0)
        a('s_waitcnt vmcnt(0)')
        self.set_flag(190, FWO)
        self.stamp(4)
        self.wait_flag(FG1, 4, 16, sleep=1)
        a('s_cmp_lt_u32 %s, 12' % sI)
        a('s_cbranch_scc1 %s' % l_nogu)
        for e in gs:
            issue(*e)
        l_nod = a.newlabel('L_nod')
        a('s_cmp_ge_u32 %s, 27' % sU)
        a('s_cbranch_scc1 %s' % l_nod)
        a.label(l_nogu)
        for e in ns:
            issue(*e)
        a('s_branch %s' % l_fin)
        a.label(l_nod)
        a('s_waitcnt vmcnt(0)')
        a('s_branch %s' % l_fin)
        a.label(l_nowo)
        mk = dict(marks)
        ld2 = self.p['ldepth2']
        for donec in sorted(mk):
            if n - donec >= ld2:
                a('s_waitcnt vmcnt(%d)' % (n - donec))
                fire(mk, donec)
        stream([('d', i, 0) for i in range(8)] + gs + ns, mk, n, ld2, pub=True)
        assert not mk
        if 'gnb' in self.opts:
            for i in range(8):
                issue('e', i, 0)
            a('s_waitcnt vmcnt(18)')
            self.set_flag(190, FGU)
        a.label(l_fin)
        a('s_waitcnt vmcnt(10)')
        self.set_flag(190, FGU)
        self.stamp(5)
        self.down_unit()

    def down_unit(self):
        a = self.a
        fin = a.newlabel('L_dend')
        a('s_cmp_ge_u32 %s, 27' % sU)
        a('s_cbranch_scc1 %s' % fin)
        DW = 96
        A0, A1 = 40, 44
        Gr, Cr, Sr, T = 16, 28, 36, 48
        self.get_mode(8)
        a('s_mul_i32 s45, %s, %d' % (sU, INP))
        a('s_add_u32 s45, s45, %s' % sLOC)
        a('s_add_u32 s45, s45, %d' % L_IN)
        a('v_and_b32 v8, 7, v0')
        a('v_lshrrev_b32 v9, 3, v0')
        a('v_lshlrev_b32 v156, 7, v8')
        a('v_lshl_add_u32 v156, v9, 4, v156')
        a('v_add_u32 v156, s45, v156')
        a('v_lshlrev_b32 v157, 6, v1')
        a('v_lshl_add_u32 v157, v2, 4, v157')
        a('v_add_u32 v157, s45, v157')
        a('v_bfe_u32 v158, v0, 3, 1')
        a('v_lshlrev_b32 v158, 5, v158')
        a('v_lshl_add_u32 v158, v2, 3, v158')
        a('v_add_u32 v158, v158, v8')
        a('v_lshlrev_b32 v158, 4, v158')
        a('v_add_u32 v158, s45, v158')
        a('v_and_b32 v159, 1, v2')
        a('v_lshl_add_u32 v159, v1, 1, v159')
        a('v_lshrrev_b32 v9, 1, v2')
        a('v_lshl_add_u32 v159, v159, 1, v9')
        a('v_lshlrev_b32 v159, 4, v159')
        a('v_add_u32 v159, s45, v159')
        a('v_add_u32 v159, 2048, v159')
        a('v_lshlrev_b32 v150, 4, v0')
        self.prefill(Cr + 4)
        self.prefill(Gr + 8)
        a('v_mov_b32 v%d, 0' % Sr)
        a('v_mov_b32 v%d, 0' % (Sr + 1))
        a('v_mov_b32 v%d, %s' % (Sr + 2, sTAG))
        a('s_mov_b32 s40, 0x000f000f')
        a('s_mov_b32 s41, 0x000f000f')

        def loads():
            a('global_load_dwordx4 %s, v157, %s offset:2560 sc1' % (v4(Cr), sp(pWS)))
            a('s_mov_b64 exec, s[40:41]')
            a('global_load_dwordx4 %s, v157, %s offset:3584 sc1' % (v4(Cr + 4), sp(pWS)))
            a('s_mov_b64 exec, -1')

        def checks():
            self.check4(Cr, T, True)
            self.check4(Cr + 4, T, False, dst=T + 4, last=True)
        self.poll(loads, checks, T, sleep=2)
        self.stamp(8)
        for q in range(10):
            a('ds_read_b128 %s, v150 offset:%d' % (v4(DW + 4 * q), WD_LDS + 1024 * q))
        for r in range(4):
            a('v_add_f32 v%d, v%d, v%d' % (Cr + r, Cr + r, T + 4 + r))
        self.allreduce([Cr, Cr + 1, Cr + 2, Cr + 3], [], steps=('x1', 'x2', 'hm', 'r8'))
        a('s_mov_b32 s40, 0x0f0f0f0f')
        a('s_mov_b32 s41, 0x0f0f0f0f')
        a('s_mov_b32 s46, -1')
        a('s_mov_b32 s47, 0x00000f0f')
        a('s_waitcnt lgkmcnt(0)')

        def loads():
            a('s_mov_b64 exec, s[46:47]')
            a('global_load_dwordx4 %s, v158, %s offset:3840 sc1' % (v4(Sr), sp(pWS)))
            a('s_mov_b64 exec, s[40:41]')
            a('global_load_dwordx4 %s, v156, %s offset:2048 sc1' % (v4(Gr + 8), sp(pWS)))
            a('s_mov_b64 exec, -1')
            for n in range(2):
                a('global_load_dwordx4 %s, v156, %s offset:%d sc1' % (v4(Gr + 4 * n), sp(pWS), 1024 * n))

        def checks():
            self.check4(Gr + 8, T, True, dst=T + 4)
            self.check4(Gr, T, False)
            self.check4(Gr + 4, T, False, last=True)
            self.check1(Sr + 2, T, False)
        self.poll(loads, checks, T)
        self.stamp(12)
        GG = [Gr, Gr + 1, Gr + 2, Gr + 3]
        SS = [Sr, Sr + 1]
        self.allreduce(SS, [], steps=('x1',))
        self.add4(Gr, Gr, Gr + 4)
        self.allreduce(SS, [], steps=('x2',))
        self.add4(Gr, Gr, T + 4)
        self.allreduce(SS, [], steps=('hm',))
        self.allreduce(GG, [], steps=('x1',))
        self.allreduce(SS, [T, T + 1], steps=('p16',))
        self.allreduce(GG, [], steps=('x2',))
        self.allreduce(SS, [T, T + 1], steps=('p32',))
        self.allreduce(GG, [], steps=('hm',))
        a('v_mul_f32 v%d, 0x%x, v%d' % (Sr, f2u(1.0 / 640), Sr))
        a('v_mul_f32 v%d, 0x%x, v%d' % (Sr + 1, f2u(1.0 / 640), Sr + 1))
        a('v_fma_f32 v%d, -v%d, v%d, v%d' % (Sr + 1, Sr, Sr, Sr + 1))
        a('v_max_f32 v%d, 0, v%d' % (Sr + 1, Sr + 1))
        self.ln_finish(Sr, Sr + 1)
        for r in range(4):
            a('v_fma_f32 v%d, -v%d, v%d, v%d' % (Gr + r, Sr, Cr + r, Gr + r))
        for r in range(4):
            a('v_mul_f32 v%d, v%d, v%d' % (Gr + r, Gr + r, Sr + 1))
        a('v_permlane32_swap_b32 v%d, v%d' % (Gr, Gr + 2))
        a('v_permlane32_swap_b32 v%d, v%d' % (Gr + 1, Gr + 3))
        self.bf16_round4(Gr, T)
        a('v_mul_f32 v%d, 0x%x, v%d' % (T + 4, f2u(-LOG2E), T))
        a('v_mul_f32 v%d, 0x%x, v%d' % (T + 5, f2u(-LOG2E), T + 1))
        a('v_exp_f32 v%d, v%d' % (T + 4, T + 4))
        a('v_exp_f32 v%d, v%d' % (T + 5, T + 5))
        a('v_add_f32 v%d, 1.0, v%d' % (T + 4, T + 4))
        a('v_add_f32 v%d, 1.0, v%d' % (T + 5, T + 5))
        a('v_rcp_f32 v%d, v%d' % (T + 4, T + 4))
        a('v_rcp_f32 v%d, v%d' % (T + 5, T + 5))
        a('v_mul_f32 v%d, v%d, v%d' % (T, T, T + 4))
        a('v_mul_f32 v%d, v%d, v%d' % (T + 1, T + 1, T + 5))
        a('v_cvt_pk_bf16_f32 v%d, v%d, v%d' % (T, T, T + 1))
        a('v_and_b32 v%d, 0xffff0000, v%d' % (T + 1, T))
        a('v_lshlrev_b32 v%d, 16, v%d' % (T, T))
        a('v_mul_f32 v%d, v%d, v%d' % (T, T, T + 2))
        a('v_mul_f32 v%d, v%d, v%d' % (T + 1, T + 1, T + 3))
        a('v_cvt_pk_bf16_f32 v%d, v%d, v%d' % (T, T, T))
        a('v_cvt_pk_bf16_f32 v%d, v%d, v%d' % (T + 1, T + 1, T + 1))
        self.sparse(A0, T)
        self.sparse(A1, T + 1)
        DD = 56
        for m in range(5):
            self.mfma(DD + 4 * m, A0, DW + 4 * m, True)
            self.mfma(DD + 4 * m, A1, DW + 20 + 4 * m, False)
        self.st_local([(159, DD + 4 * m, 1024 * m - 2048) for m in range(5)],
                      pre=lambda m: self.tag4(DD + 4 * m, second=True))
        a.label(fin)
        self.end_wave()
        self.flush_cold()

    def att_prep(self):
        a = self.a
        self.consts(12)
        a('v_lshlrev_b32 v176, 4, v2')
        a('v_and_b32 v177, 1, v2')
        a('v_lshl_add_u32 v177, v1, 1, v177')
        a('v_lshlrev_b32 v177, 4, v177')
        a('v_lshrrev_b32 v12, 5, v0')
        a('v_lshl_add_u32 v177, v12, 3, v177')
        a('s_mul_i32 s44, %s, 528' % sAW)
        a('v_add_u32 v177, s44, v177')
        a('v_mov_b32 v178, s44')
        a('v_bfe_u32 v179, v0, 3, 1')
        a('v_lshlrev_b32 v179, 7, v179')
        a('v_lshl_add_u32 v179, v2, 5, v179')
        a('s_lshl_b32 s44, %s, 9' % sAW)
        a('v_lshlrev_b32 v180, 3, v0')
        a('v_add_u32 v180, s44, v180')
        a('v_and_b32 v181, 1, v1')
        a('v_lshlrev_b32 v181, 8, v181')
        a('v_lshl_add_u32 v181, v2, 4, v181')
        a('v_add_u32 v181, s44, v181')
        a('v_lshrrev_b32 v12, 2, v1')
        a('v_lshl_add_u32 v12, v2, 3, v12')
        a('v_lshlrev_b32 v12, 6, v12')
        a('s_lshl_b32 s44, %s, 13' % sAW)
        a('v_add_u32 v12, s44, v12')
        a('v_and_b32 v13, 3, v1')
        a('v_lshl_add_u32 v182, v13, 3, v12')
        a('v_lshl_add_u32 v184, v2, 1, v1')
        a('v_lshlrev_b32 v184, 4, v184')
        a('s_lshl_b32 s44, %s, 8' % sAW)
        a('v_add_u32 v184, s44, v184')
        a('v_lshlrev_b32 v185, 4, v0')
        a('s_lshl_b32 s44, %s, 13' % sAW)
        a('s_add_u32 s44, s44, %d' % GU_LDS)
        a('v_add_u32 v186, s44, v185')
        a('s_lshl_b32 s44, %s, 10' % sAW)
        a('s_add_u32 s44, s44, %d' % V_LDS)
        a('v_add_u32 v187, s44, v185')
        a('v_xor_b32 v12, v1, v2')
        a('v_lshlrev_b32 v13, 8, v1')
        a('v_add_u32 v13, s56, v13')
        for m in range(4):
            a('v_xor_b32 v%d, %d, v12' % (192 + m, 4 * m))
            a('v_lshl_add_u32 v%d, v%d, 4, v13' % (192 + m, 192 + m))

    def att_start(self):
        a = self.a
        a('s_lshl_b32 s44, %s, 5' % sB)
        a('s_add_u32 s44, s44, %s' % sH)
        a('s_lshl_b32 s44, s44, 20')
        a('s_lshl_b32 s45, %s, 16' % sJ)
        a('s_add_u32 s44, s44, s45')
        a('s_lshl_b32 s45, %s, 14' % sAW)
        a('s_add_u32 s44, s44, s45')
        a('s_add_u32 s44, s44, %d' % (3072 * 256))
        if 'par' in self.opts:
            a('s_and_b32 s46, %s, 1' % sAW)
            a('s_lshl_b32 s46, s46, 13')
            a('s_add_u32 s44, s44, s46')
            a('s_lshl_b32 s46, s46, 1')
            a('s_sub_u32 s57, 4096, s46')
        a('v_xor_b32 v12, v1, v2')
        a('v_lshlrev_b32 v13, 8, v2')
        a('v_add_u32 v13, s44, v13')
        for q in range(4):
            a('v_xor_b32 v%d, %d, v12' % (8 + q, 4 * q))
            a('v_lshl_add_u32 v%d, v%d, 4, v13' % (8 + q, 8 + q))
            if q:
                a('v_add_u32 v%d, %d, v%d' % (8 + q, 1024 * q, 8 + q))
        a('s_lshl_b32 s44, %s, 2' % sAW)
        a('v_mov_b32 v191, s44')
        a('s_add_u32 s56, s45, %d' % K_LDS)
        a('s_waitcnt lgkmcnt(0)')
        if 'latek' in self.opts:
            a('s_barrier')
        for idx in range(self.p['depth']):
            self.kload(idx)
        if 'latek' not in self.opts:
            a('s_barrier')
        a('s_branch L_att')

    def kload(self, idx):
        a = self.a
        a('s_add_u32 m0, s56, %d' % (1024 * idx))
        a('global_load_lds_dwordx4 v%d, %s%s' % (8 + (idx & 3), sp(pK), self.nt))
        if idx < 12:
            a('v_add_u32 v%d, %s, v%d' % (8 + (idx & 3), 's57' if 'par' in self.opts and 4 <= idx < 8 else '4096', 8 + (idx & 3)))

    def attention(self):
        a = self.a
        a.label('L_att')
        a.reset()
        self.in_att = True
        KR, VR, QF, S = 16, 80, 144, 160
        a('s_load_dword %s, %s, %d' % (sTAG, sp(pWS), EPOCH))
        self.roles()
        self.att_prep()
        depth, kfree = self.p['depth'], self.p['kfree']
        for idx in range(depth, 16):
            if idx < kfree:
                a('s_waitcnt vmcnt(%d)' % (depth - 1))
            self.kload(idx)
        self.set_flag(191, FV)
        self.stamp(1)
        a('s_waitcnt lgkmcnt(0)')
        self.tagcalc()

        def rd():
            for m in range(4):
                a('ds_read_b128 %s, v176 offset:%d' % (v4(QF + 4 * m), Q_LDS + 64 * m))
        self.wait_flag(FQ, 1, 8, rd, lazy=True)
        self.stamp(2)
        for bb in range(4):
            a('s_waitcnt vmcnt(%d)' % (4 * (3 - bb)))
            for m in range(4):
                a('ds_read_b128 %s, v%d offset:%d' % (v4(KR + 16 * bb + 4 * m), 192 + m, 4096 * bb))
            if bb:
                a('s_waitcnt lgkmcnt(%d)' % (0 if self.stamps else 4))
                for m in range(4):
                    self.mfma(S + 4 * (bb - 1), KR + 16 * (bb - 1) + 4 * m, QF + 4 * m, m == 0)
        a('s_waitcnt lgkmcnt(0)')
        for m in range(4):
            self.mfma(S + 12, KR + 48 + 4 * m, QF + 4 * m, m == 0)
        self.stamp(3)
        sc = f2u(128 ** -0.5)
        for k in range(0, 16, 2):
            a('v_cvt_pk_bf16_f32 v8, v%d, v%d' % (S + k, S + k + 1))
            a('v_and_b32 v9, 0xffff0000, v8')
            a('v_lshlrev_b32 v8, 16, v8')
            a('v_mul_f32 v8, 0x%x, v8' % sc)
            a('v_mul_f32 v9, 0x%x, v9' % sc)
            a('v_cvt_pk_bf16_f32 v8, v8, v9')
            a('v_and_b32 v%d, 0xffff0000, v8' % (S + k + 1))
            a('v_lshlrev_b32 v%d, 16, v8' % (S + k))
        a('v_max3_f32 v8, v%d, v%d, v%d' % (S, S + 1, S + 2))
        a('v_max3_f32 v9, v%d, v%d, v%d' % (S + 3, S + 4, S + 5))
        a('v_max3_f32 v8, v8, v%d, v%d' % (S + 6, S + 7))
        a('v_max3_f32 v9, v9, v%d, v%d' % (S + 8, S + 9))
        a('v_max3_f32 v8, v8, v%d, v%d' % (S + 10, S + 11))
        a('v_max3_f32 v9, v9, v%d, v%d' % (S + 12, S + 13))
        a('v_max3_f32 v8, v8, v%d, v%d' % (S + 14, S + 15))
        a('v_max_f32 v8, v8, v9')
        self.allreduce([8], [9], op='max', steps=('p16', 'p32'))
        a('ds_write_b32 v191, v8 offset:%d' % MX)

        def loads():
            a('ds_read_b128 v[16:19], v190 offset:%d' % MX)

        def checks():
            a('v_or3_b32 v8, v16, v17, v18')
            a('v_or_b32 v8, v8, v19')
            a('v_and_b32 v8, 1, v8')
        self.poll(loads, checks, 8, wait='lgkmcnt(0)')
        a('v_max3_f32 v8, v16, v17, v18')
        a('v_max_f32 v8, v8, v19')
        for k in range(16):
            a('v_sub_f32 v%d, v%d, v8' % (S + k, S + k))
        for k in range(16):
            a('v_mul_f32 v%d, 0x%x, v%d' % (S + k, f2u(LOG2E), S + k))
        for k in range(16):
            a('v_exp_f32 v%d, v%d' % (S + k, S + k))
        a('v_add_f32 v9, v%d, v%d' % (S, S + 1))
        a('v_add_f32 v10, v%d, v%d' % (S + 2, S + 3))
        for k in range(4, 16, 2):
            a('v_add_f32 v9, v9, v%d' % (S + k))
            a('v_add_f32 v10, v10, v%d' % (S + k + 1))
        a('v_add_f32 v9, v9, v10')
        self.allreduce([9], [10], steps=('p16', 'p32'))
        a('v_mul_f32 v8, 0x3e800000, v8')
        a('v_mov_b32 v10, 0')
        a('v_mov_b32 v11, 0')
        a('s_mov_b64 exec, 1')
        a('ds_write_b128 v178, v[8:11] offset:%d' % (OW_LDS + 512))
        a('s_mov_b64 exec, -1')
        O = 144
        for k in range(16):
            a('v_cvt_pk_bf16_f32 v12, v%d, v%d' % (S + k, S + k))
            a('v_and_b32 v12, 0xffff0000, v12')
            a('v_sub_f32 v12, v%d, v12' % (S + k))
            a('v_cndmask_b32 v12, v%d, v12, %s' % (S + k, HIROWS))
            a('v_cvt_pk_bf16_f32 v12, v12, v12')
            self.sparse(KR + 4 * k, 12)
        self.stamp(4)
        for t, (k0, k1) in enumerate(VSTAGES):
            def rd():
                for k in range(k0, k1):
                    a('ds_read_b128 %s, v187 offset:%d' % (v4(VR + 4 * k), 4096 * k))
            self.wait_flag(FVSA[t], 1, 8, rd, lazy=(t < 3))
            for k in range(k0, k1):
                self.mfma(O, KR + 4 * k, VR + 4 * k, k == 0)
            if t == 1:
                self.get_mode(8)
                a('s_mul_i32 s44, %s, 640' % sAW)
                a('s_add_u32 s44, s44, %s' % sLOC)
                a('s_add_u32 s44, s44, 3840')
                a('v_lshrrev_b32 v8, 5, v0')
                a('v_mul_u32_u24 v8, 10240, v8')
                a('v_add_u32 v8, s44, v8')
                a('v_and_b32 v9, 31, v0')
                a('v_lshl_add_u32 v12, v9, 4, v8')
                a('v_and_b32 v9, 3, v0')
                a('v_mul_u32_u24 v9, 2560, v9')
                a('v_add_u32 v13, v9, v8')
        self.stamp(5)
        a('v_permlane32_swap_b32 v%d, v%d' % (O, O + 2))
        a('v_permlane32_swap_b32 v%d, v%d' % (O + 1, O + 3))
        a('v_add_f32 v%d, v%d, v%d' % (O, O, O + 2))
        a('v_add_f32 v%d, v%d, v%d' % (O + 1, O + 1, O + 3))
        a('ds_write_b64 v177, %s offset:%d' % (v2(O), OW_LDS))
        self.set_flag(191, FO)
        l_now = a.newlabel('L_anow')
        l_end = a.newlabel('L_aend')
        a('s_cmp_ge_u32 %s, 20' % sI)
        a('s_cbranch_scc1 %s' % l_now)
        G = 104
        OF, WF0, WF1 = 48, 64, 80

        def loads():
            a('global_load_dwordx4 %s, v13, %s offset:%d sc1' % (v4(G + 16), sp(pWS), 512 - 3840))
            for j in range(4):
                a('global_load_dwordx4 %s, v12, %s offset:%d sc1' % (v4(G + 4 * j), sp(pWS), j * 2560 - 3840))

        def rdw():
            for ks in range(4):
                for hf in range(2):
                    off = WO_LDS + (32 * ks + 4 * hf) * 64
                    a('ds_read_b64_tr_b16 %s, v182 offset:%d' % (v2(WF0 + 4 * ks + 2 * hf), off))
                    a('ds_read_b64_tr_b16 %s, v182 offset:%d' % (v2(WF1 + 4 * ks + 2 * hf), off + 32))

        def checks():
            for k in range(5):
                self.check4(G + 4 * k, 40, k == 0, last=(k == 4))
        self.poll(loads, checks, 40)
        self.set_flag(191, FG1)
        a('ds_read_b32 v42, v190 offset:%d' % FWO)
        rdw()
        self.stamp(6)
        a('v_max_f32_dpp v41, v%d, v%d quad_perm:[1,0,3,2] %s' % (G + 16, G + 16, DPPM))
        self.allreduce([41], [], op='max', steps=('x2',))
        a('v_sub_f32 v40, v%d, v41' % (G + 16))
        a('v_mul_f32 v40, 0x%x, v40' % f2u(LOG2E))
        a('v_exp_f32 v40, v40')
        a('v_mul_f32 v41, v40, v%d' % (G + 17))
        self.allreduce([41], [], steps=('x1', 'x2'))
        a('v_rcp_f32 v41, v41')
        a('v_mul_f32 v40, v40, v41')
        for r in range(4):
            a('v_mul_f32_dpp v%d, v40, v%d quad_perm:[0,0,0,0] %s' % (8 + r, G + r, DPPM))
        for j in range(1, 4):
            for r in range(4):
                a('v_fmac_f32_dpp v%d, v40, v%d quad_perm:[%d,%d,%d,%d] %s' % (8 + r, G + 4 * j + r, j, j, j, j, DPPM))
        a('v_cvt_pk_bf16_f32 v8, v8, v9')
        a('v_cvt_pk_bf16_f32 v9, v10, v11')
        a('ds_write_b64 v180, v[8:9] offset:%d' % O2_LDS)
        for ks in range(4):
            a('ds_read_b128 %s, v181 offset:%d' % (v4(OF + 4 * ks), O2_LDS + 64 * ks))
        a('s_mov_b32 s46, 0x00030003')
        a('s_mov_b32 s47, 0x00030003')
        a('s_waitcnt lgkmcnt(0)')
        l_have = a.newlabel('L_havew')
        l_late = a.newlabel('L_latew')
        a('v_cmp_ne_u32 vcc, 0, v42')
        a('s_cbranch_vccnz %s' % l_late)
        a.label(l_have)

        def cold():
            a.label(l_late)
            self.wait_flag(FWO, 1, 10, rdw)
            a('s_branch %s' % l_have)
        self.cold.append(cold)
        self.stamp(7)
        D0, D1 = 96, 100
        for ks in range(4):
            self.mfma(D0, WF0 + 4 * ks, OF + 4 * ks, ks == 0)
            self.mfma(D1, WF1 + 4 * ks, OF + 4 * ks, ks == 0)
        a('s_mov_b64 exec, s[46:47]')
        a('ds_write_b128 v184, %s offset:%d' % (v4(D0), YW_LDS))
        a('ds_write_b128 v184, %s offset:%d' % (v4(D1), YW_LDS + 128))
        self.set_flag(191, FY)
        a('s_mov_b64 exec, -1')
        self.stamp(8)
        a.label(l_now)
        a('s_cmp_lt_u32 %s, 12' % sI)
        a('s_cbranch_scc1 %s' % l_end)
        a('s_and_b32 s44, %s, 1' % sAW)
        a('s_lshl_b32 s44, s44, 4')
        a('v_add_u32 v9, s44, v1')
        a('v_cmp_gt_u32 s[40:41], 27, v9')
        a('v_min_u32 v9, 26, v9')
        a('s_and_b32 s44, %s, 2' % sAW)
        a('v_mov_b32 v8, s44')
        a('v_mul_u32_u24 v9, %d, v9' % INP)
        a('s_add_u32 s44, %s, %d' % (sLOC, L_IN))
        a('v_add_u32 v9, s44, v9')
        a('v_and_b32 v10, 1, v2')
        a('v_add_u32 v8, v8, v10')
        a('s_lshl_b32 s44, %s, 6' % sTP)
        a('v_lshl_add_u32 v13, v8, 4, v9')
        a('v_add_u32 v13, s44, v13')
        a('v_lshrrev_b32 v10, 1, v2')
        a('v_lshl_add_u32 v8, v8, 1, v10')
        a('v_lshl_add_u32 v12, v8, 4, v9')
        a('s_lshl_b32 s44, %s, 7' % sTP)
        a('v_add_u32 v12, s44, v12')
        GU, A0, A1 = 16, 48, 52
        a('v_mov_b32 v56, 0x3f803f80')
        self.sparse(A0, 56)

        def rd():
            for n in range(8):
                a('ds_read_b128 %s, v186 offset:%d' % (v4(GU + 4 * n), 1024 * n))
        self.wait_flag(FGU, 1, 8, rd, lazy=True)
        D = 60
        for n in range(8):
            self.mfma(D, A0, GU + 4 * n, n == 0)
        a('s_mov_b32 s46, s40')
        a('s_mov_b32 s47, 0')
        self.tag4(D)
        a('s_mov_b64 exec, s[46:47]')
        self.st_local([(13, D, 2560)])
        a('s_mov_b64 exec, -1')
        self.stamp(9)
        HD = 64

        def rd():
            a('ds_read_b128 %s, v179 offset:%d' % (v4(HD), H_LDS))
            a('ds_read_b128 %s, v179 offset:%d' % (v4(HD + 4), H_LDS + 16))
        self.wait_flag(FH, 1, 8, rd)
        self.stamp(10)
        D = 72
        self.sparse(A0, HD)
        for n in range(8):
            if n < 7:
                self.sparse(A1 if n % 2 == 0 else A0, HD + n + 1)
            self.mfma(D, A0 if n % 2 == 0 else A1, GU + 4 * n, n == 0)
        a('s_mov_b64 exec, s[40:41]')
        self.tag4(D)
        self.st_local([(12, D, 0)])
        a('s_mov_b64 exec, -1')
        self.stamp(11)
        a('s_cmp_lg_u32 %s, 0' % sAW)
        a('s_cbranch_scc1 %s' % l_end)
        a('s_lshl_b32 s44, %s, 8' % sTP)
        a('s_add_u32 s44, s44, %s' % sLOC)
        a('s_add_u32 s44, s44, %d' % L_IN)
        a('v_lshlrev_b32 v8, 4, v1')
        a('v_mul_u32_u24 v9, %d, v2' % INP)
        a('v_add3_u32 v80, v8, v9, s44')
        for n in range(1, 7):
            a('v_add_u32 v%d, %d, v80' % (80 + n, 4 * INP * n))
        self.slot('s44', sTP, FP)
        a('s_lshl_b32 s45, %s, 8' % sX)
        a('s_add_u32 s45, s45, s44')
        a('v_lshl_add_u32 v89, v2, 13, v8')
        a('v_add_u32 v89, s45, v89')
        if not ({'meas', 'meas2'} & self.opts):
            self.near_copy('s45')
            a('s_add_u32 s44, s44, s45')
            a('v_add_u32 v88, s44, v185')
        else:
            a('ds_read_b32 v88, v190 offset:%d' % NEAR)
            a('s_waitcnt lgkmcnt(0)')
            a('v_and_b32 v88, 8192, v88')
            a('v_add3_u32 v88, v88, s44, v185')
        if 'fpt' in self.opts:
            l_nt = a.newlabel('L_nt')
            a('s_bfe_u32 s44, %s, %d' % (sTP, 0x30000 + self.p['fsh']))
            a('s_cmp_lg_u32 s44, %s' % sX)
            a('s_cbranch_scc1 %s' % l_nt)
            a('global_load_dwordx4 v[96:99], v88, %s sc1' % sp(pWS))
            a('global_load_dwordx4 v[100:103], v88, %s offset:1024 sc1' % sp(pWS))
            a.label(l_nt)
        self.slice_off(90, 8)
        if 'outt' in self.opts:
            a('global_load_ushort v104, v90, %s' % sp(pOUT))
        self.h_addr(91, 8)
        a('ds_read_b32 v92, v91 offset:%d' % H_LDS)
        self.rowtag(93)
        G = 16
        self.prefill(G + 24, second=True)
        a('s_mov_b32 s46, -1')
        a('s_mov_b32 s47, 0xffff')
        a('s_waitcnt lgkmcnt(0)')
        a('v_and_b32 v92, 0xffff0000, v92')

        def loads():
            for n in range(6):
                a('global_load_dwordx4 %s, v%d, %s sc1' % (v4(G + 4 * n), 80 + n, sp(pWS)))
            a('s_mov_b64 exec, s[46:47]')
            a('global_load_dwordx4 %s, v86, %s sc1' % (v4(G + 24), sp(pWS)))
            a('s_mov_b64 exec, -1')

        def checks():
            for k in range(6):
                self.check4(G + 4 * k, 44, k == 0, second=True)
            self.check4(G + 24, 44, False, second=True, dst=52, last=True)
        self.poll(loads, checks, 44)
        self.stamp(12)
        self.add4(G, G, G + 4)
        self.add4(G + 8, G + 8, G + 12)
        self.add4(G + 16, G + 16, G + 20)
        self.add4(G, G, G + 8)
        self.add4(G + 16, G + 16, 52)
        self.add4(48, G, G + 16)
        self.rs4(48)
        a('v_and_or_b32 v48, v48, v7, v93')
        self.expand4(48)
        a('s_mov_b32 exec_hi, 0')
        a('global_store_dwordx4 v89, v[48:51], %s sc1' % sp(pWS))
        a('s_mov_b64 exec, -1')
        self.stamp(13)
        a('s_bfe_u32 s44, %s, %d' % (sTP, 0x30000 + self.p['fsh']))
        a('s_cmp_lg_u32 s44, %s' % sX)
        if 'wb1' in self.opts:
            l_wb = a.newlabel('L_wb')
            a('s_cbranch_scc1 %s' % l_wb)

            def cold():
                a.label(l_wb)
                a('s_cmp_lg_u32 %s, 31' % sI)
                a('s_cbranch_scc1 %s' % l_end)
                a('buffer_wbl2 sc1')
                a('s_branch %s' % l_end)
            self.cold.append(cold)
        else:
            a('s_cbranch_scc1 %s' % l_end)
        self.gather8(88, 16, 14)
        a('v_cvt_pk_bf16_f32 v16, v16, v16')
        a('v_and_b32 v16, 0xffff0000, v16')
        a('v_add_f32 v16, v16, v92')
        a('v_cvt_pk_bf16_f32 v16, v16, v16')
        a('global_store_short v90, v16, %s%s' % (sp(pOUT), ' sc1' if 'outsc' in self.opts else (' nt' if 'outnt' in self.opts else '')))
        if 'lateep' in self.opts or 'probe' in self.opts:
            a('s_cmp_lg_u32 s2, 96')
            a('s_cbranch_scc1 %s' % l_end)
        if 'lateep' in self.opts:
            a('s_mov_b64 exec, 1')
            a('v_mov_b32 v60, %s' % sTAG)
            a('global_store_dword v190, v60, %s offset:%d sc1' % (sp(pWS), EPOCH))
        if 'probe' in self.opts:
            lp = a.newlabel('L_probe')
            a('s_add_u32 s92, s92, 4000')
            a.label(lp)
            a('s_memrealtime s[94:95]')
            a('s_waitcnt lgkmcnt(0)')
            a('s_sub_u32 s44, s94, s92')
            a('s_cmp_lt_i32 s44, 0')
            a('s_cbranch_scc1 %s' % lp)
        a.label(l_end)
        self.end_wave()
        self.flush_cold()

    def build(self):
        a = self.a
        global VSTAGES
        if 'vs1' in self.opts:
            VSTAGES = [(0, 6), (6, 11), (11, 14), (14, 16)]
        if 'vs2' in self.opts:
            VSTAGES = [(0, 8), (8, 13), (13, 15), (15, 16)]
        hdr = open('cdna_kernels/%s.s.ref' % NAME).read().split('\n')
        top = []
        for ln in hdr:
            if ln.startswith('; @launch'):
                top.append('; @launch grid=(256,1,1) block=(%d,1,1) lds=%d' % (64 * NWAVES, LDS_BYTES))
                break
            top.append(ln)
        out = '\n'.join(top) + '\n'
        out += """; ---------------------------------------------------------------------------------------------
;   wave 0  LN(x), partial q, hand-offs        waves 1-4  QK / softmax / PV, wo and gate/up tiles
; ---------------------------------------------------------------------------------------------
"""
        out += '.amdgcn_target "amdgcn-amd-amdhsa--gfx950"\n.text\n.globl %s_kernel\n.p2align 8\n' % NAME
        out += '.type %s_kernel,@function\n%s_kernel:\n' % (NAME, NAME)
        self.prologue()
        self.att_start()
        self.load_start()
        self.comm()
        self.attention()
        self.loader()
        a.label('L_exit')
        a('s_endpgm')
        out += a.text()
        out += '''.section .rodata,"a"
.p2align 6
.amdhsa_kernel %s_kernel
  .amdhsa_next_free_vgpr 208
  .amdhsa_next_free_sgpr 102
  .amdhsa_accum_offset 208
  .amdhsa_group_segment_fixed_size 0
  .amdhsa_kernarg_size 96
  .amdhsa_user_sgpr_count 2
  .amdhsa_user_sgpr_kernarg_segment_ptr 1
  .amdhsa_system_sgpr_workgroup_id_x 1
  .amdhsa_float_denorm_mode_32 3
.end_amdhsa_kernel
''' % NAME
        return out


if __name__ == '__main__':
    open(sys.argv[1], 'w').write(Gen(opts=sys.argv[2:]).build())
```
